```python
import torch

def _softmax(x, axis=-1):
    return torch.softmax(x, dim=axis)
def _gelu(x):
    return torch.nn.functional.gelu(x, approximate="tanh")
def _silu(x):
    return torch.nn.functional.silu(x)
def _sigmoid(x):
    return torch.sigmoid(x)
def _layernorm(x, axis=-1, eps=1e-5):
    m = x.mean(dim=axis, keepdim=True)
    v = x.var(dim=axis, keepdim=True, unbiased=False)
    return (x - m) / torch.sqrt(v + eps)
def _scatter_add(tgt, idx, src, axis=0):
    return tgt.clone().index_add_(axis, idx, src)
def _segment_sum(src, seg, n):
    out = torch.zeros((n,) + src.shape[1:], dtype=src.dtype)
    return out.index_add_(0, seg, src)
def _pad(x, pw):
    flat = tuple(v for pair in reversed(pw) for v in pair)
    return torch.nn.functional.pad(x, flat)

kernel_name = 'sequential_preLN__linear_attn_block__swiglu_ffn__prompt'

def setup_inputs():

    _w = (lambda a: (lambda t: t.to(torch.bfloat16) if t.is_floating_point() else t)(torch.as_tensor(a)))
    def _A_setup():
        B, S, D = 1, 2048, 448
        return {
            "x": _w((lambda *s: torch.randn(*s, dtype=torch.bfloat16) * 0.05)(B, S, D)),
            "wqkv": _w((lambda *s: torch.randn(*s, dtype=torch.bfloat16) * 0.1)(D, 3 * D)),
            "wo": _w((lambda *s: torch.randn(*s, dtype=torch.bfloat16) * 0.05)(D, D)),
        }
    _A_in = _A_setup()

    def _B_setup():
        B, S, D, F = 1, 2048, 448, 1792
        return {
            "x": _w((lambda *s: torch.randn(*s, dtype=torch.bfloat16) * 0.05)(B, S, D)),
            "w_gate": _w((lambda *s: torch.randn(*s, dtype=torch.bfloat16) * 0.05)(D, F)),
            "w_up": _w((lambda *s: torch.randn(*s, dtype=torch.bfloat16) * 0.05)(D, F)),
            "w_down": _w((lambda *s: torch.randn(*s, dtype=torch.bfloat16) * 0.05)(F, D)),
        }
    _B_in = _B_setup()

    return {
        "A_x": _A_in["x"],
        "A_wqkv": _A_in["wqkv"],
        "A_wo": _A_in["wo"],
        "B_x": _B_in["x"],
        "B_w_gate": _B_in["w_gate"],
        "B_w_up": _B_in["w_up"],
        "B_w_down": _B_in["w_down"],
    }

def reference(A_x, A_wqkv, A_wo, B_x, B_w_gate, B_w_up, B_w_down):
    def _A_ref(x, wqkv, wo):
        B, S, D = x.shape
        H = 16; Dh = D // H
        qkv = (lambda x, *d: x.permute(*d))((x @ wqkv).reshape(B, S, 3, H, Dh), 2, 0, 3, 1, 4)
        q, k, v = qkv[0], qkv[1], qkv[2]
        phi = lambda t: torch.where(t > 0, t + 1, torch.exp(t)) + 1e-6
        pq, pk = phi(q), phi(k)
        kv = torch.einsum("bhsd,bhse->bhde", pk, v)
        z = torch.einsum("bhsd->bhd", pk)
        num = torch.einsum("bhqd,bhde->bhqe", pq, kv)
        den = torch.einsum("bhqd,bhd->bhq", pq, z)[..., None] + 1e-6
        o = num / den
        return (lambda x, *d: x.permute(*d))(o, 0, 2, 1, 3).reshape(B, S, D) @ wo

    def _B_ref(x, w_gate, w_up, w_down):
        g = _silu(x @ w_gate)
        u = x @ w_up
        return (g * u) @ w_down

    x = A_x
    h = x + _A_ref(_layernorm(x, axis=-1), A_wqkv, A_wo)
    h2 = h + _B_ref(_layernorm(h, axis=-1), B_w_gate, B_w_up, B_w_down)
    return h2
```

```python
import sys
sys.path.insert(0, "dev")
from layouts import *
import struct

def f2u(x): return struct.unpack("<I", struct.pack("<f", x))[0]
LOG2E = f2u(1.4426950408889634)
EPS_PHI = f2u(1e-6)
EPS_LN = f2u(1e-5)
INV_D = f2u(1.0/448.0)
ONES_BF = 0x3F803F80

class K:
    def __init__(self, name):
        self.name = name; self.lines = []; self.vm = []; self.uid = 0
    def e(self, s):
        for l in s.strip().split("\n"):
            self.lines.append("    " + l.strip())
    def label(self, l): self.lines.append(f"{l}:")
    def L(self, s): return f"L{self.name}_{s}"
    def vop(self, s, tag):
        self.e(s); self.vm.append(tag)
    def wait_vm(self, tag, extra=""):
        idx = max(i for i, t in enumerate(self.vm) if t == tag)
        n = len(self.vm) - 1 - idx
        assert n <= 63
        self.e(f"s_waitcnt vmcnt({n}) {extra}".strip())
    def nop(self, n):
        while n > 0:
            k = min(n, 16); self.e(f"s_nop {k-1}"); n -= k

def vr(b, n): return f"v[{b}:{b+n-1}]"

def srd_consts(k, base, nbytes):
    k.e(f"s_mov_b32 s{base+2}, {nbytes}")
    k.e(f"s_mov_b32 s{base+3}, 0x20000")

def phi_ops(k, dst, acc, rstd, t1, t2, s_eps):
    k.e(f"v_fma_f32 v{t1}, v{acc}, v{rstd}, s{s_eps}")
    k.e(f"v_mul_f32 v{t2}, 0x{LOG2E:x}, v{t1}")
    k.e(f"v_min_f32 v{t2}, 0, v{t2}")
    k.e(f"v_exp_f32 v{t2}, v{t2}")
    k.e(f"v_max_f32 v{t1}, s{s_eps}, v{t1}")
    k.e(f"v_add_f32 v{dst}, v{t1}, v{t2}")

def hilo_w(k, fr, p, t):
    k.e(f"v_cvt_pk_bf16_f32 v{fr+1}, v{p}, 0")
    k.e(f"v_mov_b32 v{fr+2}, 0")
    k.e(f"v_lshlrev_b32 v{t}, 16, v{fr+1}")
    k.e(f"v_sub_f32 v{t}, v{p}, v{t}")
    k.e(f"v_mov_b32 v{fr+3}, 0")
    k.e(f"v_cvt_pk_bf16_f32 v{fr}, v{p}, v{t}")

def hilo_x(k, fr, nm, t):
    k.e(f"v_cvt_pk_bf16_f32 v{fr}, v{nm}, v{nm}")
    k.e(f"v_and_b32 v{t}, 0xffff0000, v{fr}")
    k.e(f"v_sub_f32 v{t}, v{nm}, v{t}")
    k.e(f"v_cvt_pk_bf16_f32 v{fr+1}, v{t}, 0")

def gen_a():
    k = K("ka")
    SX, SW, SWS, SDB = 4, 8, 12, 16
    sW, sRB, sH, sx, skv, sq, sT, sT2, sEPS, sONE = 20, 21, 22, 23, 24, 25, 26, 27, 28, 29
    SLOT = 24576
    MISC = 6*SLOT
    WQ1, WQ2 = 0, 2*SLOT
    C6SLOT = 1
    PART = 3*SLOT
    k.e(f"""
    s_cmp_ge_u32 s2, 256
    s_cbranch_scc1 {k.L('end')}
    s_load_dwordx2 s[{SX}:{SX+1}], s[0:1], 0
    s_load_dwordx2 s[{SW}:{SW+1}], s[0:1], 8
    s_load_dwordx2 s[{SDB}:{SDB+1}], s[0:1], 64
    s_load_dwordx2 s[{SWS}:{SWS+1}], s[0:1], 72
    v_lshrrev_b32 v5, 6, v0
    v_lshrrev_b32 v6, 3, v0
    v_readfirstlane_b32 s{sW}, v5
    v_and_b32 v7, 0x38, v6
    v_add_u32 v7, v6, v7
    v_and_b32 v8, 7, v0
    v_bfe_u32 v9, v0, 4, 2
    v_xor_b32 v9, v8, v9
    v_mul_u32_u24 v1, 896, v7
    v_lshl_add_u32 v1, v9, 4, v1
    v_xor_b32 v2, 64, v1
    v_add_u32 v2, 6144, v2
    v_bfe_u32 v9, v0, 4, 1
    v_lshlrev_b32 v9, 2, v9
    v_xor_b32 v9, v8, v9
    v_mul_u32_u24 v3, 2688, v6
    v_and_b32 v8, 3, v9
    v_lshl_add_u32 v3, v8, 4, v3
    v_lshrrev_b32 v9, 2, v9
    v_mul_u32_u24 v9, 896, v9
    v_add_u32 v3, v3, v9
    s_and_b32 s{sT}, s2, 7
    s_lshr_b32 s{sT2}, s2, 3
    s_lshr_b32 s{sRB}, s{sT}, 1
    s_lshl_b32 s{sRB}, s{sRB}, 2
    s_lshr_b32 s{sH}, s{sT2}, 3
    s_add_u32 s{sRB}, s{sRB}, s{sH}
    s_and_b32 s{sH}, s{sT}, 1
    s_lshl_b32 s{sH}, s{sH}, 3
    s_and_b32 s{sT2}, s{sT2}, 7
    s_add_u32 s{sH}, s{sH}, s{sT2}
    s_mul_i32 s{sx}, s{sRB}, {128*896}
    s_mul_i32 s{sq}, s{sH}, 56
    s_add_u32 s{skv}, s{sq}, 896
    s_mul_i32 m0, s{sW}, 3072
    """)
    srd_consts(k, SX, S*D*2)
    srd_consts(k, SW, D*3*D*2 + 2048)
    srd_consts(k, SWS, WS_USED)
    srd_consts(k, SDB, 256)
    k.e(f"""
    s_mov_b32 s{sEPS}, 0x{EPS_PHI:x}
    s_mov_b32 s{sONE}, 0x{ONES_BF:x}
    s_waitcnt lgkmcnt(0)
    s_sub_u32 s{SW}, s{SW}, 2048
    s_subb_u32 s{SW+1}, s{SW+1}, 0
    """)
    k.e(f"""
    s_cmp_lg_u32 s{sRB}, 0
    s_cbranch_scc1 {k.L('nozero')}
    s_cmp_lt_u32 s{sW}, 4
    s_cbranch_scc1 {k.L('nozero')}
    v_mov_b32 v12, 0
    v_mov_b32 v13, 0
    v_mov_b32 v14, 0
    v_mov_b32 v15, 0
    v_and_b32 v10, 255, v0
    v_lshlrev_b32 v10, 4, v10
    s_lshl_b32 s{sT}, s{sH}, 12
    buffer_store_dwordx4 v[12:15], v10, s[{SWS}:{SWS+3}], s{sT} offen sc1
    """)
    k.label(k.L('nozero'))
    def issue_chunk(c):
        k.vop(f"buffer_load_dwordx4 v1, s[{SX}:{SX+3}], s{sx} offen lds", f"c{c}")
        k.vop(f"buffer_load_dwordx4 v2, s[{SX}:{SX+3}], s{sx} offen offset:1024 lds", f"c{c}")
        k.vop(f"buffer_load_dwordx4 v3, s[{SW}:{SW+3}], s{skv} offen offset:2048 lds", f"c{c}")
    for c in range(6):
        issue_chunk(c)
        if c < 5:
            k.e(f"s_add_u32 m0, m0, {SLOT}")
        k.e(f"s_add_u32 s{sx}, s{sx}, 128")
        k.e(f"s_add_u32 s{skv}, s{skv}, {64*2688}")
    k.e(f"""
    v_bfe_u32 v8, v0, 2, 4
    v_mul_u32_u24 v4, 2688, v8
    v_and_b32 v8, 3, v0
    v_lshl_add_u32 v4, v8, 4, v4
    s_mul_i32 s{sT}, s{sW}, {32*2688}
    s_add_u32 s{sq}, s{sq}, s{sT}
    s_add_u32 s{sq}, s{sq}, 2048
    """)
    def late(c):
        if c == 2:
            k.e(f"s_lshl_b32 s{sT}, s{sW}, 11")
            k.e(f"s_add_u32 m0, s{sT}, {WQ1}")
            k.e(f"s_add_u32 s{sT2}, s{sq}, {16*2688-1024}")
            k.vop(f"buffer_load_dwordx4 v4, s[{SW}:{SW+3}], s{sq} offen lds", "wq1")
            k.vop(f"buffer_load_dwordx4 v4, s[{SW}:{SW+3}], s{sT2} offen offset:1024 lds", "wq1")
        if c == 3:
            k.e(f"s_mul_i32 s{sT}, s{sW}, 3072")
            k.e(f"s_add_u32 m0, s{sT}, {C6SLOT*SLOT}")
            k.e("s_nop 0")
            issue_chunk(6)
        if c == 4:
            k.e(f"s_lshl_b32 s{sT}, s{sW}, 11")
            k.e(f"s_add_u32 m0, s{sT}, {WQ2}")
            k.e(f"s_add_u32 s{sq}, s{sq}, {256*2688}")
            k.e(f"s_add_u32 s{sT2}, s{sq}, {16*2688-1024}")
            k.vop(f"buffer_load_dwordx4 v4, s[{SW}:{SW+3}], s{sq} offen lds", "wq2")
            k.vop(f"buffer_load_dwordx4 v4, s[{SW}:{SW+3}], s{sT2} offen offset:1024 lds", "wq2")
    slot_of = [0, 1, 2, 3, 4, 5, C6SLOT]
    AX = 172
    k.e(f"""
    v_and_b32 v8, 31, v0
    v_bfe_u32 v9, v0, 5, 1
    v_bfe_u32 v10, v0, 6, 2
    v_lshrrev_b32 v11, 4, v8
    v_lshl_add_u32 v10, v10, 1, v11
    v_mul_u32_u24 v10, 3072, v10
    v_and_b32 v11, 15, v8
    v_lshl_add_u32 v10, v11, 7, v10
    v_bfe_u32 v11, v8, 1, 3
    v_xor_b32 v11, v11, v9
    """)
    for kk in range(4):
        k.e(f"v_xor_b32 v12, {2*kk}, v11")
        k.e(f"v_lshl_add_u32 v{AX+kk}, v12, 4, v10")
    k.e(f"""
    s_cmp_ge_u32 s{sW}, 4
    s_cbranch_scc1 {k.L('q')}
    """)
    vm_split = list(k.vm)
    ACK, ACV = 16, 32
    BUF = [48, 60]
    AWK, AWV = 76, 77
    CSK, CSV = 78, 80
    RSTD, XE, WEK, WEV = 84, 100, 104, 108
    PKF, VF, KVA, T = 112, 120, 128, 144
    k.e(f"""
    v_mul_u32_u24 v10, 3072, v9
    v_bfe_u32 v11, v0, 2, 2
    v_lshl_add_u32 v10, v11, 7, v10
    v_bfe_u32 v12, v0, 4, 1
    v_lshl_add_u32 v10, v12, 5, v10
    v_and_b32 v12, 3, v0
    v_lshl_add_u32 v10, v12, 3, v10
    v_lshrrev_b32 v11, 1, v11
    v_lshl_add_u32 v10, v11, 6, v10
    v_add_u32 v{AWK}, 2048, v10
    v_xor_b32 v{AWV}, 64, v{AWK}
    v_mov_b32 v{CSK}, 0
    v_mov_b32 v{CSK+1}, 0
    v_mov_b32 v{CSV}, 0
    v_mov_b32 v{CSV+1}, 0
    """)
    cur_base = 0
    def rebase(regs, slot, cur):
        want = (slot // 2) * 2 * SLOT
        if want != cur:
            d = want - cur
            for r in regs:
                if d > 0: k.e(f"v_add_u32 v{r}, {d}, v{r}")
                else: k.e(f"v_subrev_u32 v{r}, {-d}, v{r}")
        return want
    def kv_reads(slot, kk, b):
        o = slot*SLOT - cur_base
        k.e(f"ds_read_b128 {vr(BUF[b],4)}, v{AX+kk} offset:{o}")
        for ri in range(2):
            k.e(f"ds_read_b64_tr_b16 {vr(BUF[b]+4+2*ri,2)}, v{AWK} offset:{o+kk*6144+ri*512}")
        for ri in range(2):
            k.e(f"ds_read_b64_tr_b16 {vr(BUF[b]+8+2*ri,2)}, v{AWV} offset:{o+kk*6144+ri*512}")
    for c in range(7):
        cur_base = rebase([AX, AX+1, AX+2, AX+3, AWK, AWV], slot_of[c], cur_base)
        k.wait_vm(f"c{c}")
        k.e("s_barrier")
        kv_reads(slot_of[c], 0, 0)
        kv_reads(slot_of[c], 1, 1)
        late(c)
        for kk in range(4):
            b = kk & 1
            k.e(f"s_waitcnt lgkmcnt({5 if kk < 3 else 0})")
            first = (c == 0 and kk == 0)
            k.e(f"v_mfma_f32_32x32x16_bf16 {vr(ACK,16)}, {vr(BUF[b],4)}, {vr(BUF[b]+4,4)}, {'0' if first else vr(ACK,16)}")
            k.e(f"v_mfma_f32_32x32x16_bf16 {vr(ACV,16)}, {vr(BUF[b],4)}, {vr(BUF[b]+8,4)}, {'0' if first else vr(ACV,16)}")
            for j in range(4):
                k.e(f"v_dot2c_f32_bf16 v{CSK+(j&1)}, s{sONE}, v{BUF[b]+4+j}")
                k.e(f"v_dot2c_f32_bf16 v{CSV+(j&1)}, s{sONE}, v{BUF[b]+8+j}")
            if kk < 2:
                kv_reads(slot_of[c], kk+2, b)
    k.e(f"v_mov_b32 v5, 0")
    k.e(f"s_lshl_b32 s{sT2}, s{sH}, 4")
    k.vop(f"buffer_load_dwordx4 {vr(T+4,4)}, v5, s[{SDB}:{SDB+3}], s{sT2} offen sc1", "poll")
    k.e(f"v_add_f32 v{CSK}, v{CSK}, v{CSK+1}")
    k.e(f"v_add_f32 v{CSV}, v{CSV}, v{CSV+1}")
    hilo_w(k, WEK, CSK, T)
    hilo_w(k, WEV, CSV, T+1)
    k.e(f"""
    v_and_b32 v10, 31, v0
    v_bfe_u32 v11, v0, 6, 2
    v_lshl_add_u32 v10, v11, 5, v10
    v_lshlrev_b32 v10, 3, v10
    v_add_u32 v10, {MISC}, v10
    v_lshlrev_b32 v11, 7, v11
    v_lshl_add_u32 v11, v9, 4, v11
    v_add_u32 v11, {MISC+1024}, v11
    v_mov_b32 v{XE+2}, 0
    v_mov_b32 v{XE+3}, 0
    s_barrier
    ds_read_b64 {vr(XE,2)}, v10
    """)
    for a in range(4):
        k.e(f"ds_read_b128 {vr(RSTD+4*a,4)}, v11 offset:{a*32}")
    k.e(f"""
    s_waitcnt lgkmcnt(4)
    v_mfma_f32_32x32x16_bf16 {vr(ACK,16)}, {vr(XE,4)}, {vr(WEK,4)}, {vr(ACK,16)}
    v_mfma_f32_32x32x16_bf16 {vr(ACV,16)}, {vr(XE,4)}, {vr(WEV,4)}, {vr(ACV,16)}
    s_waitcnt lgkmcnt(0)
    """)
    k.nop(16)
    for i in range(0, 16, 2):
        phi_ops(k, ACK+i, ACK+i, RSTD+i, T, T+1, sEPS)
        phi_ops(k, ACK+i+1, ACK+i+1, RSTD+i+1, T+2, T+3, sEPS)
        k.e(f"v_cvt_pk_bf16_f32 v{PKF+i//2}, v{ACK+i}, v{ACK+i+1}")
    for i in range(0, 16, 2):
        k.e(f"v_pk_mul_f32 {vr(ACV+i,2)}, {vr(ACV+i,2)}, {vr(RSTD+i,2)}")
        k.e(f"v_cvt_pk_bf16_f32 v{VF+i//2}, v{ACV+i}, v{ACV+i+1}")
    k.e("s_mov_b32 exec_lo, 0x10000000\ns_mov_b32 exec_hi, 0x10000000")
    for i in range(8):
        k.e(f"v_mov_b32 v{VF+i}, s{sONE}")
    k.e("s_mov_b64 exec, -1")
    k.e(f"""
    v_and_b32 v10, 63, v0
    v_lshlrev_b32 v10, 4, v10
    v_bfe_u32 v11, v0, 6, 2
    v_lshl_add_u32 v10, v11, 12, v10
    v_add_u32 v10, {PART}, v10
    v_mfma_f32_32x32x16_bf16 {vr(KVA,16)}, {vr(PKF,4)}, {vr(VF,4)}, 0
    v_mfma_f32_32x32x16_bf16 {vr(KVA,16)}, {vr(PKF+4,4)}, {vr(VF+4,4)}, {vr(KVA,16)}
    v_and_b32 v12, 63, v0
    v_lshlrev_b32 v12, 2, v12
    v_lshl_add_u32 v12, v11, 10, v12
    v_add_u32 v13, {PART}, v12
    s_lshl_b32 s{sT}, s{sH}, 12
    """)
    k.nop(16)
    for a in range(4):
        k.e(f"ds_write_b128 v10, {vr(KVA+4*a,4)} offset:{a*1024}")
    k.wait_vm("wq2", "lgkmcnt(0)")
    k.e("s_barrier")
    for u in range(4):
        k.e(f"ds_read2st64_b32 {vr(ACK+4*u,2)}, v13 offset0:{u} offset1:{u+16}")
        k.e(f"ds_read2st64_b32 {vr(ACK+4*u+2,2)}, v13 offset0:{u+32} offset1:{u+48}")
    k.e("s_waitcnt vmcnt(0)")
    k.label(k.L('poll'))
    k.e(f"""
    v_min_u32 v{T}, v{T+4}, v{T+5}
    v_min3_u32 v{T}, v{T}, v{T+6}, v{T+7}
    v_cmp_eq_u32 vcc, 0, v{T}
    s_cbranch_vccz {k.L('pollok')}
    s_sleep 2
    buffer_load_dwordx4 {vr(T+4,4)}, v5, s[{SDB}:{SDB+3}], s{sT2} offen sc1
    s_waitcnt vmcnt(0)
    s_branch {k.L('poll')}
    """)
    k.label(k.L('pollok'))
    k.e("s_waitcnt lgkmcnt(0)")
    for u in range(4):
        k.e(f"v_add_f32 v{ACK+4*u}, v{ACK+4*u}, v{ACK+4*u+1}")
        k.e(f"v_add_f32 v{ACK+4*u+2}, v{ACK+4*u+2}, v{ACK+4*u+3}")
        k.e(f"v_add_f32 v{ACK+4*u}, v{ACK+4*u}, v{ACK+4*u+2}")
        if u == 2:
            k.e(f"s_cmp_eq_u32 s{sW}, 3\ns_cbranch_scc1 {k.L('end')}")
        k.e(f"buffer_atomic_add_f32 v{ACK+4*u}, v12, s[{SWS}:{SWS+3}], s{sT} offen offset:{u*256}")
    k.e("s_endpgm")
    k.label(k.L('q'))
    k.vm = list(vm_split)
    XQ, ACQ, WB = 16, 128, 144
    SUM, SQ, CSQ, AWQ, T = 160, 162, 164, 166, 176
    XE2, WE2, RS = 180, 184, 167
    k.e(f"""
    v_bfe_u32 v11, v0, 2, 2
    v_lshl_add_u32 v10, v9, 3, v11
    v_lshlrev_b32 v10, 6, v10
    v_and_b32 v11, 1, v0
    v_lshl_add_u32 v10, v11, 5, v10
    v_bfe_u32 v11, v0, 4, 1
    v_lshl_add_u32 v10, v11, 4, v10
    v_bfe_u32 v11, v0, 1, 1
    v_lshl_add_u32 v{AWQ}, v11, 3, v10
    """)
    for r in (SUM, SUM+1, SQ, SQ+1, CSQ, CSQ+1):
        k.e(f"v_mov_b32 v{r}, 0")
    cur_base = 0
    for c in range(7):
        cur_base = rebase([AX, AX+1, AX+2, AX+3], slot_of[c], cur_base)
        k.wait_vm(f"c{c}")
        k.e("s_barrier")
        o = slot_of[c]*SLOT - cur_base
        for kk in range(4):
            k.e(f"ds_read_b128 {vr(XQ+16*c+4*kk,4)}, v{AX+kk} offset:{o}")
        if c == 0:
            k.e(f"""
            s_cmp_lg_u32 s{sRB}, 0
            s_cbranch_scc1 {k.L('noflag')}
            s_lshl_b32 s{sT}, s{sH}, 2
            s_add_u32 s{sT}, s{sT}, s{sW}
            s_sub_u32 s{sT}, s{sT}, 4
            s_lshl_b32 s{sT}, s{sT}, 2
            v_mov_b32 v5, 0
            v_mov_b32 v12, 1
            s_mov_b64 exec, 1
            buffer_store_dword v12, v5, s[{SDB}:{SDB+3}], s{sT} offen sc1
            s_mov_b64 exec, -1
            """)
            k.label(k.L('noflag'))
        late(c)
        for kk in range(4):
            k.e(f"s_waitcnt lgkmcnt({3-kk})")
            for j in range(4):
                r = XQ+16*c+4*kk+j
                k.e(f"v_dot2c_f32_bf16 v{SUM+(j&1)}, s{sONE}, v{r}")
                k.e(f"v_dot2c_f32_bf16 v{SQ+(j&1)}, v{r}, v{r}")
    NB = 4
    def wq_read(kap):
        base = WQ1 + kap*1024 if kap < 16 else WQ2 + (kap-16)*1024
        b = WB + 4*(kap % NB)
        for ri in range(2):
            k.e(f"ds_read_b64_tr_b16 {vr(b+2*ri,2)}, v{AWQ} offset:{base+ri*256}")
    k.nop(3)
    k.e(f"""
    v_add_f32 v{SUM}, v{SUM}, v{SUM+1}
    v_add_f32 v{SQ}, v{SQ}, v{SQ+1}
    v_mov_b32 v{SUM+1}, v{SUM}
    v_mov_b32 v{SQ+1}, v{SQ}
    v_and_b32 v10, 31, v0
    v_bfe_u32 v11, v0, 6, 2
    v_permlane32_swap_b32 v{SUM}, v{SUM+1}
    v_permlane32_swap_b32 v{SQ}, v{SQ+1}
    v_lshl_add_u32 v10, v11, 5, v10
    v_add_f32 v{SUM}, v{SUM}, v{SUM+1}
    v_add_f32 v{SQ}, v{SQ}, v{SQ+1}
    v_mul_f32 v{SUM}, 0x{INV_D|0x80000000:x}, v{SUM}
    v_mul_f32 v{SQ}, 0x{INV_D:x}, v{SQ}
    v_fma_f32 v{SQ}, -v{SUM}, v{SUM}, v{SQ}
    v_max_f32 v{SQ}, 0, v{SQ}
    v_add_f32 v{SQ}, 0x{EPS_LN:x}, v{SQ}
    v_rsq_f32 v{RS}, v{SQ}
    """)
    hilo_x(k, XE2, SUM, T)
    k.e(f"""
    v_lshlrev_b32 v11, 2, v10
    v_lshlrev_b32 v10, 3, v10
    v_add_u32 v10, {MISC}, v10
    v_add_u32 v11, {MISC+1024}, v11
    ds_write_b64 v10, {vr(XE2,2)}
    ds_write_b32 v11, v{RS}
    v_mov_b32 v{XE2+2}, 0
    v_mov_b32 v{XE2+3}, 0
    s_waitcnt lgkmcnt(0)
    s_barrier
    """)
    def q_range(k0, k1):
        for kap in range(k0, min(k0+NB-1, k1)):
            wq_read(kap)
        for kap in range(k0, k1):
            if kap+NB-1 < k1:
                wq_read(kap+NB-1)
            rem = min(k1-1-kap, NB-1)
            k.e(f"s_waitcnt lgkmcnt({2*rem})")
            b = WB + 4*(kap % NB)
            k.e(f"v_mfma_f32_32x32x16_bf16 {vr(ACQ,16)}, {vr(b,4)}, {vr(XQ+4*kap,4)}, {'0' if kap == 0 else vr(ACQ,16)}")
            for j in range(4):
                k.e(f"v_dot2c_f32_bf16 v{CSQ+(j&1)}, s{sONE}, v{b+j}")
    q_range(0, 16)
    k.wait_vm("wq2")
    k.e("s_barrier")
    q_range(16, 28)
    k.nop(3)
    k.e(f"v_add_f32 v{CSQ}, v{CSQ}, v{CSQ+1}")
    hilo_w(k, WE2, CSQ, T)
    k.e(f"""
    v_and_b32 v10, 63, v0
    v_lshlrev_b32 v10, 4, v10
    v_mfma_f32_32x32x16_bf16 {vr(ACQ,16)}, {vr(WE2,4)}, {vr(XE2,4)}, {vr(ACQ,16)}
    s_lshl_b32 s{sT}, s{sRB}, 2
    s_add_u32 s{sT}, s{sT}, s{sW}
    s_sub_u32 s{sT}, s{sT}, 4
    s_lshl_b32 s{sT}, s{sT}, 4
    s_add_u32 s{sT}, s{sT}, s{sH}
    s_lshl_b32 s{sT}, s{sT}, 11
    s_add_u32 s{sT}, s{sT}, {PQ_OFF}
    """)
    k.nop(12)
    for i in range(0, 16, 2):
        phi_ops(k, ACQ+i, ACQ+i, RS, T, T+1, sEPS)
        phi_ops(k, ACQ+i+1, ACQ+i+1, RS, T+2, T+3, sEPS)
        k.e(f"v_cvt_pk_bf16_f32 v{WB+i//2}, v{ACQ+i}, v{ACQ+i+1}")
        if i == 6:
            k.e(f"buffer_store_dwordx4 {vr(WB,4)}, v10, s[{SWS}:{SWS+3}], s{sT} offen")
    k.e(f"buffer_store_dwordx4 {vr(WB+4,4)}, v10, s[{SWS}:{SWS+3}], s{sT} offen offset:1024")
    k.label(k.L('end'))
    k.e("s_endpgm")
    return k, dict(vgpr=192, sgpr=32, grid=256, block=512, lds=163840)


def gen_b():
    k = K("kb")
    SX, SW, SWS = 4, 8, 12
    sW, sRB, sCB, sT, sT2, sT3, sEPS, sONE, sKV, sPQ0, sPQ1, sWO = 20, 21, 22, 23, 24, 25, 26, 27, 28, 29, 30, 31
    WREG = 15360
    RED = 4*WREG
    k.e(f"""
    s_cmp_ge_u32 s2, 256
    s_cbranch_scc1 {k.L('end')}
    s_load_dwordx2 s[{SWS}:{SWS+1}], s[0:1], 72
    s_cmp_ge_u32 s2, 224
    s_cbranch_scc1 {k.L('cs')}
    s_load_dwordx2 s[{SX}:{SX+1}], s[0:1], 0
    s_load_dwordx2 s[{SW}:{SW+1}], s[0:1], 16
    v_lshrrev_b32 v5, 6, v0
    v_and_b32 v1, 63, v0
    v_readfirstlane_b32 s{sW}, v5
    v_lshlrev_b32 v1, 4, v1
    v_bfe_u32 v9, v0, 5, 1
    v_bfe_u32 v6, v0, 3, 2
    v_and_b32 v7, 3, v0
    v_lshl_add_u32 v6, v6, 2, v7
    v_bfe_u32 v7, v0, 2, 1
    v_mad_u32_u24 v7, v7, 14, v6
    v_cmp_gt_u32 vcc, 14, v6
    v_bfe_u32 v6, v0, 3, 3
    v_and_b32 v8, 7, v0
    v_cndmask_b32 v7, 28, v7, vcc
    v_lshlrev_b32 v2, 4, v7
    v_lshl_add_u32 v2, v9, 11, v2
    v_bfe_u32 v7, v0, 4, 1
    v_lshlrev_b32 v7, 2, v7
    v_xor_b32 v7, v7, v8
    v_mul_u32_u24 v3, 896, v6
    v_lshl_add_u32 v3, v7, 4, v3
    s_and_b32 s{sT}, s2, 7
    s_lshr_b32 s{sT2}, s2, 3
    s_mul_i32 s{sRB}, s{sT2}, 37
    s_lshr_b32 s{sRB}, s{sRB}, 8
    s_mul_i32 s{sCB}, s{sRB}, 7
    s_sub_u32 s{sCB}, s{sT2}, s{sCB}
    s_lshl_b32 s{sT}, s{sT}, 2
    s_add_u32 s{sRB}, s{sRB}, s{sT}
    s_lshl_b32 s{sKV}, s{sW}, 14
    s_and_b32 s{sT}, s{sW}, 1
    s_lshl_b32 s{sT2}, s{sRB}, 1
    s_add_u32 s{sT3}, s{sT2}, s{sT}
    s_lshl_b32 s{sPQ0}, s{sT3}, 15
    s_lshl_b32 s{sT}, s{sW}, 13
    s_add_u32 s{sPQ0}, s{sPQ0}, s{sT}
    s_add_u32 s{sPQ0}, s{sPQ0}, {PQ_OFF}
    s_xor_b32 s{sPQ1}, s{sPQ0}, 0x8000
    s_mul_i32 s{sWO}, s{sW}, {112*896}
    s_lshl_b32 s{sT}, s{sCB}, 7
    s_add_u32 s{sWO}, s{sWO}, s{sT}
    s_mul_i32 m0, s{sW}, {WREG}
    """)
    assert PQ_OFF % 0x10000 == 0
    srd_consts(k, SX, S*D*2)
    srd_consts(k, SW, D*D*2)
    srd_consts(k, SWS, WS_USED)
    k.e(f"""
    s_mov_b32 s{sEPS}, 0x{EPS_PHI:x}
    s_mov_b32 s{sONE}, 0x{ONES_BF:x}
    s_waitcnt lgkmcnt(0)
    """)
    KVF, PQR, ACC, OA, OF, WF, XR, T = 16, 80, 144, 208, 240, 16, 64, 10
    def ld_head(hh):
        for q in range(4):
            k.vop(f"buffer_load_dwordx4 {vr(KVF+16*hh+4*q,4)}, v2, s[{SWS}:{SWS+3}], s{sKV} offen offset:{q*512}", f"kv{hh}")
        if hh < 3: k.e(f"s_add_u32 s{sKV}, s{sKV}, 4096")
        for rt in range(2):
            for f in range(2):
                k.vop(f"buffer_load_dwordx4 {vr(PQR+16*hh+8*rt+4*f,4)}, v1, s[{SWS}:{SWS+3}], s{sPQ0 if rt == 0 else sPQ1} offen offset:{(hh&1)*2048+f*1024}", f"pq{hh}")
        if hh == 1:
            k.e(f"s_add_u32 s{sPQ0}, s{sPQ0}, 4096\ns_add_u32 s{sPQ1}, s{sPQ1}, 4096")
    def ld_wo(u0, u1):
        for u in range(u0, u1):
            k.vop(f"buffer_load_dwordx4 v3, s[{SW}:{SW+3}], s{sWO} offen offset:{(u&3)*1024} lds", f"wo{u}")
            if (u & 3) == 3:
                k.e(f"s_add_u32 m0, m0, 4096")
                k.e(f"s_add_u32 s{sWO}, s{sWO}, {7168+3072}")
            else:
                k.e(f"s_add_u32 s{sWO}, s{sWO}, {7168-1024}")
    ld_head(0); ld_head(1); ld_wo(0, 4); ld_head(2); ld_wo(4, 8); ld_head(3); ld_wo(8, 15)
    k.e(f"""
    v_and_b32 v6, 31, v0
    v_mul_u32_u24 v4, 896, v6
    v_lshl_add_u32 v4, v9, 5, v4
    s_mul_i32 s{sT}, s{sT3}, {32*896}
    s_lshl_b32 s{sT2}, s{sCB}, 7
    s_add_u32 s{sT}, s{sT}, s{sT2}
    s_lshr_b32 s{sT2}, s{sW}, 1
    s_lshl_b32 s{sT2}, s{sT2}, 6
    s_add_u32 s{sT}, s{sT}, s{sT2}
    """)
    XR = 248
    k.vop(f"buffer_load_dwordx4 {vr(XR,4)}, v4, s[{SX}:{SX+3}], s{sT} offen", "x")
    k.vop(f"buffer_load_dwordx4 {vr(XR+4,4)}, v4, s[{SX}:{SX+3}], s{sT} offen offset:16", "x")
    AW0, AW1 = 5, 6
    k.e(f"""
    v_bfe_u32 v7, v0, 2, 2
    v_mad_u32_u24 v5, v9, 14, v7
    v_lshlrev_b32 v5, 7, v5
    v_lshrrev_b32 v7, 1, v7
    v_xor_b32 v7, v7, v9
    v_bfe_u32 v8, v0, 7, 1
    v_xor_b32 v7, v7, v8
    v_lshl_add_u32 v5, v7, 6, v5
    v_and_b32 v7, 1, v0
    v_lshl_add_u32 v5, v7, 5, v5
    v_bfe_u32 v7, v0, 4, 1
    v_lshl_add_u32 v5, v7, 4, v5
    v_bfe_u32 v7, v0, 1, 1
    v_lshl_add_u32 v5, v7, 3, v5
    v_lshrrev_b32 v7, 6, v0
    v_mul_u32_u24 v7, {WREG}, v7
    v_add_u32 v{AW0}, v5, v7
    v_xor_b32 v{AW1}, 64, v{AW0}
    """)
    assert WREG % 128 == 0
    wo_need = [3, 7, 10, 14]
    def o_stage(hh):
        k.wait_vm(f"kv{hh}")
        b = KVF+16*hh
        for i in range(8):
            k.e(f"v_cvt_pk_bf16_f32 v{b+i}, v{b+2*i}, v{b+2*i+1}")
        k.wait_vm(f"pq{hh}")
        k.e("s_nop 0")
        for rt in range(2):
            for f in range(2):
                k.e(f"v_mfma_f32_32x32x16_bf16 {vr(OA+16*rt,16)}, {vr(b+4*f,4)}, {vr(PQR+16*hh+8*rt+4*f,4)}, {'0' if f == 0 else vr(OA+16*rt,16)}")
    def norm_stage(hh):
        for rt in range(2):
            o = OA+16*rt
            d = PQR+16*hh+8*rt
            k.e(f"v_add_f32 v{o+14}, s{sEPS}, v{o+14}")
            k.e(f"v_rcp_f32 v{o+14}, v{o+14}")
            k.e(f"v_mov_b32 v{d+7}, 0")
            for i in range(0, 14, 2):
                k.e(f"v_pk_mul_f32 {vr(o+i,2)}, {vr(o+i,2)}, {vr(o+14,2)} op_sel_hi:[1,0]")
            for i in range(0, 14, 2):
                k.e(f"v_cvt_pk_bf16_f32 v{d+i//2}, v{o+i}, v{o+i+1}")
    def w_reads(hh):
        k.wait_vm(f"wo{wo_need[hh]}")
        for f in range(2):
            for ct in range(2):
                for ri in range(2):
                    k.e(f"ds_read_b64_tr_b16 {vr(KVF+16*hh+8*f+4*ct+2*ri,2)}, v{AW0 if ct == 0 else AW1} offset:{(28*hh+8*f+4*ri)*128}")
    def main_stage(hh):
        for f in range(2):
            for ct in range(2):
                k.e(f"s_waitcnt lgkmcnt({6-4*f-2*ct})")
                for rt in range(2):
                    a = ACC+16*(2*ct+rt)
                    first = (hh == 0 and f == 0)
                    k.e(f"v_mfma_f32_32x32x16_bf16 {vr(a,16)}, {vr(KVF+16*hh+8*f+4*ct,4)}, {vr(PQR+16*hh+8*rt+4*f,4)}, {'0' if first else vr(a,16)}")
    for hh in range(4):
        o_stage(hh)
        if hh > 0:
            main_stage(hh-1)
        else:
            k.nop(16)
        norm_stage(hh)
        w_reads(hh)
    k.e("s_nop 1")
    main_stage(3)
    k.e(f"""
    v_lshrrev_b32 v7, 6, v0
    s_movk_i32 s{sT}, 12288
    v_add_u32 v14, {RED}, v1
    v_mad_u32_u24 v8, v7, s{sT}, v14
    """)
    for tp in range(1, 4):
        k.e(f"v_xor_b32 v{10+tp}, {tp}, v7")
        k.e(f"v_mad_u32_u24 v{10+tp}, v{10+tp}, s{sT}, v14")
    k.nop(8)
    for tp in range(1, 4):
        for a in range(4):
            k.e(f"ds_write_b128 v{10+tp}, {vr(ACC+16*tp+4*a,4)} offset:{(tp-1)*4096+a*1024}")
    k.e(f"""
    s_lshl_b32 s{sT}, s{sCB}, 1
    s_lshr_b32 s{sT2}, s{sW}, 1
    s_add_u32 s{sT}, s{sT}, s{sT2}
    s_mul_i32 s{sT2}, s{sT3}, 14
    s_add_u32 s{sT}, s{sT}, s{sT2}
    s_lshl_b32 s{sT2}, s{sT}, 8
    s_add_u32 s{sT2}, s{sT2}, {ST_OFF}
    s_lshl_b32 s{sT}, s{sT}, 11
    s_add_u32 s{sT}, s{sT}, {HF_OFF}
    s_waitcnt lgkmcnt(0)
    s_barrier
    """)
    for j in range(3):
        for a in range(4):
            k.e(f"ds_read_b128 {vr(16+16*j+4*a,4)}, v8 offset:{j*4096+a*1024}")
    k.wait_vm("x")
    XU = 80
    for i in range(8):
        k.e(f"v_lshlrev_b32 v{XU+2*i}, 16, v{XR+i}")
        k.e(f"v_and_b32 v{XU+2*i+1}, 0xffff0000, v{XR+i}")
    for i in range(0, 16, 2):
        k.e(f"v_pk_add_f32 {vr(ACC+i,2)}, {vr(ACC+i,2)}, {vr(XU+i,2)}")
    k.e("v_mov_b32 v10, 0\nv_mov_b32 v11, 0")
    for j in range(3):
        k.e(f"s_waitcnt lgkmcnt({8-4*j})")
        for i in range(0, 16, 2):
            k.e(f"v_pk_add_f32 {vr(ACC+i,2)}, {vr(ACC+i,2)}, {vr(16+16*j+i,2)}")
    HO = 96
    for i in range(8):
        k.e(f"v_cvt_pk_bf16_f32 v{HO+i}, v{ACC+2*i}, v{ACC+2*i+1}")
    k.e(f"""
    buffer_store_dwordx4 {vr(HO,4)}, v1, s[{SWS}:{SWS+3}], s{sT} offen
    buffer_store_dwordx4 {vr(HO+4,4)}, v1, s[{SWS}:{SWS+3}], s{sT} offen offset:1024
    """)
    for i in range(8):
        k.e(f"v_dot2c_f32_bf16 v10, s{sONE}, v{HO+i}")
        k.e(f"v_dot2c_f32_bf16 v11, v{HO+i}, v{HO+i}")
    k.e(f"""
    v_and_b32 v6, 31, v0
    v_lshlrev_b32 v6, 3, v6
    s_nop 1
    v_mov_b32 v12, v10
    v_mov_b32 v13, v11
    s_nop 1
    v_permlane32_swap_b32 v10, v12
    v_permlane32_swap_b32 v11, v13
    s_nop 0
    v_add_f32 v10, v10, v12
    v_add_f32 v11, v11, v13
    s_mov_b32 exec_hi, 0
    buffer_store_dwordx2 v[10:11], v6, s[{SWS}:{SWS+3}], s{sT2} offen
    s_endpgm
    """)
    k.label(k.L('cs'))
    k.e(f"""
    s_cmp_ge_u32 s2, 252
    s_cbranch_scc1 {k.L('end')}
    s_load_dwordx4 s[16:19], s[0:1], 32
    v_lshrrev_b32 v5, 6, v0
    v_bfe_u32 v6, v0, 3, 3
    v_readfirstlane_b32 s{sW}, v5
    v_and_b32 v7, 7, v0
    v_mul_u32_u24 v1, 3584, v6
    v_lshl_add_u32 v1, v7, 4, v1
    s_sub_u32 s{sCB}, s2, 224
    s_and_b32 s{sT}, s{sW}, 1
    s_mul_i32 s{sT}, s{sT}, {224*3584}
    s_lshl_b32 s{sT2}, s{sCB}, 7
    s_add_u32 s{sT}, s{sT}, s{sT2}
    s_mov_b32 s{sEPS}, 0x3f80
    s_mov_b32 s{sONE}, 0x3f800000
    """)
    srd_consts(k, SW, D*F*2)
    srd_consts(k, SWS, WS_USED)
    k.e(f"""
    s_waitcnt lgkmcnt(0)
    s_cmp_ge_u32 s{sW}, 2
    s_cselect_b32 s{SW}, s18, s16
    s_cselect_b32 s{SW+1}, s19, s17
    """)
    for u in range(28):
        k.e(f"buffer_load_dwordx4 {vr(16+4*u,4)}, v1, s[{SW}:{SW+3}], s{sT} offen")
        if u < 27: k.e(f"s_add_u32 s{sT}, s{sT}, {8*3584}")
    for i in range(8):
        k.e(f"v_mov_b32 v{8+i}, 0")
    for u in range(28):
        k.e(f"s_waitcnt vmcnt({27-u})")
        for j in range(4):
            k.e(f"v_dot2c_f32_bf16 v{8+2*j}, s{sEPS}, v{16+4*u+j}")
            k.e(f"v_dot2c_f32_bf16 v{9+2*j}, s{sONE}, v{16+4*u+j}")
    k.e(f"""
    v_lshlrev_b32 v2, 5, v0
    v_bfe_u32 v3, v0, 6, 1
    v_lshlrev_b32 v3, 12, v3
    v_and_b32 v4, 63, v0
    v_lshl_add_u32 v3, v4, 2, v3
    ds_write_b128 v2, v[8:11]
    ds_write_b128 v2, v[12:15] offset:16
    s_waitcnt lgkmcnt(0)
    s_barrier
    s_cmp_ge_u32 s{sW}, 2
    s_cbranch_scc1 {k.L('end')}
    """)
    for i in range(8):
        k.e(f"ds_read2st64_b32 {vr(16+2*i,2)}, v3 offset0:{2*i} offset1:{2*i+1}")
    k.e(f"""
    s_mul_i32 s{sT}, s{sW}, {1792*4}
    s_lshl_b32 s{sT2}, s{sCB}, 8
    s_add_u32 s{sT}, s{sT}, s{sT2}
    s_add_u32 s{sT}, s{sT}, {CS_OFF}
    v_lshlrev_b32 v4, 2, v4
    s_waitcnt lgkmcnt(0)
    """)
    for st in (8, 4, 2, 1):
        for i in range(st):
            k.e(f"v_add_f32 v{16+i}, v{16+i}, v{16+i+st}")
    k.e(f"buffer_store_dword v16, v4, s[{SWS}:{SWS+3}], s{sT} offen")
    k.label(k.L('end'))
    k.e("s_endpgm")
    return k, dict(vgpr=256, sgpr=32, grid=256, block=256, lds=RED+49152)


def gen_c():
    k = K("kc")
    SG, SU, SWS = 4, 8, 12
    sW, sRB, sFB, sT, sT2, sRT, sWOFF, sH = 20, 21, 22, 23, 24, 25, 26, 27
    k.e(f"""
    s_cmp_ge_u32 s2, 224
    s_cbranch_scc1 {k.L('end')}
    s_load_dwordx2 s[{SG}:{SG+1}], s[0:1], 32
    s_load_dwordx2 s[{SU}:{SU+1}], s[0:1], 40
    s_load_dwordx2 s[{SWS}:{SWS+1}], s[0:1], 72
    v_lshrrev_b32 v5, 6, v0
    v_and_b32 v1, 63, v0
    v_readfirstlane_b32 s{sW}, v5
    v_lshlrev_b32 v1, 4, v1
    v_lshrrev_b32 v6, 3, v0
    v_and_b32 v8, 7, v0
    v_bfe_u32 v7, v0, 4, 1
    v_lshlrev_b32 v7, 2, v7
    v_xor_b32 v7, v7, v8
    v_mul_u32_u24 v3, 3584, v6
    v_lshl_add_u32 v3, v7, 4, v3
    s_and_b32 s{sT}, s2, 7
    s_lshr_b32 s{sT2}, s2, 3
    s_mul_i32 s{sRB}, s{sT2}, 37
    s_lshr_b32 s{sRB}, s{sRB}, 8
    s_mul_i32 s{sFB}, s{sRB}, 7
    s_sub_u32 s{sFB}, s{sT2}, s{sFB}
    s_and_b32 s{sT2}, s{sT}, 4
    s_add_u32 s{sRB}, s{sRB}, s{sT2}
    s_and_b32 s{sT2}, s{sT}, 3
    s_mul_i32 s{sT2}, s{sT2}, 7
    s_add_u32 s{sFB}, s{sFB}, s{sT2}
    s_lshl_b32 s{sRT}, s{sRB}, 3
    s_add_u32 s{sRT}, s{sRT}, s{sW}
    s_lshl_b32 s{sWOFF}, s{sFB}, 7
    s_mul_i32 s{sH}, s{sRT}, 28672
    s_add_u32 s{sH}, s{sH}, {HF_OFF}
    s_lshl_b32 m0, s{sW}, 11
    """)
    srd_consts(k, SG, D*F*2)
    srd_consts(k, SU, D*F*2+1024)
    srd_consts(k, SWS, WS_USED)
    k.e(f"""
    s_waitcnt lgkmcnt(0)
    s_sub_u32 s{SU}, s{SU}, 1024
    s_subb_u32 s{SU+1}, s{SU+1}, 0
    """)
    HFR, ACC, WF, STR, CSR = 16, 128, 192, 208, 224
    for c in range(7):
        k.vop(f"buffer_load_dwordx4 v3, s[{SG}:{SG+3}], s{sWOFF} offen lds", f"w{c}")
        k.vop(f"buffer_load_dwordx4 v3, s[{SU}:{SU+3}], s{sWOFF} offen offset:1024 lds", f"w{c}")
        if c < 6:
            k.e(f"s_add_u32 m0, m0, 16384")
            k.e(f"s_add_u32 s{sWOFF}, s{sWOFF}, {64*3584}")
        for j in range(4):
            k.vop(f"buffer_load_dwordx4 {vr(HFR+16*c+4*j,4)}, v1, s[{SWS}:{SWS+3}], s{sH} offen offset:{j*1024}", f"h{c}")
        if c < 6:
            k.e(f"s_add_u32 s{sH}, s{sH}, 4096")
    k.e(f"""
    v_bfe_u32 v9, v0, 5, 1
    v_and_b32 v6, 31, v0
    v_mul_u32_u24 v4, 1792, v9
    v_lshl_add_u32 v4, v6, 3, v4
    s_mul_i32 s{sT}, s{sRT}, 3584
    s_add_u32 s{sT}, s{sT}, {ST_OFF}
    v_bfe_u32 v7, v0, 2, 1
    v_bfe_u32 v8, v0, 3, 2
    v_lshlrev_b32 v7, 4, v7
    v_lshl_add_u32 v7, v8, 2, v7
    v_and_b32 v8, 3, v0
    v_add_lshl_u32 v7, v7, v8, 2
    s_lshl_b32 s{sT2}, s{sFB}, 8
    s_add_u32 s{sT2}, s{sT2}, {CS_OFF}
    """)
    for u in range(7):
        k.vop(f"buffer_load_dwordx2 {vr(STR+2*u,2)}, v4, s[{SWS}:{SWS+3}], s{sT} offen offset:{u*256}", "st")
    k.vop(f"buffer_load_dword v{CSR}, v7, s[{SWS}:{SWS+3}], s{sT2} offen", "st")
    k.vop(f"buffer_load_dword v{CSR+1}, v7, s[{SWS}:{SWS+3}], s{sT2} offen offset:128", "st")
    k.e(f"s_add_u32 s{sT2}, s{sT2}, 7168")
    k.vop(f"buffer_load_dword v{CSR+2}, v7, s[{SWS}:{SWS+3}], s{sT2} offen", "st")
    k.vop(f"buffer_load_dword v{CSR+3}, v7, s[{SWS}:{SWS+3}], s{sT2} offen offset:128", "st")
    AW0, AW1 = 10, 11
    k.e(f"""
    v_bfe_u32 v7, v0, 2, 2
    v_lshlrev_b32 v5, 12, v9
    v_lshl_add_u32 v5, v7, 7, v5
    v_lshrrev_b32 v7, 1, v7
    v_lshl_add_u32 v5, v7, 6, v5
    v_and_b32 v7, 1, v0
    v_lshl_add_u32 v5, v7, 5, v5
    v_bfe_u32 v7, v0, 4, 1
    v_lshl_add_u32 v5, v7, 4, v5
    v_bfe_u32 v7, v0, 1, 1
    v_lshl_add_u32 v{AW0}, v7, 3, v5
    v_xor_b32 v{AW1}, 64, v{AW0}
    v_add_u32 v12, 0x10000, v{AW0}
    v_add_u32 v13, 0x10000, v{AW1}
    """)
    def reads(kap, tau):
        c, tl, f = kap >> 2, (kap >> 1) & 1, kap & 1
        m, ct = tau >> 1, tau & 1
        o = c*16384 + tl*8192 + f*2048 + m*1024
        a = AW0 + ct
        if o >= 0x10000: o -= 0x10000; a += 2
        for ri in range(2):
            k.e(f"ds_read_b64_tr_b16 {vr(WF+4*tau+2*ri,2)}, v{a} offset:{o+ri*512}")
    k.wait_vm("w0")
    k.e("s_barrier")
    for tau in range(4): reads(0, tau)
    for kap in range(28):
        if kap % 4 == 0:
            k.wait_vm(f"h{kap//4}")
        for tau in range(4):
            k.e(f"s_waitcnt lgkmcnt({6 if kap < 27 else 6-2*tau})")
            a = ACC+16*tau
            k.e(f"v_mfma_f32_32x32x16_bf16 {vr(a,16)}, {vr(WF+4*tau,4)}, {vr(HFR+4*kap,4)}, {'0' if kap == 0 else vr(a,16)}")
            if kap < 27:
                if kap % 4 == 3 and tau == 0:
                    k.wait_vm(f"w{kap//4+1}")
                    k.e("s_barrier")
                reads(kap+1, tau)
    k.wait_vm("st")
    T = 16
    XE = 20
    WE = 24
    for u in range(1, 7):
        k.e(f"v_pk_add_f32 {vr(STR,2)}, {vr(STR,2)}, {vr(STR+2*u,2)}")
    k.e(f"""
    v_cmp_eq_u32 vcc, 0, v9
    v_mov_b32 v{STR+2}, v{STR}
    v_mov_b32 v{STR+3}, v{STR+1}
    v_cndmask_b32 v{CSR}, 0, v{CSR}, vcc
    v_cndmask_b32 v{CSR+1}, 0, v{CSR+1}, vcc
    v_permlane32_swap_b32 v{STR}, v{STR+2}
    v_permlane32_swap_b32 v{STR+1}, v{STR+3}
    v_cndmask_b32 v{CSR+2}, 0, v{CSR+2}, vcc
    v_cndmask_b32 v{CSR+3}, 0, v{CSR+3}, vcc
    v_add_f32 v{STR}, v{STR}, v{STR+2}
    v_add_f32 v{STR+1}, v{STR+1}, v{STR+3}
    v_mul_f32 v{STR}, 0x{INV_D|0x80000000:x}, v{STR}
    v_mul_f32 v{STR+1}, 0x{INV_D:x}, v{STR+1}
    v_fma_f32 v{STR+1}, -v{STR}, v{STR}, v{STR+1}
    v_max_f32 v{STR+1}, 0, v{STR+1}
    v_add_f32 v{STR+2}, 0x{EPS_LN:x}, v{STR+1}
    v_rsq_f32 v{STR+4}, v{STR+2}
    """)
    hilo_x(k, XE, STR, T)
    k.e(f"v_mov_b32 v{XE+2}, 0\nv_mov_b32 v{XE+3}, 0")
    k.e(f"v_mul_f32 v{STR+4}, 0x{LOG2E|0x80000000:x}, v{STR+4}")
    for tau in range(4):
        hilo_w(k, WE+4*tau, CSR+tau, T+1)
    k.e("s_nop 1")
    for tau in (0, 2, 1, 3):
        a = ACC+16*tau
        k.e(f"v_mfma_f32_32x32x16_bf16 {vr(a,16)}, {vr(WE+4*tau,4)}, {vr(XE,4)}, {vr(a,16)}")
    k.e(f"""
    v_bfe_u32 v7, v0, 4, 1
    v_mul_u32_u24 v4, 57344, v7
    v_lshl_add_u32 v4, v9, 9, v4
    v_and_b32 v7, 15, v0
    v_lshl_add_u32 v4, v7, 4, v4
    s_mul_i32 s{sT}, s{sRT}, 114688
    s_lshl_b32 s{sT2}, s{sFB}, 11
    s_add_u32 s{sT}, s{sT}, s{sT2}
    s_add_u32 s{sT}, s{sT}, {ACT_OFF}
    """)
    k.nop(4)
    C1, IR2 = STR+4, STR+2
    O = 48
    for ct in range(2):
        g, u = ACC+16*ct, ACC+32+16*ct
        for i in range(0, 16, 2):
            t = 64 + (i % 8)
            k.e(f"v_pk_mul_f32 {vr(t,2)}, {vr(g+i,2)}, {vr(C1,2)} op_sel_hi:[1,0]")
            k.e(f"v_pk_mul_f32 {vr(g+i,2)}, {vr(g+i,2)}, {vr(u+i,2)}")
            k.e(f"v_exp_f32 v{t}, v{t}")
            k.e(f"v_exp_f32 v{t+1}, v{t+1}")
            k.e("s_nop 0")
            k.e(f"v_pk_fma_f32 {vr(t,2)}, {vr(t,2)}, {vr(IR2,2)}, {vr(IR2,2)} op_sel_hi:[1,0,0]")
            k.e(f"v_rcp_f32 v{t}, v{t}")
            k.e(f"v_rcp_f32 v{t+1}, v{t+1}")
            k.e("s_nop 0")
            k.e(f"v_pk_mul_f32 {vr(g+i,2)}, {vr(g+i,2)}, {vr(t,2)}")
            k.e(f"v_cvt_pk_bf16_f32 v{O+8*ct+i//2}, v{g+i}, v{g+i+1}")
            if i % 8 == 6:
                f = i // 8
                k.e(f"buffer_store_dwordx4 {vr(O+8*ct+4*f,4)}, v4, s[{SWS}:{SWS+3}], s{sT} offen offset:{ct*1024+f*256}")
    k.label(k.L('end'))
    k.e("s_endpgm")
    return k, dict(vgpr=232, sgpr=32, grid=256, block=512, lds=114688)

def gen_d():
    k = K("kd")
    SW, SO, SWS = 4, 8, 12
    sW, sRB, sCB, sT, sT2, sWOFF, sA, sKH = 20, 21, 22, 23, 24, 25, 26, 27
    NSLOT = 10
    RED = 5*16384
    k.e(f"""
    s_cmp_ge_u32 s2, 224
    s_cbranch_scc1 {k.L('end')}
    s_load_dwordx2 s[{SW}:{SW+1}], s[0:1], 48
    s_load_dwordx2 s[{SO}:{SO+1}], s[0:1], 56
    s_load_dwordx2 s[{SWS}:{SWS+1}], s[0:1], 72
    v_lshrrev_b32 v5, 6, v0
    v_and_b32 v1, 63, v0
    v_readfirstlane_b32 s{sW}, v5
    v_lshlrev_b32 v1, 4, v1
    v_lshrrev_b32 v6, 3, v0
    v_and_b32 v8, 7, v0
    v_bfe_u32 v7, v0, 4, 1
    v_bfe_u32 v9, v0, 6, 1
    v_lshl_add_u32 v7, v9, 1, v7
    v_lshlrev_b32 v7, 1, v7
    v_xor_b32 v7, v7, v8
    v_mul_u32_u24 v2, 896, v6
    v_lshl_add_u32 v2, v7, 4, v2
    v_add_u32 v3, {896*896-1024}, v2
    s_and_b32 s{sT}, s2, 7
    s_lshr_b32 s{sT2}, s2, 3
    s_mul_i32 s{sRB}, s{sT2}, 37
    s_lshr_b32 s{sRB}, s{sRB}, 8
    s_mul_i32 s{sCB}, s{sRB}, 7
    s_sub_u32 s{sCB}, s{sT2}, s{sCB}
    s_lshl_b32 s{sT}, s{sT}, 2
    s_add_u32 s{sRB}, s{sRB}, s{sT}
    s_lshl_b32 s{sWOFF}, s{sCB}, 7
    s_lshr_b32 s{sKH}, s{sW}, 2
    s_lshl_b32 s{sT}, s{sRB}, 2
    s_and_b32 s{sT2}, s{sW}, 3
    s_add_u32 s{sT}, s{sT}, s{sT2}
    s_lshl_b32 s{sT}, s{sT}, 1
    s_add_u32 s{sT}, s{sT}, s{sKH}
    s_mul_i32 s{sA}, s{sT}, 28672
    s_add_u32 s{sA}, s{sA}, {ACT_OFF}
    s_lshl_b32 m0, s{sW}, 11
    """)
    srd_consts(k, SW, F*D*2)
    srd_consts(k, SO, S*D*2)
    srd_consts(k, SWS, WS_USED)
    k.e("s_waitcnt lgkmcnt(0)")
    AF, ACC, WF, HR = 16, 128, 144, 176
    def dma(j):
        k.vop(f"buffer_load_dwordx4 v2, s[{SW}:{SW+3}], s{sWOFF} offen lds", f"w{j}")
        k.vop(f"buffer_load_dwordx4 v3, s[{SW}:{SW+3}], s{sWOFF} offen offset:1024 lds", f"w{j}")
        k.e(f"s_add_u32 s{sWOFF}, s{sWOFF}, {64*896}")
    def lda(j):
        for ks in range(2):
            t = 2*j+ks
            k.vop(f"buffer_load_dwordx4 {vr(AF+4*t,4)}, v1, s[{SWS}:{SWS+3}], s{sA} offen offset:{(t&3)*1024}", f"a{j}")
        if j & 1: k.e(f"s_add_u32 s{sA}, s{sA}, 4096")
    for j in range(NSLOT):
        dma(j)
        if j < NSLOT-1: k.e("s_add_u32 m0, m0, 16384")
        else: k.e(f"s_lshl_b32 m0, s{sW}, 11")
        lda(j)
    AW = 8
    k.e(f"""
    v_bfe_u32 v5, v0, 4, 2
    v_lshlrev_b32 v6, 11, v5
    v_bfe_u32 v7, v0, 8, 1
    v_lshl_add_u32 v6, v7, 10, v6
    v_xor_b32 v5, v5, v7
    v_and_b32 v5, 1, v5
    v_bfe_u32 v7, v0, 2, 2
    v_lshl_add_u32 v6, v7, 7, v6
    v_lshrrev_b32 v7, 1, v7
    v_lshl_add_u32 v5, v5, 1, v7
    v_lshl_add_u32 v6, v5, 5, v6
    v_and_b32 v7, 3, v0
    v_lshl_add_u32 v{AW}, v7, 3, v6
    v_xor_b32 v{AW+1}, 32, v{AW}
    v_xor_b32 v{AW+2}, 64, v{AW}
    v_xor_b32 v{AW+3}, 96, v{AW}
    """)
    state = dict(base=0)
    def rebase(slot):
        want = (slot//4)*4*16384
        d = want - state['base']
        if d:
            for i in range(4):
                if d > 0: k.e(f"v_add_u32 v{AW+i}, {d}, v{AW+i}")
                else: k.e(f"v_subrev_u32 v{AW+i}, {-d}, v{AW+i}")
        state['base'] = want
    def reads(u):
        t, tt = u >> 2, u & 3
        j, ks = t >> 1, t & 1
        o = (j % NSLOT)*16384 - state['base'] + ks*8192
        b = WF + 4*(u & 7)
        for ri in range(2):
            k.e(f"ds_read_b64_tr_b16 {vr(b+2*ri,2)}, v{AW+tt} offset:{o+ri*512}")
    def stage_gate(j):
        k.wait_vm(f"w{j}")
        k.e("s_barrier")
        rebase(j % NSLOT)
        js = j-2+NSLOT
        if j >= 2 and js < 14:
            dma(js)
            k.e("s_add_u32 m0, m0, 16384")
            lda(js)
            if js == 13:
                k.e(f"""
                v_bfe_u32 v5, v0, 5, 1
                v_lshlrev_b32 v5, 10, v5
                v_and_b32 v6, 15, v0
                v_lshl_add_u32 v5, v6, 4, v5
                v_bfe_u32 v7, v0, 4, 1
                v_lshl_add_u32 v5, v7, 3, v5
                s_lshl_b32 s{sT}, s{sRB}, 1
                s_bfe_u32 s{sT2}, s{sW}, 0x10001
                s_add_u32 s{sT}, s{sT}, s{sT2}
                s_mul_i32 s{sT}, s{sT}, 14
                s_lshl_b32 s{sT2}, s{sCB}, 1
                s_add_u32 s{sT}, s{sT}, s{sT2}
                s_add_u32 s{sT}, s{sT}, s{sKH}
                s_lshl_b32 s{sT}, s{sT}, 11
                s_and_b32 s{sT2}, s{sW}, 1
                s_lshl_b32 s{sT2}, s{sT2}, 8
                s_add_u32 s{sT}, s{sT}, s{sT2}
                s_add_u32 s{sT}, s{sT}, {HF_OFF}
                """)
                k.vop(f"buffer_load_dwordx2 {vr(HR,2)}, v5, s[{SWS}:{SWS+3}], s{sT} offen", "h")
                k.vop(f"buffer_load_dwordx2 {vr(HR+2,2)}, v5, s[{SWS}:{SWS+3}], s{sT} offen offset:512", "h")
    DEP = 6
    NU = 112
    stage_gate(0)
    for u in range(DEP): reads(u)
    for u in range(NU):
        t, tt = u >> 2, u & 3
        if u+DEP < NU:
            if (u+DEP) % 8 == 0: stage_gate((u+DEP)//8)
            reads(u+DEP)
        if u % 8 == 0:
            k.wait_vm(f"a{u//8}")
        k.e(f"s_waitcnt lgkmcnt({2*min(DEP, NU-1-u)})")
        a = ACC+4*tt
        k.e(f"v_mfma_f32_16x16x32_bf16 {vr(a,4)}, {vr(WF+4*(u&7),4)}, {vr(AF+4*t,4)}, {'0' if t == 0 else vr(a,4)}")
    k.e(f"""
    v_lshrrev_b32 v5, 6, v0
    v_lshl_add_u32 v6, v5, 11, v1
    v_add_u32 v6, {RED}, v6
    v_xor_b32 v7, 0x2000, v6
    v_and_b32 v5, 15, v0
    v_mul_u32_u24 v4, 896, v5
    v_bfe_u32 v5, v0, 4, 2
    v_lshl_add_u32 v4, v5, 3, v4
    s_lshl_b32 s{sT}, s{sRB}, 2
    s_and_b32 s{sT2}, s{sW}, 3
    s_add_u32 s{sT}, s{sT}, s{sT2}
    s_mul_i32 s{sT}, s{sT}, {16*896}
    s_lshl_b32 s{sT2}, s{sCB}, 7
    s_add_u32 s{sT}, s{sT}, s{sT2}
    s_lshl_b32 s{sT2}, s{sKH}, 6
    s_add_u32 s{sT}, s{sT}, s{sT2}
    ds_write_b128 v7, {vr(ACC+8,4)}
    ds_write_b128 v7, {vr(ACC+12,4)} offset:1024
    """)
    assert RED % 0x4000 == 0
    k.wait_vm("h")
    for i in range(4):
        k.e(f"v_lshlrev_b32 v{16+2*i}, 16, v{HR+i}")
        k.e(f"v_and_b32 v{17+2*i}, 0xffff0000, v{HR+i}")
    for i in range(0, 8, 2):
        k.e(f"v_pk_add_f32 {vr(ACC+i,2)}, {vr(ACC+i,2)}, {vr(16+i,2)}")
    k.e(f"""
    s_waitcnt lgkmcnt(0)
    s_barrier
    ds_read_b128 v[24:27], v6
    ds_read_b128 v[28:31], v6 offset:1024
    s_waitcnt lgkmcnt(0)
    """)
    for i in range(0, 8, 2):
        k.e(f"v_pk_add_f32 {vr(ACC+i,2)}, {vr(ACC+i,2)}, {vr(24+i,2)}")
    for i in range(4):
        k.e(f"v_cvt_pk_bf16_f32 v{32+i}, v{ACC+2*i}, v{ACC+2*i+1}")
    k.e(f"""
    buffer_store_dwordx2 v[32:33], v4, s[{SO}:{SO+3}], s{sT} offen
    buffer_store_dwordx2 v[34:35], v4, s[{SO}:{SO+3}], s{sT} offen offset:32
    """)
    k.label(k.L('end'))
    k.e("s_endpgm")
    return k, dict(vgpr=184, sgpr=32, grid=256, block=512, lds=163840)

HEADER = open("sequential_preLN__linear_attn_block__swiglu_ffn__prompt.s.ref").read().split("; Override launch geometry")[0]

def build(kernels):
    out = [HEADER.rstrip()]
    for k, m in kernels:
        out.append(f"; @launch kernel={k.name}_kernel grid=({m['grid']},1,1) block=({m['block']},1,1) lds={m['lds']}")
    out.append('.amdgcn_target "amdgcn-amd-amdhsa--gfx950"')
    out.append(".text")
    for k, m in kernels:
        n = f"{k.name}_kernel"
        out += [f".globl {n}", ".p2align 8", f".type {n},@function", f"{n}:"]
        out += k.lines
    out.append('.section .rodata,"a"')
    for k, m in kernels:
        n = f"{k.name}_kernel"
        acc = (min(m['vgpr'], 256)+3)//4*4
        out += [".p2align 6", f".amdhsa_kernel {n}",
                f"  .amdhsa_next_free_vgpr {m['vgpr']}",
                f"  .amdhsa_next_free_sgpr {m['sgpr']}",
                f"  .amdhsa_accum_offset {m.get('accum', acc)}",
                "  .amdhsa_group_segment_fixed_size 0",
                "  .amdhsa_kernarg_size 80",
                "  .amdhsa_user_sgpr_count 2",
                "  .amdhsa_user_sgpr_kernarg_segment_ptr 1",
                "  .amdhsa_system_sgpr_workgroup_id_x 1",
                ".end_amdhsa_kernel"]
    return "\n".join(out) + "\n"

if __name__ == "__main__":
    ks = [gen_a()]
    for g in ("gen_b", "gen_c", "gen_d"):
        if g in globals(): ks.append(globals()[g]())
    open(sys.argv[1] if len(sys.argv) > 1 else "sequential_preLN__linear_attn_block__swiglu_ffn__prompt.s", "w").write(build(ks))
```

```python
import sys
sys.path.insert(0, "dev")
from layouts import *
import struct

def f2u(x): return struct.unpack("<I", struct.pack("<f", x))[0]
LOG2E = f2u(1.4426950408889634)
EPS_PHI = f2u(1e-6)
EPS_LN = f2u(1e-5)
INV_D = f2u(1.0/448.0)
ONES_BF = 0x3F803F80

import os
STAMPS = bool(int(os.environ.get('STAMPS', '0')))
STAMP_OFF = 16<<20
PF = bool(int(os.environ.get('PF', '1')))
CKS = int(os.environ.get('CKS', '16'))
CLP = int(os.environ.get('CLP', '12'))
DDEP = int(os.environ.get('DDEP', '3'))

class K:
    def __init__(self, name):
        self.name = name; self.lines = []; self.vm = []; self.uid = 0
    def e(self, s):
        for l in s.strip().split("\n"):
            self.lines.append("    " + l.strip())
    def label(self, l): self.lines.append(f"{l}:")
    def L(self, s): return f"L{self.name}_{s}"
    def vop(self, s, tag):
        self.e(s); self.vm.append(tag)
    def wait_vm(self, tag, extra=""):
        idx = max(i for i, t in enumerate(self.vm) if t == tag)
        n = len(self.vm) - 1 - idx
        assert n <= 63
        self.e(f"s_waitcnt vmcnt({n}) {extra}".strip())
    def stamp(self, i):
        if STAMPS: self.e(f"s_memrealtime s[{40+2*i}:{41+2*i}]")
    def end(self, sws, kid, n, drain=True):
        if STAMPS:
            if drain: self.e("s_waitcnt vmcnt(0)")
            self.stamp(n)
            self.e("s_waitcnt lgkmcnt(0)")
            self.e("s_mov_b64 exec, 1")
            for i in range(8):
                self.e(f"v_mov_b32 v{16+i}, s{40+2*i}" if i <= n else f"v_mov_b32 v{16+i}, 0")
            self.e(f"v_lshrrev_b32 v1, 6, v0")
            self.e(f"v_lshlrev_b32 v1, 5, v1")
            self.e(f"s_lshl_b32 s38, s2, 8")
            self.e(f"s_add_u32 s38, s38, {STAMP_OFF + kid*65536*2}")
            self.e(f"s_mov_b32 s{sws+2}, {STAMP_OFF + 8*65536*2}")
            self.e(f"buffer_store_dwordx4 v[16:19], v1, s[{sws}:{sws+3}], s38 offen")
            self.e(f"buffer_store_dwordx4 v[20:23], v1, s[{sws}:{sws+3}], s38 offen offset:16")
        self.e("s_endpgm")
    def nop(self, n):
        while n > 0:
            k = min(n, 16); self.e(f"s_nop {k-1}"); n -= k

def vr(b, n): return f"v[{b}:{b+n-1}]"

def srd_consts(k, base, nbytes):
    k.e(f"s_mov_b32 s{base+2}, {nbytes}")
    k.e(f"s_mov_b32 s{base+3}, 0x20000")

def phi_ops(k, dst, acc, rstd, t1, t2, s_eps):
    k.e(f"v_fma_f32 v{t1}, v{acc}, v{rstd}, s{s_eps}")
    k.e(f"v_mul_f32 v{t2}, 0x{LOG2E:x}, v{t1}")
    k.e(f"v_min_f32 v{t2}, 0, v{t2}")
    k.e(f"v_exp_f32 v{t2}, v{t2}")
    k.e(f"v_max_f32 v{t1}, s{s_eps}, v{t1}")
    k.e(f"v_add_f32 v{dst}, v{t1}, v{t2}")

def hilo_w(k, fr, p, t):
    k.e(f"v_cvt_pk_bf16_f32 v{fr+1}, v{p}, 0")
    k.e(f"v_mov_b32 v{fr+2}, 0")
    k.e(f"v_lshlrev_b32 v{t}, 16, v{fr+1}")
    k.e(f"v_sub_f32 v{t}, v{p}, v{t}")
    k.e(f"v_mov_b32 v{fr+3}, 0")
    k.e(f"v_cvt_pk_bf16_f32 v{fr}, v{p}, v{t}")

def hilo_x(k, fr, nm, t):
    k.e(f"v_cvt_pk_bf16_f32 v{fr}, v{nm}, v{nm}")
    k.e(f"v_and_b32 v{t}, 0xffff0000, v{fr}")
    k.e(f"v_sub_f32 v{t}, v{nm}, v{t}")
    k.e(f"v_cvt_pk_bf16_f32 v{fr+1}, v{t}, 0")

def gen_a():
    k = K("ka")
    SX, SW, SWS, SDB = 4, 8, 12, 16
    sW, sRB, sH, sx, skv, sq, sT, sT2, sEPS, sONE = 20, 21, 22, 23, 24, 25, 26, 27, 28, 29
    SLOT = 24576
    MISC = 6*SLOT
    WQ1, WQ2 = 0, 2*SLOT
    C6SLOT = 1
    PART = 3*SLOT
    CSX = MISC + 2048
    k.stamp(0)
    k.e(f"""
    s_cmp_ge_u32 s2, 256
    s_cbranch_scc1 {k.L('end')}
    s_load_dwordx2 s[{SX}:{SX+1}], s[0:1], 0
    s_load_dwordx2 s[{SW}:{SW+1}], s[0:1], 8
    s_load_dwordx2 s[{SDB}:{SDB+1}], s[0:1], 64
    s_load_dwordx2 s[{SWS}:{SWS+1}], s[0:1], 72
    v_lshrrev_b32 v5, 6, v0
    v_lshrrev_b32 v6, 3, v0
    v_readfirstlane_b32 s{sW}, v5
    v_and_b32 v7, 0x38, v6
    v_add_u32 v7, v6, v7
    v_and_b32 v8, 7, v0
    v_bfe_u32 v9, v0, 4, 2
    v_xor_b32 v9, v8, v9
    v_mul_u32_u24 v1, 896, v7
    v_lshl_add_u32 v1, v9, 4, v1
    v_xor_b32 v2, 64, v1
    v_add_u32 v2, 6144, v2
    v_bfe_u32 v9, v0, 4, 1
    v_lshlrev_b32 v9, 2, v9
    v_xor_b32 v9, v8, v9
    v_mul_u32_u24 v3, 2688, v6
    v_and_b32 v8, 3, v9
    v_lshl_add_u32 v3, v8, 4, v3
    v_lshrrev_b32 v9, 2, v9
    v_mul_u32_u24 v9, 896, v9
    v_add_u32 v3, v3, v9
    s_and_b32 s{sT}, s2, 7
    s_lshr_b32 s{sT2}, s2, 3
    s_lshr_b32 s{sRB}, s{sT}, 1
    s_lshl_b32 s{sRB}, s{sRB}, 2
    s_lshr_b32 s{sH}, s{sT2}, 3
    s_add_u32 s{sRB}, s{sRB}, s{sH}
    s_and_b32 s{sH}, s{sT}, 1
    s_lshl_b32 s{sH}, s{sH}, 3
    s_and_b32 s{sT2}, s{sT2}, 7
    s_add_u32 s{sH}, s{sH}, s{sT2}
    s_mul_i32 s{sx}, s{sRB}, {128*896}
    s_mul_i32 s{sq}, s{sH}, 56
    s_add_u32 s{skv}, s{sq}, 896
    s_mul_i32 m0, s{sW}, 3072
    """)
    srd_consts(k, SX, S*D*2)
    srd_consts(k, SW, D*3*D*2 + 2048)
    srd_consts(k, SWS, WS_USED)
    srd_consts(k, SDB, 256)
    k.e(f"""
    s_mov_b32 s{sEPS}, 0x{EPS_PHI:x}
    s_mov_b32 s{sONE}, 0x{ONES_BF:x}
    s_waitcnt lgkmcnt(0)
    s_sub_u32 s{SW}, s{SW}, 2048
    s_subb_u32 s{SW+1}, s{SW+1}, 0
    """)
    k.stamp(1)
    k.e(f"""
    s_cmp_lg_u32 s{sRB}, 0
    s_cbranch_scc1 {k.L('nozero')}
    s_cmp_lt_u32 s{sW}, 4
    s_cbranch_scc1 {k.L('nozero')}
    v_mov_b32 v12, 0
    v_mov_b32 v13, 0
    v_mov_b32 v14, 0
    v_mov_b32 v15, 0
    v_and_b32 v10, 255, v0
    v_lshlrev_b32 v10, 4, v10
    s_lshl_b32 s{sT}, s{sH}, 12
    buffer_store_dwordx4 v[12:15], v10, s[{SWS}:{SWS+3}], s{sT} offen sc1
    """)
    k.label(k.L('nozero'))
    def issue_chunk(c):
        k.vop(f"buffer_load_dwordx4 v1, s[{SX}:{SX+3}], s{sx} offen lds", f"c{c}")
        k.vop(f"buffer_load_dwordx4 v2, s[{SX}:{SX+3}], s{sx} offen offset:1024 lds", f"c{c}")
        k.vop(f"buffer_load_dwordx4 v3, s[{SW}:{SW+3}], s{skv} offen offset:2048 lds", f"c{c}")
    if PF:
        k.e(f"""
        s_lshr_b32 s{sT}, s2, 3
        s_cmp_ge_u32 s{sW}, 2
        s_cbranch_scc1 {k.L('pfw')}
        s_mul_i32 s{sT}, s{sT}, {112*128}
        s_bfe_u32 s{sT2}, s2, 0x20001
        s_mul_i32 s{sT2}, s{sT2}, {512*896}
        s_add_u32 s{sT}, s{sT}, s{sT2}
        v_min_u32 v10, 111, v0
        v_lshlrev_b32 v10, 7, v10
        buffer_load_dword v11, v10, s[{SX}:{SX+3}], s{sT} offen
        s_branch {k.L('pfd')}
        """)
        k.label(k.L('pfw'))
        k.e(f"""
        s_cmp_ge_u32 s{sW}, 6
        s_cbranch_scc1 {k.L('pfd')}
        s_mul_i32 s{sT}, s{sT}, {14*2688}
        s_and_b32 s{sT2}, s2, 1
        s_mul_i32 s{sT2}, s{sT2}, 384
        s_add_u32 s{sT}, s{sT}, s{sT2}
        s_add_u32 s{sT}, s{sT}, 2048
        v_subrev_u32 v10, 128, v0
        v_lshrrev_b32 v11, 4, v10
        v_min_u32 v11, 13, v11
        v_mul_u32_u24 v11, 2688, v11
        v_bfe_u32 v12, v10, 2, 2
        v_min_u32 v12, 2, v12
        v_mul_u32_u24 v12, 896, v12
        v_and_b32 v10, 3, v10
        v_lshl_add_u32 v10, v10, 7, v11
        v_add_u32 v10, v10, v12
        buffer_load_dword v11, v10, s[{SW}:{SW+3}], s{sT} offen
        """)
        k.label(k.L('pfd'))
    slot_of = [0, 1, 2, 3, 4, 5, C6SLOT]
    def issue_next(c):
        if c > 0:
            k.e(f"s_mul_i32 s{sT}, s{sW}, 3072")
            k.e(f"s_add_u32 m0, s{sT}, {slot_of[c]*SLOT}")
            k.e(f"s_add_u32 s{sx}, s{sx}, 128")
            k.e(f"s_add_u32 s{skv}, s{skv}, {64*2688}")
        issue_chunk(c)
    issue_next(0)
    k.e("s_barrier")
    issue_next(1)
    k.e(f"""
    v_bfe_u32 v8, v0, 2, 4
    v_mul_u32_u24 v4, 2688, v8
    v_and_b32 v8, 3, v0
    v_lshl_add_u32 v4, v8, 4, v4
    s_mul_i32 s{sT}, s{sW}, {32*2688}
    s_add_u32 s{sq}, s{sq}, s{sT}
    s_add_u32 s{sq}, s{sq}, 2048
    """)
    def late(c):
        if c+2 <= 5:
            issue_next(c+2)
        if c == 4:
            k.e(f"s_lshl_b32 s{sT}, s{sW}, 11")
            k.e(f"s_add_u32 m0, s{sT}, {WQ1}")
            k.e(f"s_add_u32 s{sT2}, s{sq}, {16*2688-1024}")
            k.vop(f"buffer_load_dwordx4 v4, s[{SW}:{SW+3}], s{sq} offen lds", "wq1")
            k.vop(f"buffer_load_dwordx4 v4, s[{SW}:{SW+3}], s{sT2} offen offset:1024 lds", "wq1")
            issue_next(6)
        if c == 5:
            k.e(f"s_lshl_b32 s{sT}, s{sW}, 11")
            k.e(f"s_add_u32 m0, s{sT}, {WQ2}")
            k.e(f"s_add_u32 s{sq}, s{sq}, {256*2688}")
            k.e(f"s_add_u32 s{sT2}, s{sq}, {16*2688-1024}")
            k.vop(f"buffer_load_dwordx4 v4, s[{SW}:{SW+3}], s{sq} offen lds", "wq2")
            k.vop(f"buffer_load_dwordx4 v4, s[{SW}:{SW+3}], s{sT2} offen offset:1024 lds", "wq2")
    AX = 172
    k.e(f"""
    v_and_b32 v8, 31, v0
    v_bfe_u32 v9, v0, 5, 1
    v_bfe_u32 v10, v0, 6, 2
    v_lshrrev_b32 v11, 4, v8
    v_lshl_add_u32 v10, v10, 1, v11
    v_mul_u32_u24 v10, 3072, v10
    v_and_b32 v11, 15, v8
    v_lshl_add_u32 v10, v11, 7, v10
    v_bfe_u32 v11, v8, 1, 3
    v_xor_b32 v11, v11, v9
    """)
    for kk in range(4):
        k.e(f"v_xor_b32 v12, {2*kk}, v11")
        k.e(f"v_lshl_add_u32 v{AX+kk}, v12, 4, v10")
    k.e(f"""
    s_cmp_ge_u32 s{sW}, 4
    s_cbranch_scc1 {k.L('q')}
    """)
    vm_split = list(k.vm)
    ACK, ACV = 16, 32
    BUF = [48, 60]
    AWK, AWV = 76, 77
    CSK, CSV = 78, 80
    RSTD, XE, WEK, WEV = 84, 100, 104, 108
    PKF, VF, KVA, T = 112, 120, 128, 144
    k.e(f"""
    v_mul_u32_u24 v10, 3072, v9
    v_bfe_u32 v11, v0, 2, 2
    v_lshl_add_u32 v10, v11, 7, v10
    v_bfe_u32 v12, v0, 4, 1
    v_lshl_add_u32 v10, v12, 5, v10
    v_and_b32 v12, 3, v0
    v_lshl_add_u32 v10, v12, 3, v10
    v_lshrrev_b32 v11, 1, v11
    v_lshl_add_u32 v10, v11, 6, v10
    v_add_u32 v{AWK}, 2048, v10
    v_xor_b32 v{AWV}, 64, v{AWK}
    v_mov_b32 v{CSK}, 0
    v_mov_b32 v{CSK+1}, 0
    v_mov_b32 v{CSV}, 0
    v_mov_b32 v{CSV+1}, 0
    """)
    cur_base = 0
    def rebase(regs, slot, cur):
        want = (slot // 2) * 2 * SLOT
        if want != cur:
            d = want - cur
            for r in regs:
                if d > 0: k.e(f"v_add_u32 v{r}, {d}, v{r}")
                else: k.e(f"v_subrev_u32 v{r}, {-d}, v{r}")
        return want
    def kv_reads(slot, kk, b):
        o = slot*SLOT - cur_base
        k.e(f"ds_read_b128 {vr(BUF[b],4)}, v{AX+kk} offset:{o}")
        for ri in range(2):
            k.e(f"ds_read_b64_tr_b16 {vr(BUF[b]+4+2*ri,2)}, v{AWK} offset:{o+kk*6144+ri*512}")
        for ri in range(2):
            k.e(f"ds_read_b64_tr_b16 {vr(BUF[b]+8+2*ri,2)}, v{AWV} offset:{o+kk*6144+ri*512}")
    for c in range(7):
        cur_base = rebase([AX, AX+1, AX+2, AX+3, AWK, AWV], slot_of[c], cur_base)
        k.wait_vm(f"c{c}")
        k.e("s_barrier")
        if c == 0: k.stamp(2)
        if c == 6: k.stamp(3)
        kv_reads(slot_of[c], 0, 0)
        kv_reads(slot_of[c], 1, 1)
        for kk in range(4):
            b = kk & 1
            k.e(f"s_waitcnt lgkmcnt({5 if kk < 3 else 0})")
            first = (c == 0 and kk == 0)
            k.e(f"v_mfma_f32_32x32x16_bf16 {vr(ACK,16)}, {vr(BUF[b],4)}, {vr(BUF[b]+4,4)}, {'0' if first else vr(ACK,16)}")
            k.e(f"v_mfma_f32_32x32x16_bf16 {vr(ACV,16)}, {vr(BUF[b],4)}, {vr(BUF[b]+8,4)}, {'0' if first else vr(ACV,16)}")
            k.e(f"s_cmp_lg_u32 s{sW}, {kk}")
            k.e(f"s_cbranch_scc1 {k.L(f'cs{c}_{kk}')}")
            for j in range(4):
                k.e(f"v_dot2c_f32_bf16 v{CSK}, s{sONE}, v{BUF[b]+4+j}")
                k.e(f"v_dot2c_f32_bf16 v{CSK+1}, s{sONE}, v{BUF[b]+8+j}")
            k.label(k.L(f'cs{c}_{kk}'))
            if kk < 2:
                kv_reads(slot_of[c], kk+2, b)
        late(c)
    k.e(f"v_mov_b32 v5, 0")
    k.e(f"s_lshl_b32 s{sT2}, s{sH}, 4")
    k.vop(f"buffer_load_dwordx4 {vr(T+4,4)}, v5, s[{SDB}:{SDB+3}], s{sT2} offen sc1", "poll")
    k.e(f"""
    v_lshlrev_b32 v12, 3, v0
    v_add_u32 v12, {CSX}, v12
    v_and_b32 v13, 63, v0
    v_lshlrev_b32 v13, 3, v13
    v_add_u32 v13, {CSX}, v13
    ds_write_b64 v12, {vr(CSK,2)}
    """)
    k.e(f"""
    v_and_b32 v10, 31, v0
    v_bfe_u32 v11, v0, 6, 2
    v_lshl_add_u32 v10, v11, 5, v10
    v_lshlrev_b32 v10, 3, v10
    v_add_u32 v10, {MISC}, v10
    v_lshlrev_b32 v11, 7, v11
    v_lshl_add_u32 v11, v9, 4, v11
    v_add_u32 v11, {MISC+1024}, v11
    v_mov_b32 v{XE+2}, 0
    v_mov_b32 v{XE+3}, 0
    s_waitcnt lgkmcnt(0)
    s_barrier
    ds_read2st64_b64 {vr(PKF,4)}, v13 offset0:0 offset1:1
    ds_read2st64_b64 {vr(PKF+4,4)}, v13 offset0:2 offset1:3
    ds_read_b64 {vr(XE,2)}, v10
    """)
    k.stamp(4)
    for a in range(4):
        k.e(f"ds_read_b128 {vr(RSTD+4*a,4)}, v11 offset:{a*32}")
    k.e(f"""
    s_waitcnt lgkmcnt(5)
    v_add_f32 v{PKF}, v{PKF}, v{PKF+2}
    v_add_f32 v{PKF+1}, v{PKF+1}, v{PKF+3}
    v_add_f32 v{PKF+4}, v{PKF+4}, v{PKF+6}
    v_add_f32 v{PKF+5}, v{PKF+5}, v{PKF+7}
    v_add_f32 v{CSK}, v{PKF}, v{PKF+4}
    v_add_f32 v{CSV}, v{PKF+1}, v{PKF+5}
    """)
    hilo_w(k, WEK, CSK, T)
    hilo_w(k, WEV, CSV, T+1)
    k.e(f"""
    s_waitcnt lgkmcnt(4)
    s_nop 0
    v_mfma_f32_32x32x16_bf16 {vr(ACK,16)}, {vr(XE,4)}, {vr(WEK,4)}, {vr(ACK,16)}
    v_mfma_f32_32x32x16_bf16 {vr(ACV,16)}, {vr(XE,4)}, {vr(WEV,4)}, {vr(ACV,16)}
    s_waitcnt lgkmcnt(0)
    """)
    k.nop(16)
    for i in range(0, 16, 2):
        phi_ops(k, ACK+i, ACK+i, RSTD+i, T, T+1, sEPS)
        phi_ops(k, ACK+i+1, ACK+i+1, RSTD+i+1, T+2, T+3, sEPS)
        k.e(f"v_cvt_pk_bf16_f32 v{PKF+i//2}, v{ACK+i}, v{ACK+i+1}")
    for i in range(0, 16, 2):
        k.e(f"v_pk_mul_f32 {vr(ACV+i,2)}, {vr(ACV+i,2)}, {vr(RSTD+i,2)}")
        k.e(f"v_cvt_pk_bf16_f32 v{VF+i//2}, v{ACV+i}, v{ACV+i+1}")
    k.e("s_mov_b32 exec_lo, 0x10000000\ns_mov_b32 exec_hi, 0x10000000")
    for i in range(8):
        k.e(f"v_mov_b32 v{VF+i}, s{sONE}")
    k.e("s_mov_b64 exec, -1")
    k.e(f"""
    v_and_b32 v10, 63, v0
    v_lshlrev_b32 v10, 4, v10
    v_bfe_u32 v11, v0, 6, 2
    v_lshl_add_u32 v10, v11, 12, v10
    v_add_u32 v10, {PART}, v10
    v_mfma_f32_32x32x16_bf16 {vr(KVA,16)}, {vr(PKF,4)}, {vr(VF,4)}, 0
    v_mfma_f32_32x32x16_bf16 {vr(KVA,16)}, {vr(PKF+4,4)}, {vr(VF+4,4)}, {vr(KVA,16)}
    v_and_b32 v12, 63, v0
    v_lshlrev_b32 v12, 2, v12
    v_lshl_add_u32 v12, v11, 10, v12
    v_add_u32 v13, {PART}, v12
    s_lshl_b32 s{sT}, s{sH}, 12
    """)
    k.nop(16)
    for a in range(4):
        k.e(f"ds_write_b128 v10, {vr(KVA+4*a,4)} offset:{a*1024}")
    k.wait_vm("wq2", "lgkmcnt(0)")
    k.e("s_barrier")
    k.stamp(5)
    for u in range(4):
        k.e(f"ds_read2st64_b32 {vr(ACK+4*u,2)}, v13 offset0:{u} offset1:{u+16}")
        k.e(f"ds_read2st64_b32 {vr(ACK+4*u+2,2)}, v13 offset0:{u+32} offset1:{u+48}")
    k.e("s_waitcnt vmcnt(0)")
    k.label(k.L('poll'))
    k.e(f"""
    v_min_u32 v{T}, v{T+4}, v{T+5}
    v_min3_u32 v{T}, v{T}, v{T+6}, v{T+7}
    v_cmp_eq_u32 vcc, 0, v{T}
    s_cbranch_vccz {k.L('pollok')}
    s_sleep 2
    buffer_load_dwordx4 {vr(T+4,4)}, v5, s[{SDB}:{SDB+3}], s{sT2} offen sc1
    s_waitcnt vmcnt(0)
    s_branch {k.L('poll')}
    """)
    k.label(k.L('pollok'))
    k.e("s_waitcnt lgkmcnt(0)")
    for u in range(4):
        k.e(f"v_add_f32 v{ACK+4*u}, v{ACK+4*u}, v{ACK+4*u+1}")
        k.e(f"v_add_f32 v{ACK+4*u+2}, v{ACK+4*u+2}, v{ACK+4*u+3}")
        k.e(f"v_add_f32 v{ACK+4*u}, v{ACK+4*u}, v{ACK+4*u+2}")
        if u == 2:
            k.e(f"s_cmp_eq_u32 s{sW}, 3\ns_cbranch_scc1 {k.L('kvend')}")
        k.e(f"buffer_atomic_add_f32 v{ACK+4*u}, v12, s[{SWS}:{SWS+3}], s{sT} offen offset:{u*256}")
    k.label(k.L('kvend'))
    k.e("s_barrier")
    k.stamp(6)
    k.end(SWS, 0, 7)
    k.label(k.L('q'))
    k.vm = list(vm_split)
    XQ, ACQ, WB = 16, 128, 144
    SUM, SQ, CSQ, AWQ, T = 160, 162, 164, 166, 176
    XE2, WE2, RS = 180, 184, 167
    k.e(f"""
    v_bfe_u32 v11, v0, 2, 2
    v_lshl_add_u32 v10, v9, 3, v11
    v_lshlrev_b32 v10, 6, v10
    v_and_b32 v11, 1, v0
    v_lshl_add_u32 v10, v11, 5, v10
    v_bfe_u32 v11, v0, 4, 1
    v_lshl_add_u32 v10, v11, 4, v10
    v_bfe_u32 v11, v0, 1, 1
    v_lshl_add_u32 v{AWQ}, v11, 3, v10
    """)
    for r in (SUM, SUM+1, SQ, SQ+1, CSQ, CSQ+1):
        k.e(f"v_mov_b32 v{r}, 0")
    cur_base = 0
    for c in range(7):
        cur_base = rebase([AX, AX+1, AX+2, AX+3], slot_of[c], cur_base)
        k.wait_vm(f"c{c}")
        k.e("s_barrier")
        if c == 0: k.stamp(2)
        if c == 6: k.stamp(3)
        o = slot_of[c]*SLOT - cur_base
        for kk in range(4):
            k.e(f"ds_read_b128 {vr(XQ+16*c+4*kk,4)}, v{AX+kk} offset:{o}")
        if c == 0:
            k.e(f"""
            s_cmp_lg_u32 s{sRB}, 0
            s_cbranch_scc1 {k.L('noflag')}
            s_lshl_b32 s{sT}, s{sH}, 2
            s_add_u32 s{sT}, s{sT}, s{sW}
            s_sub_u32 s{sT}, s{sT}, 4
            s_lshl_b32 s{sT}, s{sT}, 2
            v_mov_b32 v5, 0
            v_mov_b32 v12, 1
            s_mov_b64 exec, 1
            buffer_store_dword v12, v5, s[{SDB}:{SDB+3}], s{sT} offen sc1
            s_mov_b64 exec, -1
            """)
            k.label(k.L('noflag'))
        for kk in range(4):
            k.e(f"s_waitcnt lgkmcnt({3-kk})")
            for j in range(4):
                r = XQ+16*c+4*kk+j
                k.e(f"v_dot2c_f32_bf16 v{SUM+(j&1)}, s{sONE}, v{r}")
                k.e(f"v_dot2c_f32_bf16 v{SQ+(j&1)}, v{r}, v{r}")
        late(c)
    NB = 4
    def wq_read(kap):
        base = WQ1 + kap*1024 if kap < 16 else WQ2 + (kap-16)*1024
        b = WB + 4*(kap % NB)
        for ri in range(2):
            k.e(f"ds_read_b64_tr_b16 {vr(b+2*ri,2)}, v{AWQ} offset:{base+ri*256}")
    k.nop(3)
    k.e(f"""
    v_add_f32 v{SUM}, v{SUM}, v{SUM+1}
    v_add_f32 v{SQ}, v{SQ}, v{SQ+1}
    v_mov_b32 v{SUM+1}, v{SUM}
    v_mov_b32 v{SQ+1}, v{SQ}
    v_and_b32 v10, 31, v0
    v_bfe_u32 v11, v0, 6, 2
    v_permlane32_swap_b32 v{SUM}, v{SUM+1}
    v_permlane32_swap_b32 v{SQ}, v{SQ+1}
    v_lshl_add_u32 v10, v11, 5, v10
    v_add_f32 v{SUM}, v{SUM}, v{SUM+1}
    v_add_f32 v{SQ}, v{SQ}, v{SQ+1}
    v_mul_f32 v{SUM}, 0x{INV_D|0x80000000:x}, v{SUM}
    v_mul_f32 v{SQ}, 0x{INV_D:x}, v{SQ}
    v_fma_f32 v{SQ}, -v{SUM}, v{SUM}, v{SQ}
    v_max_f32 v{SQ}, 0, v{SQ}
    v_add_f32 v{SQ}, 0x{EPS_LN:x}, v{SQ}
    v_rsq_f32 v{RS}, v{SQ}
    """)
    hilo_x(k, XE2, SUM, T)
    k.e(f"""
    v_lshlrev_b32 v11, 2, v10
    v_lshlrev_b32 v10, 3, v10
    v_add_u32 v10, {MISC}, v10
    v_add_u32 v11, {MISC+1024}, v11
    ds_write_b64 v10, {vr(XE2,2)}
    ds_write_b32 v11, v{RS}
    v_mov_b32 v{XE2+2}, 0
    v_mov_b32 v{XE2+3}, 0
    s_waitcnt lgkmcnt(0)
    s_barrier
    """)
    def q_range(k0, k1):
        for kap in range(k0, min(k0+NB-1, k1)):
            wq_read(kap)
        for kap in range(k0, k1):
            if kap+NB-1 < k1:
                wq_read(kap+NB-1)
            rem = min(k1-1-kap, NB-1)
            k.e(f"s_waitcnt lgkmcnt({2*rem})")
            b = WB + 4*(kap % NB)
            k.e(f"v_mfma_f32_32x32x16_bf16 {vr(ACQ,16)}, {vr(b,4)}, {vr(XQ+4*kap,4)}, {'0' if kap == 0 else vr(ACQ,16)}")
            k.e(f"s_cmp_lg_u32 s{sW}, {4+(kap&3)}")
            k.e(f"s_cbranch_scc1 {k.L(f'cq{kap}')}")
            for j in range(4):
                k.e(f"v_dot2c_f32_bf16 v{CSQ+(j&1)}, s{sONE}, v{b+j}")
            k.label(k.L(f'cq{kap}'))
    k.stamp(4)
    q_range(0, 16)
    k.wait_vm("wq2")
    k.e("s_barrier")
    k.stamp(5)
    q_range(16, 28)
    k.e(f"""
    v_lshlrev_b32 v12, 2, v0
    v_add_u32 v12, {CSX+1024}, v12
    v_and_b32 v13, 63, v0
    v_lshlrev_b32 v13, 2, v13
    v_add_u32 v13, {CSX+2048}, v13
    v_add_f32 v{CSQ}, v{CSQ}, v{CSQ+1}
    ds_write_b32 v12, v{CSQ}
    s_waitcnt lgkmcnt(0)
    s_barrier
    ds_read2st64_b32 {vr(WB,2)}, v13 offset0:0 offset1:1
    ds_read2st64_b32 {vr(WB+2,2)}, v13 offset0:2 offset1:3
    s_waitcnt lgkmcnt(0)
    v_add_f32 v{WB}, v{WB}, v{WB+1}
    v_add_f32 v{WB+2}, v{WB+2}, v{WB+3}
    v_add_f32 v{CSQ}, v{WB}, v{WB+2}
    """)
    hilo_w(k, WE2, CSQ, T)
    k.e(f"""
    v_and_b32 v10, 63, v0
    v_lshlrev_b32 v10, 4, v10
    v_mfma_f32_32x32x16_bf16 {vr(ACQ,16)}, {vr(WE2,4)}, {vr(XE2,4)}, {vr(ACQ,16)}
    s_lshl_b32 s{sT}, s{sRB}, 2
    s_add_u32 s{sT}, s{sT}, s{sW}
    s_sub_u32 s{sT}, s{sT}, 4
    s_lshl_b32 s{sT}, s{sT}, 4
    s_add_u32 s{sT}, s{sT}, s{sH}
    s_lshl_b32 s{sT}, s{sT}, 11
    s_add_u32 s{sT}, s{sT}, {PQ_OFF}
    """)
    k.nop(12)
    for i in range(0, 16, 2):
        phi_ops(k, ACQ+i, ACQ+i, RS, T, T+1, sEPS)
        phi_ops(k, ACQ+i+1, ACQ+i+1, RS, T+2, T+3, sEPS)
        k.e(f"v_cvt_pk_bf16_f32 v{WB+i//2}, v{ACQ+i}, v{ACQ+i+1}")
        if i == 6:
            k.e(f"buffer_store_dwordx4 {vr(WB,4)}, v10, s[{SWS}:{SWS+3}], s{sT} offen")
    k.e(f"buffer_store_dwordx4 {vr(WB+4,4)}, v10, s[{SWS}:{SWS+3}], s{sT} offen offset:1024")
    k.stamp(6)
    k.end(SWS, 0, 7)
    k.label(k.L('end'))
    k.e("s_endpgm")
    return k, dict(vgpr=192, sgpr=64, grid=256, block=512, lds=163840)


def gen_b():
    k = K("kb")
    SX, SW, SWS = 4, 8, 12
    sW, sRB, sCB, sT, sT2, sT3, sEPS, sONE, sKV, sPQ0, sPQ1, sWO = 20, 21, 22, 23, 24, 25, 26, 27, 28, 29, 30, 31
    WREG = 15360
    RED = 4*WREG
    k.stamp(0)
    k.e(f"""
    s_cmp_ge_u32 s2, 256
    s_cbranch_scc1 {k.L('end')}
    s_load_dwordx2 s[{SWS}:{SWS+1}], s[0:1], 72
    s_cmp_ge_u32 s2, 224
    s_cbranch_scc1 {k.L('cs')}
    s_load_dwordx2 s[{SX}:{SX+1}], s[0:1], 0
    s_load_dwordx2 s[{SW}:{SW+1}], s[0:1], 16
    v_lshrrev_b32 v5, 6, v0
    v_and_b32 v1, 63, v0
    v_readfirstlane_b32 s{sW}, v5
    v_lshlrev_b32 v1, 4, v1
    v_bfe_u32 v9, v0, 5, 1
    v_bfe_u32 v6, v0, 3, 2
    v_and_b32 v7, 3, v0
    v_lshl_add_u32 v6, v6, 2, v7
    v_bfe_u32 v7, v0, 2, 1
    v_mad_u32_u24 v7, v7, 14, v6
    v_cmp_gt_u32 vcc, 14, v6
    v_bfe_u32 v6, v0, 3, 3
    v_and_b32 v8, 7, v0
    v_cndmask_b32 v7, 28, v7, vcc
    v_lshlrev_b32 v2, 4, v7
    v_lshl_add_u32 v2, v9, 11, v2
    v_bfe_u32 v7, v0, 4, 1
    v_lshlrev_b32 v7, 2, v7
    v_xor_b32 v7, v7, v8
    v_mul_u32_u24 v3, 896, v6
    v_lshl_add_u32 v3, v7, 4, v3
    s_and_b32 s{sT}, s2, 7
    s_lshr_b32 s{sT2}, s2, 3
    s_mul_i32 s{sRB}, s{sT2}, 37
    s_lshr_b32 s{sRB}, s{sRB}, 8
    s_mul_i32 s{sCB}, s{sRB}, 7
    s_sub_u32 s{sCB}, s{sT2}, s{sCB}
    s_lshl_b32 s{sT}, s{sT}, 2
    s_add_u32 s{sRB}, s{sRB}, s{sT}
    s_lshl_b32 s{sKV}, s{sW}, 14
    s_and_b32 s{sT}, s{sW}, 1
    s_lshl_b32 s{sT2}, s{sRB}, 1
    s_add_u32 s{sT3}, s{sT2}, s{sT}
    s_lshl_b32 s{sPQ0}, s{sT3}, 15
    s_lshl_b32 s{sT}, s{sW}, 13
    s_add_u32 s{sPQ0}, s{sPQ0}, s{sT}
    s_add_u32 s{sPQ0}, s{sPQ0}, {PQ_OFF}
    s_xor_b32 s{sPQ1}, s{sPQ0}, 0x8000
    s_mul_i32 s{sWO}, s{sW}, {112*896}
    s_lshl_b32 s{sT}, s{sCB}, 7
    s_add_u32 s{sWO}, s{sWO}, s{sT}
    s_mul_i32 m0, s{sW}, {WREG}
    """)
    assert PQ_OFF % 0x10000 == 0
    srd_consts(k, SX, S*D*2)
    srd_consts(k, SW, D*D*2)
    srd_consts(k, SWS, WS_USED)
    k.e(f"""
    s_mov_b32 s{sEPS}, 0x{EPS_PHI:x}
    s_mov_b32 s{sONE}, 0x{ONES_BF:x}
    s_waitcnt lgkmcnt(0)
    """)
    k.stamp(1)
    KVF, PQR, ACC, OA, OF, WF, XR, T = 16, 80, 144, 208, 240, 16, 64, 10
    def ld_head(hh):
        for q in range(4):
            k.vop(f"buffer_load_dwordx4 {vr(KVF+16*hh+4*q,4)}, v2, s[{SWS}:{SWS+3}], s{sKV} offen offset:{q*512}", f"kv{hh}")
        if hh < 3: k.e(f"s_add_u32 s{sKV}, s{sKV}, 4096")
        for rt in range(2):
            for f in range(2):
                k.vop(f"buffer_load_dwordx4 {vr(PQR+16*hh+8*rt+4*f,4)}, v1, s[{SWS}:{SWS+3}], s{sPQ0 if rt == 0 else sPQ1} offen offset:{(hh&1)*2048+f*1024}", f"pq{hh}")
        if hh == 1:
            k.e(f"s_add_u32 s{sPQ0}, s{sPQ0}, 4096\ns_add_u32 s{sPQ1}, s{sPQ1}, 4096")
    def ld_wo(u0, u1):
        for u in range(u0, u1):
            k.vop(f"buffer_load_dwordx4 v3, s[{SW}:{SW+3}], s{sWO} offen offset:{(u&3)*1024} lds", f"wo{u}")
            if (u & 3) == 3:
                k.e(f"s_add_u32 m0, m0, 4096")
                k.e(f"s_add_u32 s{sWO}, s{sWO}, {7168+3072}")
            else:
                k.e(f"s_add_u32 s{sWO}, s{sWO}, {7168-1024}")
    if PF:
        k.e(f"""
        s_lshr_b32 s{sT}, s2, 3
        s_cmp_ge_u32 s{sW}, 2
        s_cbranch_scc1 {k.L('pfw')}
        s_mul_i32 s{sT}, s{sT}, {92*128}
        s_and_b32 s{sT2}, s2, 7
        s_lshl_b32 s{sT2}, s{sT2}, 18
        v_min_u32 v10, 91, v0
        v_lshlrev_b32 v10, 7, v10
        v_add_u32 v10, s{sT}, v10
        v_cmp_lt_u32 vcc, 0xffff, v10
        v_mov_b32 v11, s{sT2}
        s_nop 0
        v_cndmask_b32 v11, 0, v11, vcc
        v_add_u32 v10, v10, v11
        buffer_load_dword v11, v10, s[{SWS}:{SWS+3}], 0 offen
        s_branch {k.L('pfd')}
        """)
        k.label(k.L('pfw'))
        k.e(f"""
        s_mul_i32 s{sT}, s{sT}, {112*128}
        v_and_b32 v10, 127, v0
        v_min_u32 v10, 111, v10
        v_lshlrev_b32 v10, 7, v10
        buffer_load_dword v11, v10, s[{SW}:{SW+3}], s{sT} offen
        """)
        k.label(k.L('pfd'))
    ld_head(0); ld_head(1)
    k.e(f"""
    v_and_b32 v6, 31, v0
    v_mul_u32_u24 v4, 896, v6
    v_lshl_add_u32 v4, v9, 5, v4
    s_mul_i32 s{sT}, s{sT3}, {32*896}
    s_lshl_b32 s{sT2}, s{sCB}, 7
    s_add_u32 s{sT}, s{sT}, s{sT2}
    s_lshr_b32 s{sT2}, s{sW}, 1
    s_lshl_b32 s{sT2}, s{sT2}, 6
    s_add_u32 s{sT}, s{sT}, s{sT2}
    """)
    XR = 248
    def ld_x():
        k.vop(f"buffer_load_dwordx4 {vr(XR,4)}, v4, s[{SX}:{SX+3}], s{sT} offen", "x")
        k.vop(f"buffer_load_dwordx4 {vr(XR+4,4)}, v4, s[{SX}:{SX+3}], s{sT} offen offset:16", "x")
    AW0, AW1 = 5, 6
    k.e(f"""
    v_bfe_u32 v7, v0, 2, 2
    v_mad_u32_u24 v5, v9, 14, v7
    v_lshlrev_b32 v5, 7, v5
    v_lshrrev_b32 v7, 1, v7
    v_xor_b32 v7, v7, v9
    v_bfe_u32 v8, v0, 7, 1
    v_xor_b32 v7, v7, v8
    v_lshl_add_u32 v5, v7, 6, v5
    v_and_b32 v7, 1, v0
    v_lshl_add_u32 v5, v7, 5, v5
    v_bfe_u32 v7, v0, 4, 1
    v_lshl_add_u32 v5, v7, 4, v5
    v_bfe_u32 v7, v0, 1, 1
    v_lshl_add_u32 v5, v7, 3, v5
    v_lshrrev_b32 v7, 6, v0
    v_mul_u32_u24 v7, {WREG}, v7
    v_add_u32 v{AW0}, v5, v7
    v_xor_b32 v{AW1}, 64, v{AW0}
    """)
    assert WREG % 128 == 0
    wo_need = [3, 7, 10, 14]
    def o_stage(hh):
        k.wait_vm(f"kv{hh}")
        if hh == 0: k.stamp(2)
        if hh == 3: k.stamp(3)
        b = KVF+16*hh
        for i in range(8):
            k.e(f"v_cvt_pk_bf16_f32 v{b+i}, v{b+2*i}, v{b+2*i+1}")
        k.wait_vm(f"pq{hh}")
        k.e("s_nop 0")
        for rt in range(2):
            for f in range(2):
                k.e(f"v_mfma_f32_32x32x16_bf16 {vr(OA+16*rt,16)}, {vr(b+4*f,4)}, {vr(PQR+16*hh+8*rt+4*f,4)}, {'0' if f == 0 else vr(OA+16*rt,16)}")
    def norm_stage(hh):
        for rt in range(2):
            o = OA+16*rt
            d = PQR+16*hh+8*rt
            k.e(f"v_add_f32 v{o+14}, s{sEPS}, v{o+14}")
            k.e(f"v_rcp_f32 v{o+14}, v{o+14}")
            k.e(f"v_mov_b32 v{d+7}, 0")
            for i in range(0, 14, 2):
                k.e(f"v_pk_mul_f32 {vr(o+i,2)}, {vr(o+i,2)}, {vr(o+14,2)} op_sel_hi:[1,0]")
            for i in range(0, 14, 2):
                k.e(f"v_cvt_pk_bf16_f32 v{d+i//2}, v{o+i}, v{o+i+1}")
    def w_reads(hh):
        k.wait_vm(f"wo{wo_need[hh]}")
        for f in range(2):
            for ct in range(2):
                for ri in range(2):
                    k.e(f"ds_read_b64_tr_b16 {vr(KVF+16*hh+8*f+4*ct+2*ri,2)}, v{AW0 if ct == 0 else AW1} offset:{(28*hh+8*f+4*ri)*128}")
    def main_stage(hh):
        for f in range(2):
            for ct in range(2):
                k.e(f"s_waitcnt lgkmcnt({6-4*f-2*ct})")
                for rt in range(2):
                    a = ACC+16*(2*ct+rt)
                    first = (hh == 0 and f == 0)
                    k.e(f"v_mfma_f32_32x32x16_bf16 {vr(a,16)}, {vr(KVF+16*hh+8*f+4*ct,4)}, {vr(PQR+16*hh+8*rt+4*f,4)}, {'0' if first else vr(a,16)}")
    for hh in range(4):
        o_stage(hh)
        if hh == 0: ld_wo(0, 4); ld_head(2)
        if hh == 1: ld_wo(4, 8); ld_head(3)
        if hh == 2: ld_wo(8, 15); ld_x()
        if hh > 0:
            main_stage(hh-1)
        norm_stage(hh)
        w_reads(hh)
    k.stamp(4)
    k.e("s_nop 1")
    main_stage(3)
    k.e(f"""
    v_lshrrev_b32 v7, 6, v0
    s_movk_i32 s{sT}, 12288
    v_add_u32 v14, {RED}, v1
    v_mad_u32_u24 v8, v7, s{sT}, v14
    """)
    for tp in range(1, 4):
        k.e(f"v_xor_b32 v{10+tp}, {tp}, v7")
        k.e(f"v_mad_u32_u24 v{10+tp}, v{10+tp}, s{sT}, v14")
    k.nop(8)
    for tp in range(1, 4):
        for a in range(4):
            k.e(f"ds_write_b128 v{10+tp}, {vr(ACC+16*tp+4*a,4)} offset:{(tp-1)*4096+a*1024}")
    k.e(f"""
    s_lshl_b32 s{sT}, s{sCB}, 1
    s_lshr_b32 s{sT2}, s{sW}, 1
    s_add_u32 s{sT}, s{sT}, s{sT2}
    s_mul_i32 s{sT2}, s{sT3}, 14
    s_add_u32 s{sT}, s{sT}, s{sT2}
    s_lshl_b32 s{sT2}, s{sT}, 8
    s_add_u32 s{sT2}, s{sT2}, {ST_OFF}
    s_lshl_b32 s{sT}, s{sT}, 11
    s_add_u32 s{sT}, s{sT}, {HF_OFF}
    s_waitcnt lgkmcnt(0)
    s_barrier
    """)
    k.stamp(5)
    for j in range(3):
        for a in range(4):
            k.e(f"ds_read_b128 {vr(16+16*j+4*a,4)}, v8 offset:{j*4096+a*1024}")
    k.wait_vm("x")
    XU = 80
    for i in range(8):
        k.e(f"v_lshlrev_b32 v{XU+2*i}, 16, v{XR+i}")
        k.e(f"v_and_b32 v{XU+2*i+1}, 0xffff0000, v{XR+i}")
    for i in range(0, 16, 2):
        k.e(f"v_pk_add_f32 {vr(ACC+i,2)}, {vr(ACC+i,2)}, {vr(XU+i,2)}")
    k.e("v_mov_b32 v10, 0\nv_mov_b32 v11, 0")
    for j in range(3):
        k.e(f"s_waitcnt lgkmcnt({8-4*j})")
        for i in range(0, 16, 2):
            k.e(f"v_pk_add_f32 {vr(ACC+i,2)}, {vr(ACC+i,2)}, {vr(16+16*j+i,2)}")
    HO = 96
    for i in range(8):
        k.e(f"v_cvt_pk_bf16_f32 v{HO+i}, v{ACC+2*i}, v{ACC+2*i+1}")
    k.e(f"""
    buffer_store_dwordx4 {vr(HO,4)}, v1, s[{SWS}:{SWS+3}], s{sT} offen
    buffer_store_dwordx4 {vr(HO+4,4)}, v1, s[{SWS}:{SWS+3}], s{sT} offen offset:1024
    """)
    for i in range(8):
        k.e(f"v_dot2c_f32_bf16 v10, s{sONE}, v{HO+i}")
        k.e(f"v_dot2c_f32_bf16 v11, v{HO+i}, v{HO+i}")
    k.e(f"""
    v_and_b32 v6, 31, v0
    v_lshlrev_b32 v6, 3, v6
    s_nop 1
    v_mov_b32 v12, v10
    v_mov_b32 v13, v11
    s_nop 1
    v_permlane32_swap_b32 v10, v12
    v_permlane32_swap_b32 v11, v13
    s_nop 0
    v_add_f32 v10, v10, v12
    v_add_f32 v11, v11, v13
    s_mov_b32 exec_hi, 0
    buffer_store_dwordx2 v[10:11], v6, s[{SWS}:{SWS+3}], s{sT2} offen
    """)
    k.stamp(6)
    k.end(SWS, 1, 7)
    k.label(k.L('cs'))
    k.e(f"""
    s_cmp_ge_u32 s2, 252
    s_cbranch_scc1 {k.L('end')}
    s_load_dwordx4 s[16:19], s[0:1], 32
    v_lshrrev_b32 v5, 6, v0
    v_bfe_u32 v6, v0, 3, 3
    v_readfirstlane_b32 s{sW}, v5
    v_and_b32 v7, 7, v0
    v_mul_u32_u24 v1, 3584, v6
    v_lshl_add_u32 v1, v7, 4, v1
    s_sub_u32 s{sCB}, s2, 224
    s_and_b32 s{sT}, s{sW}, 1
    s_mul_i32 s{sT}, s{sT}, {224*3584}
    s_lshl_b32 s{sT2}, s{sCB}, 7
    s_add_u32 s{sT}, s{sT}, s{sT2}
    s_mov_b32 s{sEPS}, 0x3f80
    s_mov_b32 s{sONE}, 0x3f800000
    """)
    srd_consts(k, SW, D*F*2)
    srd_consts(k, SWS, WS_USED)
    k.e(f"""
    s_waitcnt lgkmcnt(0)
    s_cmp_ge_u32 s{sW}, 2
    s_cselect_b32 s{SW}, s18, s16
    s_cselect_b32 s{SW+1}, s19, s17
    """)
    for u in range(28):
        k.e(f"buffer_load_dwordx4 {vr(16+4*u,4)}, v1, s[{SW}:{SW+3}], s{sT} offen")
        if u < 27: k.e(f"s_add_u32 s{sT}, s{sT}, {8*3584}")
    for i in range(8):
        k.e(f"v_mov_b32 v{8+i}, 0")
    for u in range(28):
        k.e(f"s_waitcnt vmcnt({27-u})")
        for j in range(4):
            k.e(f"v_dot2c_f32_bf16 v{8+2*j}, s{sEPS}, v{16+4*u+j}")
            k.e(f"v_dot2c_f32_bf16 v{9+2*j}, s{sONE}, v{16+4*u+j}")
    k.e(f"""
    v_lshlrev_b32 v2, 5, v0
    v_bfe_u32 v3, v0, 6, 1
    v_lshlrev_b32 v3, 12, v3
    v_and_b32 v4, 63, v0
    v_lshl_add_u32 v3, v4, 2, v3
    ds_write_b128 v2, v[8:11]
    ds_write_b128 v2, v[12:15] offset:16
    s_waitcnt lgkmcnt(0)
    s_barrier
    s_cmp_ge_u32 s{sW}, 2
    s_cbranch_scc1 {k.L('end')}
    """)
    for i in range(8):
        k.e(f"ds_read2st64_b32 {vr(16+2*i,2)}, v3 offset0:{2*i} offset1:{2*i+1}")
    k.e(f"""
    s_mul_i32 s{sT}, s{sW}, {1792*4}
    s_lshl_b32 s{sT2}, s{sCB}, 8
    s_add_u32 s{sT}, s{sT}, s{sT2}
    s_add_u32 s{sT}, s{sT}, {CS_OFF}
    v_lshlrev_b32 v4, 2, v4
    s_waitcnt lgkmcnt(0)
    """)
    for st in (8, 4, 2, 1):
        for i in range(st):
            k.e(f"v_add_f32 v{16+i}, v{16+i}, v{16+i+st}")
    k.e(f"buffer_store_dword v16, v4, s[{SWS}:{SWS+3}], s{sT} offen")
    k.end(SWS, 1, 1)
    k.label(k.L('end'))
    k.e("s_endpgm")
    return k, dict(vgpr=256, sgpr=64, grid=256, block=256, lds=RED+49152)


def gen_c():
    k = K("kc")
    SG, SU, SWS = 4, 8, 12
    sW, sRB, sFB, sT, sT2, sRT, sWOFF, sH = 20, 21, 22, 23, 24, 25, 26, 27
    k.stamp(0)
    k.e(f"""
    s_cmp_ge_u32 s2, 224
    s_cbranch_scc1 {k.L('end')}
    s_load_dwordx2 s[{SG}:{SG+1}], s[0:1], 32
    s_load_dwordx2 s[{SU}:{SU+1}], s[0:1], 40
    s_load_dwordx2 s[{SWS}:{SWS+1}], s[0:1], 72
    v_lshrrev_b32 v5, 6, v0
    v_and_b32 v1, 63, v0
    v_readfirstlane_b32 s{sW}, v5
    v_lshlrev_b32 v1, 4, v1
    v_lshrrev_b32 v6, 3, v0
    v_and_b32 v8, 7, v0
    v_bfe_u32 v7, v0, 4, 1
    v_lshlrev_b32 v7, 2, v7
    v_xor_b32 v7, v7, v8
    v_mul_u32_u24 v3, 3584, v6
    v_lshl_add_u32 v3, v7, 4, v3
    s_and_b32 s{sT}, s2, 7
    s_lshr_b32 s{sT2}, s2, 3
    s_mul_i32 s{sRB}, s{sT2}, 37
    s_lshr_b32 s{sRB}, s{sRB}, 8
    s_mul_i32 s{sFB}, s{sRB}, 7
    s_sub_u32 s{sFB}, s{sT2}, s{sFB}
    s_and_b32 s{sT2}, s{sT}, 4
    s_add_u32 s{sRB}, s{sRB}, s{sT2}
    s_and_b32 s{sT2}, s{sT}, 3
    s_mul_i32 s{sT2}, s{sT2}, 7
    s_add_u32 s{sFB}, s{sFB}, s{sT2}
    s_lshl_b32 s{sRT}, s{sRB}, 3
    s_add_u32 s{sRT}, s{sRT}, s{sW}
    s_lshl_b32 s{sWOFF}, s{sFB}, 7
    s_mul_i32 s{sH}, s{sRT}, 28672
    s_add_u32 s{sH}, s{sH}, {HF_OFF}
    s_lshl_b32 m0, s{sW}, 11
    """)
    srd_consts(k, SG, D*F*2)
    srd_consts(k, SU, D*F*2+1024)
    srd_consts(k, SWS, WS_USED)
    k.e(f"""
    s_waitcnt lgkmcnt(0)
    s_sub_u32 s{SU}, s{SU}, 1024
    s_subb_u32 s{SU+1}, s{SU+1}, 0
    """)
    HFR, ACC, WF, STR, CSR = 16, 128, 192, 208, 224
    k.stamp(1)
    if PF:
        k.e(f"""
        s_lshr_b32 s{sT}, s2, 3
        s_cmp_ge_u32 s{sW}, 4
        s_cbranch_scc1 {k.L('pfw')}
        s_lshl_b32 s{sT}, s{sT}, 15
        s_bfe_u32 s{sT2}, s2, 0x10002
        s_mul_i32 s{sT2}, s{sT2}, {32*28672}
        s_add_u32 s{sT}, s{sT}, s{sT2}
        s_add_u32 s{sT}, s{sT}, {HF_OFF}
        v_lshlrev_b32 v10, 7, v0
        buffer_load_dword v11, v10, s[{SWS}:{SWS+3}], s{sT} offen
        s_branch {k.L('pfd')}
        """)
        k.label(k.L('pfw'))
        k.e(f"""
        s_mul_i32 s{sT}, s{sT}, {16*3584}
        s_and_b32 s{sT2}, s2, 3
        s_mul_i32 s{sT2}, s{sT2}, 896
        s_add_u32 s{sT}, s{sT}, s{sT2}
        v_bfe_u32 v10, v0, 3, 4
        v_mul_u32_u24 v10, 3584, v10
        v_and_b32 v11, 7, v0
        v_min_u32 v11, 6, v11
        v_lshl_add_u32 v10, v11, 7, v10
        s_cmp_ge_u32 s{sW}, 6
        s_cbranch_scc1 {k.L('pfu')}
        buffer_load_dword v11, v10, s[{SG}:{SG+3}], s{sT} offen
        s_branch {k.L('pfd')}
        """)
        k.label(k.L('pfu'))
        k.e(f"buffer_load_dword v11, v10, s[{SU}:{SU+3}], s{sT} offen offset:1024")
        k.label(k.L('pfd'))
    def chunk_loads(c):
        L = []
        def w0():
            if c > 0:
                k.e(f"s_add_u32 m0, m0, 16384")
                k.e(f"s_add_u32 s{sWOFF}, s{sWOFF}, {64*3584}")
            k.vop(f"buffer_load_dwordx4 v3, s[{SG}:{SG+3}], s{sWOFF} offen lds", f"w{c}")
        def w1():
            k.vop(f"buffer_load_dwordx4 v3, s[{SU}:{SU+3}], s{sWOFF} offen offset:1024 lds", f"w{c}")
        L += [w0, w1]
        for j in range(4):
            def hj(j=j):
                if j == 0 and c > 0: k.e(f"s_add_u32 s{sH}, s{sH}, 4096")
                k.vop(f"buffer_load_dwordx4 {vr(HFR+16*c+4*j,4)}, v1, s[{SWS}:{SWS+3}], s{sH} offen offset:{j*1024}", f"h{c}")
            L.append(hj)
        return L
    for f in chunk_loads(0): f()
    k.e("s_barrier")
    for f in chunk_loads(1): f()
    k.e(f"""
    v_bfe_u32 v9, v0, 5, 1
    v_and_b32 v6, 31, v0
    v_mul_u32_u24 v4, 1792, v9
    v_lshl_add_u32 v4, v6, 3, v4
    s_mul_i32 s{sT}, s{sRT}, 3584
    s_add_u32 s{sT}, s{sT}, {ST_OFF}
    v_bfe_u32 v7, v0, 2, 1
    v_bfe_u32 v8, v0, 3, 2
    v_lshlrev_b32 v7, 4, v7
    v_lshl_add_u32 v7, v8, 2, v7
    v_and_b32 v8, 3, v0
    v_add_lshl_u32 v7, v7, v8, 2
    s_lshl_b32 s{sT2}, s{sFB}, 8
    s_add_u32 s{sT2}, s{sT2}, {CS_OFF}
    """)
    k.e(f"v_mov_b32 v2, v7\ns_add_u32 s{sRB}, s{sT2}, 7168")
    stl = []
    for u in range(7):
        stl.append(lambda u=u: k.vop(f"buffer_load_dwordx2 {vr(STR+2*u,2)}, v4, s[{SWS}:{SWS+3}], s{sT} offen offset:{u*256}", "st"))
    for q in range(4):
        stl.append(lambda q=q: k.vop(f"buffer_load_dword v{CSR+q}, v2, s[{SWS}:{SWS+3}], s{sT2 if q < 2 else sRB} offen offset:{(q&1)*128}", "st"))
    AW0, AW1 = 10, 11
    k.e(f"""
    v_bfe_u32 v7, v0, 2, 2
    v_lshlrev_b32 v5, 12, v9
    v_lshl_add_u32 v5, v7, 7, v5
    v_lshrrev_b32 v7, 1, v7
    v_lshl_add_u32 v5, v7, 6, v5
    v_and_b32 v7, 1, v0
    v_lshl_add_u32 v5, v7, 5, v5
    v_bfe_u32 v7, v0, 4, 1
    v_lshl_add_u32 v5, v7, 4, v5
    v_bfe_u32 v7, v0, 1, 1
    v_lshl_add_u32 v{AW0}, v7, 3, v5
    v_xor_b32 v{AW1}, 64, v{AW0}
    v_add_u32 v12, 0x10000, v{AW0}
    v_add_u32 v13, 0x10000, v{AW1}
    """)
    def reads(kap, tau):
        c, tl, f = kap >> 2, (kap >> 1) & 1, kap & 1
        m, ct = tau >> 1, tau & 1
        o = c*16384 + tl*8192 + f*2048 + m*1024
        a = AW0 + ct
        if o >= 0x10000: o -= 0x10000; a += 2
        for ri in range(2):
            k.e(f"ds_read_b64_tr_b16 {vr(WF+4*tau+2*ri,2)}, v{a} offset:{o+ri*512}")
    KS = CKS
    units = [(kap, tau) for kap in range(KS) for tau in range(4)]
    units += [(kap, tau) for kap in range(KS, 28) for tau in (0, 2)] + [('x', 0), ('x', 2)]
    nA = len(units)
    units += [(kap, tau) for kap in range(KS, 28) for tau in (1, 3)] + [('x', 1), ('x', 3)]
    NU = len(units)
    DEP = 4
    T, XE, WE = 228, 232, 236
    C1, IR2 = STR+4, STR+2
    pend = []
    for c in range(2, 7):
        for i, f in enumerate(chunk_loads(c)):
            pend.append(((c-2)*CLP + 2*i, f))
    for i, f in enumerate(stl): pend.append((2*i+13, f))
    pend.sort(key=lambda x: x[0])
    kk = K("tmp")
    for u in range(1, 7):
        kk.e(f"v_add_f32 v{STR}, v{STR}, v{STR+2*u}")
        kk.e(f"v_add_f32 v{STR+1}, v{STR+1}, v{STR+2*u+1}")
    kk.e(f"""
    v_cmp_eq_u32 vcc, 0, v9
    v_mov_b32 v{STR+2}, v{STR}
    v_mov_b32 v{STR+3}, v{STR+1}
    v_cndmask_b32 v{CSR}, 0, v{CSR}, vcc
    v_cndmask_b32 v{CSR+1}, 0, v{CSR+1}, vcc
    v_permlane32_swap_b32 v{STR}, v{STR+2}
    v_permlane32_swap_b32 v{STR+1}, v{STR+3}
    v_cndmask_b32 v{CSR+2}, 0, v{CSR+2}, vcc
    v_cndmask_b32 v{CSR+3}, 0, v{CSR+3}, vcc
    v_add_f32 v{STR}, v{STR}, v{STR+2}
    v_add_f32 v{STR+1}, v{STR+1}, v{STR+3}
    v_mul_f32 v{STR}, 0x{INV_D|0x80000000:x}, v{STR}
    v_mul_f32 v{STR+1}, 0x{INV_D:x}, v{STR+1}
    v_fma_f32 v{STR+1}, -v{STR}, v{STR}, v{STR+1}
    v_max_f32 v{STR+1}, 0, v{STR+1}
    v_add_f32 v{STR+2}, 0x{EPS_LN:x}, v{STR+1}
    v_rsq_f32 v{STR+4}, v{STR+2}
    """)
    hilo_x(kk, XE, STR, T)
    kk.e(f"v_mov_b32 v{XE+2}, 0\nv_mov_b32 v{XE+3}, 0")
    kk.e(f"v_mul_f32 v{STR+4}, 0x{LOG2E|0x80000000:x}, v{STR+4}")
    for tau in range(4):
        hilo_w(kk, WE+4*tau, CSR+tau, T+1)
    kk.e(f"""
    v_bfe_u32 v7, v0, 4, 1
    v_mul_u32_u24 v4, 57344, v7
    v_lshl_add_u32 v4, v9, 9, v4
    v_and_b32 v7, 15, v0
    v_lshl_add_u32 v4, v7, 4, v4
    s_mul_i32 s{sT}, s{sRT}, 114688
    s_lshl_b32 s{sT2}, s{sFB}, 11
    s_add_u32 s{sT}, s{sT}, s{sT2}
    s_add_u32 s{sT}, s{sT}, {ACT_OFF}
    """)
    side1 = [l.strip() for l in kk.lines]
    def epi(ct, packed):
        kk = K("tmp")
        O = 16 + 8*ct
        g, u = ACC+16*ct, ACC+32+16*ct
        for i in range(0, 16, 2):
            t = 32 + (i % 8)
            if packed:
                kk.e(f"v_pk_mul_f32 {vr(t,2)}, {vr(g+i,2)}, {vr(C1,2)} op_sel_hi:[1,0]")
                kk.e(f"v_pk_mul_f32 {vr(g+i,2)}, {vr(g+i,2)}, {vr(u+i,2)}")
                kk.e(f"v_exp_f32 v{t}, v{t}")
                kk.e(f"v_exp_f32 v{t+1}, v{t+1}")
                kk.e("s_nop 0")
                kk.e(f"v_pk_fma_f32 {vr(t,2)}, {vr(t,2)}, {vr(IR2,2)}, {vr(IR2,2)} op_sel_hi:[1,0,0]")
                kk.e(f"v_rcp_f32 v{t}, v{t}")
                kk.e(f"v_rcp_f32 v{t+1}, v{t+1}")
                kk.e("s_nop 0")
                kk.e(f"v_pk_mul_f32 {vr(g+i,2)}, {vr(g+i,2)}, {vr(t,2)}")
            else:
                kk.e(f"v_mul_f32 v{t}, v{g+i}, v{C1}")
                kk.e(f"v_mul_f32 v{t+1}, v{g+i+1}, v{C1}")
                kk.e(f"v_exp_f32 v{t}, v{t}")
                kk.e(f"v_mul_f32 v{g+i}, v{g+i}, v{u+i}")
                kk.e(f"v_exp_f32 v{t+1}, v{t+1}")
                kk.e(f"v_mul_f32 v{g+i+1}, v{g+i+1}, v{u+i+1}")
                kk.e(f"v_fma_f32 v{t}, v{t}, v{IR2}, v{IR2}")
                kk.e(f"v_fma_f32 v{t+1}, v{t+1}, v{IR2}, v{IR2}")
                kk.e(f"v_rcp_f32 v{t}, v{t}")
                kk.e(f"v_rcp_f32 v{t+1}, v{t+1}")
                kk.e(f"v_mul_f32 v{g+i}, v{g+i}, v{t}")
                kk.e(f"v_mul_f32 v{g+i+1}, v{g+i+1}, v{t+1}")
            kk.e(f"v_cvt_pk_bf16_f32 v{O+i//2}, v{g+i}, v{g+i+1}")
            if i % 8 == 6:
                f = i // 8
                kk.e(f"buffer_store_dwordx4 {vr(O+4*f,4)}, v4, s[{SWS}:{SWS+3}], s{sT} offen offset:{ct*1024+f*256}")
        return [l.strip() for l in kk.lines]
    side2 = epi(0, False)
    s1_start = nA - 2 - (len(side1)+3)//4 - 1
    s2_start = nA + 3
    gated = {0}
    hw = set()
    def rd(u):
        kap, tau = units[u]
        if kap == 'x': return
        c = kap >> 2
        if c not in gated:
            gated.add(c)
            k.wait_vm(f"w{c}")
            k.e("s_barrier")
            if c == 3: k.stamp(3)
            if c == 6: k.stamp(4)
        cc, tl, f = kap >> 2, (kap >> 1) & 1, kap & 1
        m, ct = tau >> 1, tau & 1
        o = cc*16384 + tl*8192 + f*2048 + m*1024
        a = AW0 + ct
        if o >= 0x10000: o -= 0x10000; a += 2
        for ri in range(2):
            k.e(f"ds_read_b64_tr_b16 {vr(WF+4*(u%DEP)+2*ri,2)}, v{a} offset:{o+ri*512}")
    k.wait_vm("w0")
    k.e("s_barrier")
    k.stamp(2)
    for u in range(DEP): rd(u)
    started = set()
    for u in range(NU):
        kap, tau = units[u]
        a = ACC+16*tau
        if kap == 'x':
            assert not side1
            k.e(f"v_mfma_f32_32x32x16_bf16 {vr(a,16)}, {vr(WE+4*tau,4)}, {vr(XE,4)}, {vr(a,16)}")
        else:
            if (kap >> 2) not in hw:
                hw.add(kap >> 2)
                k.wait_vm(f"h{kap>>2}")
            nout = sum(1 for v in range(u+1, min(u+DEP, NU)) if units[v][0] != 'x')
            k.e(f"s_waitcnt lgkmcnt({2*nout})")
            k.e(f"v_mfma_f32_32x32x16_bf16 {vr(a,16)}, {vr(WF+4*(u%DEP),4)}, {vr(HFR+4*kap,4)}, {'0' if tau not in started else vr(a,16)}")
            started.add(tau)
        if u+DEP < NU: rd(u+DEP)
        while pend and pend[0][0] <= u:
            pend.pop(0)[1]()
        if u >= s1_start and side1:
            if u == s1_start: k.wait_vm("st")
            for _ in range(4):
                if side1: k.e(side1.pop(0))
        if u >= s2_start and side2:
            for _ in range(5 if len(side2) > 4*(NU-u) else 4):
                if side2: k.e(side2.pop(0))
    k.stamp(5)
    for l in side2: k.e(l)
    k.nop(max(0, 12-len(side2)))
    for l in epi(1, True): k.e(l)
    k.stamp(6)
    k.end(SWS, 2, 7)
    k.label(k.L('end'))
    k.e("s_endpgm")
    return k, dict(vgpr=256, sgpr=64, grid=256, block=512, lds=114688)

def gen_d():
    k = K("kd")
    SW, SO, SWS = 4, 8, 12
    sW, sRB, sCB, sT, sT2, sWOFF, sA, sKH = 20, 21, 22, 23, 24, 25, 26, 27
    NSLOT = 10
    RED = 5*16384
    k.stamp(0)
    k.e(f"""
    s_cmp_ge_u32 s2, 224
    s_cbranch_scc1 {k.L('end')}
    s_load_dwordx2 s[{SW}:{SW+1}], s[0:1], 48
    s_load_dwordx2 s[{SO}:{SO+1}], s[0:1], 56
    s_load_dwordx2 s[{SWS}:{SWS+1}], s[0:1], 72
    v_lshrrev_b32 v5, 6, v0
    v_and_b32 v1, 63, v0
    v_readfirstlane_b32 s{sW}, v5
    v_lshlrev_b32 v1, 4, v1
    v_lshrrev_b32 v6, 3, v0
    v_and_b32 v8, 7, v0
    v_bfe_u32 v7, v0, 4, 1
    v_bfe_u32 v9, v0, 6, 1
    v_lshl_add_u32 v7, v9, 1, v7
    v_lshlrev_b32 v7, 1, v7
    v_xor_b32 v7, v7, v8
    v_mul_u32_u24 v2, 896, v6
    v_lshl_add_u32 v2, v7, 4, v2
    v_add_u32 v3, {896*896-1024}, v2
    s_and_b32 s{sT}, s2, 7
    s_lshr_b32 s{sT2}, s2, 3
    s_mul_i32 s{sRB}, s{sT2}, 37
    s_lshr_b32 s{sRB}, s{sRB}, 8
    s_mul_i32 s{sCB}, s{sRB}, 7
    s_sub_u32 s{sCB}, s{sT2}, s{sCB}
    s_lshl_b32 s{sT}, s{sT}, 2
    s_add_u32 s{sRB}, s{sRB}, s{sT}
    s_lshl_b32 s{sWOFF}, s{sCB}, 7
    s_lshr_b32 s{sKH}, s{sW}, 2
    s_lshl_b32 s{sT}, s{sRB}, 2
    s_and_b32 s{sT2}, s{sW}, 3
    s_add_u32 s{sT}, s{sT}, s{sT2}
    s_lshl_b32 s{sT}, s{sT}, 1
    s_add_u32 s{sT}, s{sT}, s{sKH}
    s_mul_i32 s{sA}, s{sT}, 28672
    s_add_u32 s{sA}, s{sA}, {ACT_OFF}
    s_lshl_b32 m0, s{sW}, 11
    """)
    srd_consts(k, SW, F*D*2)
    srd_consts(k, SO, S*D*2)
    srd_consts(k, SWS, WS_USED)
    k.e("s_waitcnt lgkmcnt(0)")
    AF, ACC, WF, HR = 16, 128, 144, 176
    k.stamp(1)
    def dma(j):
        k.vop(f"buffer_load_dwordx4 v2, s[{SW}:{SW+3}], s{sWOFF} offen lds", f"w{j}")
        k.vop(f"buffer_load_dwordx4 v3, s[{SW}:{SW+3}], s{sWOFF} offen offset:1024 lds", f"w{j}")
        k.e(f"s_add_u32 s{sWOFF}, s{sWOFF}, {64*896}")
    def lda(j):
        for ks in range(2):
            t = 2*j+ks
            k.vop(f"buffer_load_dwordx4 {vr(AF+4*t,4)}, v1, s[{SWS}:{SWS+3}], s{sA} offen offset:{(t&3)*1024}", f"a{j}")
        if j & 1: k.e(f"s_add_u32 s{sA}, s{sA}, 4096")
    if PF:
        k.e(f"""
        s_lshr_b32 s{sT}, s2, 3
        s_mul_i32 s{sT2}, s{sT}, {448*128}
        v_min_u32 v10, 447, v0
        v_lshlrev_b32 v10, 7, v10
        s_cmp_ge_u32 s{sW}, 4
        s_cbranch_scc1 {k.L('pfw')}
        s_lshl_b32 s{sT}, s{sT}, 15
        s_and_b32 s30, s2, 7
        s_mul_i32 s30, s30, {16*57344}
        s_add_u32 s{sT}, s{sT}, s30
        s_add_u32 s{sT}, s{sT}, {ACT_OFF}
        buffer_load_dword v11, v10, s[{SWS}:{SWS+3}], s{sT} offen
        """)
        k.label(k.L('pfw'))
        k.e(f"buffer_load_dword v12, v10, s[{SW}:{SW+3}], s{sT2} offen")
    def issue_stage(j):
        dma(j)
        if (j+1) % NSLOT: k.e("s_add_u32 m0, m0, 16384")
        else: k.e(f"s_lshl_b32 m0, s{sW}, 11")
        lda(j)
    for j in range(DDEP):
        issue_stage(j)
        if j < DDEP-1: k.e("s_barrier")
    AW = 8
    k.e(f"""
    v_bfe_u32 v5, v0, 4, 2
    v_lshlrev_b32 v6, 11, v5
    v_bfe_u32 v7, v0, 8, 1
    v_lshl_add_u32 v6, v7, 10, v6
    v_xor_b32 v5, v5, v7
    v_and_b32 v5, 1, v5
    v_bfe_u32 v7, v0, 2, 2
    v_lshl_add_u32 v6, v7, 7, v6
    v_lshrrev_b32 v7, 1, v7
    v_lshl_add_u32 v5, v5, 1, v7
    v_lshl_add_u32 v6, v5, 5, v6
    v_and_b32 v7, 3, v0
    v_lshl_add_u32 v{AW}, v7, 3, v6
    v_xor_b32 v{AW+1}, 32, v{AW}
    v_xor_b32 v{AW+2}, 64, v{AW}
    v_xor_b32 v{AW+3}, 96, v{AW}
    """)
    state = dict(base=0)
    def rebase(slot):
        want = (slot//4)*4*16384
        d = want - state['base']
        if d:
            for i in range(4):
                if d > 0: k.e(f"v_add_u32 v{AW+i}, {d}, v{AW+i}")
                else: k.e(f"v_subrev_u32 v{AW+i}, {-d}, v{AW+i}")
        state['base'] = want
    def reads(u):
        t, tt = u >> 2, u & 3
        j, ks = t >> 1, t & 1
        o = (j % NSLOT)*16384 - state['base'] + ks*8192
        b = WF + 4*(u & 7)
        for ri in range(2):
            k.e(f"ds_read_b64_tr_b16 {vr(b+2*ri,2)}, v{AW+tt} offset:{o+ri*512}")
    def stage_gate(j):
        k.wait_vm(f"w{j}")
        k.e("s_barrier")
        if j == 0: k.stamp(2)
        if j == 7: k.stamp(3)
        if j == 13: k.stamp(4)
        rebase(j % NSLOT)
    def late(js):
        if js < 14:
            issue_stage(js)
            if js == 13:
                k.e(f"""
                v_bfe_u32 v5, v0, 5, 1
                v_lshlrev_b32 v5, 10, v5
                v_and_b32 v6, 15, v0
                v_lshl_add_u32 v5, v6, 4, v5
                v_bfe_u32 v7, v0, 4, 1
                v_lshl_add_u32 v5, v7, 3, v5
                s_lshl_b32 s{sT}, s{sRB}, 1
                s_bfe_u32 s{sT2}, s{sW}, 0x10001
                s_add_u32 s{sT}, s{sT}, s{sT2}
                s_mul_i32 s{sT}, s{sT}, 14
                s_lshl_b32 s{sT2}, s{sCB}, 1
                s_add_u32 s{sT}, s{sT}, s{sT2}
                s_add_u32 s{sT}, s{sT}, s{sKH}
                s_lshl_b32 s{sT}, s{sT}, 11
                s_and_b32 s{sT2}, s{sW}, 1
                s_lshl_b32 s{sT2}, s{sT2}, 8
                s_add_u32 s{sT}, s{sT}, s{sT2}
                s_add_u32 s{sT}, s{sT}, {HF_OFF}
                """)
                k.vop(f"buffer_load_dwordx2 {vr(HR,2)}, v5, s[{SWS}:{SWS+3}], s{sT} offen", "h")
                k.vop(f"buffer_load_dwordx2 {vr(HR+2,2)}, v5, s[{SWS}:{SWS+3}], s{sT} offen offset:512", "h")
    DEP = 6
    NU = 112
    stage_gate(0)
    for u in range(DEP): reads(u)
    for u in range(NU):
        t, tt = u >> 2, u & 3
        if u+DEP < NU:
            if (u+DEP) % 8 == 0:
                late((u+DEP)//8 - 1 + DDEP)
                stage_gate((u+DEP)//8)
            reads(u+DEP)
        if u % 8 == 0:
            k.wait_vm(f"a{u//8}")
        k.e(f"s_waitcnt lgkmcnt({2*min(DEP, NU-1-u)})")
        a = ACC+4*tt
        k.e(f"v_mfma_f32_16x16x32_bf16 {vr(a,4)}, {vr(WF+4*(u&7),4)}, {vr(AF+4*t,4)}, {'0' if t == 0 else vr(a,4)}")
    k.stamp(5)
    k.e(f"""
    v_lshrrev_b32 v5, 6, v0
    v_lshl_add_u32 v6, v5, 11, v1
    v_add_u32 v6, {RED}, v6
    v_xor_b32 v7, 0x2000, v6
    v_and_b32 v5, 15, v0
    v_mul_u32_u24 v4, 896, v5
    v_bfe_u32 v5, v0, 4, 2
    v_lshl_add_u32 v4, v5, 3, v4
    s_lshl_b32 s{sT}, s{sRB}, 2
    s_and_b32 s{sT2}, s{sW}, 3
    s_add_u32 s{sT}, s{sT}, s{sT2}
    s_mul_i32 s{sT}, s{sT}, {16*896}
    s_lshl_b32 s{sT2}, s{sCB}, 7
    s_add_u32 s{sT}, s{sT}, s{sT2}
    s_lshl_b32 s{sT2}, s{sKH}, 6
    s_add_u32 s{sT}, s{sT}, s{sT2}
    ds_write_b128 v7, {vr(ACC+8,4)}
    ds_write_b128 v7, {vr(ACC+12,4)} offset:1024
    """)
    assert RED % 0x4000 == 0
    k.wait_vm("h")
    for i in range(4):
        k.e(f"v_lshlrev_b32 v{16+2*i}, 16, v{HR+i}")
        k.e(f"v_and_b32 v{17+2*i}, 0xffff0000, v{HR+i}")
    for i in range(0, 8, 2):
        k.e(f"v_pk_add_f32 {vr(ACC+i,2)}, {vr(ACC+i,2)}, {vr(16+i,2)}")
    k.e(f"""
    s_waitcnt lgkmcnt(0)
    s_barrier
    ds_read_b128 v[24:27], v6
    ds_read_b128 v[28:31], v6 offset:1024
    s_waitcnt lgkmcnt(0)
    """)
    for i in range(0, 8, 2):
        k.e(f"v_pk_add_f32 {vr(ACC+i,2)}, {vr(ACC+i,2)}, {vr(24+i,2)}")
    for i in range(4):
        k.e(f"v_cvt_pk_bf16_f32 v{32+i}, v{ACC+2*i}, v{ACC+2*i+1}")
    k.e(f"""
    buffer_store_dwordx2 v[32:33], v4, s[{SO}:{SO+3}], s{sT} offen
    buffer_store_dwordx2 v[34:35], v4, s[{SO}:{SO+3}], s{sT} offen offset:32
    """)
    k.stamp(6)
    k.end(SWS, 3, 7)
    k.label(k.L('end'))
    k.e("s_endpgm")
    return k, dict(vgpr=184, sgpr=64, grid=256, block=512, lds=163840)

HEADER = open("sequential_preLN__linear_attn_block__swiglu_ffn__prompt.s.ref").read().split("; Override launch geometry")[0]

def build(kernels):
    out = [HEADER.rstrip()]
    for k, m in kernels:
        out.append(f"; @launch kernel={k.name}_kernel grid=({m['grid']},1,1) block=({m['block']},1,1) lds={m['lds']}")
    out.append('.amdgcn_target "amdgcn-amd-amdhsa--gfx950"')
    out.append(".text")
    for k, m in kernels:
        n = f"{k.name}_kernel"
        out += [f".globl {n}", ".p2align 8", f".type {n},@function", f"{n}:"]
        out += k.lines
    out.append('.section .rodata,"a"')
    for k, m in kernels:
        n = f"{k.name}_kernel"
        acc = (min(m['vgpr'], 256)+3)//4*4
        out += [".p2align 6", f".amdhsa_kernel {n}",
                f"  .amdhsa_next_free_vgpr {m['vgpr']}",
                f"  .amdhsa_next_free_sgpr {m['sgpr']}",
                f"  .amdhsa_accum_offset {m.get('accum', acc)}",
                "  .amdhsa_group_segment_fixed_size 0",
                "  .amdhsa_kernarg_size 80",
                "  .amdhsa_user_sgpr_count 2",
                "  .amdhsa_user_sgpr_kernarg_segment_ptr 1",
                "  .amdhsa_system_sgpr_workgroup_id_x 1",
                ".end_amdhsa_kernel"]
    return "\n".join(out) + "\n"

if __name__ == "__main__":
    ks = [gen_a()]
    for g in ("gen_b", "gen_c", "gen_d"):
        if g in globals(): ks.append(globals()[g]())
    open(sys.argv[1] if len(sys.argv) > 1 else "sequential_preLN__linear_attn_block__swiglu_ffn__prompt.s", "w").write(build(ks))
```

```python
import sys, os, struct
sys.path.insert(0, "dev")
from layouts import *

def f2u(x): return struct.unpack("<I", struct.pack("<f", x))[0]
LOG2E_F = 1.4426950408889634
LOG2E = f2u(LOG2E_F)
LN2 = f2u(0.6931471805599453)
EPS_PHI = f2u(1e-6)
EPS_PHI_L = f2u(1e-6*LOG2E_F)
EPS_LN = f2u(1e-5)
INV_D = f2u(1.0/448.0)
ONES_BF = 0x3F803F80
def env(n, d): return int(os.environ.get(n, str(d)))
STAMPS = env('STAMPS', 0)
STAMP_OFF = 16 << 20
ROT = env('ROT', 1)
CPF = env('CPF', 1)
WPF = env('WPF', 1)
APF = env('APF', 0)
CKS = env('CKS', 16)
CLP = env('CLP', 12)
DDEP = env('DDEP', 3)

class K:
    def __init__(self, name):
        self.name = name; self.lines = []; self.vm = []
    def e(self, s):
        for l in s.strip().split("\n"):
            if l.strip(): self.lines.append("    " + l.strip())
    def label(self, l): self.lines.append(f"{l}:")
    def L(self, s): return f"L{self.name}_{s}"
    def vop(self, s, tag):
        self.e(s); self.vm.append(tag)
    def wait_vm(self, tag, extra=""):
        idx = max(i for i, t in enumerate(self.vm) if t == tag)
        n = len(self.vm) - 1 - idx
        assert n <= 63
        self.e(f"s_waitcnt vmcnt({n}) {extra}".strip())
    def stamp(self, i):
        if STAMPS: self.e(f"s_memrealtime s[{40+2*i}:{41+2*i}]")
    def end(self, sws, kid, n):
        if STAMPS:
            self.e("s_waitcnt vmcnt(0)")
            self.stamp(n)
            self.e("s_waitcnt lgkmcnt(0)")
            self.e("s_mov_b64 exec, 1")
            for i in range(8):
                self.e(f"v_mov_b32 v{16+i}, s{40+2*i}" if i <= n else f"v_mov_b32 v{16+i}, 0")
            self.e(f"v_lshrrev_b32 v1, 6, v0")
            self.e(f"v_lshlrev_b32 v1, 5, v1")
            self.e(f"s_lshl_b32 s38, s2, 8")
            self.e(f"s_add_u32 s38, s38, {STAMP_OFF + kid*65536*2}")
            self.e(f"s_mov_b32 s{sws+2}, {STAMP_OFF + 8*65536*2}")
            self.e(f"buffer_store_dwordx4 v[16:19], v1, s[{sws}:{sws+3}], s38 offen")
            self.e(f"buffer_store_dwordx4 v[20:23], v1, s[{sws}:{sws+3}], s38 offen offset:16")
        self.e("s_endpgm")
    def nop(self, n):
        while n > 0:
            c = min(n, 16); self.e(f"s_nop {c-1}"); n -= c

def vr(b, n): return f"v[{b}:{b+n-1}]"
def srd_consts(k, base, nbytes):
    k.e(f"s_mov_b32 s{base+2}, {nbytes}")
    k.e(f"s_mov_b32 s{base+3}, 0x20000")

def phi_ops(k, dst, acc, rl, t1, s_epsl, s_ln2):
    k.e(f"v_fma_f32 v{acc}, v{acc}, v{rl}, s{s_epsl}")
    k.e(f"v_exp_f32 v{t1}, v{acc} clamp")
    k.e(f"v_max_f32 v{acc}, s{s_epsl}, v{acc}")
    k.e(f"v_fma_f32 v{dst}, v{acc}, s{s_ln2}, v{t1}")

def hilo_w(k, fr, p, t):
    k.e(f"v_cvt_pk_bf16_f32 v{fr+1}, v{p}, 0")
    k.e(f"v_mov_b32 v{fr+2}, 0")
    k.e(f"v_lshlrev_b32 v{t}, 16, v{fr+1}")
    k.e(f"v_sub_f32 v{t}, v{p}, v{t}")
    k.e(f"v_mov_b32 v{fr+3}, 0")
    k.e(f"v_cvt_pk_bf16_f32 v{fr}, v{p}, v{t}")

def hilo_x(k, fr, nm, t):
    k.e(f"v_cvt_pk_bf16_f32 v{fr}, v{nm}, v{nm}")
    k.e(f"v_and_b32 v{t}, 0xffff0000, v{fr}")
    k.e(f"v_sub_f32 v{t}, v{nm}, v{t}")
    k.e(f"v_cvt_pk_bf16_f32 v{fr+1}, v{t}, 0")

def div7(k, q, r, x):
    k.e(f"""
    s_mul_i32 s{q}, s{x}, 37
    s_lshr_b32 s{q}, s{q}, 8
    s_mul_i32 s{r}, s{q}, 7
    s_sub_u32 s{r}, s{x}, s{r}
    """)

def gen_a():
    k = K("ka")
    SX, SW, SWS, SDB, SP = 4, 8, 12, 16, 32
    sW, sRB, sH, sx, skv, sq, sT, sT2, sEPS, sONE, sLN2, sCG = 20, 21, 22, 23, 24, 25, 26, 27, 28, 29, 30, 31
    SLOT = 24576
    MISC = 6*SLOT
    WQ1, WQ2 = 0, 2*SLOT
    C6SLOT = 1
    PART = 3*SLOT
    CSX = MISC + 2048
    DUM = 190
    k.stamp(0)
    k.e(f"""
    s_cmp_ge_u32 s2, 256
    s_cbranch_scc1 {k.L('end')}
    s_load_dwordx2 s[{SX}:{SX+1}], s[0:1], 0
    s_load_dwordx2 s[{SW}:{SW+1}], s[0:1], 8
    s_load_dwordx2 s[{SDB}:{SDB+1}], s[0:1], 64
    s_load_dwordx2 s[{SWS}:{SWS+1}], s[0:1], 72
    """)
    if CPF:
        k.e(f"""
        s_getpc_b64 s[36:37]
        Lka_pc:
        s_lshr_b32 s{sT2}, s2, 3
        v_min_u32 v5, 7, v0
        v_lshlrev_b32 v5, 7, v5
        s_lshl_b32 s{sT}, s{sT2}, 10
        v_add_u32 v5, s{sT}, v5
        v_min_u32 v5, Lcode_end-Lka_pc-4, v5
        v_cmp_gt_u32 vcc, 8, v0
        s_and_saveexec_b64 s[38:39], vcc
        s_cbranch_execz {k.L('nocpf')}
        global_load_dword v{DUM}, v5, s[36:37]
        """)
        k.label(k.L('nocpf'))
        k.e("s_mov_b64 exec, -1")
    k.e(f"""
    v_lshrrev_b32 v5, 6, v0
    v_lshrrev_b32 v6, 3, v0
    v_readfirstlane_b32 s{sW}, v5
    v_and_b32 v7, 0x38, v6
    v_add_u32 v7, v6, v7
    v_and_b32 v8, 7, v0
    v_bfe_u32 v9, v0, 4, 2
    v_xor_b32 v9, v8, v9
    v_mul_u32_u24 v1, 896, v7
    v_lshl_add_u32 v1, v9, 4, v1
    v_xor_b32 v2, 64, v1
    v_add_u32 v2, 6144, v2
    v_bfe_u32 v9, v0, 4, 1
    v_lshlrev_b32 v9, 2, v9
    v_xor_b32 v9, v8, v9
    v_mul_u32_u24 v3, 2688, v6
    v_and_b32 v8, 3, v9
    v_lshl_add_u32 v3, v8, 4, v3
    v_lshrrev_b32 v9, 2, v9
    v_mul_u32_u24 v9, 896, v9
    v_add_u32 v3, v3, v9
    s_bfe_u32 s{sRB}, s2, 0x20001
    s_lshl_b32 s{sRB}, s{sRB}, 2
    s_lshr_b32 s{sT}, s2, 6
    s_add_u32 s{sRB}, s{sRB}, s{sT}
    s_and_b32 s{sH}, s2, 1
    s_lshl_b32 s{sH}, s{sH}, 3
    s_bfe_u32 s{sT2}, s2, 0x30003
    s_add_u32 s{sH}, s{sH}, s{sT2}
    """)
    if ROT:
        k.e(f"""
        s_lshl_b32 s{sT}, s{sT}, 1
        s_add_u32 s{sT}, s{sT}, s{sT2}
        """)
        div7(k, sT2, sCG, sT)
    else:
        k.e(f"s_mov_b32 s{sCG}, 0")
    k.e(f"""
    s_mul_i32 s{sx}, s{sRB}, {128*896}
    s_lshl_b32 s{sT}, s{sCG}, 7
    s_add_u32 s{sx}, s{sx}, s{sT}
    s_mul_i32 s{sq}, s{sH}, 56
    s_mul_i32 s{sT}, s{sCG}, {64*2688}
    s_add_u32 s{skv}, s{sq}, s{sT}
    s_add_u32 s{skv}, s{skv}, 896
    s_mul_i32 m0, s{sW}, 3072
    """)
    srd_consts(k, SX, S*D*2)
    srd_consts(k, SW, D*3*D*2 + 2048)
    srd_consts(k, SWS, WS_USED)
    srd_consts(k, SDB, 256)
    k.e(f"""
    s_waitcnt lgkmcnt(0)
    s_sub_u32 s{SW}, s{SW}, 2048
    s_subb_u32 s{SW+1}, s{SW+1}, 0
    """)
    k.stamp(1)
    def issue_chunk(c):
        k.vop(f"buffer_load_dwordx4 v1, s[{SX}:{SX+3}], s{sx} offen lds", f"c{c}")
        k.vop(f"buffer_load_dwordx4 v2, s[{SX}:{SX+3}], s{sx} offen offset:1024 lds", f"c{c}")
        k.vop(f"buffer_load_dwordx4 v3, s[{SW}:{SW+3}], s{skv} offen offset:2048 lds", f"c{c}")
    slot_of = [0, 1, 2, 3, 4, 5, C6SLOT]
    sROT = 35
    def issue_next(c):
        if c > 0:
            k.e(f"""
            s_mul_i32 s{sT}, s{sW}, 3072
            s_add_u32 m0, s{sT}, {slot_of[c]*SLOT}
            s_add_u32 s{sCG}, s{sCG}, 1
            s_cmp_eq_u32 s{sCG}, 7
            s_cselect_b32 s{sT}, -6, 1
            s_lshl_b32 s{sT2}, s{sT}, 7
            s_add_u32 s{sx}, s{sx}, s{sT2}
            s_mul_i32 s{sT}, s{sT}, {64*2688}
            s_add_u32 s{skv}, s{skv}, s{sT}
            """)
        issue_chunk(c)
    sM6, sP1 = 33, 34
    k.e(f"s_mov_b32 s{sROT}, s{sCG}")
    issue_next(0)
    k.e(f"""
    s_cmp_lg_u32 s{sRB}, 0
    s_cbranch_scc1 {k.L('nozero')}
    s_cmp_lt_u32 s{sW}, 4
    s_cbranch_scc1 {k.L('nozero')}
    v_mov_b32 v12, 0
    v_mov_b32 v13, 0
    v_mov_b32 v14, 0
    v_mov_b32 v15, 0
    v_and_b32 v10, 255, v0
    v_lshlrev_b32 v10, 4, v10
    s_lshl_b32 s{sT}, s{sH}, 12
    buffer_store_dwordx4 v[12:15], v10, s[{SWS}:{SWS+3}], s{sT} offen sc1
    """)
    k.label(k.L('nozero'))
    k.e("s_barrier")
    issue_next(1)
    k.e(f"""
    v_bfe_u32 v8, v0, 2, 4
    v_mul_u32_u24 v4, 2688, v8
    v_and_b32 v8, 3, v0
    v_lshl_add_u32 v4, v8, 4, v4
    s_and_b32 s{sT}, s{sW}, 1
    s_mul_i32 s{sT}, s{sT}, {32*2688}
    s_add_u32 s{sq}, s{sq}, s{sT}
    s_add_u32 s{sq}, s{sq}, 2048
    s_mov_b32 s{sEPS}, 0x{EPS_PHI_L:x}
    s_mov_b32 s{sONE}, 0x{ONES_BF:x}
    s_mov_b32 s{sLN2}, 0x{LN2:x}
    """)
    def wq_dma(part):
        k.e(f"""
        s_lshl_b32 s{sT}, s{sW}, 11
        s_add_u32 m0, s{sT}, {WQ1 if part == 0 else WQ2}
        s_lshr_b32 s{sT}, s{sW}, 1
        s_add_u32 s{sT2}, s{sT}, s{sROT}
        """)
        if part: k.e(f"s_add_u32 s{sT2}, s{sT2}, 4")
        k.e(f"""
        s_cmp_ge_u32 s{sT2}, 7
        s_cselect_b32 s36, 7, 0
        s_sub_u32 s{sT2}, s{sT2}, s36
        """)
        if part:
            k.e(f"s_cmp_eq_u32 s{sT}, 3\ns_cselect_b32 s{sT2}, 8, s{sT2}")
        k.e(f"""
        s_mul_i32 s{sT2}, s{sT2}, {64*2688}
        s_add_u32 s{sT2}, s{sT2}, s{sq}
        s_add_u32 s{sT}, s{sT2}, {16*2688-1024}
        """)
        k.vop(f"buffer_load_dwordx4 v4, s[{SW}:{SW+3}], s{sT2} offen lds", f"wq{part+1}")
        k.vop(f"buffer_load_dwordx4 v4, s[{SW}:{SW+3}], s{sT} offen offset:1024 lds", f"wq{part+1}")
    def late(c):
        if c+2 <= 5: issue_next(c+2)
        if c == 4:
            wq_dma(0)
            issue_next(6)
        if c == 5:
            wq_dma(1)
    def wpf():
        if not WPF: return
        k.e(f"""
        s_lshl_b32 s{sT}, s{sW}, 3
        s_add_u32 s{sT}, s{sT}, 24
        s_cmp_eq_u32 s{sW}, 0
        s_cselect_b32 s{sT}, 16, s{sT}
        s_load_dwordx2 s[{SP}:{SP+1}], s[0:1], s{sT}
        s_cselect_b32 s{SP+2}, {D*D*2}, s{sXS}
        s_cselect_b32 s{sT}, 13, 49
        s_mov_b32 s{SP+3}, 0x20000
        v_and_b32 v5, 63, v0
        v_min_u32 v5, 48, v5
        s_mul_i32 s{sT}, s{sT}, s2
        v_add_lshl_u32 v5, v5, s{sT}, 7
        s_waitcnt lgkmcnt(0)
        """)
        k.vop(f"buffer_load_dword v{DUM}, v5, s[{SP}:{SP+3}], 0 offen", "pf")
    sXS = 37
    AX = 172
    k.e(f"""
    s_mov_b32 s{sXS}, {D*F*2}
    v_and_b32 v8, 31, v0
    v_bfe_u32 v9, v0, 5, 1
    v_bfe_u32 v14, v0, 6, 2
    v_lshrrev_b32 v11, 4, v8
    v_lshl_add_u32 v10, v14, 1, v11
    v_mul_u32_u24 v10, 3072, v10
    v_and_b32 v11, 15, v8
    v_lshl_add_u32 v10, v11, 7, v10
    v_bfe_u32 v11, v8, 1, 3
    v_xor_b32 v11, v11, v9
    v_lshlrev_b32 v12, 1, v14
    v_xor_b32 v11, v11, v12
    """)
    for p in range(4):
        k.e(f"v_xor_b32 v12, {2*p}, v11")
        k.e(f"v_lshl_add_u32 v{AX+p}, v12, 4, v10")
    k.e(f"""
    s_cmp_ge_u32 s{sW}, 4
    s_cbranch_scc1 {k.L('q')}
    """)
    vm_split = list(k.vm)
    ACK, ACV = 16, 32
    BUF = [48, 60]
    AWK, AWV = 152, 156
    CSK, CSV = 78, 80
    RL, XE, WEK, WEV = 84, 100, 104, 108
    PKF, VF, KVA, T = 112, 120, 128, 144
    k.e(f"""
    v_mul_u32_u24 v10, 3072, v9
    v_bfe_u32 v11, v0, 2, 2
    v_lshl_add_u32 v10, v11, 7, v10
    v_bfe_u32 v12, v0, 4, 1
    v_lshl_add_u32 v10, v12, 5, v10
    v_and_b32 v12, 3, v0
    v_lshl_add_u32 v10, v12, 3, v10
    v_lshrrev_b32 v11, 1, v11
    v_lshl_add_u32 v10, v11, 6, v10
    v_add_u32 v10, 2048, v10
    v_mov_b32 v{CSK}, 0
    v_mov_b32 v{CSK+1}, 0
    """)
    for p in range(4):
        k.e(f"v_xor_b32 v11, {p}, v14")
        k.e(f"v_mul_u32_u24 v11, 6144, v11")
        k.e(f"v_add_u32 v{AWK+p}, v10, v11")
        k.e(f"v_xor_b32 v{AWV+p}, 64, v{AWK+p}")
    st = dict(base=0)
    def rebase(regs, slot):
        want = (slot // 3) * 3 * SLOT
        d = want - st['base']
        if d:
            for r in regs:
                if d > 0: k.e(f"v_add_u32 v{r}, {d}, v{r}")
                else: k.e(f"v_subrev_u32 v{r}, {-d}, v{r}")
        st['base'] = want
    def kv_reads(slot, p, b):
        o = slot*SLOT - st['base']
        k.e(f"ds_read_b128 {vr(BUF[b],4)}, v{AX+p} offset:{o}")
        for ri in range(2):
            k.e(f"ds_read_b64_tr_b16 {vr(BUF[b]+4+2*ri,2)}, v{AWK+p} offset:{o+ri*512}")
        for ri in range(2):
            k.e(f"ds_read_b64_tr_b16 {vr(BUF[b]+8+2*ri,2)}, v{AWV+p} offset:{o+ri*512}")
    for c in range(7):
        rebase(list(range(AX, AX+4)) + list(range(AWK, AWK+8)), slot_of[c])
        k.wait_vm(f"c{c}")
        k.e("s_barrier")
        if c == 0: k.stamp(2)
        if c == 6: k.stamp(3)
        kv_reads(slot_of[c], 0, 0)
        kv_reads(slot_of[c], 1, 1)
        for p in range(4):
            b = p & 1
            k.e(f"s_waitcnt lgkmcnt({5 if p < 3 else 0})")
            first = (c == 0 and p == 0)
            k.e(f"v_mfma_f32_32x32x16_bf16 {vr(ACK,16)}, {vr(BUF[b],4)}, {vr(BUF[b]+4,4)}, {'0' if first else vr(ACK,16)}")
            k.e(f"v_mfma_f32_32x32x16_bf16 {vr(ACV,16)}, {vr(BUF[b],4)}, {vr(BUF[b]+8,4)}, {'0' if first else vr(ACV,16)}")
            if p == 0:
                for j in range(4):
                    k.e(f"v_dot2c_f32_bf16 v{CSK}, s{sONE}, v{BUF[b]+4+j}")
                    k.e(f"v_dot2c_f32_bf16 v{CSK+1}, s{sONE}, v{BUF[b]+8+j}")
            if p < 2:
                kv_reads(slot_of[c], p+2, b)
            if c == 6 and p == 1:
                k.e(f"""
                v_lshlrev_b32 v12, 3, v0
                v_add_u32 v12, {CSX}, v12
                ds_write_b64 v12, {vr(CSK,2)}
                """)
        late(c)
    k.e(f"""
    v_mov_b32 v5, 0
    s_lshl_b32 s{sT2}, s{sH}, 4
    """)
    k.vop(f"buffer_load_dwordx4 {vr(T+4,4)}, v5, s[{SDB}:{SDB+3}], s{sT2} offen sc1", "poll")
    k.e(f"""
    v_and_b32 v13, 63, v0
    v_lshlrev_b32 v13, 3, v13
    v_add_u32 v13, {CSX}, v13
    v_lshl_add_u32 v10, v14, 5, v8
    v_lshlrev_b32 v10, 3, v10
    v_add_u32 v10, {MISC}, v10
    v_lshlrev_b32 v11, 7, v14
    v_lshl_add_u32 v11, v9, 4, v11
    v_add_u32 v11, {MISC+1024}, v11
    v_mov_b32 v{XE+2}, 0
    v_mov_b32 v{XE+3}, 0
    s_waitcnt lgkmcnt(0)
    s_barrier
    ds_read2st64_b64 {vr(PKF,4)}, v13 offset0:0 offset1:1
    ds_read2st64_b64 {vr(PKF+4,4)}, v13 offset0:2 offset1:3
    ds_read_b64 {vr(XE,2)}, v10
    """)
    k.stamp(4)
    for a in range(4):
        k.e(f"ds_read_b128 {vr(RL+4*a,4)}, v11 offset:{a*32}")
    k.e(f"""
    s_waitcnt lgkmcnt(5)
    v_add_f32 v{PKF}, v{PKF}, v{PKF+2}
    v_add_f32 v{PKF+1}, v{PKF+1}, v{PKF+3}
    v_add_f32 v{PKF+4}, v{PKF+4}, v{PKF+6}
    v_add_f32 v{PKF+5}, v{PKF+5}, v{PKF+7}
    v_add_f32 v{CSK}, v{PKF}, v{PKF+4}
    v_add_f32 v{CSV}, v{PKF+1}, v{PKF+5}
    """)
    hilo_w(k, WEK, CSK, T)
    hilo_w(k, WEV, CSV, T+1)
    k.e(f"""
    s_waitcnt lgkmcnt(4)
    s_nop 0
    v_mfma_f32_32x32x16_bf16 {vr(ACK,16)}, {vr(XE,4)}, {vr(WEK,4)}, {vr(ACK,16)}
    v_mfma_f32_32x32x16_bf16 {vr(ACV,16)}, {vr(XE,4)}, {vr(WEV,4)}, {vr(ACV,16)}
    """)
    n0 = len(k.lines)
    wpf()
    k.e(f"""
    v_and_b32 v10, 63, v0
    v_lshlrev_b32 v12, 2, v10
    v_lshlrev_b32 v10, 4, v10
    v_lshl_add_u32 v10, v14, 12, v10
    v_add_u32 v10, {PART}, v10
    v_lshl_add_u32 v12, v14, 10, v12
    v_add_u32 v13, {PART}, v12
    v_mov_b32 v5, 0
    s_waitcnt lgkmcnt(0)
    """)
    k.nop(max(0, 12 - (len(k.lines)-n0)))
    for i in range(0, 16, 2):
        phi_ops(k, ACK+i, ACK+i, RL+i, T, sEPS, sLN2)
        phi_ops(k, ACK+i+1, ACK+i+1, RL+i+1, T+1, sEPS, sLN2)
        k.e(f"v_cvt_pk_bf16_f32 v{PKF+i//2}, v{ACK+i}, v{ACK+i+1}")
        k.e(f"v_mul_f32 v{ACV+i}, v{ACV+i}, v{RL+i}")
        k.e(f"v_mul_f32 v{ACV+i+1}, v{ACV+i+1}, v{RL+i+1}")
        k.e(f"v_cvt_pk_bf16_f32 v{VF+i//2}, v{ACV+i}, v{ACV+i+1}")
        if i == 6 or i == 14:
            h = i // 8
            k.e("s_mov_b32 exec_lo, 0x10000000\ns_mov_b32 exec_hi, 0x10000000")
            for j in range(4):
                k.e(f"v_mov_b32 v{VF+4*h+j}, s{sONE}")
            k.e("s_mov_b64 exec, -1\ns_nop 0")
            k.e(f"v_mfma_f32_32x32x16_bf16 {vr(KVA,16)}, {vr(PKF+4*h,4)}, {vr(VF+4*h,4)}, {'0' if h == 0 else vr(KVA,16)}")
    k.e(f"s_lshl_b32 s{sT}, s{sH}, 12")
    k.nop(11)
    for a in range(4):
        k.e(f"ds_write_b128 v10, {vr(KVA+4*a,4)} offset:{a*1024}")
    k.wait_vm("poll", "lgkmcnt(0)")
    k.e("s_barrier")
    k.stamp(5)
    for u in range(4):
        k.e(f"ds_read2st64_b32 {vr(ACK+4*u,2)}, v13 offset0:{u} offset1:{u+16}")
        k.e(f"ds_read2st64_b32 {vr(ACK+4*u+2,2)}, v13 offset0:{u+32} offset1:{u+48}")
    k.label(k.L('poll'))
    k.e(f"""
    v_min_u32 v{T}, v{T+4}, v{T+5}
    v_min3_u32 v{T}, v{T}, v{T+6}, v{T+7}
    v_cmp_eq_u32 vcc, 0, v{T}
    s_cbranch_vccz {k.L('pollok')}
    s_sleep 2
    buffer_load_dwordx4 {vr(T+4,4)}, v5, s[{SDB}:{SDB+3}], s{sT2} offen sc1
    s_waitcnt vmcnt(0)
    s_branch {k.L('poll')}
    """)
    k.label(k.L('pollok'))
    k.e("s_waitcnt lgkmcnt(0)")
    for u in range(4):
        k.e(f"v_add_f32 v{ACK+4*u}, v{ACK+4*u}, v{ACK+4*u+1}")
        k.e(f"v_add_f32 v{ACK+4*u+2}, v{ACK+4*u+2}, v{ACK+4*u+3}")
        k.e(f"v_add_f32 v{ACK+4*u}, v{ACK+4*u}, v{ACK+4*u+2}")
        if u == 2:
            k.e(f"s_cmp_eq_u32 s{sW}, 3\ns_cbranch_scc1 {k.L('kvend')}")
        k.e(f"buffer_atomic_add_f32 v{ACK+4*u}, v12, s[{SWS}:{SWS+3}], s{sT} offen offset:{u*256}")
    k.label(k.L('kvend'))
    k.e("s_barrier")
    k.stamp(6)
    k.end(SWS, 0, 7)
    k.label(k.L('q'))
    k.vm = list(vm_split)
    XQ, ACQ, WB = 16, 128, 144
    SUM, SQ, CSQ, AWQ, T = 160, 162, 164, 168, 176
    XE2, WE2, RS = 180, 184, 166
    k.e(f"""
    v_bfe_u32 v11, v0, 2, 2
    v_lshl_add_u32 v10, v9, 3, v11
    v_lshlrev_b32 v10, 6, v10
    v_and_b32 v11, 1, v0
    v_lshl_add_u32 v10, v11, 5, v10
    v_bfe_u32 v11, v0, 4, 1
    v_lshl_add_u32 v10, v11, 4, v10
    v_bfe_u32 v11, v0, 1, 1
    v_lshl_add_u32 v10, v11, 3, v10
    v_lshl_add_u32 v{AWQ}, v14, 10, v10
    v_xor_b32 v{AWQ+1}, 0x400, v{AWQ}
    v_xor_b32 v{AWQ+2}, 0x800, v{AWQ}
    v_xor_b32 v{AWQ+3}, 0xc00, v{AWQ}
    """)
    for r in (SUM, SUM+1, SQ, SQ+1, CSQ, CSQ+1):
        k.e(f"v_mov_b32 v{r}, 0")
    st['base'] = 0
    for c in range(7):
        rebase(list(range(AX, AX+4)), slot_of[c])
        k.wait_vm(f"c{c}")
        k.e("s_barrier")
        if c == 0: k.stamp(2)
        if c == 6: k.stamp(3)
        o = slot_of[c]*SLOT - st['base']
        for p in range(4):
            k.e(f"ds_read_b128 {vr(XQ+16*c+4*p,4)}, v{AX+p} offset:{o}")
        if c == 1:
            k.e(f"""
            s_cmp_lg_u32 s{sRB}, 0
            s_cbranch_scc1 {k.L('noflag')}
            s_lshl_b32 s{sT}, s{sH}, 2
            s_add_u32 s{sT}, s{sT}, s{sW}
            s_sub_u32 s{sT}, s{sT}, 4
            s_lshl_b32 s{sT}, s{sT}, 2
            v_mov_b32 v5, 0
            v_mov_b32 v12, 1
            s_mov_b64 exec, 1
            buffer_store_dword v12, v5, s[{SDB}:{SDB+3}], s{sT} offen sc1
            s_mov_b64 exec, -1
            """)
            k.label(k.L('noflag'))
        for p in range(4):
            k.e(f"s_waitcnt lgkmcnt({3-p})")
            for j in range(4):
                r = XQ+16*c+4*p+j
                k.e(f"v_dot2c_f32_bf16 v{SUM+(j&1)}, s{sONE}, v{r}")
                k.e(f"v_dot2c_f32_bf16 v{SQ+(j&1)}, v{r}, v{r}")
        late(c)
    NB = 4
    def wq_read(kap):
        c, p = kap >> 2, kap & 3
        base = WQ1 + c*4096 if c < 4 else WQ2 + (c-4)*4096
        b = WB + 4*(kap % NB)
        for ri in range(2):
            k.e(f"ds_read_b64_tr_b16 {vr(b+2*ri,2)}, v{AWQ+p} offset:{base+ri*256}")
    k.e(f"""
    v_lshl_add_u32 v10, v14, 5, v8
    v_lshlrev_b32 v11, 2, v10
    v_lshlrev_b32 v10, 3, v10
    v_add_f32 v{SUM}, v{SUM}, v{SUM+1}
    v_add_f32 v{SQ}, v{SQ}, v{SQ+1}
    v_mov_b32 v{SUM+1}, v{SUM}
    v_mov_b32 v{SQ+1}, v{SQ}
    v_add_u32 v10, {MISC}, v10
    v_add_u32 v11, {MISC+1024}, v11
    v_permlane32_swap_b32 v{SUM}, v{SUM+1}
    v_permlane32_swap_b32 v{SQ}, v{SQ+1}
    v_mov_b32 v{XE2+2}, 0
    v_add_f32 v{SUM}, v{SUM}, v{SUM+1}
    v_add_f32 v{SQ}, v{SQ}, v{SQ+1}
    v_mul_f32 v{SUM}, 0x{INV_D|0x80000000:x}, v{SUM}
    v_mul_f32 v{SQ}, 0x{INV_D:x}, v{SQ}
    v_fma_f32 v{SQ}, -v{SUM}, v{SUM}, v{SQ}
    v_max_f32 v{SQ}, 0, v{SQ}
    v_add_f32 v{SQ}, 0x{EPS_LN:x}, v{SQ}
    v_rsq_f32 v{RS}, v{SQ}
    """)
    hilo_x(k, XE2, SUM, T)
    k.e(f"""
    v_mul_f32 v{RS}, 0x{LOG2E:x}, v{RS}
    ds_write_b64 v10, {vr(XE2,2)}
    ds_write_b32 v11, v{RS}
    v_mov_b32 v{XE2+3}, 0
    s_waitcnt lgkmcnt(0)
    s_barrier
    """)
    def q_range(k0, k1):
        for kap in range(k0, min(k0+NB-1, k1)):
            wq_read(kap)
        for kap in range(k0, k1):
            if kap+NB-1 < k1:
                wq_read(kap+NB-1)
            rem = min(k1-1-kap, NB-1)
            k.e(f"s_waitcnt lgkmcnt({2*rem})")
            b = WB + 4*(kap % NB)
            k.e(f"v_mfma_f32_32x32x16_bf16 {vr(ACQ,16)}, {vr(b,4)}, {vr(XQ+4*kap,4)}, {'0' if kap == 0 else vr(ACQ,16)}")
            if (kap & 3) == 0:
                for j in range(4):
                    k.e(f"v_dot2c_f32_bf16 v{CSQ+(j&1)}, s{sONE}, v{b+j}")
    k.stamp(4)
    q_range(0, 16)
    k.e(f"""
    v_lshlrev_b32 v12, 2, v0
    v_add_u32 v12, {CSX+1024}, v12
    v_and_b32 v10, 63, v0
    v_lshlrev_b32 v13, 2, v10
    v_add_u32 v13, {CSX+2048}, v13
    v_lshlrev_b32 v10, 4, v10
    s_lshl_b32 s{sT}, s{sRB}, 2
    s_add_u32 s{sT}, s{sT}, s{sW}
    s_sub_u32 s{sT}, s{sT}, 4
    s_lshl_b32 s{sT}, s{sT}, 4
    s_add_u32 s{sT}, s{sT}, s{sH}
    s_lshl_b32 s{sT}, s{sT}, 11
    s_add_u32 s{sT}, s{sT}, {PQ_OFF}
    """)
    k.wait_vm("wq2")
    k.e("s_barrier")
    k.stamp(5)
    q_range(16, 25)
    k.e(f"""
    s_nop 2
    v_add_f32 v{CSQ}, v{CSQ}, v{CSQ+1}
    ds_write_b32 v12, v{CSQ}
    """)
    q_range(25, 28)
    k.e(f"""
    s_barrier
    ds_read2st64_b32 {vr(WB,2)}, v13 offset0:0 offset1:1
    ds_read2st64_b32 {vr(WB+2,2)}, v13 offset0:2 offset1:3
    s_waitcnt lgkmcnt(0)
    v_add_f32 v{WB}, v{WB}, v{WB+1}
    v_add_f32 v{WB+2}, v{WB+2}, v{WB+3}
    v_add_f32 v{CSQ}, v{WB}, v{WB+2}
    """)
    hilo_w(k, WE2, CSQ, T)
    k.e(f"""
    s_nop 1
    v_mfma_f32_32x32x16_bf16 {vr(ACQ,16)}, {vr(WE2,4)}, {vr(XE2,4)}, {vr(ACQ,16)}
    """)
    k.nop(12)
    for i in range(0, 16, 2):
        phi_ops(k, ACQ+i, ACQ+i, RS, T, sEPS, sLN2)
        phi_ops(k, ACQ+i+1, ACQ+i+1, RS, T+1, sEPS, sLN2)
        k.e(f"v_cvt_pk_bf16_f32 v{WB+i//2}, v{ACQ+i}, v{ACQ+i+1}")
        if i == 6:
            k.e(f"buffer_store_dwordx4 {vr(WB,4)}, v10, s[{SWS}:{SWS+3}], s{sT} offen")
    k.e(f"buffer_store_dwordx4 {vr(WB+4,4)}, v10, s[{SWS}:{SWS+3}], s{sT} offen offset:1024")
    k.stamp(6)
    k.end(SWS, 0, 7)
    k.label(k.L('end'))
    k.e("s_endpgm")
    return k, dict(vgpr=192, sgpr=64, grid=256, block=512, lds=163840)

def gen_b():
    k = K("kb")
    SX, SW, SWS, SP = 4, 8, 12, 32
    sW, sRB, sCB, sT, sT2, sT3, sEPS, sONE, sKV, sPQ0, sWO, sROT, sLN2 = 20, 21, 22, 23, 24, 25, 26, 27, 28, 29, 30, 31, 19
    WREG = 16384
    RED = 4*WREG
    DUM = 247
    k.stamp(0)
    k.e(f"""
    s_cmp_ge_u32 s2, 256
    s_cbranch_scc1 {k.L('end')}
    s_load_dwordx2 s[{SWS}:{SWS+1}], s[0:1], 72
    s_cmp_ge_u32 s2, 224
    s_cbranch_scc1 {k.L('cs')}
    s_load_dwordx2 s[{SX}:{SX+1}], s[0:1], 0
    s_load_dwordx2 s[{SW}:{SW+1}], s[0:1], 16
    v_lshrrev_b32 v5, 6, v0
    v_and_b32 v1, 63, v0
    v_readfirstlane_b32 s{sW}, v5
    v_lshlrev_b32 v1, 4, v1
    v_bfe_u32 v9, v0, 5, 1
    v_bfe_u32 v6, v0, 3, 2
    v_and_b32 v7, 3, v0
    v_lshl_add_u32 v6, v6, 2, v7
    v_bfe_u32 v7, v0, 2, 1
    v_mad_u32_u24 v7, v7, 14, v6
    v_cmp_gt_u32 vcc, 14, v6
    v_bfe_u32 v6, v0, 3, 3
    v_and_b32 v8, 7, v0
    v_cndmask_b32 v7, 28, v7, vcc
    v_lshlrev_b32 v2, 4, v7
    v_lshl_add_u32 v2, v9, 11, v2
    v_bfe_u32 v7, v0, 4, 1
    v_lshlrev_b32 v7, 2, v7
    v_xor_b32 v7, v7, v8
    v_mul_u32_u24 v3, 896, v6
    v_lshl_add_u32 v3, v7, 4, v3
    s_lshr_b32 s{sT2}, s2, 3
    """)
    div7(k, sRB, sCB, sT2)
    k.e(f"""
    s_add_u32 s{sROT}, s{sRB}, s{sCB}
    s_and_b32 s{sROT}, s{sROT}, {3 if ROT else 0}
    s_and_b32 s{sT}, s2, 7
    s_lshl_b32 s{sT}, s{sT}, 2
    s_add_u32 s{sRB}, s{sRB}, s{sT}
    s_lshl_b32 s{sT}, s{sW}, 2
    s_add_u32 s{sROT}, s{sROT}, s{sT}
    s_and_b32 s{sT}, s{sW}, 1
    s_lshl_b32 s{sT2}, s{sRB}, 1
    s_add_u32 s{sT3}, s{sT2}, s{sT}
    s_lshl_b32 s{sPQ0}, s{sT3}, 15
    s_add_u32 s{sPQ0}, s{sPQ0}, {PQ_OFF}
    s_lshl_b32 s{sWO}, s{sCB}, 7
    s_lshl_b32 m0, s{sW}, 14
    """)
    assert PQ_OFF % 0x10000 == 0
    srd_consts(k, SX, S*D*2)
    srd_consts(k, SW, D*D*2)
    srd_consts(k, SWS, WS_USED)
    k.e(f"""
    s_mov_b32 s{sEPS}, 0x{EPS_PHI:x}
    s_mov_b32 s{sONE}, 0x{ONES_BF:x}
    s_mov_b32 s{sLN2}, 0x{LN2:x}
    s_waitcnt lgkmcnt(0)
    """)
    k.stamp(1)
    KVF, PQR, ACC, OA, XR = 16, 80, 144, 208, 248
    def ld_head(p):
        k.e(f"""
        s_xor_b32 s{sT}, s{sROT}, {p}
        s_lshl_b32 s{sKV}, s{sT}, 12
        s_lshl_b32 s{sT}, s{sT}, 11
        s_add_u32 s{sT}, s{sT}, s{sPQ0}
        s_xor_b32 s{sT2}, s{sT}, 0x8000
        """)
        for q in range(4):
            k.vop(f"buffer_load_dwordx4 {vr(KVF+16*p+4*q,4)}, v2, s[{SWS}:{SWS+3}], s{sKV} offen offset:{q*512}", f"kv{p}")
        for rt in range(2):
            for f in range(2):
                k.vop(f"buffer_load_dwordx4 {vr(PQR+16*p+8*rt+4*f,4)}, v1, s[{SWS}:{SWS+3}], s{sT if rt == 0 else sT2} offen offset:{f*1024}", f"pq{p}")
    def ld_wo(p):
        k.e(f"""
        s_xor_b32 s{sT}, s{sROT}, {p}
        s_mul_i32 s{sT}, s{sT}, {28*896}
        s_add_u32 s{sT}, s{sT}, s{sWO}
        """)
        for u in range(4):
            k.vop(f"buffer_load_dwordx4 v3, s[{SW}:{SW+3}], s{sT} offen offset:{u*1024} lds", f"wo{p}")
            if u < 3: k.e(f"s_add_u32 s{sT}, s{sT}, {7168-1024}")
        k.e("s_add_u32 m0, m0, 4096")
    ld_head(0); ld_head(1)
    def ld_x():
        k.e(f"""
        v_and_b32 v6, 31, v0
        v_mul_u32_u24 v4, 896, v6
        v_lshl_add_u32 v4, v9, 5, v4
        s_mul_i32 s{sT}, s{sT3}, {32*896}
        s_add_u32 s{sT}, s{sT}, s{sWO}
        s_lshr_b32 s{sT2}, s{sW}, 1
        s_lshl_b32 s{sT2}, s{sT2}, 6
        s_add_u32 s{sT}, s{sT}, s{sT2}
        """)
        k.vop(f"buffer_load_dwordx4 {vr(XR,4)}, v4, s[{SX}:{SX+3}], s{sT} offen", "x")
        k.vop(f"buffer_load_dwordx4 {vr(XR+4,4)}, v4, s[{SX}:{SX+3}], s{sT} offen offset:16", "x")
    AW0, AW1 = 14, 15
    k.e(f"""
    v_bfe_u32 v7, v0, 2, 2
    v_mad_u32_u24 v5, v9, 14, v7
    v_lshlrev_b32 v5, 7, v5
    v_lshrrev_b32 v7, 1, v7
    v_xor_b32 v7, v7, v9
    v_bfe_u32 v8, v0, 7, 1
    v_xor_b32 v7, v7, v8
    v_lshl_add_u32 v5, v7, 6, v5
    v_and_b32 v7, 1, v0
    v_lshl_add_u32 v5, v7, 5, v5
    v_bfe_u32 v7, v0, 4, 1
    v_lshl_add_u32 v5, v7, 4, v5
    v_bfe_u32 v7, v0, 1, 1
    v_lshl_add_u32 v5, v7, 3, v5
    v_lshrrev_b32 v7, 6, v0
    v_lshl_add_u32 v{AW0}, v7, 14, v5
    v_xor_b32 v{AW1}, 64, v{AW0}
    """)
    def o_stage(p):
        k.wait_vm(f"kv{p}")
        if p == 0: k.stamp(2)
        if p == 3: k.stamp(3)
        b = KVF+16*p
        for i in range(8):
            k.e(f"v_cvt_pk_bf16_f32 v{b+i}, v{b+2*i}, v{b+2*i+1}")
        k.wait_vm(f"pq{p}")
        k.e("s_nop 0")
        for rt in range(2):
            for f in range(2):
                k.e(f"v_mfma_f32_32x32x16_bf16 {vr(OA+16*rt,16)}, {vr(b+4*f,4)}, {vr(PQR+16*p+8*rt+4*f,4)}, {'0' if f == 0 else vr(OA+16*rt,16)}")
    def norm_stage(p):
        for rt in range(2):
            o = OA+16*rt
            d = PQR+16*p+8*rt
            k.e(f"v_add_f32 v{o+14}, s{sEPS}, v{o+14}")
            k.e(f"v_rcp_f32 v{o+14}, v{o+14}")
            k.e(f"v_mov_b32 v{d+7}, 0")
            k.e(f"v_mul_f32 v{o+14}, s{sLN2}, v{o+14}")
            for i in range(0, 14, 2):
                k.e(f"v_pk_mul_f32 {vr(o+i,2)}, {vr(o+i,2)}, {vr(o+14,2)} op_sel_hi:[1,0]")
            for i in range(0, 14, 2):
                k.e(f"v_cvt_pk_bf16_f32 v{d+i//2}, v{o+i}, v{o+i+1}")
    def w_reads(p):
        k.wait_vm(f"wo{p}")
        for f in range(2):
            for ct in range(2):
                for ri in range(2):
                    k.e(f"ds_read_b64_tr_b16 {vr(KVF+16*p+8*f+4*ct+2*ri,2)}, v{AW0 if ct == 0 else AW1} offset:{(32*p+8*f+4*ri)*128}")
    def main_stage(p):
        for f in range(2):
            for ct in range(2):
                k.e(f"s_waitcnt lgkmcnt({6-4*f-2*ct})")
                for rt in range(2):
                    a = ACC+16*(2*ct+rt)
                    first = (p == 0 and f == 0)
                    k.e(f"v_mfma_f32_32x32x16_bf16 {vr(a,16)}, {vr(KVF+16*p+8*f+4*ct,4)}, {vr(PQR+16*p+8*rt+4*f,4)}, {'0' if first else vr(a,16)}")
    def wpf():
        if not WPF: return
        k.e(f"""
        s_lshr_b32 s{sT}, s{sW}, 1
        s_lshl_b32 s{sT}, s{sT}, 3
        s_add_u32 s{sT}, s{sT}, 32
        s_load_dwordx2 s[{SP}:{SP+1}], s[0:1], s{sT}
        s_mov_b32 s{SP+2}, {D*F*2}
        s_mov_b32 s{SP+3}, 0x20000
        s_lshr_b32 s{sT}, s2, 3
        s_mul_i32 s{sT}, s{sT}, {16*3584}
        s_and_b32 s{sT2}, s2, 3
        s_mul_i32 s{sT2}, s{sT2}, 896
        s_add_u32 s{sT}, s{sT}, s{sT2}
        v_bfe_u32 v10, v0, 3, 4
        v_mul_u32_u24 v10, 3584, v10
        v_and_b32 v11, 7, v0
        v_min_u32 v11, 6, v11
        v_lshl_add_u32 v10, v11, 7, v10
        s_waitcnt lgkmcnt(0)
        """)
        k.vop(f"buffer_load_dword v{DUM}, v10, s[{SP}:{SP+3}], s{sT} offen", "pf")
    for p in range(4):
        o_stage(p)
        if p == 0: ld_wo(0); ld_head(2)
        if p == 1: ld_wo(1); ld_head(3)
        if p == 2: ld_wo(2); ld_wo(3); ld_x()
        if p > 0:
            main_stage(p-1)
        if p == 3: wpf()
        norm_stage(p)
        w_reads(p)
    k.stamp(4)
    k.e("s_nop 1")
    main_stage(3)
    k.e(f"""
    v_lshrrev_b32 v7, 6, v0
    s_movk_i32 s{sT}, 12288
    v_add_u32 v6, {RED}, v1
    v_mad_u32_u24 v8, v7, s{sT}, v6
    """)
    for tp in range(1, 4):
        k.e(f"v_xor_b32 v{10+tp}, {tp}, v7")
        k.e(f"v_mad_u32_u24 v{10+tp}, v{10+tp}, s{sT}, v6")
    k.nop(4)
    for tp in range(1, 4):
        for a in range(4):
            k.e(f"ds_write_b128 v{10+tp}, {vr(ACC+16*tp+4*a,4)} offset:{(tp-1)*4096+a*1024}")
    k.e(f"""
    s_lshl_b32 s{sT}, s{sCB}, 1
    s_lshr_b32 s{sT2}, s{sW}, 1
    s_add_u32 s{sT}, s{sT}, s{sT2}
    s_mul_i32 s{sT2}, s{sT3}, 14
    s_add_u32 s{sT}, s{sT}, s{sT2}
    s_lshl_b32 s{sT2}, s{sT}, 8
    s_add_u32 s{sT2}, s{sT2}, {ST_OFF}
    s_lshl_b32 s{sT}, s{sT}, 11
    s_add_u32 s{sT}, s{sT}, {HF_OFF}
    """)
    k.wait_vm("x")
    XU = 80
    for i in range(8):
        k.e(f"v_lshlrev_b32 v{XU+2*i}, 16, v{XR+i}")
        k.e(f"v_and_b32 v{XU+2*i+1}, 0xffff0000, v{XR+i}")
    for i in range(0, 16, 2):
        k.e(f"v_pk_add_f32 {vr(ACC+i,2)}, {vr(ACC+i,2)}, {vr(XU+i,2)}")
    k.e("""
    v_mov_b32 v10, 0
    v_mov_b32 v11, 0
    s_waitcnt lgkmcnt(0)
    s_barrier
    """)
    k.stamp(5)
    for j in range(3):
        for a in range(4):
            k.e(f"ds_read_b128 {vr(16+16*j+4*a,4)}, v8 offset:{j*4096+a*1024}")
    for j in range(3):
        k.e(f"s_waitcnt lgkmcnt({8-4*j})")
        for i in range(0, 16, 2):
            k.e(f"v_pk_add_f32 {vr(ACC+i,2)}, {vr(ACC+i,2)}, {vr(16+16*j+i,2)}")
    HO = 96
    for i in range(8):
        k.e(f"v_cvt_pk_bf16_f32 v{HO+i}, v{ACC+2*i}, v{ACC+2*i+1}")
    k.e(f"""
    buffer_store_dwordx4 {vr(HO,4)}, v1, s[{SWS}:{SWS+3}], s{sT} offen
    buffer_store_dwordx4 {vr(HO+4,4)}, v1, s[{SWS}:{SWS+3}], s{sT} offen offset:1024
    """)
    for i in range(8):
        k.e(f"v_dot2c_f32_bf16 v10, s{sONE}, v{HO+i}")
        k.e(f"v_dot2c_f32_bf16 v11, v{HO+i}, v{HO+i}")
    k.e(f"""
    v_and_b32 v6, 31, v0
    v_lshlrev_b32 v6, 3, v6
    s_nop 1
    v_mov_b32 v12, v10
    v_mov_b32 v13, v11
    s_nop 1
    v_permlane32_swap_b32 v10, v12
    v_permlane32_swap_b32 v11, v13
    s_nop 0
    v_add_f32 v10, v10, v12
    v_add_f32 v11, v11, v13
    s_mov_b32 exec_hi, 0
    buffer_store_dwordx2 v[10:11], v6, s[{SWS}:{SWS+3}], s{sT2} offen
    """)
    k.stamp(6)
    k.end(SWS, 1, 7)
    k.label(k.L('cs'))
    k.e(f"""
    s_cmp_ge_u32 s2, 252
    s_cbranch_scc1 {k.L('end')}
    s_load_dwordx4 s[16:19], s[0:1], 32
    v_lshrrev_b32 v5, 6, v0
    v_bfe_u32 v6, v0, 3, 3
    v_readfirstlane_b32 s{sW}, v5
    v_and_b32 v7, 7, v0
    v_mul_u32_u24 v1, 3584, v6
    v_lshl_add_u32 v1, v7, 4, v1
    s_sub_u32 s{sCB}, s2, 224
    s_and_b32 s{sT}, s{sW}, 1
    s_mul_i32 s{sT}, s{sT}, {224*3584}
    s_lshl_b32 s{sT2}, s{sCB}, 7
    s_add_u32 s{sT}, s{sT}, s{sT2}
    s_mov_b32 s{sEPS}, 0x3f80
    s_mov_b32 s{sONE}, 0x3f800000
    """)
    srd_consts(k, SW, D*F*2)
    srd_consts(k, SWS, WS_USED)
    k.e(f"""
    s_waitcnt lgkmcnt(0)
    s_cmp_ge_u32 s{sW}, 2
    s_cselect_b32 s{SW}, s18, s16
    s_cselect_b32 s{SW+1}, s19, s17
    """)
    for i in range(8):
        k.e(f"v_mov_b32 v{8+i}, 0")
    NL = 7
    def lds_(b):
        for u in range(NL):
            k.e(f"buffer_load_dwordx4 {vr(16+28*b+4*u,4)}, v1, s[{SW}:{SW+3}], s{sT} offen")
            k.e(f"s_add_u32 s{sT}, s{sT}, {8*3584}")
    def acc_(b, outstanding):
        for u in range(NL):
            k.e(f"s_waitcnt vmcnt({outstanding+NL-1-u})")
            for j in range(4):
                k.e(f"v_dot2c_f32_bf16 v{8+2*j}, s{sEPS}, v{16+28*b+4*u+j}")
                k.e(f"v_dot2c_f32_bf16 v{9+2*j}, s{sONE}, v{16+28*b+4*u+j}")
    lds_(0)
    k.e(f"s_mov_b32 s{sRB}, 0")
    k.label(k.L('csl'))
    lds_(1)
    acc_(0, NL)
    k.e(f"s_cmp_eq_u32 s{sRB}, 1\ns_cbranch_scc1 {k.L('cs2')}")
    lds_(0)
    acc_(1, NL)
    k.e(f"s_mov_b32 s{sRB}, 1\ns_branch {k.L('csl')}")
    k.label(k.L('cs2'))
    acc_(1, 0)
    k.e(f"""
    v_lshlrev_b32 v2, 5, v0
    v_bfe_u32 v3, v0, 6, 1
    v_lshlrev_b32 v3, 12, v3
    v_and_b32 v4, 63, v0
    v_lshl_add_u32 v3, v4, 2, v3
    ds_write_b128 v2, v[8:11]
    ds_write_b128 v2, v[12:15] offset:16
    s_waitcnt lgkmcnt(0)
    s_barrier
    s_cmp_ge_u32 s{sW}, 2
    s_cbranch_scc1 {k.L('end')}
    """)
    for i in range(8):
        k.e(f"ds_read2st64_b32 {vr(16+2*i,2)}, v3 offset0:{2*i} offset1:{2*i+1}")
    k.e(f"""
    s_mul_i32 s{sT}, s{sW}, {1792*4}
    s_lshl_b32 s{sT2}, s{sCB}, 8
    s_add_u32 s{sT}, s{sT}, s{sT2}
    s_add_u32 s{sT}, s{sT}, {CS_OFF}
    v_lshlrev_b32 v4, 2, v4
    s_waitcnt lgkmcnt(0)
    """)
    for stp in (8, 4, 2, 1):
        for i in range(stp):
            k.e(f"v_add_f32 v{16+i}, v{16+i}, v{16+i+stp}")
    k.e(f"buffer_store_dword v16, v4, s[{SWS}:{SWS+3}], s{sT} offen")
    k.end(SWS, 1, 1)
    k.label(k.L('end'))
    k.e("s_endpgm")
    return k, dict(vgpr=256, sgpr=64, grid=256, block=256, lds=RED+49152)

def gen_c():
    k = K("kc")
    SG, SU, SWS, SP = 4, 8, 12, 32
    sW, sRB, sFB, sT, sT2, sRT, sWOFF, sH, sCG, sM6, sP1, sT3 = 20, 21, 22, 23, 24, 25, 26, 27, 28, 29, 30, 31
    DUM = 252
    k.stamp(0)
    k.e(f"""
    s_cmp_ge_u32 s2, 224
    s_cbranch_scc1 {k.L('end')}
    s_load_dwordx2 s[{SG}:{SG+1}], s[0:1], 32
    s_load_dwordx2 s[{SU}:{SU+1}], s[0:1], 40
    s_load_dwordx2 s[{SWS}:{SWS+1}], s[0:1], 72
    s_load_dwordx2 s[{SP}:{SP+1}], s[0:1], 48
    v_lshrrev_b32 v5, 6, v0
    v_and_b32 v1, 63, v0
    v_readfirstlane_b32 s{sW}, v5
    v_lshlrev_b32 v1, 4, v1
    v_lshrrev_b32 v6, 3, v0
    v_and_b32 v8, 7, v0
    v_bfe_u32 v7, v0, 4, 1
    v_lshlrev_b32 v7, 2, v7
    v_xor_b32 v7, v7, v8
    v_mul_u32_u24 v3, 3584, v6
    v_lshl_add_u32 v3, v7, 4, v3
    s_lshr_b32 s{sT2}, s2, 3
    """)
    div7(k, sRB, sFB, sT2)
    if ROT:
        k.e(f"s_lshl_b32 s{sT}, s{sRB}, 1\ns_add_u32 s{sT}, s{sT}, s{sFB}")
        div7(k, sT2, sCG, sT)
    else:
        k.e(f"s_mov_b32 s{sCG}, 0")
    k.e(f"""
    s_and_b32 s{sT2}, s2, 4
    s_add_u32 s{sRB}, s{sRB}, s{sT2}
    s_and_b32 s{sT2}, s2, 3
    s_mul_i32 s{sT2}, s{sT2}, 7
    s_add_u32 s{sFB}, s{sFB}, s{sT2}
    s_lshl_b32 s{sRT}, s{sRB}, 3
    s_add_u32 s{sRT}, s{sRT}, s{sW}
    s_lshl_b32 s{sWOFF}, s{sFB}, 7
    s_mul_i32 s{sT}, s{sCG}, {64*3584}
    s_add_u32 s{sWOFF}, s{sWOFF}, s{sT}
    s_mul_i32 s{sH}, s{sRT}, 28672
    s_lshl_b32 s{sT}, s{sCG}, 12
    s_add_u32 s{sH}, s{sH}, s{sT}
    s_add_u32 s{sH}, s{sH}, {HF_OFF}
    s_lshl_b32 m0, s{sW}, 11
    """)
    srd_consts(k, SG, D*F*2)
    srd_consts(k, SU, D*F*2+1024)
    srd_consts(k, SWS, WS_USED)
    k.e(f"""
    s_waitcnt lgkmcnt(0)
    s_sub_u32 s{SU}, s{SU}, 1024
    s_subb_u32 s{SU+1}, s{SU+1}, 0
    """)
    HFR, ACC, WF, STR, CSR = 16, 128, 192, 208, 224
    k.stamp(1)
    def chunk_loads(c):
        L = []
        def w0():
            if c > 0:
                k.e(f"""
                s_add_u32 m0, m0, 16384
                s_add_u32 s{sCG}, s{sCG}, 1
                s_cmp_eq_u32 s{sCG}, 7
                s_cselect_b32 s{sT3}, s{sM6}, s{sP1}
                s_add_u32 s{sWOFF}, s{sWOFF}, s{sT3}
                """)
            k.vop(f"buffer_load_dwordx4 v3, s[{SG}:{SG+3}], s{sWOFF} offen lds", f"w{c}")
        def w1():
            k.vop(f"buffer_load_dwordx4 v3, s[{SU}:{SU+3}], s{sWOFF} offen offset:1024 lds", f"w{c}")
        L += [w0, w1]
        for j in range(4):
            def hj(j=j):
                if j == 0 and c > 0:
                    k.e(f"""
                    s_cmp_eq_u32 s{sCG}, 7
                    s_cselect_b32 s{sT3}, {(-6*4096) & 0xffffffff}, s{sK4}
                    s_add_u32 s{sH}, s{sH}, s{sT3}
                    """)
                k.vop(f"buffer_load_dwordx4 {vr(HFR+16*c+4*j,4)}, v1, s[{SWS}:{SWS+3}], s{sH} offen offset:{j*1024}", f"h{c}")
            L.append(hj)
        return L
    sK4 = 19
    for f in chunk_loads(0): f()
    k.e(f"""
    s_mov_b32 s{sM6}, {(-6*64*3584) & 0xffffffff}
    s_mov_b32 s{sP1}, {64*3584}
    s_movk_i32 s{sK4}, 4096
    s_barrier
    """)
    for f in chunk_loads(1): f()
    srd_consts(k, SP, F*D*2)
    k.e(f"""
    v_bfe_u32 v9, v0, 5, 1
    v_and_b32 v6, 31, v0
    v_mul_u32_u24 v4, 1792, v9
    v_lshl_add_u32 v4, v6, 3, v4
    s_mul_i32 s{sT}, s{sRT}, 3584
    s_add_u32 s{sT}, s{sT}, {ST_OFF}
    v_bfe_u32 v7, v0, 2, 1
    v_bfe_u32 v8, v0, 3, 2
    v_lshlrev_b32 v7, 4, v7
    v_lshl_add_u32 v7, v8, 2, v7
    v_and_b32 v8, 3, v0
    v_add_lshl_u32 v2, v7, v8, 2
    s_lshl_b32 s{sT2}, s{sFB}, 8
    s_add_u32 s{sT2}, s{sT2}, {CS_OFF}
    s_add_u32 s{sRB}, s{sT2}, 7168
    v_min_u32 v14, 447, v0
    v_lshlrev_b32 v14, 7, v14
    s_lshr_b32 s18, s2, 3
    s_mul_i32 s18, s18, {448*128}
    """)
    stl = []
    for u in range(7):
        stl.append(lambda u=u: k.vop(f"buffer_load_dwordx2 {vr(STR+2*u,2)}, v4, s[{SWS}:{SWS+3}], s{sT} offen offset:{u*256}", "st"))
    for q in range(4):
        stl.append(lambda q=q: k.vop(f"buffer_load_dword v{CSR+q}, v2, s[{SWS}:{SWS+3}], s{sT2 if q < 2 else sRB} offen offset:{(q&1)*128}", "st"))
    AW0, AW1 = 10, 11
    k.e(f"""
    v_bfe_u32 v7, v0, 2, 2
    v_lshlrev_b32 v5, 12, v9
    v_lshl_add_u32 v5, v7, 7, v5
    v_lshrrev_b32 v7, 1, v7
    v_lshl_add_u32 v5, v7, 6, v5
    v_and_b32 v7, 1, v0
    v_lshl_add_u32 v5, v7, 5, v5
    v_bfe_u32 v7, v0, 4, 1
    v_lshl_add_u32 v5, v7, 4, v5
    v_bfe_u32 v7, v0, 1, 1
    v_lshl_add_u32 v{AW0}, v7, 3, v5
    v_xor_b32 v{AW1}, 64, v{AW0}
    v_add_u32 v12, 0x10000, v{AW0}
    v_add_u32 v13, 0x10000, v{AW1}
    """)
    KS = CKS
    units = [(kap, tau) for kap in range(KS) for tau in range(4)]
    units += [(kap, tau) for kap in range(KS, 28) for tau in (0, 2)] + [('x', 0), ('x', 2)]
    nA = len(units)
    units += [(kap, tau) for kap in range(KS, 28) for tau in (1, 3)] + [('x', 1), ('x', 3)]
    NU = len(units)
    DEP = 4
    T, XE, WE = 228, 232, 236
    C1, IR2 = STR+4, STR+2
    pend = []
    for c in range(2, 7):
        for i, f in enumerate(chunk_loads(c)):
            pend.append(((c-2)*CLP + 2*i, f))
    for i, f in enumerate(stl): pend.append((2*i+13, f))
    if WPF:
        pend.append((5*CLP+8, lambda: k.vop(f"buffer_load_dword v{DUM}, v14, s[{SP}:{SP+3}], s18 offen", "pf")))
    pend.sort(key=lambda x: x[0])
    kk = K("tmp")
    for u in range(1, 7):
        kk.e(f"v_add_f32 v{STR}, v{STR}, v{STR+2*u}")
        kk.e(f"v_add_f32 v{STR+1}, v{STR+1}, v{STR+2*u+1}")
    kk.e(f"""
    v_cmp_eq_u32 vcc, 0, v9
    v_mov_b32 v{STR+2}, v{STR}
    v_mov_b32 v{STR+3}, v{STR+1}
    v_cndmask_b32 v{CSR}, 0, v{CSR}, vcc
    v_cndmask_b32 v{CSR+1}, 0, v{CSR+1}, vcc
    v_permlane32_swap_b32 v{STR}, v{STR+2}
    v_permlane32_swap_b32 v{STR+1}, v{STR+3}
    v_cndmask_b32 v{CSR+2}, 0, v{CSR+2}, vcc
    v_cndmask_b32 v{CSR+3}, 0, v{CSR+3}, vcc
    v_add_f32 v{STR}, v{STR}, v{STR+2}
    v_add_f32 v{STR+1}, v{STR+1}, v{STR+3}
    v_mul_f32 v{STR}, 0x{INV_D|0x80000000:x}, v{STR}
    v_mul_f32 v{STR+1}, 0x{INV_D:x}, v{STR+1}
    v_fma_f32 v{STR+1}, -v{STR}, v{STR}, v{STR+1}
    v_max_f32 v{STR+1}, 0, v{STR+1}
    v_add_f32 v{STR+2}, 0x{EPS_LN:x}, v{STR+1}
    v_rsq_f32 v{STR+4}, v{STR+2}
    """)
    hilo_x(kk, XE, STR, T)
    kk.e(f"v_mov_b32 v{XE+2}, 0\nv_mov_b32 v{XE+3}, 0")
    kk.e(f"v_mul_f32 v{STR+4}, 0x{LOG2E|0x80000000:x}, v{STR+4}")
    for tau in range(4):
        hilo_w(kk, WE+4*tau, CSR+tau, T+1)
    kk.e(f"""
    v_bfe_u32 v7, v0, 4, 1
    v_mul_u32_u24 v4, 57344, v7
    v_lshl_add_u32 v4, v9, 9, v4
    v_and_b32 v7, 15, v0
    v_lshl_add_u32 v4, v7, 4, v4
    s_mul_i32 s{sT}, s{sRT}, 114688
    s_lshl_b32 s{sT2}, s{sFB}, 11
    s_add_u32 s{sT}, s{sT}, s{sT2}
    s_add_u32 s{sT}, s{sT}, {ACT_OFF}
    """)
    side1 = [l.strip() for l in kk.lines]
    def epi(ct, packed):
        kk = K("tmp")
        O = 16 + 8*ct
        g, u = ACC+16*ct, ACC+32+16*ct
        for i in range(0, 16, 2):
            t = 32 + (i % 8)
            if packed:
                kk.e(f"v_pk_mul_f32 {vr(t,2)}, {vr(g+i,2)}, {vr(C1,2)} op_sel_hi:[1,0]")
                kk.e(f"v_pk_mul_f32 {vr(g+i,2)}, {vr(g+i,2)}, {vr(u+i,2)}")
                kk.e(f"v_exp_f32 v{t}, v{t}")
                kk.e(f"v_exp_f32 v{t+1}, v{t+1}")
                kk.e("s_nop 0")
                kk.e(f"v_pk_fma_f32 {vr(t,2)}, {vr(t,2)}, {vr(IR2,2)}, {vr(IR2,2)} op_sel_hi:[1,0,0]")
                kk.e(f"v_rcp_f32 v{t}, v{t}")
                kk.e(f"v_rcp_f32 v{t+1}, v{t+1}")
                kk.e("s_nop 0")
                kk.e(f"v_pk_mul_f32 {vr(g+i,2)}, {vr(g+i,2)}, {vr(t,2)}")
            else:
                kk.e(f"v_mul_f32 v{t}, v{g+i}, v{C1}")
                kk.e(f"v_mul_f32 v{t+1}, v{g+i+1}, v{C1}")
                kk.e(f"v_exp_f32 v{t}, v{t}")
                kk.e(f"v_mul_f32 v{g+i}, v{g+i}, v{u+i}")
                kk.e(f"v_exp_f32 v{t+1}, v{t+1}")
                kk.e(f"v_mul_f32 v{g+i+1}, v{g+i+1}, v{u+i+1}")
                kk.e(f"v_fma_f32 v{t}, v{t}, v{IR2}, v{IR2}")
                kk.e(f"v_fma_f32 v{t+1}, v{t+1}, v{IR2}, v{IR2}")
                kk.e(f"v_rcp_f32 v{t}, v{t}")
                kk.e(f"v_rcp_f32 v{t+1}, v{t+1}")
                kk.e(f"v_mul_f32 v{g+i}, v{g+i}, v{t}")
                kk.e(f"v_mul_f32 v{g+i+1}, v{g+i+1}, v{t+1}")
            kk.e(f"v_cvt_pk_bf16_f32 v{O+i//2}, v{g+i}, v{g+i+1}")
            if i % 8 == 6:
                f = i // 8
                kk.e(f"buffer_store_dwordx4 {vr(O+4*f,4)}, v4, s[{SWS}:{SWS+3}], s{sT} offen offset:{ct*1024+f*256}")
        return [l.strip() for l in kk.lines]
    side2 = epi(0, False)
    s1_start = nA - 2 - (len(side1)+3)//4 - 1
    s2_start = nA + 3
    gated = {0}
    hw = set()
    def rd(u):
        kap, tau = units[u]
        if kap == 'x': return
        c = kap >> 2
        if c not in gated:
            gated.add(c)
            k.wait_vm(f"w{c}")
            k.e("s_barrier")
            if c == 3: k.stamp(3)
            if c == 6: k.stamp(4)
        cc, tl, f = kap >> 2, (kap >> 1) & 1, kap & 1
        m, ct = tau >> 1, tau & 1
        o = cc*16384 + tl*8192 + f*2048 + m*1024
        a = AW0 + ct
        if o >= 0x10000: o -= 0x10000; a += 2
        for ri in range(2):
            k.e(f"ds_read_b64_tr_b16 {vr(WF+4*(u%DEP)+2*ri,2)}, v{a} offset:{o+ri*512}")
    k.wait_vm("w0")
    k.e("s_barrier")
    k.stamp(2)
    for u in range(DEP): rd(u)
    started = set()
    for u in range(NU):
        kap, tau = units[u]
        a = ACC+16*tau
        if kap == 'x':
            assert not side1
            k.e(f"v_mfma_f32_32x32x16_bf16 {vr(a,16)}, {vr(WE+4*tau,4)}, {vr(XE,4)}, {vr(a,16)}")
        else:
            if (kap >> 2) not in hw:
                hw.add(kap >> 2)
                k.wait_vm(f"h{kap>>2}")
            nout = sum(1 for v in range(u+1, min(u+DEP, NU)) if units[v][0] != 'x')
            k.e(f"s_waitcnt lgkmcnt({2*nout})")
            k.e(f"v_mfma_f32_32x32x16_bf16 {vr(a,16)}, {vr(WF+4*(u%DEP),4)}, {vr(HFR+4*kap,4)}, {'0' if tau not in started else vr(a,16)}")
            started.add(tau)
        if u+DEP < NU: rd(u+DEP)
        while pend and pend[0][0] <= u:
            pend.pop(0)[1]()
        if u >= s1_start and side1:
            if u == s1_start: k.wait_vm("st")
            for _ in range(4):
                if side1: k.e(side1.pop(0))
        if u >= s2_start and side2:
            for _ in range(5 if len(side2) > 4*(NU-u) else 4):
                if side2: k.e(side2.pop(0))
    k.stamp(5)
    for l in side2: k.e(l)
    k.nop(max(0, 12-len(side2)))
    for l in epi(1, True): k.e(l)
    k.stamp(6)
    k.end(SWS, 2, 7)
    k.label(k.L('end'))
    k.e("s_endpgm")
    return k, dict(vgpr=256, sgpr=64, grid=256, block=512, lds=114688)

def gen_d():
    k = K("kd")
    SW, SO, SWS = 4, 8, 12
    sW, sRB, sCB, sT, sT2, sWOFF, sA, sKH, sCG, sM, sP, sT3 = 20, 21, 22, 23, 24, 25, 26, 27, 28, 29, 30, 31
    NSLOT = 8
    RED = 8*16384
    k.stamp(0)
    k.e(f"""
    s_cmp_ge_u32 s2, 224
    s_cbranch_scc1 {k.L('end')}
    s_load_dwordx2 s[{SW}:{SW+1}], s[0:1], 48
    s_load_dwordx2 s[{SO}:{SO+1}], s[0:1], 56
    s_load_dwordx2 s[{SWS}:{SWS+1}], s[0:1], 72
    v_lshrrev_b32 v5, 6, v0
    v_and_b32 v1, 63, v0
    v_readfirstlane_b32 s{sW}, v5
    v_lshlrev_b32 v1, 4, v1
    v_lshrrev_b32 v6, 3, v0
    v_and_b32 v8, 7, v0
    v_bfe_u32 v7, v0, 4, 1
    v_bfe_u32 v9, v0, 6, 1
    v_lshl_add_u32 v7, v9, 1, v7
    v_lshlrev_b32 v7, 1, v7
    v_xor_b32 v7, v7, v8
    v_mul_u32_u24 v2, 896, v6
    v_lshl_add_u32 v2, v7, 4, v2
    v_add_u32 v3, {896*896-1024}, v2
    s_lshr_b32 s{sT2}, s2, 3
    """)
    div7(k, sRB, sCB, sT2)
    if ROT:
        k.e(f"""
        s_mul_i32 s{sT}, s{sRB}, 7
        s_lshr_b32 s{sT}, s{sT}, 1
        s_lshl_b32 s{sCG}, s{sCB}, 1
        s_add_u32 s{sCG}, s{sCG}, s{sT}
        s_cmp_ge_u32 s{sCG}, 14
        s_cselect_b32 s{sT}, 14, 0
        s_sub_u32 s{sCG}, s{sCG}, s{sT}
        """)
    else:
        k.e(f"s_mov_b32 s{sCG}, 0")
    k.e(f"""
    s_and_b32 s{sT}, s2, 7
    s_lshl_b32 s{sT}, s{sT}, 2
    s_add_u32 s{sRB}, s{sRB}, s{sT}
    s_lshl_b32 s{sWOFF}, s{sCB}, 7
    s_mul_i32 s{sT}, s{sCG}, {64*896}
    s_add_u32 s{sWOFF}, s{sWOFF}, s{sT}
    s_lshr_b32 s{sKH}, s{sW}, 2
    s_lshl_b32 s{sT}, s{sRB}, 2
    s_and_b32 s{sT2}, s{sW}, 3
    s_add_u32 s{sT}, s{sT}, s{sT2}
    s_lshl_b32 s{sT}, s{sT}, 1
    s_add_u32 s{sT}, s{sT}, s{sKH}
    s_mul_i32 s{sA}, s{sT}, 28672
    s_lshl_b32 s{sT}, s{sCG}, 11
    s_add_u32 s{sA}, s{sA}, s{sT}
    s_add_u32 s{sA}, s{sA}, {ACT_OFF}
    s_lshl_b32 m0, s{sW}, 11
    s_mov_b32 s{sM}, {(-13*64*896) & 0xffffffff}
    s_mov_b32 s{sP}, {64*896}
    s_movk_i32 s19, 2048
    """)
    srd_consts(k, SW, F*D*2)
    srd_consts(k, SO, S*D*2)
    srd_consts(k, SWS, WS_USED)
    k.e("s_waitcnt lgkmcnt(0)")
    AF, ACC, WF, HR = 16, 128, 144, 176
    k.stamp(1)
    def issue_stage(j):
        k.vop(f"buffer_load_dwordx4 v2, s[{SW}:{SW+3}], s{sWOFF} offen lds", f"w{j}")
        k.vop(f"buffer_load_dwordx4 v3, s[{SW}:{SW+3}], s{sWOFF} offen offset:1024 lds", f"w{j}")
        for ks in range(2):
            k.vop(f"buffer_load_dwordx4 {vr(AF+8*j+4*ks,4)}, v1, s[{SWS}:{SWS+3}], s{sA} offen offset:{ks*1024}", f"a{j}")
        if j < 13:
            if (j+1) % NSLOT: k.e("s_add_u32 m0, m0, 16384")
            else: k.e(f"s_lshl_b32 m0, s{sW}, 11")
            k.e(f"""
            s_add_u32 s{sCG}, s{sCG}, 1
            s_cmp_eq_u32 s{sCG}, 14
            s_cselect_b32 s{sT3}, s{sM}, s{sP}
            s_add_u32 s{sWOFF}, s{sWOFF}, s{sT3}
            s_cmp_eq_u32 s{sCG}, 14
            s_cselect_b32 s{sT3}, {(-13*2048) & 0xffffffff}, s19
            s_add_u32 s{sA}, s{sA}, s{sT3}
            """)
    for j in range(DDEP):
        issue_stage(j)
        if j < DDEP-1: k.e("s_barrier")
    AW = 8
    k.e(f"""
    v_bfe_u32 v5, v0, 4, 2
    v_lshlrev_b32 v6, 11, v5
    v_bfe_u32 v7, v0, 8, 1
    v_lshl_add_u32 v6, v7, 10, v6
    v_xor_b32 v5, v5, v7
    v_and_b32 v5, 1, v5
    v_bfe_u32 v7, v0, 2, 2
    v_lshl_add_u32 v6, v7, 7, v6
    v_lshrrev_b32 v7, 1, v7
    v_lshl_add_u32 v5, v5, 1, v7
    v_lshl_add_u32 v6, v5, 5, v6
    v_and_b32 v7, 3, v0
    v_lshl_add_u32 v{AW}, v7, 3, v6
    v_xor_b32 v{AW+1}, 32, v{AW}
    v_xor_b32 v{AW+2}, 64, v{AW}
    v_xor_b32 v{AW+3}, 96, v{AW}
    v_add_u32 v{AW+4}, 0x10000, v{AW}
    v_add_u32 v{AW+5}, 0x10000, v{AW+1}
    v_add_u32 v{AW+6}, 0x10000, v{AW+2}
    v_add_u32 v{AW+7}, 0x10000, v{AW+3}
    """)
    def reads(u):
        t, tt = u >> 2, u & 3
        j, ks = t >> 1, t & 1
        o = (j % NSLOT)*16384 + ks*8192
        a = AW+tt
        if o >= 0x10000: o -= 0x10000; a += 4
        b = WF + 4*(u & 7)
        for ri in range(2):
            k.e(f"ds_read_b64_tr_b16 {vr(b+2*ri,2)}, v{a} offset:{o+ri*512}")
    def stage_gate(j):
        k.wait_vm(f"w{j}")
        k.e("s_barrier")
        if j == 0: k.stamp(2)
        if j == 7: k.stamp(3)
        if j == 13: k.stamp(4)
    def late(js):
        if js < 14:
            issue_stage(js)
            if js == 13:
                k.e(f"""
                v_bfe_u32 v5, v0, 5, 1
                v_lshlrev_b32 v5, 10, v5
                v_and_b32 v6, 15, v0
                v_lshl_add_u32 v5, v6, 4, v5
                v_bfe_u32 v7, v0, 4, 1
                v_lshl_add_u32 v5, v7, 3, v5
                s_lshl_b32 s{sT}, s{sRB}, 1
                s_bfe_u32 s{sT2}, s{sW}, 0x10001
                s_add_u32 s{sT}, s{sT}, s{sT2}
                s_mul_i32 s{sT}, s{sT}, 14
                s_lshl_b32 s{sT2}, s{sCB}, 1
                s_add_u32 s{sT}, s{sT}, s{sT2}
                s_add_u32 s{sT}, s{sT}, s{sKH}
                s_lshl_b32 s{sT}, s{sT}, 11
                s_and_b32 s{sT2}, s{sW}, 1
                s_lshl_b32 s{sT2}, s{sT2}, 8
                s_add_u32 s{sT}, s{sT}, s{sT2}
                s_add_u32 s{sT}, s{sT}, {HF_OFF}
                """)
                k.vop(f"buffer_load_dwordx2 {vr(HR,2)}, v5, s[{SWS}:{SWS+3}], s{sT} offen", "h")
                k.vop(f"buffer_load_dwordx2 {vr(HR+2,2)}, v5, s[{SWS}:{SWS+3}], s{sT} offen offset:512", "h")
                k.e(f"""
                v_lshrrev_b32 v5, 6, v0
                v_lshl_add_u32 v6, v5, 11, v1
                v_add_u32 v6, {RED}, v6
                v_xor_b32 v7, 0x2000, v6
                v_and_b32 v5, 15, v0
                v_mul_u32_u24 v4, 896, v5
                v_bfe_u32 v5, v0, 4, 2
                v_lshl_add_u32 v4, v5, 3, v4
                s_lshl_b32 s{sT}, s{sRB}, 2
                s_and_b32 s{sT2}, s{sW}, 3
                s_add_u32 s{sT}, s{sT}, s{sT2}
                s_mul_i32 s{sT}, s{sT}, {16*896}
                s_lshl_b32 s{sT2}, s{sCB}, 7
                s_add_u32 s{sT}, s{sT}, s{sT2}
                s_lshl_b32 s{sT2}, s{sKH}, 6
                s_add_u32 s{sT}, s{sT}, s{sT2}
                """)
    DEP = 6
    NU = 112
    stage_gate(0)
    for u in range(DEP): reads(u)
    for u in range(NU):
        t, tt = u >> 2, u & 3
        if u+DEP < NU:
            if (u+DEP) % 8 == 0:
                late((u+DEP)//8 - 1 + DDEP)
                stage_gate((u+DEP)//8)
            reads(u+DEP)
        if u % 8 == 0:
            k.wait_vm(f"a{u//8}")
        k.e(f"s_waitcnt lgkmcnt({2*min(DEP, NU-1-u)})")
        a = ACC+4*tt
        k.e(f"v_mfma_f32_16x16x32_bf16 {vr(a,4)}, {vr(WF+4*(u&7),4)}, {vr(AF+4*t,4)}, {'0' if t == 0 else vr(a,4)}")
    k.stamp(5)
    k.wait_vm("h")
    for i in range(4):
        k.e(f"v_lshlrev_b32 v{16+2*i}, 16, v{HR+i}")
        k.e(f"v_and_b32 v{17+2*i}, 0xffff0000, v{HR+i}")
    k.e(f"""
    ds_write_b128 v7, {vr(ACC+8,4)}
    ds_write_b128 v7, {vr(ACC+12,4)} offset:1024
    """)
    for i in range(0, 8, 2):
        k.e(f"v_pk_add_f32 {vr(ACC+i,2)}, {vr(ACC+i,2)}, {vr(16+i,2)}")
    k.e(f"""
    s_waitcnt lgkmcnt(0)
    s_barrier
    ds_read_b128 v[24:27], v6
    ds_read_b128 v[28:31], v6 offset:1024
    s_waitcnt lgkmcnt(0)
    """)
    for i in range(0, 8, 2):
        k.e(f"v_pk_add_f32 {vr(ACC+i,2)}, {vr(ACC+i,2)}, {vr(24+i,2)}")
    for i in range(4):
        k.e(f"v_cvt_pk_bf16_f32 v{32+i}, v{ACC+2*i}, v{ACC+2*i+1}")
    k.e(f"""
    buffer_store_dwordx2 v[32:33], v4, s[{SO}:{SO+3}], s{sT} offen
    buffer_store_dwordx2 v[34:35], v4, s[{SO}:{SO+3}], s{sT} offen offset:32
    """)
    k.stamp(6)
    k.end(SWS, 3, 7)
    k.label(k.L('end'))
    k.e("s_endpgm")
    return k, dict(vgpr=184, sgpr=64, grid=256, block=512, lds=RED+16384)

HEADER = open("sequential_preLN__linear_attn_block__swiglu_ffn__prompt.s.ref").read().split("; Override launch geometry")[0]

def build(kernels):
    out = [HEADER.rstrip()]
    for k, m in kernels:
        out.append(f"; @launch kernel={k.name}_kernel grid=({m['grid']},1,1) block=({m['block']},1,1) lds={m['lds']}")
    out.append('.amdgcn_target "amdgcn-amd-amdhsa--gfx950"')
    out.append(".text")
    for k, m in kernels:
        n = f"{k.name}_kernel"
        out += [f".globl {n}", ".p2align 8", f".type {n},@function", f"{n}:"]
        out += k.lines
    out.append("Lcode_end:")
    out.append('.section .rodata,"a"')
    for k, m in kernels:
        n = f"{k.name}_kernel"
        acc = (min(m['vgpr'], 256)+3)//4*4
        out += [".p2align 6", f".amdhsa_kernel {n}",
                f"  .amdhsa_next_free_vgpr {m['vgpr']}",
                f"  .amdhsa_next_free_sgpr {m['sgpr']}",
                f"  .amdhsa_accum_offset {m.get('accum', acc)}",
                "  .amdhsa_group_segment_fixed_size 0",
                "  .amdhsa_kernarg_size 80",
                "  .amdhsa_user_sgpr_count 2",
                "  .amdhsa_user_sgpr_kernarg_segment_ptr 1",
                "  .amdhsa_system_sgpr_workgroup_id_x 1",
                ".end_amdhsa_kernel"]
    return "\n".join(out) + "\n"

if __name__ == "__main__":
    ks = [gen_a(), gen_b(), gen_c(), gen_d()]
    open(sys.argv[1] if len(sys.argv) > 1 else "sequential_preLN__linear_attn_block__swiglu_ffn__prompt.s", "w").write(build(ks))
```

```python
import sys, os, struct
sys.path.insert(0, "dev")
from layouts import *

def f2u(x): return struct.unpack("<I", struct.pack("<f", x))[0]
LOG2E_F = 1.4426950408889634
LOG2E = f2u(LOG2E_F)
LN2 = f2u(0.6931471805599453)
EPS_PHI = f2u(1e-6)
EPS_PHI_L = f2u(1e-6*LOG2E_F)
EPS_LN = f2u(1e-5)
INV_D = f2u(1.0/448.0)
ONES_BF = 0x3F803F80
def env(n, d): return int(os.environ.get(n, str(d)))
STAMPS = env('STAMPS', 0)
STAMP_OFF = 16 << 20
ROT = env('ROT', 1)
CPF = env('CPF', 1)
WPF = env('WPF', 1)
APF = env('APF', 0)
CKS = env('CKS', 16)
CLP = env('CLP', 12)
DDEP = env('DDEP', 3)

class K:
    def __init__(self, name):
        self.name = name; self.lines = []; self.vm = []
    def e(self, s):
        for l in s.strip().split("\n"):
            if l.strip(): self.lines.append("    " + l.strip())
    def label(self, l): self.lines.append(f"{l}:")
    def L(self, s): return f"L{self.name}_{s}"
    def vop(self, s, tag):
        self.e(s); self.vm.append(tag)
    def wait_vm(self, tag, extra=""):
        idx = max(i for i, t in enumerate(self.vm) if t == tag)
        n = len(self.vm) - 1 - idx
        assert n <= 63
        self.e(f"s_waitcnt vmcnt({n}) {extra}".strip())
    def stamp(self, i):
        if STAMPS: self.e(f"s_memrealtime s[{40+2*i}:{41+2*i}]")
    def end(self, sws, kid, n):
        if STAMPS:
            self.e("s_waitcnt vmcnt(0)")
            self.stamp(n)
            self.e("s_waitcnt lgkmcnt(0)")
            self.e("s_mov_b64 exec, 1")
            for i in range(8):
                self.e(f"v_mov_b32 v{16+i}, s{40+2*i}" if i <= n else f"v_mov_b32 v{16+i}, 0")
            self.e(f"v_lshrrev_b32 v1, 6, v0")
            self.e(f"v_lshlrev_b32 v1, 5, v1")
            self.e(f"s_lshl_b32 s38, s2, 8")
            self.e(f"s_add_u32 s38, s38, {STAMP_OFF + kid*65536*2}")
            self.e(f"s_mov_b32 s{sws+2}, {STAMP_OFF + 8*65536*2}")
            self.e(f"buffer_store_dwordx4 v[16:19], v1, s[{sws}:{sws+3}], s38 offen")
            self.e(f"buffer_store_dwordx4 v[20:23], v1, s[{sws}:{sws+3}], s38 offen offset:16")
            if STAMPS == 2 and kid == 3:
                self.e(f"""
                s_cmp_lg_u32 s2, 8
                s_cbranch_scc1 Lkd_nodbg
                v_cmp_ne_u32 vcc, 0, v1
                s_cbranch_vccnz Lkd_nodbg
                s_load_dwordx2 s[4:5], s[0:1], 64
                s_mov_b32 s6, 256
                s_mov_b32 s7, 0x20000
                s_mov_b64 exec, 0xffff
                v_and_b32 v2, 3, v0
                v_lshrrev_b32 v3, 2, v0
                v_lshlrev_b32 v3, 17, v3
                v_cmp_eq_u32 vcc, 1, v2
                v_mov_b32 v4, 0
                v_cndmask_b32 v4, v4, 8, vcc
                v_cmp_eq_u32 vcc, 2, v2
                s_nop 1
                v_cndmask_b32 v4, v4, 20, vcc
                v_cmp_eq_u32 vcc, 3, v2
                s_nop 1
                v_cndmask_b32 v4, v4, 28, vcc
                v_add_u32 v3, v3, v4
                s_mov_b32 s38, {STAMP_OFF + 8*256}
                s_waitcnt vmcnt(0) lgkmcnt(0)
                buffer_load_dword v5, v3, s[{sws}:{sws+3}], s38 offen sc1
                v_lshlrev_b32 v2, 2, v0
                s_waitcnt vmcnt(0)
                buffer_store_dword v5, v2, s[4:7], 0 offen
                Lkd_nodbg:
                """)
        self.e("s_endpgm")
    def nop(self, n):
        while n > 0:
            c = min(n, 16); self.e(f"s_nop {c-1}"); n -= c

def vr(b, n): return f"v[{b}:{b+n-1}]"
def srd_consts(k, base, nbytes):
    k.e(f"s_mov_b32 s{base+2}, {nbytes}")
    k.e(f"s_mov_b32 s{base+3}, 0x20000")

def phi_ops(k, dst, acc, rl, t1, s_epsl, s_ln2):
    k.e(f"v_fma_f32 v{acc}, v{acc}, v{rl}, s{s_epsl}")
    k.e(f"v_exp_f32 v{t1}, v{acc} clamp")
    k.e(f"v_max_f32 v{acc}, s{s_epsl}, v{acc}")
    k.e(f"v_fma_f32 v{dst}, v{acc}, s{s_ln2}, v{t1}")

def hilo_w(k, fr, p, t):
    k.e(f"v_cvt_pk_bf16_f32 v{fr+1}, v{p}, 0")
    k.e(f"v_mov_b32 v{fr+2}, 0")
    k.e(f"v_lshlrev_b32 v{t}, 16, v{fr+1}")
    k.e(f"v_sub_f32 v{t}, v{p}, v{t}")
    k.e(f"v_mov_b32 v{fr+3}, 0")
    k.e(f"v_cvt_pk_bf16_f32 v{fr}, v{p}, v{t}")

def hilo_x(k, fr, nm, t):
    k.e(f"v_cvt_pk_bf16_f32 v{fr}, v{nm}, v{nm}")
    k.e(f"v_and_b32 v{t}, 0xffff0000, v{fr}")
    k.e(f"v_sub_f32 v{t}, v{nm}, v{t}")
    k.e(f"v_cvt_pk_bf16_f32 v{fr+1}, v{t}, 0")

def div7(k, q, r, x):
    k.e(f"""
    s_mul_i32 s{q}, s{x}, 37
    s_lshr_b32 s{q}, s{q}, 8
    s_mul_i32 s{r}, s{q}, 7
    s_sub_u32 s{r}, s{x}, s{r}
    """)

def gen_a():
    k = K("ka")
    SX, SW, SWS, SDB, SP = 4, 8, 12, 16, 32
    sW, sRB, sH, sx, skv, sq, sT, sT2, sEPS, sONE, sLN2, sCG = 20, 21, 22, 23, 24, 25, 26, 27, 28, 29, 30, 31
    SLOT = 24576
    MISC = 6*SLOT
    WQ1, WQ2 = 0, 2*SLOT
    C6SLOT = 1
    PART = 3*SLOT
    CSX = MISC + 2048
    DUM = 190
    k.stamp(0)
    k.e(f"""
    s_cmp_ge_u32 s2, 256
    s_cbranch_scc1 {k.L('end')}
    s_load_dwordx2 s[{SX}:{SX+1}], s[0:1], 0
    s_load_dwordx2 s[{SW}:{SW+1}], s[0:1], 8
    s_load_dwordx2 s[{SDB}:{SDB+1}], s[0:1], 64
    s_load_dwordx2 s[{SWS}:{SWS+1}], s[0:1], 72
    """)
    if CPF:
        k.e(f"""
        s_getpc_b64 s[36:37]
        Lka_pc:
        s_lshr_b32 s{sT2}, s2, 3
        v_min_u32 v5, 7, v0
        v_lshlrev_b32 v5, 7, v5
        s_lshl_b32 s{sT}, s{sT2}, 10
        v_add_u32 v5, s{sT}, v5
        v_min_u32 v5, Lcode_end-Lka_pc-4, v5
        v_cmp_gt_u32 vcc, 8, v0
        s_and_saveexec_b64 s[38:39], vcc
        s_cbranch_execz {k.L('nocpf')}
        global_load_dword v{DUM}, v5, s[36:37]
        """)
        k.label(k.L('nocpf'))
        k.e("s_mov_b64 exec, -1")
    k.e(f"""
    v_lshrrev_b32 v5, 6, v0
    v_lshrrev_b32 v6, 3, v0
    v_readfirstlane_b32 s{sW}, v5
    v_and_b32 v7, 0x38, v6
    v_add_u32 v7, v6, v7
    v_and_b32 v8, 7, v0
    v_bfe_u32 v9, v0, 4, 2
    v_xor_b32 v9, v8, v9
    v_mul_u32_u24 v1, 896, v7
    v_lshl_add_u32 v1, v9, 4, v1
    v_xor_b32 v2, 64, v1
    v_add_u32 v2, 6144, v2
    v_bfe_u32 v9, v0, 4, 1
    v_lshlrev_b32 v9, 2, v9
    v_xor_b32 v9, v8, v9
    v_mul_u32_u24 v3, 2688, v6
    v_and_b32 v8, 3, v9
    v_lshl_add_u32 v3, v8, 4, v3
    v_lshrrev_b32 v9, 2, v9
    v_mul_u32_u24 v9, 896, v9
    v_add_u32 v3, v3, v9
    s_bfe_u32 s{sRB}, s2, 0x20001
    s_lshl_b32 s{sRB}, s{sRB}, 2
    s_lshr_b32 s{sT}, s2, 6
    s_add_u32 s{sRB}, s{sRB}, s{sT}
    s_and_b32 s{sH}, s2, 1
    s_lshl_b32 s{sH}, s{sH}, 3
    s_bfe_u32 s{sT2}, s2, 0x30003
    s_add_u32 s{sH}, s{sH}, s{sT2}
    """)
    if ROT:
        k.e(f"""
        s_lshl_b32 s{sT}, s{sT}, 1
        s_add_u32 s{sT}, s{sT}, s{sT2}
        """)
        div7(k, sT2, sCG, sT)
    else:
        k.e(f"s_mov_b32 s{sCG}, 0")
    k.e(f"""
    s_mul_i32 s{sx}, s{sRB}, {128*896}
    s_lshl_b32 s{sT}, s{sCG}, 7
    s_add_u32 s{sx}, s{sx}, s{sT}
    s_mul_i32 s{sq}, s{sH}, 56
    s_mul_i32 s{sT}, s{sCG}, {64*2688}
    s_add_u32 s{skv}, s{sq}, s{sT}
    s_add_u32 s{skv}, s{skv}, 896
    s_mul_i32 m0, s{sW}, 3072
    """)
    srd_consts(k, SX, S*D*2)
    srd_consts(k, SW, D*3*D*2 + 2048)
    srd_consts(k, SWS, WS_USED)
    srd_consts(k, SDB, 256)
    k.e(f"""
    s_waitcnt lgkmcnt(0)
    s_sub_u32 s{SW}, s{SW}, 2048
    s_subb_u32 s{SW+1}, s{SW+1}, 0
    """)
    k.stamp(1)
    def issue_chunk(c):
        k.vop(f"buffer_load_dwordx4 v1, s[{SX}:{SX+3}], s{sx} offen lds", f"c{c}")
        k.vop(f"buffer_load_dwordx4 v2, s[{SX}:{SX+3}], s{sx} offen offset:1024 lds", f"c{c}")
        k.vop(f"buffer_load_dwordx4 v3, s[{SW}:{SW+3}], s{skv} offen offset:2048 lds", f"c{c}")
    slot_of = [0, 1, 2, 3, 4, 5, C6SLOT]
    sROT = 35
    def issue_next(c):
        if c > 0:
            k.e(f"""
            s_mul_i32 s{sT}, s{sW}, 3072
            s_add_u32 m0, s{sT}, {slot_of[c]*SLOT}
            s_add_u32 s{sCG}, s{sCG}, 1
            s_cmp_eq_u32 s{sCG}, 7
            s_cselect_b32 s{sT}, -6, 1
            s_lshl_b32 s{sT2}, s{sT}, 7
            s_add_u32 s{sx}, s{sx}, s{sT2}
            s_mul_i32 s{sT}, s{sT}, {64*2688}
            s_add_u32 s{skv}, s{skv}, s{sT}
            """)
        issue_chunk(c)
    sM6, sP1 = 33, 34
    k.e(f"s_mov_b32 s{sROT}, s{sCG}")
    issue_next(0)
    k.e(f"""
    s_cmp_lg_u32 s{sRB}, 0
    s_cbranch_scc1 {k.L('nozero')}
    s_cmp_lt_u32 s{sW}, 4
    s_cbranch_scc1 {k.L('nozero')}
    v_mov_b32 v12, 0
    v_mov_b32 v13, 0
    v_mov_b32 v14, 0
    v_mov_b32 v15, 0
    v_and_b32 v10, 255, v0
    v_lshlrev_b32 v10, 4, v10
    s_lshl_b32 s{sT}, s{sH}, 12
    buffer_store_dwordx4 v[12:15], v10, s[{SWS}:{SWS+3}], s{sT} offen sc1
    """)
    k.label(k.L('nozero'))
    k.e("s_barrier")
    issue_next(1)
    k.e(f"""
    v_bfe_u32 v8, v0, 2, 4
    v_mul_u32_u24 v4, 2688, v8
    v_and_b32 v8, 3, v0
    v_lshl_add_u32 v4, v8, 4, v4
    s_and_b32 s{sT}, s{sW}, 1
    s_mul_i32 s{sT}, s{sT}, {32*2688}
    s_add_u32 s{sq}, s{sq}, s{sT}
    s_add_u32 s{sq}, s{sq}, 2048
    s_mov_b32 s{sEPS}, 0x{EPS_PHI_L:x}
    s_mov_b32 s{sONE}, 0x{ONES_BF:x}
    s_mov_b32 s{sLN2}, 0x{LN2:x}
    """)
    def wq_dma(part):
        k.e(f"""
        s_lshl_b32 s{sT}, s{sW}, 11
        s_add_u32 m0, s{sT}, {WQ1 if part == 0 else WQ2}
        s_lshr_b32 s{sT}, s{sW}, 1
        s_add_u32 s{sT2}, s{sT}, s{sROT}
        """)
        if part: k.e(f"s_add_u32 s{sT2}, s{sT2}, 4")
        k.e(f"""
        s_cmp_ge_u32 s{sT2}, 7
        s_cselect_b32 s36, 7, 0
        s_sub_u32 s{sT2}, s{sT2}, s36
        """)
        if part:
            k.e(f"s_cmp_eq_u32 s{sT}, 3\ns_cselect_b32 s{sT2}, 8, s{sT2}")
        k.e(f"""
        s_mul_i32 s{sT2}, s{sT2}, {64*2688}
        s_add_u32 s{sT2}, s{sT2}, s{sq}
        s_add_u32 s{sT}, s{sT2}, {16*2688-1024}
        """)
        k.vop(f"buffer_load_dwordx4 v4, s[{SW}:{SW+3}], s{sT2} offen lds", f"wq{part+1}")
        k.vop(f"buffer_load_dwordx4 v4, s[{SW}:{SW+3}], s{sT} offen offset:1024 lds", f"wq{part+1}")
    def late(c):
        if c+2 <= 5: issue_next(c+2)
        if c == 4:
            wq_dma(0)
            issue_next(6)
        if c == 5:
            wq_dma(1)
    def wpf():
        if not WPF: return
        k.e(f"""
        s_lshl_b32 s{sT}, s{sW}, 3
        s_add_u32 s{sT}, s{sT}, 24
        s_cmp_eq_u32 s{sW}, 0
        s_cselect_b32 s{sT}, 16, s{sT}
        s_load_dwordx2 s[{SP}:{SP+1}], s[0:1], s{sT}
        s_cselect_b32 s{SP+2}, {D*D*2}, s{sXS}
        s_cselect_b32 s{sT}, 13, 49
        s_mov_b32 s{SP+3}, 0x20000
        v_and_b32 v5, 63, v0
        v_min_u32 v5, 48, v5
        s_mul_i32 s{sT}, s{sT}, s2
        v_add_lshl_u32 v5, v5, s{sT}, 7
        s_waitcnt lgkmcnt(0)
        """)
        k.vop(f"buffer_load_dword v{DUM}, v5, s[{SP}:{SP+3}], 0 offen", "pf")
    sXS = 37
    AX = 172
    k.e(f"""
    s_mov_b32 s{sXS}, {D*F*2}
    v_and_b32 v8, 31, v0
    v_bfe_u32 v9, v0, 5, 1
    v_bfe_u32 v14, v0, 6, 2
    v_lshrrev_b32 v11, 4, v8
    v_lshl_add_u32 v10, v14, 1, v11
    v_mul_u32_u24 v10, 3072, v10
    v_and_b32 v11, 15, v8
    v_lshl_add_u32 v10, v11, 7, v10
    v_bfe_u32 v11, v8, 1, 3
    v_xor_b32 v11, v11, v9
    v_lshlrev_b32 v12, 1, v14
    v_xor_b32 v11, v11, v12
    """)
    for p in range(4):
        k.e(f"v_xor_b32 v12, {2*p}, v11")
        k.e(f"v_lshl_add_u32 v{AX+p}, v12, 4, v10")
    k.e(f"""
    s_cmp_ge_u32 s{sW}, 4
    s_cbranch_scc1 {k.L('q')}
    """)
    vm_split = list(k.vm)
    ACK, ACV = 16, 32
    BUF = [48, 60]
    AWK, AWV = 152, 156
    CSK, CSV = 78, 80
    RL, XE, WEK, WEV = 84, 100, 104, 108
    PKF, VF, KVA, T = 112, 120, 128, 144
    k.e(f"""
    v_mul_u32_u24 v10, 3072, v9
    v_bfe_u32 v11, v0, 2, 2
    v_lshl_add_u32 v10, v11, 7, v10
    v_bfe_u32 v12, v0, 4, 1
    v_lshl_add_u32 v10, v12, 5, v10
    v_and_b32 v12, 3, v0
    v_lshl_add_u32 v10, v12, 3, v10
    v_lshrrev_b32 v11, 1, v11
    v_lshl_add_u32 v10, v11, 6, v10
    v_add_u32 v10, 2048, v10
    v_mov_b32 v{CSK}, 0
    v_mov_b32 v{CSK+1}, 0
    """)
    for p in range(4):
        k.e(f"v_xor_b32 v11, {p}, v14")
        k.e(f"v_mul_u32_u24 v11, 6144, v11")
        k.e(f"v_add_u32 v{AWK+p}, v10, v11")
        k.e(f"v_xor_b32 v{AWV+p}, 64, v{AWK+p}")
    st = dict(base=0)
    def rebase(regs, slot):
        want = (slot // 3) * 3 * SLOT
        d = want - st['base']
        if d:
            for r in regs:
                if d > 0: k.e(f"v_add_u32 v{r}, {d}, v{r}")
                else: k.e(f"v_subrev_u32 v{r}, {-d}, v{r}")
        st['base'] = want
    def kv_reads(slot, p, b):
        o = slot*SLOT - st['base']
        k.e(f"ds_read_b128 {vr(BUF[b],4)}, v{AX+p} offset:{o}")
        for ri in range(2):
            k.e(f"ds_read_b64_tr_b16 {vr(BUF[b]+4+2*ri,2)}, v{AWK+p} offset:{o+ri*512}")
        for ri in range(2):
            k.e(f"ds_read_b64_tr_b16 {vr(BUF[b]+8+2*ri,2)}, v{AWV+p} offset:{o+ri*512}")
    for c in range(7):
        rebase(list(range(AX, AX+4)) + list(range(AWK, AWK+8)), slot_of[c])
        k.wait_vm(f"c{c}")
        k.e("s_barrier")
        if c == 0: k.stamp(2)
        if c == 6: k.stamp(3)
        kv_reads(slot_of[c], 0, 0)
        kv_reads(slot_of[c], 1, 1)
        for p in range(4):
            b = p & 1
            k.e(f"s_waitcnt lgkmcnt({5 if p < 3 else 0})")
            first = (c == 0 and p == 0)
            k.e(f"v_mfma_f32_32x32x16_bf16 {vr(ACK,16)}, {vr(BUF[b],4)}, {vr(BUF[b]+4,4)}, {'0' if first else vr(ACK,16)}")
            k.e(f"v_mfma_f32_32x32x16_bf16 {vr(ACV,16)}, {vr(BUF[b],4)}, {vr(BUF[b]+8,4)}, {'0' if first else vr(ACV,16)}")
            if p == 0:
                for j in range(4):
                    k.e(f"v_dot2c_f32_bf16 v{CSK}, s{sONE}, v{BUF[b]+4+j}")
                    k.e(f"v_dot2c_f32_bf16 v{CSK+1}, s{sONE}, v{BUF[b]+8+j}")
            if p < 2:
                kv_reads(slot_of[c], p+2, b)
            if c == 6 and p == 1:
                k.e(f"""
                v_lshlrev_b32 v12, 3, v0
                v_add_u32 v12, {CSX}, v12
                ds_write_b64 v12, {vr(CSK,2)}
                """)
        late(c)
    k.e(f"""
    v_mov_b32 v5, 0
    s_lshl_b32 s{sT2}, s{sH}, 4
    """)
    k.vop(f"buffer_load_dwordx4 {vr(T+4,4)}, v5, s[{SDB}:{SDB+3}], s{sT2} offen sc1", "poll")
    k.e(f"""
    v_and_b32 v13, 63, v0
    v_lshlrev_b32 v13, 3, v13
    v_add_u32 v13, {CSX}, v13
    v_lshl_add_u32 v10, v14, 5, v8
    v_lshlrev_b32 v10, 3, v10
    v_add_u32 v10, {MISC}, v10
    v_lshlrev_b32 v11, 7, v14
    v_lshl_add_u32 v11, v9, 4, v11
    v_add_u32 v11, {MISC+1024}, v11
    v_mov_b32 v{XE+2}, 0
    v_mov_b32 v{XE+3}, 0
    s_waitcnt lgkmcnt(0)
    s_barrier
    ds_read2st64_b64 {vr(PKF,4)}, v13 offset0:0 offset1:1
    ds_read2st64_b64 {vr(PKF+4,4)}, v13 offset0:2 offset1:3
    ds_read_b64 {vr(XE,2)}, v10
    """)
    k.stamp(4)
    for a in range(4):
        k.e(f"ds_read_b128 {vr(RL+4*a,4)}, v11 offset:{a*32}")
    k.e(f"""
    s_waitcnt lgkmcnt(5)
    v_add_f32 v{PKF}, v{PKF}, v{PKF+2}
    v_add_f32 v{PKF+1}, v{PKF+1}, v{PKF+3}
    v_add_f32 v{PKF+4}, v{PKF+4}, v{PKF+6}
    v_add_f32 v{PKF+5}, v{PKF+5}, v{PKF+7}
    v_add_f32 v{CSK}, v{PKF}, v{PKF+4}
    v_add_f32 v{CSV}, v{PKF+1}, v{PKF+5}
    """)
    hilo_w(k, WEK, CSK, T)
    hilo_w(k, WEV, CSV, T+1)
    k.e(f"""
    s_waitcnt lgkmcnt(4)
    s_nop 0
    v_mfma_f32_32x32x16_bf16 {vr(ACK,16)}, {vr(XE,4)}, {vr(WEK,4)}, {vr(ACK,16)}
    v_mfma_f32_32x32x16_bf16 {vr(ACV,16)}, {vr(XE,4)}, {vr(WEV,4)}, {vr(ACV,16)}
    """)
    n0 = len(k.lines)
    wpf()
    k.e(f"""
    v_and_b32 v10, 63, v0
    v_lshlrev_b32 v12, 2, v10
    v_lshlrev_b32 v10, 4, v10
    v_lshl_add_u32 v10, v14, 12, v10
    v_add_u32 v10, {PART}, v10
    v_lshl_add_u32 v12, v14, 10, v12
    v_add_u32 v13, {PART}, v12
    v_mov_b32 v5, 0
    s_waitcnt lgkmcnt(0)
    """)
    k.nop(max(0, 12 - (len(k.lines)-n0)))
    for i in range(0, 16, 2):
        phi_ops(k, ACK+i, ACK+i, RL+i, T, sEPS, sLN2)
        phi_ops(k, ACK+i+1, ACK+i+1, RL+i+1, T+1, sEPS, sLN2)
        k.e(f"v_cvt_pk_bf16_f32 v{PKF+i//2}, v{ACK+i}, v{ACK+i+1}")
        k.e(f"v_mul_f32 v{ACV+i}, v{ACV+i}, v{RL+i}")
        k.e(f"v_mul_f32 v{ACV+i+1}, v{ACV+i+1}, v{RL+i+1}")
        k.e(f"v_cvt_pk_bf16_f32 v{VF+i//2}, v{ACV+i}, v{ACV+i+1}")
        if i == 6 or i == 14:
            h = i // 8
            k.e("s_mov_b32 exec_lo, 0x10000000\ns_mov_b32 exec_hi, 0x10000000")
            for j in range(4):
                k.e(f"v_mov_b32 v{VF+4*h+j}, s{sONE}")
            k.e("s_mov_b64 exec, -1\ns_nop 0")
            k.e(f"v_mfma_f32_32x32x16_bf16 {vr(KVA,16)}, {vr(PKF+4*h,4)}, {vr(VF+4*h,4)}, {'0' if h == 0 else vr(KVA,16)}")
    k.e(f"s_lshl_b32 s{sT}, s{sH}, 12")
    k.nop(11)
    for a in range(4):
        k.e(f"ds_write_b128 v10, {vr(KVA+4*a,4)} offset:{a*1024}")
    k.wait_vm("poll", "lgkmcnt(0)")
    k.e("s_barrier")
    k.stamp(5)
    for u in range(4):
        k.e(f"ds_read2st64_b32 {vr(ACK+4*u,2)}, v13 offset0:{u} offset1:{u+16}")
        k.e(f"ds_read2st64_b32 {vr(ACK+4*u+2,2)}, v13 offset0:{u+32} offset1:{u+48}")
    k.label(k.L('poll'))
    k.e(f"""
    v_min_u32 v{T}, v{T+4}, v{T+5}
    v_min3_u32 v{T}, v{T}, v{T+6}, v{T+7}
    v_cmp_eq_u32 vcc, 0, v{T}
    s_cbranch_vccz {k.L('pollok')}
    s_sleep 2
    buffer_load_dwordx4 {vr(T+4,4)}, v5, s[{SDB}:{SDB+3}], s{sT2} offen sc1
    s_waitcnt vmcnt(0)
    s_branch {k.L('poll')}
    """)
    k.label(k.L('pollok'))
    k.e("s_waitcnt lgkmcnt(0)")
    for u in range(4):
        k.e(f"v_add_f32 v{ACK+4*u}, v{ACK+4*u}, v{ACK+4*u+1}")
        k.e(f"v_add_f32 v{ACK+4*u+2}, v{ACK+4*u+2}, v{ACK+4*u+3}")
        k.e(f"v_add_f32 v{ACK+4*u}, v{ACK+4*u}, v{ACK+4*u+2}")
        if u == 2:
            k.e(f"s_cmp_eq_u32 s{sW}, 3\ns_cbranch_scc1 {k.L('kvend')}")
        k.e(f"buffer_atomic_add_f32 v{ACK+4*u}, v12, s[{SWS}:{SWS+3}], s{sT} offen offset:{u*256}")
    k.label(k.L('kvend'))
    k.e("s_barrier")
    k.stamp(6)
    k.end(SWS, 0, 7)
    k.label(k.L('q'))
    k.vm = list(vm_split)
    XQ, ACQ, WB = 16, 128, 144
    SUM, SQ, CSQ, AWQ, T = 160, 162, 164, 168, 176
    XE2, WE2, RS = 180, 184, 166
    k.e(f"""
    v_bfe_u32 v11, v0, 2, 2
    v_lshl_add_u32 v10, v9, 3, v11
    v_lshlrev_b32 v10, 6, v10
    v_and_b32 v11, 1, v0
    v_lshl_add_u32 v10, v11, 5, v10
    v_bfe_u32 v11, v0, 4, 1
    v_lshl_add_u32 v10, v11, 4, v10
    v_bfe_u32 v11, v0, 1, 1
    v_lshl_add_u32 v10, v11, 3, v10
    v_lshl_add_u32 v{AWQ}, v14, 10, v10
    v_xor_b32 v{AWQ+1}, 0x400, v{AWQ}
    v_xor_b32 v{AWQ+2}, 0x800, v{AWQ}
    v_xor_b32 v{AWQ+3}, 0xc00, v{AWQ}
    """)
    for r in (SUM, SUM+1, SQ, SQ+1, CSQ, CSQ+1):
        k.e(f"v_mov_b32 v{r}, 0")
    st['base'] = 0
    for c in range(7):
        rebase(list(range(AX, AX+4)), slot_of[c])
        k.wait_vm(f"c{c}")
        k.e("s_barrier")
        if c == 0: k.stamp(2)
        if c == 6: k.stamp(3)
        o = slot_of[c]*SLOT - st['base']
        for p in range(4):
            k.e(f"ds_read_b128 {vr(XQ+16*c+4*p,4)}, v{AX+p} offset:{o}")
        if c == 1:
            k.e(f"""
            s_cmp_lg_u32 s{sRB}, 0
            s_cbranch_scc1 {k.L('noflag')}
            s_lshl_b32 s{sT}, s{sH}, 2
            s_add_u32 s{sT}, s{sT}, s{sW}
            s_sub_u32 s{sT}, s{sT}, 4
            s_lshl_b32 s{sT}, s{sT}, 2
            v_mov_b32 v5, 0
            v_mov_b32 v12, 1
            s_mov_b64 exec, 1
            buffer_store_dword v12, v5, s[{SDB}:{SDB+3}], s{sT} offen sc1
            s_mov_b64 exec, -1
            """)
            k.label(k.L('noflag'))
        for p in range(4):
            k.e(f"s_waitcnt lgkmcnt({3-p})")
            for j in range(4):
                r = XQ+16*c+4*p+j
                k.e(f"v_dot2c_f32_bf16 v{SUM+(j&1)}, s{sONE}, v{r}")
                k.e(f"v_dot2c_f32_bf16 v{SQ+(j&1)}, v{r}, v{r}")
        late(c)
    NB = 4
    def wq_read(kap):
        c, p = kap >> 2, kap & 3
        base = WQ1 + c*4096 if c < 4 else WQ2 + (c-4)*4096
        b = WB + 4*(kap % NB)
        for ri in range(2):
            k.e(f"ds_read_b64_tr_b16 {vr(b+2*ri,2)}, v{AWQ+p} offset:{base+ri*256}")
    k.e(f"""
    v_lshl_add_u32 v10, v14, 5, v8
    v_lshlrev_b32 v11, 2, v10
    v_lshlrev_b32 v10, 3, v10
    v_add_f32 v{SUM}, v{SUM}, v{SUM+1}
    v_add_f32 v{SQ}, v{SQ}, v{SQ+1}
    v_mov_b32 v{SUM+1}, v{SUM}
    v_mov_b32 v{SQ+1}, v{SQ}
    v_add_u32 v10, {MISC}, v10
    v_add_u32 v11, {MISC+1024}, v11
    v_permlane32_swap_b32 v{SUM}, v{SUM+1}
    v_permlane32_swap_b32 v{SQ}, v{SQ+1}
    v_mov_b32 v{XE2+2}, 0
    v_add_f32 v{SUM}, v{SUM}, v{SUM+1}
    v_add_f32 v{SQ}, v{SQ}, v{SQ+1}
    v_mul_f32 v{SUM}, 0x{INV_D|0x80000000:x}, v{SUM}
    v_mul_f32 v{SQ}, 0x{INV_D:x}, v{SQ}
    v_fma_f32 v{SQ}, -v{SUM}, v{SUM}, v{SQ}
    v_max_f32 v{SQ}, 0, v{SQ}
    v_add_f32 v{SQ}, 0x{EPS_LN:x}, v{SQ}
    v_rsq_f32 v{RS}, v{SQ}
    """)
    hilo_x(k, XE2, SUM, T)
    k.e(f"""
    v_mul_f32 v{RS}, 0x{LOG2E:x}, v{RS}
    ds_write_b64 v10, {vr(XE2,2)}
    ds_write_b32 v11, v{RS}
    v_mov_b32 v{XE2+3}, 0
    s_waitcnt lgkmcnt(0)
    s_barrier
    """)
    def q_range(k0, k1):
        for kap in range(k0, min(k0+NB-1, k1)):
            wq_read(kap)
        for kap in range(k0, k1):
            if kap+NB-1 < k1:
                wq_read(kap+NB-1)
            rem = min(k1-1-kap, NB-1)
            k.e(f"s_waitcnt lgkmcnt({2*rem})")
            b = WB + 4*(kap % NB)
            k.e(f"v_mfma_f32_32x32x16_bf16 {vr(ACQ,16)}, {vr(b,4)}, {vr(XQ+4*kap,4)}, {'0' if kap == 0 else vr(ACQ,16)}")
            if (kap & 3) == 0:
                for j in range(4):
                    k.e(f"v_dot2c_f32_bf16 v{CSQ+(j&1)}, s{sONE}, v{b+j}")
    k.stamp(4)
    q_range(0, 16)
    k.e(f"""
    v_lshlrev_b32 v12, 2, v0
    v_add_u32 v12, {CSX+1024}, v12
    v_and_b32 v10, 63, v0
    v_lshlrev_b32 v13, 2, v10
    v_add_u32 v13, {CSX+2048}, v13
    v_lshlrev_b32 v10, 4, v10
    s_lshl_b32 s{sT}, s{sRB}, 2
    s_add_u32 s{sT}, s{sT}, s{sW}
    s_sub_u32 s{sT}, s{sT}, 4
    s_lshl_b32 s{sT}, s{sT}, 4
    s_add_u32 s{sT}, s{sT}, s{sH}
    s_lshl_b32 s{sT}, s{sT}, 11
    s_add_u32 s{sT}, s{sT}, {PQ_OFF}
    """)
    k.wait_vm("wq2")
    k.e("s_barrier")
    k.stamp(5)
    q_range(16, 25)
    k.e(f"""
    s_nop 2
    v_add_f32 v{CSQ}, v{CSQ}, v{CSQ+1}
    ds_write_b32 v12, v{CSQ}
    """)
    q_range(25, 28)
    k.e(f"""
    s_barrier
    ds_read2st64_b32 {vr(WB,2)}, v13 offset0:0 offset1:1
    ds_read2st64_b32 {vr(WB+2,2)}, v13 offset0:2 offset1:3
    s_waitcnt lgkmcnt(0)
    v_add_f32 v{WB}, v{WB}, v{WB+1}
    v_add_f32 v{WB+2}, v{WB+2}, v{WB+3}
    v_add_f32 v{CSQ}, v{WB}, v{WB+2}
    """)
    hilo_w(k, WE2, CSQ, T)
    k.e(f"""
    s_nop 1
    v_mfma_f32_32x32x16_bf16 {vr(ACQ,16)}, {vr(WE2,4)}, {vr(XE2,4)}, {vr(ACQ,16)}
    """)
    k.nop(12)
    for i in range(0, 16, 2):
        phi_ops(k, ACQ+i, ACQ+i, RS, T, sEPS, sLN2)
        phi_ops(k, ACQ+i+1, ACQ+i+1, RS, T+1, sEPS, sLN2)
        k.e(f"v_cvt_pk_bf16_f32 v{WB+i//2}, v{ACQ+i}, v{ACQ+i+1}")
        if i == 6:
            k.e(f"buffer_store_dwordx4 {vr(WB,4)}, v10, s[{SWS}:{SWS+3}], s{sT} offen")
    k.e(f"buffer_store_dwordx4 {vr(WB+4,4)}, v10, s[{SWS}:{SWS+3}], s{sT} offen offset:1024")
    k.stamp(6)
    k.end(SWS, 0, 7)
    k.label(k.L('end'))
    k.e("s_endpgm")
    return k, dict(vgpr=192, sgpr=64, grid=256, block=512, lds=163840)

def gen_b():
    k = K("kb")
    SX, SW, SWS, SP = 4, 8, 12, 32
    sW, sRB, sCB, sT, sT2, sT3, sEPS, sONE, sKV, sPQ0, sWO, sROT, sLN2 = 20, 21, 22, 23, 24, 25, 26, 27, 28, 29, 30, 31, 19
    WREG = 16384
    RED = 4*WREG
    DUM = 247
    k.stamp(0)
    k.e(f"""
    s_cmp_ge_u32 s2, 256
    s_cbranch_scc1 {k.L('end')}
    s_load_dwordx2 s[{SWS}:{SWS+1}], s[0:1], 72
    s_cmp_ge_u32 s2, 224
    s_cbranch_scc1 {k.L('cs')}
    s_load_dwordx2 s[{SX}:{SX+1}], s[0:1], 0
    s_load_dwordx2 s[{SW}:{SW+1}], s[0:1], 16
    v_lshrrev_b32 v5, 6, v0
    v_and_b32 v1, 63, v0
    v_readfirstlane_b32 s{sW}, v5
    v_lshlrev_b32 v1, 4, v1
    v_bfe_u32 v9, v0, 5, 1
    v_bfe_u32 v6, v0, 3, 2
    v_and_b32 v7, 3, v0
    v_lshl_add_u32 v6, v6, 2, v7
    v_bfe_u32 v7, v0, 2, 1
    v_mad_u32_u24 v7, v7, 14, v6
    v_cmp_gt_u32 vcc, 14, v6
    v_bfe_u32 v6, v0, 3, 3
    v_and_b32 v8, 7, v0
    v_cndmask_b32 v7, 28, v7, vcc
    v_lshlrev_b32 v2, 4, v7
    v_lshl_add_u32 v2, v9, 11, v2
    v_bfe_u32 v7, v0, 4, 1
    v_lshlrev_b32 v7, 2, v7
    v_xor_b32 v7, v7, v8
    v_mul_u32_u24 v3, 896, v6
    v_lshl_add_u32 v3, v7, 4, v3
    s_lshr_b32 s{sT2}, s2, 3
    """)
    div7(k, sRB, sCB, sT2)
    k.e(f"""
    s_add_u32 s{sROT}, s{sRB}, s{sCB}
    s_and_b32 s{sROT}, s{sROT}, {3 if ROT else 0}
    s_and_b32 s{sT}, s2, 7
    s_lshl_b32 s{sT}, s{sT}, 2
    s_add_u32 s{sRB}, s{sRB}, s{sT}
    s_lshl_b32 s{sT}, s{sW}, 2
    s_add_u32 s{sROT}, s{sROT}, s{sT}
    s_and_b32 s{sT}, s{sW}, 1
    s_lshl_b32 s{sT2}, s{sRB}, 1
    s_add_u32 s{sT3}, s{sT2}, s{sT}
    s_lshl_b32 s{sPQ0}, s{sT3}, 15
    s_add_u32 s{sPQ0}, s{sPQ0}, {PQ_OFF}
    s_lshl_b32 s{sWO}, s{sCB}, 7
    s_lshl_b32 m0, s{sW}, 14
    """)
    assert PQ_OFF % 0x10000 == 0
    srd_consts(k, SX, S*D*2)
    srd_consts(k, SW, D*D*2)
    srd_consts(k, SWS, WS_USED)
    k.e(f"""
    s_mov_b32 s{sEPS}, 0x{EPS_PHI:x}
    s_mov_b32 s{sONE}, 0x{ONES_BF:x}
    s_mov_b32 s{sLN2}, 0x{LN2:x}
    s_waitcnt lgkmcnt(0)
    """)
    k.stamp(1)
    KVF, PQR, ACC, OA, XR = 16, 80, 144, 208, 248
    def ld_head(p):
        k.e(f"""
        s_xor_b32 s{sT}, s{sROT}, {p}
        s_lshl_b32 s{sKV}, s{sT}, 12
        s_lshl_b32 s{sT}, s{sT}, 11
        s_add_u32 s{sT}, s{sT}, s{sPQ0}
        s_xor_b32 s{sT2}, s{sT}, 0x8000
        """)
        for q in range(4):
            k.vop(f"buffer_load_dwordx4 {vr(KVF+16*p+4*q,4)}, v2, s[{SWS}:{SWS+3}], s{sKV} offen offset:{q*512}", f"kv{p}")
        for rt in range(2):
            for f in range(2):
                k.vop(f"buffer_load_dwordx4 {vr(PQR+16*p+8*rt+4*f,4)}, v1, s[{SWS}:{SWS+3}], s{sT if rt == 0 else sT2} offen offset:{f*1024}", f"pq{p}")
    def ld_wo(p):
        k.e(f"""
        s_xor_b32 s{sT}, s{sROT}, {p}
        s_mul_i32 s{sT}, s{sT}, {28*896}
        s_add_u32 s{sT}, s{sT}, s{sWO}
        """)
        for u in range(4):
            k.vop(f"buffer_load_dwordx4 v3, s[{SW}:{SW+3}], s{sT} offen offset:{u*1024} lds", f"wo{p}")
            if u < 3: k.e(f"s_add_u32 s{sT}, s{sT}, {7168-1024}")
        k.e("s_add_u32 m0, m0, 4096")
    ld_head(0); ld_head(1)
    def ld_x():
        k.e(f"""
        v_and_b32 v6, 31, v0
        v_mul_u32_u24 v4, 896, v6
        v_lshl_add_u32 v4, v9, 5, v4
        s_mul_i32 s{sT}, s{sT3}, {32*896}
        s_add_u32 s{sT}, s{sT}, s{sWO}
        s_lshr_b32 s{sT2}, s{sW}, 1
        s_lshl_b32 s{sT2}, s{sT2}, 6
        s_add_u32 s{sT}, s{sT}, s{sT2}
        """)
        k.vop(f"buffer_load_dwordx4 {vr(XR,4)}, v4, s[{SX}:{SX+3}], s{sT} offen", "x")
        k.vop(f"buffer_load_dwordx4 {vr(XR+4,4)}, v4, s[{SX}:{SX+3}], s{sT} offen offset:16", "x")
    AW0, AW1 = 14, 15
    k.e(f"""
    v_bfe_u32 v7, v0, 2, 2
    v_mad_u32_u24 v5, v9, 14, v7
    v_lshlrev_b32 v5, 7, v5
    v_lshrrev_b32 v7, 1, v7
    v_xor_b32 v7, v7, v9
    v_bfe_u32 v8, v0, 7, 1
    v_xor_b32 v7, v7, v8
    v_lshl_add_u32 v5, v7, 6, v5
    v_and_b32 v7, 1, v0
    v_lshl_add_u32 v5, v7, 5, v5
    v_bfe_u32 v7, v0, 4, 1
    v_lshl_add_u32 v5, v7, 4, v5
    v_bfe_u32 v7, v0, 1, 1
    v_lshl_add_u32 v5, v7, 3, v5
    v_lshrrev_b32 v7, 6, v0
    v_lshl_add_u32 v{AW0}, v7, 14, v5
    v_xor_b32 v{AW1}, 64, v{AW0}
    """)
    def o_stage(p):
        k.wait_vm(f"kv{p}")
        if p == 0: k.stamp(2)
        if p == 3: k.stamp(3)
        b = KVF+16*p
        for i in range(8):
            k.e(f"v_cvt_pk_bf16_f32 v{b+i}, v{b+2*i}, v{b+2*i+1}")
        k.wait_vm(f"pq{p}")
        k.e("s_nop 0")
        for rt in range(2):
            for f in range(2):
                k.e(f"v_mfma_f32_32x32x16_bf16 {vr(OA+16*rt,16)}, {vr(b+4*f,4)}, {vr(PQR+16*p+8*rt+4*f,4)}, {'0' if f == 0 else vr(OA+16*rt,16)}")
    def norm_stage(p):
        for rt in range(2):
            o = OA+16*rt
            d = PQR+16*p+8*rt
            k.e(f"v_add_f32 v{o+14}, s{sEPS}, v{o+14}")
            k.e(f"v_rcp_f32 v{o+14}, v{o+14}")
            k.e(f"v_mov_b32 v{d+7}, 0")
            k.e(f"v_mul_f32 v{o+14}, s{sLN2}, v{o+14}")
            for i in range(0, 14, 2):
                k.e(f"v_pk_mul_f32 {vr(o+i,2)}, {vr(o+i,2)}, {vr(o+14,2)} op_sel_hi:[1,0]")
            for i in range(0, 14, 2):
                k.e(f"v_cvt_pk_bf16_f32 v{d+i//2}, v{o+i}, v{o+i+1}")
    def w_reads(p):
        k.wait_vm(f"wo{p}")
        for f in range(2):
            for ct in range(2):
                for ri in range(2):
                    k.e(f"ds_read_b64_tr_b16 {vr(KVF+16*p+8*f+4*ct+2*ri,2)}, v{AW0 if ct == 0 else AW1} offset:{(32*p+8*f+4*ri)*128}")
    def main_stage(p):
        for f in range(2):
            for ct in range(2):
                k.e(f"s_waitcnt lgkmcnt({6-4*f-2*ct})")
                for rt in range(2):
                    a = ACC+16*(2*ct+rt)
                    first = (p == 0 and f == 0)
                    k.e(f"v_mfma_f32_32x32x16_bf16 {vr(a,16)}, {vr(KVF+16*p+8*f+4*ct,4)}, {vr(PQR+16*p+8*rt+4*f,4)}, {'0' if first else vr(a,16)}")
    def wpf():
        if not WPF: return
        k.e(f"""
        s_lshr_b32 s{sT}, s{sW}, 1
        s_lshl_b32 s{sT}, s{sT}, 3
        s_add_u32 s{sT}, s{sT}, 32
        s_load_dwordx2 s[{SP}:{SP+1}], s[0:1], s{sT}
        s_mov_b32 s{SP+2}, {D*F*2}
        s_mov_b32 s{SP+3}, 0x20000
        s_lshr_b32 s{sT}, s2, 3
        s_mul_i32 s{sT}, s{sT}, {16*3584}
        s_and_b32 s{sT2}, s2, 3
        s_mul_i32 s{sT2}, s{sT2}, 896
        s_add_u32 s{sT}, s{sT}, s{sT2}
        v_bfe_u32 v10, v0, 3, 4
        v_mul_u32_u24 v10, 3584, v10
        v_and_b32 v11, 7, v0
        v_min_u32 v11, 6, v11
        v_lshl_add_u32 v10, v11, 7, v10
        s_waitcnt lgkmcnt(0)
        """)
        k.vop(f"buffer_load_dword v{DUM}, v10, s[{SP}:{SP+3}], s{sT} offen", "pf")
    for p in range(4):
        o_stage(p)
        if p == 0: ld_wo(0); ld_head(2)
        if p == 1: ld_wo(1); ld_head(3)
        if p == 2: ld_wo(2); ld_wo(3); ld_x()
        if p > 0:
            main_stage(p-1)
        if p == 3: wpf()
        norm_stage(p)
        w_reads(p)
    k.stamp(4)
    k.e("s_nop 1")
    main_stage(3)
    k.e(f"""
    v_lshrrev_b32 v7, 6, v0
    s_movk_i32 s{sT}, 12288
    v_add_u32 v6, {RED}, v1
    v_mad_u32_u24 v8, v7, s{sT}, v6
    """)
    for tp in range(1, 4):
        k.e(f"v_xor_b32 v{10+tp}, {tp}, v7")
        k.e(f"v_mad_u32_u24 v{10+tp}, v{10+tp}, s{sT}, v6")
    k.nop(4)
    for tp in range(1, 4):
        for a in range(4):
            k.e(f"ds_write_b128 v{10+tp}, {vr(ACC+16*tp+4*a,4)} offset:{(tp-1)*4096+a*1024}")
    k.e(f"""
    s_lshl_b32 s{sT}, s{sCB}, 1
    s_lshr_b32 s{sT2}, s{sW}, 1
    s_add_u32 s{sT}, s{sT}, s{sT2}
    s_mul_i32 s{sT2}, s{sT3}, 14
    s_add_u32 s{sT}, s{sT}, s{sT2}
    s_lshl_b32 s{sT2}, s{sT}, 8
    s_add_u32 s{sT2}, s{sT2}, {ST_OFF}
    s_lshl_b32 s{sT}, s{sT}, 11
    s_add_u32 s{sT}, s{sT}, {HF_OFF}
    """)
    k.wait_vm("x")
    XU = 80
    for i in range(8):
        k.e(f"v_lshlrev_b32 v{XU+2*i}, 16, v{XR+i}")
        k.e(f"v_and_b32 v{XU+2*i+1}, 0xffff0000, v{XR+i}")
    for i in range(0, 16, 2):
        k.e(f"v_pk_add_f32 {vr(ACC+i,2)}, {vr(ACC+i,2)}, {vr(XU+i,2)}")
    k.e("""
    v_mov_b32 v10, 0
    v_mov_b32 v11, 0
    s_waitcnt lgkmcnt(0)
    s_barrier
    """)
    k.stamp(5)
    for j in range(3):
        for a in range(4):
            k.e(f"ds_read_b128 {vr(16+16*j+4*a,4)}, v8 offset:{j*4096+a*1024}")
    for j in range(3):
        k.e(f"s_waitcnt lgkmcnt({8-4*j})")
        for i in range(0, 16, 2):
            k.e(f"v_pk_add_f32 {vr(ACC+i,2)}, {vr(ACC+i,2)}, {vr(16+16*j+i,2)}")
    HO = 96
    for i in range(8):
        k.e(f"v_cvt_pk_bf16_f32 v{HO+i}, v{ACC+2*i}, v{ACC+2*i+1}")
    k.e(f"""
    buffer_store_dwordx4 {vr(HO,4)}, v1, s[{SWS}:{SWS+3}], s{sT} offen
    buffer_store_dwordx4 {vr(HO+4,4)}, v1, s[{SWS}:{SWS+3}], s{sT} offen offset:1024
    """)
    for i in range(8):
        k.e(f"v_dot2c_f32_bf16 v10, s{sONE}, v{HO+i}")
        k.e(f"v_dot2c_f32_bf16 v11, v{HO+i}, v{HO+i}")
    k.e(f"""
    v_and_b32 v6, 31, v0
    v_lshlrev_b32 v6, 3, v6
    s_nop 1
    v_mov_b32 v12, v10
    v_mov_b32 v13, v11
    s_nop 1
    v_permlane32_swap_b32 v10, v12
    v_permlane32_swap_b32 v11, v13
    s_nop 0
    v_add_f32 v10, v10, v12
    v_add_f32 v11, v11, v13
    s_mov_b32 exec_hi, 0
    buffer_store_dwordx2 v[10:11], v6, s[{SWS}:{SWS+3}], s{sT2} offen
    """)
    k.stamp(6)
    k.end(SWS, 1, 7)
    k.label(k.L('cs'))
    k.e(f"""
    s_cmp_ge_u32 s2, 252
    s_cbranch_scc1 {k.L('end')}
    s_load_dwordx4 s[16:19], s[0:1], 32
    v_lshrrev_b32 v5, 6, v0
    v_bfe_u32 v6, v0, 3, 3
    v_readfirstlane_b32 s{sW}, v5
    v_and_b32 v7, 7, v0
    v_mul_u32_u24 v1, 3584, v6
    v_lshl_add_u32 v1, v7, 4, v1
    s_sub_u32 s{sCB}, s2, 224
    s_and_b32 s{sT}, s{sW}, 1
    s_mul_i32 s{sT}, s{sT}, {224*3584}
    s_lshl_b32 s{sT2}, s{sCB}, 7
    s_add_u32 s{sT}, s{sT}, s{sT2}
    s_mov_b32 s{sEPS}, 0x3f80
    s_mov_b32 s{sONE}, 0x3f800000
    """)
    srd_consts(k, SW, D*F*2)
    srd_consts(k, SWS, WS_USED)
    k.e(f"""
    s_waitcnt lgkmcnt(0)
    s_cmp_ge_u32 s{sW}, 2
    s_cselect_b32 s{SW}, s18, s16
    s_cselect_b32 s{SW+1}, s19, s17
    """)
    for i in range(8):
        k.e(f"v_mov_b32 v{8+i}, 0")
    NL = 7
    def lds_(b):
        for u in range(NL):
            k.e(f"buffer_load_dwordx4 {vr(16+28*b+4*u,4)}, v1, s[{SW}:{SW+3}], s{sT} offen")
            k.e(f"s_add_u32 s{sT}, s{sT}, {8*3584}")
    def acc_(b, outstanding):
        for u in range(NL):
            k.e(f"s_waitcnt vmcnt({outstanding+NL-1-u})")
            for j in range(4):
                k.e(f"v_dot2c_f32_bf16 v{8+2*j}, s{sEPS}, v{16+28*b+4*u+j}")
                k.e(f"v_dot2c_f32_bf16 v{9+2*j}, s{sONE}, v{16+28*b+4*u+j}")
    lds_(0)
    k.e(f"s_mov_b32 s{sRB}, 0")
    k.label(k.L('csl'))
    lds_(1)
    acc_(0, NL)
    k.e(f"s_cmp_eq_u32 s{sRB}, 1\ns_cbranch_scc1 {k.L('cs2')}")
    lds_(0)
    acc_(1, NL)
    k.e(f"s_mov_b32 s{sRB}, 1\ns_branch {k.L('csl')}")
    k.label(k.L('cs2'))
    acc_(1, 0)
    k.e(f"""
    v_lshlrev_b32 v2, 5, v0
    v_bfe_u32 v3, v0, 6, 1
    v_lshlrev_b32 v3, 12, v3
    v_and_b32 v4, 63, v0
    v_lshl_add_u32 v3, v4, 2, v3
    ds_write_b128 v2, v[8:11]
    ds_write_b128 v2, v[12:15] offset:16
    s_waitcnt lgkmcnt(0)
    s_barrier
    s_cmp_ge_u32 s{sW}, 2
    s_cbranch_scc1 {k.L('end')}
    """)
    for i in range(8):
        k.e(f"ds_read2st64_b32 {vr(16+2*i,2)}, v3 offset0:{2*i} offset1:{2*i+1}")
    k.e(f"""
    s_mul_i32 s{sT}, s{sW}, {1792*4}
    s_lshl_b32 s{sT2}, s{sCB}, 8
    s_add_u32 s{sT}, s{sT}, s{sT2}
    s_add_u32 s{sT}, s{sT}, {CS_OFF}
    v_lshlrev_b32 v4, 2, v4
    s_waitcnt lgkmcnt(0)
    """)
    for stp in (8, 4, 2, 1):
        for i in range(stp):
            k.e(f"v_add_f32 v{16+i}, v{16+i}, v{16+i+stp}")
    k.e(f"buffer_store_dword v16, v4, s[{SWS}:{SWS+3}], s{sT} offen")
    k.end(SWS, 1, 1)
    k.label(k.L('end'))
    k.e("s_endpgm")
    return k, dict(vgpr=256, sgpr=64, grid=256, block=256, lds=RED+49152)

def gen_c():
    k = K("kc")
    SG, SU, SWS, SP = 4, 8, 12, 32
    sW, sRB, sFB, sT, sT2, sRT, sWOFF, sH, sCG, sM6, sP1, sT3 = 20, 21, 22, 23, 24, 25, 26, 27, 28, 29, 30, 31
    DUM = 252
    k.stamp(0)
    k.e(f"""
    s_cmp_ge_u32 s2, 224
    s_cbranch_scc1 {k.L('end')}
    s_load_dwordx2 s[{SG}:{SG+1}], s[0:1], 32
    s_load_dwordx2 s[{SU}:{SU+1}], s[0:1], 40
    s_load_dwordx2 s[{SWS}:{SWS+1}], s[0:1], 72
    s_load_dwordx2 s[{SP}:{SP+1}], s[0:1], 48
    v_lshrrev_b32 v5, 6, v0
    v_and_b32 v1, 63, v0
    v_readfirstlane_b32 s{sW}, v5
    v_lshlrev_b32 v1, 4, v1
    v_lshrrev_b32 v6, 3, v0
    v_and_b32 v8, 7, v0
    v_bfe_u32 v7, v0, 4, 1
    v_lshlrev_b32 v7, 2, v7
    v_xor_b32 v7, v7, v8
    v_mul_u32_u24 v3, 3584, v6
    v_lshl_add_u32 v3, v7, 4, v3
    s_lshr_b32 s{sT2}, s2, 3
    """)
    div7(k, sRB, sFB, sT2)
    if ROT:
        k.e(f"s_lshl_b32 s{sT}, s{sRB}, 1\ns_add_u32 s{sT}, s{sT}, s{sFB}")
        div7(k, sT2, sCG, sT)
    else:
        k.e(f"s_mov_b32 s{sCG}, 0")
    k.e(f"""
    s_and_b32 s{sT2}, s2, 4
    s_add_u32 s{sRB}, s{sRB}, s{sT2}
    s_and_b32 s{sT2}, s2, 3
    s_mul_i32 s{sT2}, s{sT2}, 7
    s_add_u32 s{sFB}, s{sFB}, s{sT2}
    s_lshl_b32 s{sRT}, s{sRB}, 3
    s_add_u32 s{sRT}, s{sRT}, s{sW}
    s_lshl_b32 s{sWOFF}, s{sFB}, 7
    s_mul_i32 s{sT}, s{sCG}, {64*3584}
    s_add_u32 s{sWOFF}, s{sWOFF}, s{sT}
    s_mul_i32 s{sH}, s{sRT}, 28672
    s_lshl_b32 s{sT}, s{sCG}, 12
    s_add_u32 s{sH}, s{sH}, s{sT}
    s_add_u32 s{sH}, s{sH}, {HF_OFF}
    s_lshl_b32 m0, s{sW}, 11
    """)
    srd_consts(k, SG, D*F*2)
    srd_consts(k, SU, D*F*2+1024)
    srd_consts(k, SWS, WS_USED)
    k.e(f"""
    s_waitcnt lgkmcnt(0)
    s_sub_u32 s{SU}, s{SU}, 1024
    s_subb_u32 s{SU+1}, s{SU+1}, 0
    """)
    HFR, ACC, WF, STR, CSR = 16, 128, 192, 208, 224
    k.stamp(1)
    def chunk_loads(c):
        L = []
        def w0():
            if c > 0:
                k.e(f"""
                s_add_u32 m0, m0, 16384
                s_add_u32 s{sCG}, s{sCG}, 1
                s_cmp_eq_u32 s{sCG}, 7
                s_cselect_b32 s{sT3}, s{sM6}, s{sP1}
                s_add_u32 s{sWOFF}, s{sWOFF}, s{sT3}
                """)
            k.vop(f"buffer_load_dwordx4 v3, s[{SG}:{SG+3}], s{sWOFF} offen lds", f"w{c}")
        def w1():
            k.vop(f"buffer_load_dwordx4 v3, s[{SU}:{SU+3}], s{sWOFF} offen offset:1024 lds", f"w{c}")
        L += [w0, w1]
        for j in range(4):
            def hj(j=j):
                if j == 0 and c > 0:
                    k.e(f"""
                    s_cmp_eq_u32 s{sCG}, 7
                    s_cselect_b32 s{sT3}, {(-6*4096) & 0xffffffff}, s{sK4}
                    s_add_u32 s{sH}, s{sH}, s{sT3}
                    """)
                k.vop(f"buffer_load_dwordx4 {vr(HFR+16*c+4*j,4)}, v1, s[{SWS}:{SWS+3}], s{sH} offen offset:{j*1024}", f"h{c}")
            L.append(hj)
        return L
    sK4 = 19
    for f in chunk_loads(0): f()
    k.e(f"""
    s_mov_b32 s{sM6}, {(-6*64*3584) & 0xffffffff}
    s_mov_b32 s{sP1}, {64*3584}
    s_movk_i32 s{sK4}, 4096
    s_barrier
    """)
    for f in chunk_loads(1): f()
    srd_consts(k, SP, F*D*2)
    k.e(f"""
    v_bfe_u32 v9, v0, 5, 1
    v_and_b32 v6, 31, v0
    v_mul_u32_u24 v4, 1792, v9
    v_lshl_add_u32 v4, v6, 3, v4
    s_mul_i32 s{sT}, s{sRT}, 3584
    s_add_u32 s{sT}, s{sT}, {ST_OFF}
    v_bfe_u32 v7, v0, 2, 1
    v_bfe_u32 v8, v0, 3, 2
    v_lshlrev_b32 v7, 4, v7
    v_lshl_add_u32 v7, v8, 2, v7
    v_and_b32 v8, 3, v0
    v_add_lshl_u32 v2, v7, v8, 2
    s_lshl_b32 s{sT2}, s{sFB}, 8
    s_add_u32 s{sT2}, s{sT2}, {CS_OFF}
    s_add_u32 s{sRB}, s{sT2}, 7168
    v_min_u32 v14, 447, v0
    v_lshlrev_b32 v14, 7, v14
    s_lshr_b32 s18, s2, 3
    s_mul_i32 s18, s18, {448*128}
    """)
    stl = []
    for u in range(7):
        stl.append(lambda u=u: k.vop(f"buffer_load_dwordx2 {vr(STR+2*u,2)}, v4, s[{SWS}:{SWS+3}], s{sT} offen offset:{u*256}", "st"))
    for q in range(4):
        stl.append(lambda q=q: k.vop(f"buffer_load_dword v{CSR+q}, v2, s[{SWS}:{SWS+3}], s{sT2 if q < 2 else sRB} offen offset:{(q&1)*128}", "st"))
    AW0, AW1 = 10, 11
    k.e(f"""
    v_bfe_u32 v7, v0, 2, 2
    v_lshlrev_b32 v5, 12, v9
    v_lshl_add_u32 v5, v7, 7, v5
    v_lshrrev_b32 v7, 1, v7
    v_lshl_add_u32 v5, v7, 6, v5
    v_and_b32 v7, 1, v0
    v_lshl_add_u32 v5, v7, 5, v5
    v_bfe_u32 v7, v0, 4, 1
    v_lshl_add_u32 v5, v7, 4, v5
    v_bfe_u32 v7, v0, 1, 1
    v_lshl_add_u32 v{AW0}, v7, 3, v5
    v_xor_b32 v{AW1}, 64, v{AW0}
    v_add_u32 v12, 0x10000, v{AW0}
    v_add_u32 v13, 0x10000, v{AW1}
    """)
    KS = CKS
    units = [(kap, tau) for kap in range(KS) for tau in range(4)]
    units += [(kap, tau) for kap in range(KS, 28) for tau in (0, 2)] + [('x', 0), ('x', 2)]
    nA = len(units)
    units += [(kap, tau) for kap in range(KS, 28) for tau in (1, 3)] + [('x', 1), ('x', 3)]
    NU = len(units)
    DEP = 4
    T, XE, WE = 228, 232, 236
    C1, IR2 = STR+4, STR+2
    pend = []
    for c in range(2, 7):
        for i, f in enumerate(chunk_loads(c)):
            pend.append(((c-2)*CLP + 2*i, f))
    for i, f in enumerate(stl): pend.append((2*i+13, f))
    if WPF:
        pend.append((5*CLP+8, lambda: k.vop(f"buffer_load_dword v{DUM}, v14, s[{SP}:{SP+3}], s18 offen", "pf")))
    pend.sort(key=lambda x: x[0])
    kk = K("tmp")
    for u in range(1, 7):
        kk.e(f"v_add_f32 v{STR}, v{STR}, v{STR+2*u}")
        kk.e(f"v_add_f32 v{STR+1}, v{STR+1}, v{STR+2*u+1}")
    kk.e(f"""
    v_cmp_eq_u32 vcc, 0, v9
    v_mov_b32 v{STR+2}, v{STR}
    v_mov_b32 v{STR+3}, v{STR+1}
    v_cndmask_b32 v{CSR}, 0, v{CSR}, vcc
    v_cndmask_b32 v{CSR+1}, 0, v{CSR+1}, vcc
    v_permlane32_swap_b32 v{STR}, v{STR+2}
    v_permlane32_swap_b32 v{STR+1}, v{STR+3}
    v_cndmask_b32 v{CSR+2}, 0, v{CSR+2}, vcc
    v_cndmask_b32 v{CSR+3}, 0, v{CSR+3}, vcc
    v_add_f32 v{STR}, v{STR}, v{STR+2}
    v_add_f32 v{STR+1}, v{STR+1}, v{STR+3}
    v_mul_f32 v{STR}, 0x{INV_D|0x80000000:x}, v{STR}
    v_mul_f32 v{STR+1}, 0x{INV_D:x}, v{STR+1}
    v_fma_f32 v{STR+1}, -v{STR}, v{STR}, v{STR+1}
    v_max_f32 v{STR+1}, 0, v{STR+1}
    v_add_f32 v{STR+2}, 0x{EPS_LN:x}, v{STR+1}
    v_rsq_f32 v{STR+4}, v{STR+2}
    """)
    hilo_x(kk, XE, STR, T)
    kk.e(f"v_mov_b32 v{XE+2}, 0\nv_mov_b32 v{XE+3}, 0")
    kk.e(f"v_mul_f32 v{STR+4}, 0x{LOG2E|0x80000000:x}, v{STR+4}")
    for tau in range(4):
        hilo_w(kk, WE+4*tau, CSR+tau, T+1)
    kk.e(f"""
    v_bfe_u32 v7, v0, 4, 1
    v_mul_u32_u24 v4, 57344, v7
    v_lshl_add_u32 v4, v9, 9, v4
    v_and_b32 v7, 15, v0
    v_lshl_add_u32 v4, v7, 4, v4
    s_mul_i32 s{sT}, s{sRT}, 114688
    s_lshl_b32 s{sT2}, s{sFB}, 11
    s_add_u32 s{sT}, s{sT}, s{sT2}
    s_add_u32 s{sT}, s{sT}, {ACT_OFF}
    """)
    side1 = [l.strip() for l in kk.lines]
    def epi(ct, packed):
        kk = K("tmp")
        O = 16 + 8*ct
        g, u = ACC+16*ct, ACC+32+16*ct
        for i in range(0, 16, 2):
            t = 32 + (i % 8)
            if packed:
                kk.e(f"v_pk_mul_f32 {vr(t,2)}, {vr(g+i,2)}, {vr(C1,2)} op_sel_hi:[1,0]")
                kk.e(f"v_pk_mul_f32 {vr(g+i,2)}, {vr(g+i,2)}, {vr(u+i,2)}")
                kk.e(f"v_exp_f32 v{t}, v{t}")
                kk.e(f"v_exp_f32 v{t+1}, v{t+1}")
                kk.e("s_nop 0")
                kk.e(f"v_pk_fma_f32 {vr(t,2)}, {vr(t,2)}, {vr(IR2,2)}, {vr(IR2,2)} op_sel_hi:[1,0,0]")
                kk.e(f"v_rcp_f32 v{t}, v{t}")
                kk.e(f"v_rcp_f32 v{t+1}, v{t+1}")
                kk.e("s_nop 0")
                kk.e(f"v_pk_mul_f32 {vr(g+i,2)}, {vr(g+i,2)}, {vr(t,2)}")
            else:
                kk.e(f"v_mul_f32 v{t}, v{g+i}, v{C1}")
                kk.e(f"v_mul_f32 v{t+1}, v{g+i+1}, v{C1}")
                kk.e(f"v_exp_f32 v{t}, v{t}")
                kk.e(f"v_mul_f32 v{g+i}, v{g+i}, v{u+i}")
                kk.e(f"v_exp_f32 v{t+1}, v{t+1}")
                kk.e(f"v_mul_f32 v{g+i+1}, v{g+i+1}, v{u+i+1}")
                kk.e(f"v_fma_f32 v{t}, v{t}, v{IR2}, v{IR2}")
                kk.e(f"v_fma_f32 v{t+1}, v{t+1}, v{IR2}, v{IR2}")
                kk.e(f"v_rcp_f32 v{t}, v{t}")
                kk.e(f"v_rcp_f32 v{t+1}, v{t+1}")
                kk.e(f"v_mul_f32 v{g+i}, v{g+i}, v{t}")
                kk.e(f"v_mul_f32 v{g+i+1}, v{g+i+1}, v{t+1}")
            kk.e(f"v_cvt_pk_bf16_f32 v{O+i//2}, v{g+i}, v{g+i+1}")
            if i % 8 == 6:
                f = i // 8
                kk.e(f"buffer_store_dwordx4 {vr(O+4*f,4)}, v4, s[{SWS}:{SWS+3}], s{sT} offen offset:{ct*1024+f*256}")
        return [l.strip() for l in kk.lines]
    side2 = epi(0, False)
    s1_start = nA - 2 - (len(side1)+3)//4 - 1
    s2_start = nA + 3
    gated = {0}
    hw = set()
    def rd(u):
        kap, tau = units[u]
        if kap == 'x': return
        c = kap >> 2
        if c not in gated:
            gated.add(c)
            k.wait_vm(f"w{c}")
            k.e("s_barrier")
            if c == 3: k.stamp(3)
            if c == 6: k.stamp(4)
        cc, tl, f = kap >> 2, (kap >> 1) & 1, kap & 1
        m, ct = tau >> 1, tau & 1
        o = cc*16384 + tl*8192 + f*2048 + m*1024
        a = AW0 + ct
        if o >= 0x10000: o -= 0x10000; a += 2
        for ri in range(2):
            k.e(f"ds_read_b64_tr_b16 {vr(WF+4*(u%DEP)+2*ri,2)}, v{a} offset:{o+ri*512}")
    k.wait_vm("w0")
    k.e("s_barrier")
    k.stamp(2)
    for u in range(DEP): rd(u)
    started = set()
    for u in range(NU):
        kap, tau = units[u]
        a = ACC+16*tau
        if kap == 'x':
            assert not side1
            k.e(f"v_mfma_f32_32x32x16_bf16 {vr(a,16)}, {vr(WE+4*tau,4)}, {vr(XE,4)}, {vr(a,16)}")
        else:
            if (kap >> 2) not in hw:
                hw.add(kap >> 2)
                k.wait_vm(f"h{kap>>2}")
            nout = sum(1 for v in range(u+1, min(u+DEP, NU)) if units[v][0] != 'x')
            k.e(f"s_waitcnt lgkmcnt({2*nout})")
            k.e(f"v_mfma_f32_32x32x16_bf16 {vr(a,16)}, {vr(WF+4*(u%DEP),4)}, {vr(HFR+4*kap,4)}, {'0' if tau not in started else vr(a,16)}")
            started.add(tau)
        if u+DEP < NU: rd(u+DEP)
        while pend and pend[0][0] <= u:
            pend.pop(0)[1]()
        if u >= s1_start and side1:
            if u == s1_start: k.wait_vm("st")
            for _ in range(4):
                if side1: k.e(side1.pop(0))
        if u >= s2_start and side2:
            for _ in range(5 if len(side2) > 4*(NU-u) else 4):
                if side2: k.e(side2.pop(0))
    k.stamp(5)
    for l in side2: k.e(l)
    k.nop(max(0, 12-len(side2)))
    for l in epi(1, True): k.e(l)
    k.stamp(6)
    k.end(SWS, 2, 7)
    k.label(k.L('end'))
    k.e("s_endpgm")
    return k, dict(vgpr=256, sgpr=64, grid=256, block=512, lds=114688)

def gen_d():
    k = K("kd")
    SW, SO, SWS = 4, 8, 12
    sW, sRB, sCB, sT, sT2, sWOFF, sA, sKH, sCG, sM, sP, sT3 = 20, 21, 22, 23, 24, 25, 26, 27, 28, 29, 30, 31
    NSLOT = 8
    RED = 8*16384
    k.stamp(0)
    k.e(f"""
    s_cmp_ge_u32 s2, 224
    s_cbranch_scc1 {k.L('end')}
    s_load_dwordx2 s[{SW}:{SW+1}], s[0:1], 48
    s_load_dwordx2 s[{SO}:{SO+1}], s[0:1], 56
    s_load_dwordx2 s[{SWS}:{SWS+1}], s[0:1], 72
    v_lshrrev_b32 v5, 6, v0
    v_and_b32 v1, 63, v0
    v_readfirstlane_b32 s{sW}, v5
    v_lshlrev_b32 v1, 4, v1
    v_lshrrev_b32 v6, 3, v0
    v_and_b32 v8, 7, v0
    v_bfe_u32 v7, v0, 4, 1
    v_bfe_u32 v9, v0, 6, 1
    v_lshl_add_u32 v7, v9, 1, v7
    v_lshlrev_b32 v7, 1, v7
    v_xor_b32 v7, v7, v8
    v_mul_u32_u24 v2, 896, v6
    v_lshl_add_u32 v2, v7, 4, v2
    v_add_u32 v3, {896*896-1024}, v2
    s_lshr_b32 s{sT2}, s2, 3
    """)
    div7(k, sRB, sCB, sT2)
    if ROT:
        k.e(f"""
        s_mul_i32 s{sT}, s{sRB}, 7
        s_lshr_b32 s{sT}, s{sT}, 1
        s_lshl_b32 s{sCG}, s{sCB}, 1
        s_add_u32 s{sCG}, s{sCG}, s{sT}
        s_cmp_ge_u32 s{sCG}, 14
        s_cselect_b32 s{sT}, 14, 0
        s_sub_u32 s{sCG}, s{sCG}, s{sT}
        """)
    else:
        k.e(f"s_mov_b32 s{sCG}, 0")
    k.e(f"""
    s_and_b32 s{sT}, s2, 7
    s_lshl_b32 s{sT}, s{sT}, 2
    s_add_u32 s{sRB}, s{sRB}, s{sT}
    s_lshl_b32 s{sWOFF}, s{sCB}, 7
    s_mul_i32 s{sT}, s{sCG}, {64*896}
    s_add_u32 s{sWOFF}, s{sWOFF}, s{sT}
    s_lshr_b32 s{sKH}, s{sW}, 2
    s_lshl_b32 s{sT}, s{sRB}, 2
    s_and_b32 s{sT2}, s{sW}, 3
    s_add_u32 s{sT}, s{sT}, s{sT2}
    s_lshl_b32 s{sT}, s{sT}, 1
    s_add_u32 s{sT}, s{sT}, s{sKH}
    s_mul_i32 s{sA}, s{sT}, 28672
    s_lshl_b32 s{sT}, s{sCG}, 11
    s_add_u32 s{sA}, s{sA}, s{sT}
    s_add_u32 s{sA}, s{sA}, {ACT_OFF}
    s_lshl_b32 m0, s{sW}, 11
    s_mov_b32 s{sM}, {(-13*64*896) & 0xffffffff}
    s_mov_b32 s{sP}, {64*896}
    s_movk_i32 s19, 2048
    """)
    srd_consts(k, SW, F*D*2)
    srd_consts(k, SO, S*D*2)
    srd_consts(k, SWS, WS_USED)
    k.e("s_waitcnt lgkmcnt(0)")
    AF, ACC, WF, HR = 16, 128, 144, 176
    k.stamp(1)
    def issue_stage(j):
        k.vop(f"buffer_load_dwordx4 v2, s[{SW}:{SW+3}], s{sWOFF} offen lds", f"w{j}")
        k.vop(f"buffer_load_dwordx4 v3, s[{SW}:{SW+3}], s{sWOFF} offen offset:1024 lds", f"w{j}")
        for ks in range(2):
            k.vop(f"buffer_load_dwordx4 {vr(AF+8*j+4*ks,4)}, v1, s[{SWS}:{SWS+3}], s{sA} offen offset:{ks*1024}", f"a{j}")
        if j < 13:
            if (j+1) % NSLOT: k.e("s_add_u32 m0, m0, 16384")
            else: k.e(f"s_lshl_b32 m0, s{sW}, 11")
            k.e(f"""
            s_add_u32 s{sCG}, s{sCG}, 1
            s_cmp_eq_u32 s{sCG}, 14
            s_cselect_b32 s{sT3}, s{sM}, s{sP}
            s_add_u32 s{sWOFF}, s{sWOFF}, s{sT3}
            s_cmp_eq_u32 s{sCG}, 14
            s_cselect_b32 s{sT3}, {(-13*2048) & 0xffffffff}, s19
            s_add_u32 s{sA}, s{sA}, s{sT3}
            """)
    for j in range(DDEP):
        issue_stage(j)
        if j < DDEP-1: k.e("s_barrier")
    AW = 8
    k.e(f"""
    v_bfe_u32 v5, v0, 4, 2
    v_lshlrev_b32 v6, 11, v5
    v_bfe_u32 v7, v0, 8, 1
    v_lshl_add_u32 v6, v7, 10, v6
    v_xor_b32 v5, v5, v7
    v_and_b32 v5, 1, v5
    v_bfe_u32 v7, v0, 2, 2
    v_lshl_add_u32 v6, v7, 7, v6
    v_lshrrev_b32 v7, 1, v7
    v_lshl_add_u32 v5, v5, 1, v7
    v_lshl_add_u32 v6, v5, 5, v6
    v_and_b32 v7, 3, v0
    v_lshl_add_u32 v{AW}, v7, 3, v6
    v_xor_b32 v{AW+1}, 32, v{AW}
    v_xor_b32 v{AW+2}, 64, v{AW}
    v_xor_b32 v{AW+3}, 96, v{AW}
    v_add_u32 v{AW+4}, 0x10000, v{AW}
    v_add_u32 v{AW+5}, 0x10000, v{AW+1}
    v_add_u32 v{AW+6}, 0x10000, v{AW+2}
    v_add_u32 v{AW+7}, 0x10000, v{AW+3}
    """)
    def reads(u):
        t, tt = u >> 2, u & 3
        j, ks = t >> 1, t & 1
        o = (j % NSLOT)*16384 + ks*8192
        a = AW+tt
        if o >= 0x10000: o -= 0x10000; a += 4
        b = WF + 4*(u & 7)
        for ri in range(2):
            k.e(f"ds_read_b64_tr_b16 {vr(b+2*ri,2)}, v{a} offset:{o+ri*512}")
    def stage_gate(j):
        k.wait_vm(f"w{j}")
        k.e("s_barrier")
        if j == 0: k.stamp(2)
        if j == 7: k.stamp(3)
        if j == 13: k.stamp(4)
    def late(js):
        if js < 14:
            issue_stage(js)
            if js == 13:
                k.e(f"""
                v_bfe_u32 v5, v0, 5, 1
                v_lshlrev_b32 v5, 10, v5
                v_and_b32 v6, 15, v0
                v_lshl_add_u32 v5, v6, 4, v5
                v_bfe_u32 v7, v0, 4, 1
                v_lshl_add_u32 v5, v7, 3, v5
                s_lshl_b32 s{sT}, s{sRB}, 1
                s_bfe_u32 s{sT2}, s{sW}, 0x10001
                s_add_u32 s{sT}, s{sT}, s{sT2}
                s_mul_i32 s{sT}, s{sT}, 14
                s_lshl_b32 s{sT2}, s{sCB}, 1
                s_add_u32 s{sT}, s{sT}, s{sT2}
                s_add_u32 s{sT}, s{sT}, s{sKH}
                s_lshl_b32 s{sT}, s{sT}, 11
                s_and_b32 s{sT2}, s{sW}, 1
                s_lshl_b32 s{sT2}, s{sT2}, 8
                s_add_u32 s{sT}, s{sT}, s{sT2}
                s_add_u32 s{sT}, s{sT}, {HF_OFF}
                """)
                k.vop(f"buffer_load_dwordx2 {vr(HR,2)}, v5, s[{SWS}:{SWS+3}], s{sT} offen", "h")
                k.vop(f"buffer_load_dwordx2 {vr(HR+2,2)}, v5, s[{SWS}:{SWS+3}], s{sT} offen offset:512", "h")
                k.e(f"""
                v_lshrrev_b32 v5, 6, v0
                v_lshl_add_u32 v6, v5, 11, v1
                v_add_u32 v6, {RED}, v6
                v_xor_b32 v7, 0x2000, v6
                v_and_b32 v5, 15, v0
                v_mul_u32_u24 v4, 896, v5
                v_bfe_u32 v5, v0, 4, 2
                v_lshl_add_u32 v4, v5, 3, v4
                s_lshl_b32 s{sT}, s{sRB}, 2
                s_and_b32 s{sT2}, s{sW}, 3
                s_add_u32 s{sT}, s{sT}, s{sT2}
                s_mul_i32 s{sT}, s{sT}, {16*896}
                s_lshl_b32 s{sT2}, s{sCB}, 7
                s_add_u32 s{sT}, s{sT}, s{sT2}
                s_lshl_b32 s{sT2}, s{sKH}, 6
                s_add_u32 s{sT}, s{sT}, s{sT2}
                """)
    DEP = 6
    NU = 112
    stage_gate(0)
    for u in range(DEP): reads(u)
    for u in range(NU):
        t, tt = u >> 2, u & 3
        if u+DEP < NU:
            if (u+DEP) % 8 == 0:
                late((u+DEP)//8 - 1 + DDEP)
                stage_gate((u+DEP)//8)
            reads(u+DEP)
        if u % 8 == 0:
            k.wait_vm(f"a{u//8}")
        k.e(f"s_waitcnt lgkmcnt({2*min(DEP, NU-1-u)})")
        a = ACC+4*tt
        k.e(f"v_mfma_f32_16x16x32_bf16 {vr(a,4)}, {vr(WF+4*(u&7),4)}, {vr(AF+4*t,4)}, {'0' if t == 0 else vr(a,4)}")
    k.stamp(5)
    k.wait_vm("h")
    for i in range(4):
        k.e(f"v_lshlrev_b32 v{16+2*i}, 16, v{HR+i}")
        k.e(f"v_and_b32 v{17+2*i}, 0xffff0000, v{HR+i}")
    k.e(f"""
    ds_write_b128 v7, {vr(ACC+8,4)}
    ds_write_b128 v7, {vr(ACC+12,4)} offset:1024
    """)
    for i in range(0, 8, 2):
        k.e(f"v_pk_add_f32 {vr(ACC+i,2)}, {vr(ACC+i,2)}, {vr(16+i,2)}")
    k.e(f"""
    s_waitcnt lgkmcnt(0)
    s_barrier
    ds_read_b128 v[24:27], v6
    ds_read_b128 v[28:31], v6 offset:1024
    s_waitcnt lgkmcnt(0)
    """)
    for i in range(0, 8, 2):
        k.e(f"v_pk_add_f32 {vr(ACC+i,2)}, {vr(ACC+i,2)}, {vr(24+i,2)}")
    for i in range(4):
        k.e(f"v_cvt_pk_bf16_f32 v{32+i}, v{ACC+2*i}, v{ACC+2*i+1}")
    k.e(f"""
    buffer_store_dwordx2 v[32:33], v4, s[{SO}:{SO+3}], s{sT} offen
    buffer_store_dwordx2 v[34:35], v4, s[{SO}:{SO+3}], s{sT} offen offset:32
    """)
    k.stamp(6)
    k.end(SWS, 3, 7)
    k.label(k.L('end'))
    k.e("s_endpgm")
    return k, dict(vgpr=184, sgpr=64, grid=256, block=512, lds=RED+16384)

HEADER = open("sequential_preLN__linear_attn_block__swiglu_ffn__prompt.s.ref").read().split("; Override launch geometry")[0]

def build(kernels):
    out = [HEADER.rstrip()]
    for k, m in kernels:
        out.append(f"; @launch kernel={k.name}_kernel grid=({m['grid']},1,1) block=({m['block']},1,1) lds={m['lds']}")
    out.append('.amdgcn_target "amdgcn-amd-amdhsa--gfx950"')
    out.append(".text")
    for k, m in kernels:
        n = f"{k.name}_kernel"
        out += [f".globl {n}", ".p2align 8", f".type {n},@function", f"{n}:"]
        out += k.lines
    out.append("Lcode_end:")
    out.append('.section .rodata,"a"')
    for k, m in kernels:
        n = f"{k.name}_kernel"
        acc = (min(m['vgpr'], 256)+3)//4*4
        out += [".p2align 6", f".amdhsa_kernel {n}",
                f"  .amdhsa_next_free_vgpr {m['vgpr']}",
                f"  .amdhsa_next_free_sgpr {m['sgpr']}",
                f"  .amdhsa_accum_offset {m.get('accum', acc)}",
                "  .amdhsa_group_segment_fixed_size 0",
                "  .amdhsa_kernarg_size 80",
                "  .amdhsa_user_sgpr_count 2",
                "  .amdhsa_user_sgpr_kernarg_segment_ptr 1",
                "  .amdhsa_system_sgpr_workgroup_id_x 1",
                ".end_amdhsa_kernel"]
    return "\n".join(out) + "\n"

if __name__ == "__main__":
    ks = [gen_a(), gen_b(), gen_c(), gen_d()]
    open(sys.argv[1] if len(sys.argv) > 1 else "sequential_preLN__linear_attn_block__swiglu_ffn__prompt.s", "w").write(build(ks))
```

```python
import sys, os, struct
sys.path.insert(0, "dev")
from layouts import *

def f2u(x): return struct.unpack("<I", struct.pack("<f", x))[0]
LOG2E_F = 1.4426950408889634
LOG2E = f2u(LOG2E_F)
LN2 = f2u(0.6931471805599453)
EPS_PHI = f2u(1e-6)
EPS_PHI_L = f2u(1e-6*LOG2E_F)
EPS_LN = f2u(1e-5)
INV_D = f2u(1.0/448.0)
ONES_BF = 0x3F803F80
def env(n, d): return int(os.environ.get(n, str(d)))
STAMPS = env('STAMPS', 0)
STAMP_OFF = 16 << 20
ROT = env('ROT', 1)
CPF = env('CPF', 1)
WPF = env('WPF', 1)
APF = env('APF', 0)
CKS = env('CKS', 16)
CLP = env('CLP', 12)
DDEP = env('DDEP', 3)
STF = os.environ.get('STF', '')

class K:
    def __init__(self, name):
        self.name = name; self.lines = []; self.vm = []
    def e(self, s):
        for l in s.strip().split("\n"):
            if l.strip(): self.lines.append("    " + l.strip())
    def label(self, l): self.lines.append(f"{l}:")
    def L(self, s): return f"L{self.name}_{s}"
    def vop(self, s, tag):
        self.e(s); self.vm.append(tag)
    def wait_vm(self, tag, extra=""):
        idx = max(i for i, t in enumerate(self.vm) if t == tag)
        n = len(self.vm) - 1 - idx
        assert n <= 63
        self.e(f"s_waitcnt vmcnt({n}) {extra}".strip())
    def stamp(self, i):
        if STAMPS: self.e(f"{'s_memtime' if env('STAMPCLK',0) else 's_memrealtime'} s[{40+2*i}:{41+2*i}]")
    def end(self, sws, kid, n):
        if STAMPS:
            self.e("s_waitcnt vmcnt(0)")
            self.stamp(n)
            self.e("s_waitcnt lgkmcnt(0)")
            self.e("s_mov_b64 exec, 1")
            for i in range(8):
                self.e(f"v_mov_b32 v{16+i}, s{40+2*i}" if i <= n else f"v_mov_b32 v{16+i}, 0")
            self.e(f"v_lshrrev_b32 v1, 6, v0")
            self.e(f"v_lshlrev_b32 v1, 5, v1")
            self.e(f"s_lshl_b32 s38, s2, 8")
            self.e(f"s_add_u32 s38, s38, {STAMP_OFF + kid*65536*2}")
            self.e(f"s_mov_b32 s{sws+2}, {STAMP_OFF + 8*65536*2}")
            self.e(f"buffer_store_dwordx4 v[16:19], v1, s[{sws}:{sws+3}], s38 offen")
            self.e(f"buffer_store_dwordx4 v[20:23], v1, s[{sws}:{sws+3}], s38 offen offset:16")
            if STAMPS == 2 and kid == 3:
                self.e(f"""
                s_cmp_lg_u32 s2, 8
                s_cbranch_scc1 Lkd_nodbg
                v_cmp_ne_u32 vcc, 0, v1
                s_cbranch_vccnz Lkd_nodbg
                s_load_dwordx2 s[4:5], s[0:1], 64
                s_mov_b32 s6, 256
                s_mov_b32 s7, 0x20000
                s_mov_b64 exec, 0xffff
                v_and_b32 v2, 3, v0
                v_lshrrev_b32 v3, 2, v0
                v_lshlrev_b32 v3, 17, v3
                v_cmp_eq_u32 vcc, 1, v2
                v_mov_b32 v4, 0
                v_cndmask_b32 v4, v4, 8, vcc
                v_cmp_eq_u32 vcc, 2, v2
                s_nop 1
                v_cndmask_b32 v4, v4, 20, vcc
                v_cmp_eq_u32 vcc, 3, v2
                s_nop 1
                v_cndmask_b32 v4, v4, 28, vcc
                v_add_u32 v3, v3, v4
                s_mov_b32 s38, {STAMP_OFF + 8*256}
                s_waitcnt vmcnt(0) lgkmcnt(0)
                buffer_load_dword v5, v3, s[{sws}:{sws+3}], s38 offen sc1
                v_lshlrev_b32 v2, 2, v0
                s_waitcnt vmcnt(0)
                buffer_store_dword v5, v2, s[4:7], 0 offen
                Lkd_nodbg:
                """)
        self.e("s_endpgm")
    def nop(self, n):
        while n > 0:
            c = min(n, 16); self.e(f"s_nop {c-1}"); n -= c

def vr(b, n): return f"v[{b}:{b+n-1}]"
def srd_consts(k, base, nbytes):
    k.e(f"s_mov_b32 s{base+2}, {nbytes}")
    k.e(f"s_mov_b32 s{base+3}, 0x20000")

def phi_ops(k, dst, acc, rl, t1, s_epsl, s_ln2):
    k.e(f"v_fma_f32 v{acc}, v{acc}, v{rl}, s{s_epsl}")
    k.e(f"v_exp_f32 v{t1}, v{acc} clamp")
    k.e(f"v_max_f32 v{acc}, s{s_epsl}, v{acc}")
    k.e(f"v_fma_f32 v{dst}, v{acc}, s{s_ln2}, v{t1}")

def hilo_w(k, fr, p, t):
    k.e(f"v_cvt_pk_bf16_f32 v{fr+1}, v{p}, 0")
    k.e(f"v_mov_b32 v{fr+2}, 0")
    k.e(f"v_lshlrev_b32 v{t}, 16, v{fr+1}")
    k.e(f"v_sub_f32 v{t}, v{p}, v{t}")
    k.e(f"v_mov_b32 v{fr+3}, 0")
    k.e(f"v_cvt_pk_bf16_f32 v{fr}, v{p}, v{t}")

def hilo_x(k, fr, nm, t):
    k.e(f"v_cvt_pk_bf16_f32 v{fr}, v{nm}, v{nm}")
    k.e(f"v_and_b32 v{t}, 0xffff0000, v{fr}")
    k.e(f"v_sub_f32 v{t}, v{nm}, v{t}")
    k.e(f"v_cvt_pk_bf16_f32 v{fr+1}, v{t}, 0")

def div7(k, q, r, x):
    k.e(f"""
    s_mul_i32 s{q}, s{x}, 37
    s_lshr_b32 s{q}, s{q}, 8
    s_mul_i32 s{r}, s{q}, 7
    s_sub_u32 s{r}, s{x}, s{r}
    """)

def gen_a():
    k = K("ka")
    SX, SW, SWS, SDB, SP = 4, 8, 12, 16, 32
    sW, sRB, sH, sx, skv, sq, sT, sT2, sEPS, sONE, sLN2, sCG = 20, 21, 22, 23, 24, 25, 26, 27, 28, 29, 30, 31
    SLOT = 24576
    MISC = 6*SLOT
    WQ1, WQ2 = 0, 2*SLOT
    C6SLOT = 1
    PART = 3*SLOT
    CSX = MISC + 2048
    DUM = 190
    k.stamp(0)
    k.e(f"""
    s_cmp_ge_u32 s2, 256
    s_cbranch_scc1 {k.L('end')}
    s_load_dwordx2 s[{SX}:{SX+1}], s[0:1], 0
    s_load_dwordx2 s[{SW}:{SW+1}], s[0:1], 8
    s_load_dwordx2 s[{SDB}:{SDB+1}], s[0:1], 64
    s_load_dwordx2 s[{SWS}:{SWS+1}], s[0:1], 72
    """)
    if CPF:
        k.e(f"""
        s_getpc_b64 s[36:37]
        Lka_pc:
        s_lshr_b32 s{sT2}, s2, 3
        v_min_u32 v5, 7, v0
        v_lshlrev_b32 v5, 7, v5
        s_lshl_b32 s{sT}, s{sT2}, 10
        v_add_u32 v5, s{sT}, v5
        v_min_u32 v5, Lcode_end-Lka_pc-4, v5
        v_cmp_gt_u32 vcc, 8, v0
        s_and_saveexec_b64 s[38:39], vcc
        s_cbranch_execz {k.L('nocpf')}
        global_load_dword v{DUM}, v5, s[36:37]
        """)
        k.label(k.L('nocpf'))
        k.e("s_mov_b64 exec, -1")
    k.e(f"""
    v_lshrrev_b32 v5, 6, v0
    v_lshrrev_b32 v6, 3, v0
    v_readfirstlane_b32 s{sW}, v5
    v_and_b32 v7, 0x38, v6
    v_add_u32 v7, v6, v7
    v_and_b32 v8, 7, v0
    v_bfe_u32 v9, v0, 4, 2
    v_xor_b32 v9, v8, v9
    v_mul_u32_u24 v1, 896, v7
    v_lshl_add_u32 v1, v9, 4, v1
    v_xor_b32 v2, 64, v1
    v_add_u32 v2, 6144, v2
    v_bfe_u32 v9, v0, 4, 1
    v_lshlrev_b32 v9, 2, v9
    v_xor_b32 v9, v8, v9
    v_mul_u32_u24 v3, 2688, v6
    v_and_b32 v8, 3, v9
    v_lshl_add_u32 v3, v8, 4, v3
    v_lshrrev_b32 v9, 2, v9
    v_mul_u32_u24 v9, 896, v9
    v_add_u32 v3, v3, v9
    s_bfe_u32 s{sRB}, s2, 0x20001
    s_lshl_b32 s{sRB}, s{sRB}, 2
    s_lshr_b32 s{sT}, s2, 6
    s_add_u32 s{sRB}, s{sRB}, s{sT}
    s_and_b32 s{sH}, s2, 1
    s_lshl_b32 s{sH}, s{sH}, 3
    s_bfe_u32 s{sT2}, s2, 0x30003
    s_add_u32 s{sH}, s{sH}, s{sT2}
    """)
    if ROT:
        k.e(f"""
        s_lshl_b32 s{sT}, s{sT}, 1
        s_add_u32 s{sT}, s{sT}, s{sT2}
        """)
        div7(k, sT2, sCG, sT)
    else:
        k.e(f"s_mov_b32 s{sCG}, 0")
    k.e(f"""
    s_mul_i32 s{sx}, s{sRB}, {128*896}
    s_lshl_b32 s{sT}, s{sCG}, 7
    s_add_u32 s{sx}, s{sx}, s{sT}
    s_mul_i32 s{sq}, s{sH}, 56
    s_mul_i32 s{sT}, s{sCG}, {64*2688}
    s_add_u32 s{skv}, s{sq}, s{sT}
    s_add_u32 s{skv}, s{skv}, 896
    s_mul_i32 m0, s{sW}, 3072
    """)
    srd_consts(k, SX, S*D*2)
    srd_consts(k, SW, D*3*D*2 + 2048)
    srd_consts(k, SWS, WS_USED)
    srd_consts(k, SDB, 256)
    k.e(f"""
    s_waitcnt lgkmcnt(0)
    s_sub_u32 s{SW}, s{SW}, 2048
    s_subb_u32 s{SW+1}, s{SW+1}, 0
    """)
    k.stamp(1)
    def issue_chunk(c):
        k.vop(f"buffer_load_dwordx4 v1, s[{SX}:{SX+3}], s{sx} offen lds", f"c{c}")
        k.vop(f"buffer_load_dwordx4 v2, s[{SX}:{SX+3}], s{sx} offen offset:1024 lds", f"c{c}")
        k.vop(f"buffer_load_dwordx4 v3, s[{SW}:{SW+3}], s{skv} offen offset:2048 lds", f"c{c}")
    slot_of = [0, 1, 2, 3, 4, 5, C6SLOT]
    sROT = 35
    def issue_next(c):
        if c > 0:
            k.e(f"""
            s_mul_i32 s{sT}, s{sW}, 3072
            s_add_u32 m0, s{sT}, {slot_of[c]*SLOT}
            s_add_u32 s{sCG}, s{sCG}, 1
            s_cmp_eq_u32 s{sCG}, 7
            s_cselect_b32 s{sT}, -6, 1
            s_lshl_b32 s{sT2}, s{sT}, 7
            s_add_u32 s{sx}, s{sx}, s{sT2}
            s_mul_i32 s{sT}, s{sT}, {64*2688}
            s_add_u32 s{skv}, s{skv}, s{sT}
            """)
        issue_chunk(c)
    sM6, sP1 = 33, 34
    k.e(f"s_mov_b32 s{sROT}, s{sCG}")
    issue_next(0)
    k.e(f"""
    s_cmp_lg_u32 s{sRB}, 0
    s_cbranch_scc1 {k.L('nozero')}
    s_cmp_lt_u32 s{sW}, 4
    s_cbranch_scc1 {k.L('nozero')}
    v_mov_b32 v12, 0
    v_mov_b32 v13, 0
    v_mov_b32 v14, 0
    v_mov_b32 v15, 0
    v_and_b32 v10, 255, v0
    v_lshlrev_b32 v10, 4, v10
    s_lshl_b32 s{sT}, s{sH}, 12
    buffer_store_dwordx4 v[12:15], v10, s[{SWS}:{SWS+3}], s{sT} offen sc1
    """)
    k.label(k.L('nozero'))
    if env('ZFL', 0):
        k.e(f"""
        s_lshr_b32 s{sT}, s2, 4
        s_cmp_lg_u32 s{sT}, 4
        s_cbranch_scc1 {k.L('nozf')}
        s_cmp_lt_u32 s{sW}, 4
        s_cbranch_scc1 {k.L('nozf')}
        v_mov_b32 v12, 0
        v_mov_b32 v13, 0
        v_mov_b32 v14, 0
        v_mov_b32 v15, 0
        v_and_b32 v10, 255, v0
        v_lshlrev_b32 v10, 4, v10
        s_and_b32 s{sT}, s2, 15
        s_lshl_b32 s{sT}, s{sT}, 12
        s_add_u32 s{sT}, s{sT}, {FL_OFF}
        buffer_store_dwordx4 v[12:15], v10, s[{SWS}:{SWS+3}], s{sT} offen sc1
        """)
        k.label(k.L('nozf'))
    k.e("s_barrier")
    issue_next(1)
    k.e(f"""
    v_bfe_u32 v8, v0, 2, 4
    v_mul_u32_u24 v4, 2688, v8
    v_and_b32 v8, 3, v0
    v_lshl_add_u32 v4, v8, 4, v4
    s_and_b32 s{sT}, s{sW}, 1
    s_mul_i32 s{sT}, s{sT}, {32*2688}
    s_add_u32 s{sq}, s{sq}, s{sT}
    s_add_u32 s{sq}, s{sq}, 2048
    s_mov_b32 s{sEPS}, 0x{EPS_PHI_L:x}
    s_mov_b32 s{sONE}, 0x{ONES_BF:x}
    s_mov_b32 s{sLN2}, 0x{LN2:x}
    """)
    def wq_dma(part):
        k.e(f"""
        s_lshl_b32 s{sT}, s{sW}, 11
        s_add_u32 m0, s{sT}, {WQ1 if part == 0 else WQ2}
        s_lshr_b32 s{sT}, s{sW}, 1
        s_add_u32 s{sT2}, s{sT}, s{sROT}
        """)
        if part: k.e(f"s_add_u32 s{sT2}, s{sT2}, 4")
        k.e(f"""
        s_cmp_ge_u32 s{sT2}, 7
        s_cselect_b32 s36, 7, 0
        s_sub_u32 s{sT2}, s{sT2}, s36
        """)
        if part:
            k.e(f"s_cmp_eq_u32 s{sT}, 3\ns_cselect_b32 s{sT2}, 8, s{sT2}")
        k.e(f"""
        s_mul_i32 s{sT2}, s{sT2}, {64*2688}
        s_add_u32 s{sT2}, s{sT2}, s{sq}
        s_add_u32 s{sT}, s{sT2}, {16*2688-1024}
        """)
        k.vop(f"buffer_load_dwordx4 v4, s[{SW}:{SW+3}], s{sT2} offen lds", f"wq{part+1}")
        k.vop(f"buffer_load_dwordx4 v4, s[{SW}:{SW+3}], s{sT} offen offset:1024 lds", f"wq{part+1}")
    def late(c):
        if c+2 <= 5: issue_next(c+2)
        if c == 4:
            wq_dma(0)
            issue_next(6)
        if c == 5:
            wq_dma(1)
    def wpf():
        if not WPF: return
        k.e(f"""
        s_lshl_b32 s{sT}, s{sW}, 3
        s_add_u32 s{sT}, s{sT}, 24
        s_cmp_eq_u32 s{sW}, 0
        s_cselect_b32 s{sT}, 16, s{sT}
        s_load_dwordx2 s[{SP}:{SP+1}], s[0:1], s{sT}
        s_cselect_b32 s{SP+2}, {D*D*2}, s{sXS}
        s_cselect_b32 s{sT}, 13, 49
        s_mov_b32 s{SP+3}, 0x20000
        v_and_b32 v5, 63, v0
        v_min_u32 v5, 48, v5
        s_mul_i32 s{sT}, s{sT}, s2
        v_add_lshl_u32 v5, v5, s{sT}, 7
        s_waitcnt lgkmcnt(0)
        """)
        k.vop(f"buffer_load_dword v{DUM}, v5, s[{SP}:{SP+3}], 0 offen", "pf")
    sXS = 37
    AX = 172
    k.e(f"""
    s_mov_b32 s{sXS}, {D*F*2}
    v_and_b32 v8, 31, v0
    v_bfe_u32 v9, v0, 5, 1
    v_bfe_u32 v14, v0, 6, 2
    v_lshrrev_b32 v11, 4, v8
    v_lshl_add_u32 v10, v14, 1, v11
    v_mul_u32_u24 v10, 3072, v10
    v_and_b32 v11, 15, v8
    v_lshl_add_u32 v10, v11, 7, v10
    v_bfe_u32 v11, v8, 1, 3
    v_xor_b32 v11, v11, v9
    v_lshlrev_b32 v12, 1, v14
    v_xor_b32 v11, v11, v12
    """)
    for p in range(4):
        k.e(f"v_xor_b32 v12, {2*p}, v11")
        k.e(f"v_lshl_add_u32 v{AX+p}, v12, 4, v10")
    k.e(f"""
    s_cmp_ge_u32 s{sW}, 4
    s_cbranch_scc1 {k.L('q')}
    """)
    vm_split = list(k.vm)
    ACK, ACV = 16, 32
    BUF = [48, 60]
    AWK, AWV = 152, 156
    CSK, CSV = 78, 80
    RL, XE, WEK, WEV = 84, 100, 104, 108
    PKF, VF, KVA, T = 112, 120, 128, 144
    k.e(f"""
    v_mul_u32_u24 v10, 3072, v9
    v_bfe_u32 v11, v0, 2, 2
    v_lshl_add_u32 v10, v11, 7, v10
    v_bfe_u32 v12, v0, 4, 1
    v_lshl_add_u32 v10, v12, 5, v10
    v_and_b32 v12, 3, v0
    v_lshl_add_u32 v10, v12, 3, v10
    v_lshrrev_b32 v11, 1, v11
    v_lshl_add_u32 v10, v11, 6, v10
    v_add_u32 v10, 2048, v10
    v_mov_b32 v{CSK}, 0
    v_mov_b32 v{CSK+1}, 0
    """)
    for p in range(4):
        k.e(f"v_xor_b32 v11, {p}, v14")
        k.e(f"v_mul_u32_u24 v11, 6144, v11")
        k.e(f"v_add_u32 v{AWK+p}, v10, v11")
        k.e(f"v_xor_b32 v{AWV+p}, 64, v{AWK+p}")
    st = dict(base=0)
    def rebase(regs, slot):
        want = (slot // 3) * 3 * SLOT
        d = want - st['base']
        if d:
            for r in regs:
                if d > 0: k.e(f"v_add_u32 v{r}, {d}, v{r}")
                else: k.e(f"v_subrev_u32 v{r}, {-d}, v{r}")
        st['base'] = want
    def kv_reads(slot, p, b):
        o = slot*SLOT - st['base']
        k.e(f"ds_read_b128 {vr(BUF[b],4)}, v{AX+p} offset:{o}")
        for ri in range(2):
            k.e(f"ds_read_b64_tr_b16 {vr(BUF[b]+4+2*ri,2)}, v{AWK+p} offset:{o+ri*512}")
        for ri in range(2):
            k.e(f"ds_read_b64_tr_b16 {vr(BUF[b]+8+2*ri,2)}, v{AWV+p} offset:{o+ri*512}")
    for c in range(7):
        rebase(list(range(AX, AX+4)) + list(range(AWK, AWK+8)), slot_of[c])
        k.wait_vm(f"c{c}")
        k.e("s_barrier")
        if c == 0: k.stamp(2)
        if c == 6: k.stamp(3)
        kv_reads(slot_of[c], 0, 0)
        kv_reads(slot_of[c], 1, 1)
        for p in range(4):
            b = p & 1
            k.e(f"s_waitcnt lgkmcnt({5 if p < 3 else 0})")
            first = (c == 0 and p == 0)
            k.e(f"v_mfma_f32_32x32x16_bf16 {vr(ACK,16)}, {vr(BUF[b],4)}, {vr(BUF[b]+4,4)}, {'0' if first else vr(ACK,16)}")
            k.e(f"v_mfma_f32_32x32x16_bf16 {vr(ACV,16)}, {vr(BUF[b],4)}, {vr(BUF[b]+8,4)}, {'0' if first else vr(ACV,16)}")
            if p == 0:
                for j in range(4):
                    k.e(f"v_dot2c_f32_bf16 v{CSK}, s{sONE}, v{BUF[b]+4+j}")
                    k.e(f"v_dot2c_f32_bf16 v{CSK+1}, s{sONE}, v{BUF[b]+8+j}")
            if p < 2:
                kv_reads(slot_of[c], p+2, b)
            if c == 6 and p == 1:
                k.e(f"""
                v_lshlrev_b32 v12, 3, v0
                v_add_u32 v12, {CSX}, v12
                ds_write_b64 v12, {vr(CSK,2)}
                """)
        late(c)
    k.e(f"""
    v_mov_b32 v5, 0
    s_lshl_b32 s{sT2}, s{sH}, 4
    """)
    k.vop(f"buffer_load_dwordx4 {vr(T+4,4)}, v5, s[{SDB}:{SDB+3}], s{sT2} offen sc1", "poll")
    k.e(f"""
    v_and_b32 v13, 63, v0
    v_lshlrev_b32 v13, 3, v13
    v_add_u32 v13, {CSX}, v13
    v_lshl_add_u32 v10, v14, 5, v8
    v_lshlrev_b32 v10, 3, v10
    v_add_u32 v10, {MISC}, v10
    v_lshlrev_b32 v11, 7, v14
    v_lshl_add_u32 v11, v9, 4, v11
    v_add_u32 v11, {MISC+1024}, v11
    v_mov_b32 v{XE+2}, 0
    v_mov_b32 v{XE+3}, 0
    s_waitcnt lgkmcnt(0)
    s_barrier
    ds_read2st64_b64 {vr(PKF,4)}, v13 offset0:0 offset1:1
    ds_read2st64_b64 {vr(PKF+4,4)}, v13 offset0:2 offset1:3
    ds_read_b64 {vr(XE,2)}, v10
    """)
    k.stamp(4)
    for a in range(4):
        k.e(f"ds_read_b128 {vr(RL+4*a,4)}, v11 offset:{a*32}")
    k.e(f"""
    s_waitcnt lgkmcnt(5)
    v_add_f32 v{PKF}, v{PKF}, v{PKF+2}
    v_add_f32 v{PKF+1}, v{PKF+1}, v{PKF+3}
    v_add_f32 v{PKF+4}, v{PKF+4}, v{PKF+6}
    v_add_f32 v{PKF+5}, v{PKF+5}, v{PKF+7}
    v_add_f32 v{CSK}, v{PKF}, v{PKF+4}
    v_add_f32 v{CSV}, v{PKF+1}, v{PKF+5}
    """)
    hilo_w(k, WEK, CSK, T)
    hilo_w(k, WEV, CSV, T+1)
    k.e(f"""
    s_waitcnt lgkmcnt(4)
    s_nop 0
    v_mfma_f32_32x32x16_bf16 {vr(ACK,16)}, {vr(XE,4)}, {vr(WEK,4)}, {vr(ACK,16)}
    v_mfma_f32_32x32x16_bf16 {vr(ACV,16)}, {vr(XE,4)}, {vr(WEV,4)}, {vr(ACV,16)}
    """)
    n0 = len(k.lines)
    wpf()
    k.e(f"""
    v_and_b32 v10, 63, v0
    v_lshlrev_b32 v12, 2, v10
    v_lshlrev_b32 v10, 4, v10
    v_lshl_add_u32 v10, v14, 12, v10
    v_add_u32 v10, {PART}, v10
    v_lshl_add_u32 v12, v14, 10, v12
    v_add_u32 v13, {PART}, v12
    v_mov_b32 v5, 0
    s_waitcnt lgkmcnt(0)
    """)
    k.nop(max(0, 12 - (len(k.lines)-n0)))
    for i in range(0, 16, 2):
        phi_ops(k, ACK+i, ACK+i, RL+i, T, sEPS, sLN2)
        phi_ops(k, ACK+i+1, ACK+i+1, RL+i+1, T+1, sEPS, sLN2)
        k.e(f"v_cvt_pk_bf16_f32 v{PKF+i//2}, v{ACK+i}, v{ACK+i+1}")
        k.e(f"v_mul_f32 v{ACV+i}, v{ACV+i}, v{RL+i}")
        k.e(f"v_mul_f32 v{ACV+i+1}, v{ACV+i+1}, v{RL+i+1}")
        k.e(f"v_cvt_pk_bf16_f32 v{VF+i//2}, v{ACV+i}, v{ACV+i+1}")
        if i == 6 or i == 14:
            h = i // 8
            k.e("s_mov_b32 exec_lo, 0x10000000\ns_mov_b32 exec_hi, 0x10000000")
            for j in range(4):
                k.e(f"v_mov_b32 v{VF+4*h+j}, s{sONE}")
            k.e("s_mov_b64 exec, -1\ns_nop 0")
            k.e(f"v_mfma_f32_32x32x16_bf16 {vr(KVA,16)}, {vr(PKF+4*h,4)}, {vr(VF+4*h,4)}, {'0' if h == 0 else vr(KVA,16)}")
    k.e(f"s_lshl_b32 s{sT}, s{sH}, 12")
    k.nop(11)
    for a in range(4):
        k.e(f"ds_write_b128 v10, {vr(KVA+4*a,4)} offset:{a*1024}")
    k.wait_vm("poll", "lgkmcnt(0)")
    k.e("s_barrier")
    k.stamp(5)
    for u in range(4):
        k.e(f"ds_read2st64_b32 {vr(ACK+4*u,2)}, v13 offset0:{u} offset1:{u+16}")
        k.e(f"ds_read2st64_b32 {vr(ACK+4*u+2,2)}, v13 offset0:{u+32} offset1:{u+48}")
    k.label(k.L('poll'))
    k.e(f"""
    v_min_u32 v{T}, v{T+4}, v{T+5}
    v_min3_u32 v{T}, v{T}, v{T+6}, v{T+7}
    v_cmp_eq_u32 vcc, 0, v{T}
    s_cbranch_vccz {k.L('pollok')}
    s_sleep 2
    buffer_load_dwordx4 {vr(T+4,4)}, v5, s[{SDB}:{SDB+3}], s{sT2} offen sc1
    s_waitcnt vmcnt(0)
    s_branch {k.L('poll')}
    """)
    k.label(k.L('pollok'))
    k.e("s_waitcnt lgkmcnt(0)")
    for u in range(4):
        k.e(f"v_add_f32 v{ACK+4*u}, v{ACK+4*u}, v{ACK+4*u+1}")
        k.e(f"v_add_f32 v{ACK+4*u+2}, v{ACK+4*u+2}, v{ACK+4*u+3}")
        k.e(f"v_add_f32 v{ACK+4*u}, v{ACK+4*u}, v{ACK+4*u+2}")
        if u == 2:
            k.e(f"s_cmp_eq_u32 s{sW}, 3\ns_cbranch_scc1 {k.L('kvend')}")
        k.e(f"buffer_atomic_add_f32 v{ACK+4*u}, v12, s[{SWS}:{SWS+3}], s{sT} offen offset:{u*256}")
    k.label(k.L('kvend'))
    k.e("s_barrier")
    k.stamp(6)
    k.end(SWS, 0, 7)
    k.label(k.L('q'))
    k.vm = list(vm_split)
    XQ, ACQ, WB = 16, 128, 144
    SUM, SQ, CSQ, AWQ, T = 160, 162, 164, 168, 176
    XE2, WE2, RS = 180, 184, 166
    k.e(f"""
    v_bfe_u32 v11, v0, 2, 2
    v_lshl_add_u32 v10, v9, 3, v11
    v_lshlrev_b32 v10, 6, v10
    v_and_b32 v11, 1, v0
    v_lshl_add_u32 v10, v11, 5, v10
    v_bfe_u32 v11, v0, 4, 1
    v_lshl_add_u32 v10, v11, 4, v10
    v_bfe_u32 v11, v0, 1, 1
    v_lshl_add_u32 v10, v11, 3, v10
    v_lshl_add_u32 v{AWQ}, v14, 10, v10
    v_xor_b32 v{AWQ+1}, 0x400, v{AWQ}
    v_xor_b32 v{AWQ+2}, 0x800, v{AWQ}
    v_xor_b32 v{AWQ+3}, 0xc00, v{AWQ}
    """)
    for r in (SUM, SUM+1, SQ, SQ+1, CSQ, CSQ+1):
        k.e(f"v_mov_b32 v{r}, 0")
    st['base'] = 0
    for c in range(7):
        rebase(list(range(AX, AX+4)), slot_of[c])
        k.wait_vm(f"c{c}")
        k.e("s_barrier")
        if c == 0: k.stamp(2)
        if c == 6: k.stamp(3)
        o = slot_of[c]*SLOT - st['base']
        for p in range(4):
            k.e(f"ds_read_b128 {vr(XQ+16*c+4*p,4)}, v{AX+p} offset:{o}")
        if c == 1:
            k.e(f"""
            s_cmp_lg_u32 s{sRB}, 0
            s_cbranch_scc1 {k.L('noflag')}
            s_lshl_b32 s{sT}, s{sH}, 2
            s_add_u32 s{sT}, s{sT}, s{sW}
            s_sub_u32 s{sT}, s{sT}, 4
            s_lshl_b32 s{sT}, s{sT}, 2
            v_mov_b32 v5, 0
            v_mov_b32 v12, 1
            s_mov_b64 exec, 1
            buffer_store_dword v12, v5, s[{SDB}:{SDB+3}], s{sT} offen sc1
            s_mov_b64 exec, -1
            """)
            k.label(k.L('noflag'))
        for p in range(4):
            k.e(f"s_waitcnt lgkmcnt({3-p})")
            for j in range(4):
                r = XQ+16*c+4*p+j
                k.e(f"v_dot2c_f32_bf16 v{SUM+(j&1)}, s{sONE}, v{r}")
                k.e(f"v_dot2c_f32_bf16 v{SQ+(j&1)}, v{r}, v{r}")
        late(c)
    NB = 4
    def wq_read(kap):
        c, p = kap >> 2, kap & 3
        base = WQ1 + c*4096 if c < 4 else WQ2 + (c-4)*4096
        b = WB + 4*(kap % NB)
        for ri in range(2):
            k.e(f"ds_read_b64_tr_b16 {vr(b+2*ri,2)}, v{AWQ+p} offset:{base+ri*256}")
    k.e(f"""
    v_lshl_add_u32 v10, v14, 5, v8
    v_lshlrev_b32 v11, 2, v10
    v_lshlrev_b32 v10, 3, v10
    v_add_f32 v{SUM}, v{SUM}, v{SUM+1}
    v_add_f32 v{SQ}, v{SQ}, v{SQ+1}
    v_mov_b32 v{SUM+1}, v{SUM}
    v_mov_b32 v{SQ+1}, v{SQ}
    v_add_u32 v10, {MISC}, v10
    v_add_u32 v11, {MISC+1024}, v11
    v_permlane32_swap_b32 v{SUM}, v{SUM+1}
    v_permlane32_swap_b32 v{SQ}, v{SQ+1}
    v_mov_b32 v{XE2+2}, 0
    v_add_f32 v{SUM}, v{SUM}, v{SUM+1}
    v_add_f32 v{SQ}, v{SQ}, v{SQ+1}
    v_mul_f32 v{SUM}, 0x{INV_D|0x80000000:x}, v{SUM}
    v_mul_f32 v{SQ}, 0x{INV_D:x}, v{SQ}
    v_fma_f32 v{SQ}, -v{SUM}, v{SUM}, v{SQ}
    v_max_f32 v{SQ}, 0, v{SQ}
    v_add_f32 v{SQ}, 0x{EPS_LN:x}, v{SQ}
    v_rsq_f32 v{RS}, v{SQ}
    """)
    hilo_x(k, XE2, SUM, T)
    k.e(f"""
    v_mul_f32 v{RS}, 0x{LOG2E:x}, v{RS}
    ds_write_b64 v10, {vr(XE2,2)}
    ds_write_b32 v11, v{RS}
    v_mov_b32 v{XE2+3}, 0
    s_waitcnt lgkmcnt(0)
    s_barrier
    """)
    def q_range(k0, k1):
        for kap in range(k0, min(k0+NB-1, k1)):
            wq_read(kap)
        for kap in range(k0, k1):
            if kap+NB-1 < k1:
                wq_read(kap+NB-1)
            rem = min(k1-1-kap, NB-1)
            k.e(f"s_waitcnt lgkmcnt({2*rem})")
            b = WB + 4*(kap % NB)
            k.e(f"v_mfma_f32_32x32x16_bf16 {vr(ACQ,16)}, {vr(b,4)}, {vr(XQ+4*kap,4)}, {'0' if kap == 0 else vr(ACQ,16)}")
            if (kap & 3) == 0:
                for j in range(4):
                    k.e(f"v_dot2c_f32_bf16 v{CSQ+(j&1)}, s{sONE}, v{b+j}")
    k.stamp(4)
    q_range(0, 16)
    k.e(f"""
    v_lshlrev_b32 v12, 2, v0
    v_add_u32 v12, {CSX+1024}, v12
    v_and_b32 v10, 63, v0
    v_lshlrev_b32 v13, 2, v10
    v_add_u32 v13, {CSX+2048}, v13
    v_lshlrev_b32 v10, 4, v10
    s_lshl_b32 s{sT}, s{sRB}, 2
    s_add_u32 s{sT}, s{sT}, s{sW}
    s_sub_u32 s{sT}, s{sT}, 4
    s_lshl_b32 s{sT}, s{sT}, 4
    s_add_u32 s{sT}, s{sT}, s{sH}
    s_lshl_b32 s{sT}, s{sT}, 11
    s_add_u32 s{sT}, s{sT}, {PQ_OFF}
    """)
    k.wait_vm("wq2")
    k.e("s_barrier")
    k.stamp(5)
    q_range(16, 25)
    k.e(f"""
    s_nop 2
    v_add_f32 v{CSQ}, v{CSQ}, v{CSQ+1}
    ds_write_b32 v12, v{CSQ}
    """)
    q_range(25, 28)
    k.e(f"""
    s_barrier
    ds_read2st64_b32 {vr(WB,2)}, v13 offset0:0 offset1:1
    ds_read2st64_b32 {vr(WB+2,2)}, v13 offset0:2 offset1:3
    s_waitcnt lgkmcnt(0)
    v_add_f32 v{WB}, v{WB}, v{WB+1}
    v_add_f32 v{WB+2}, v{WB+2}, v{WB+3}
    v_add_f32 v{CSQ}, v{WB}, v{WB+2}
    """)
    hilo_w(k, WE2, CSQ, T)
    k.e(f"""
    s_nop 1
    v_mfma_f32_32x32x16_bf16 {vr(ACQ,16)}, {vr(WE2,4)}, {vr(XE2,4)}, {vr(ACQ,16)}
    """)
    k.nop(12)
    for i in range(0, 16, 2):
        phi_ops(k, ACQ+i, ACQ+i, RS, T, sEPS, sLN2)
        phi_ops(k, ACQ+i+1, ACQ+i+1, RS, T+1, sEPS, sLN2)
        k.e(f"v_cvt_pk_bf16_f32 v{WB+i//2}, v{ACQ+i}, v{ACQ+i+1}")
        if i == 6:
            k.e(f"buffer_store_dwordx4 {vr(WB,4)}, v10, s[{SWS}:{SWS+3}], s{sT} offen {STF}")
    k.e(f"buffer_store_dwordx4 {vr(WB+4,4)}, v10, s[{SWS}:{SWS+3}], s{sT} offen offset:1024 {STF}")
    k.stamp(6)
    k.end(SWS, 0, 7)
    k.label(k.L('end'))
    k.e("s_endpgm")
    return k, dict(vgpr=192, sgpr=64, grid=256, block=512, lds=163840)

def gen_b():
    k = K("kb")
    SX, SW, SWS, SP = 4, 8, 12, 32
    sW, sRB, sCB, sT, sT2, sT3, sEPS, sONE, sKV, sPQ0, sWO, sROT, sLN2 = 20, 21, 22, 23, 24, 25, 26, 27, 28, 29, 30, 31, 19
    WREG = 16384
    RED = 4*WREG
    DUM = 247
    k.stamp(0)
    k.e(f"""
    s_cmp_ge_u32 s2, 256
    s_cbranch_scc1 {k.L('end')}
    s_load_dwordx2 s[{SWS}:{SWS+1}], s[0:1], 72
    s_cmp_ge_u32 s2, 224
    s_cbranch_scc1 {k.L('cs')}
    s_load_dwordx2 s[{SX}:{SX+1}], s[0:1], 0
    s_load_dwordx2 s[{SW}:{SW+1}], s[0:1], 16
    v_lshrrev_b32 v5, 6, v0
    v_and_b32 v1, 63, v0
    v_readfirstlane_b32 s{sW}, v5
    v_lshlrev_b32 v1, 4, v1
    v_bfe_u32 v9, v0, 5, 1
    v_bfe_u32 v6, v0, 3, 2
    v_and_b32 v7, 3, v0
    v_lshl_add_u32 v6, v6, 2, v7
    v_bfe_u32 v7, v0, 2, 1
    v_mad_u32_u24 v7, v7, 14, v6
    v_cmp_gt_u32 vcc, 14, v6
    v_bfe_u32 v6, v0, 3, 3
    v_and_b32 v8, 7, v0
    v_cndmask_b32 v7, 28, v7, vcc
    v_lshlrev_b32 v2, 4, v7
    v_lshl_add_u32 v2, v9, 11, v2
    v_bfe_u32 v7, v0, 4, 1
    v_lshlrev_b32 v7, 2, v7
    v_xor_b32 v7, v7, v8
    v_mul_u32_u24 v3, 896, v6
    v_lshl_add_u32 v3, v7, 4, v3
    s_lshr_b32 s{sT2}, s2, 3
    """)
    div7(k, sRB, sCB, sT2)
    k.e(f"""
    s_add_u32 s{sROT}, s{sRB}, s{sCB}
    s_and_b32 s{sROT}, s{sROT}, {3 if ROT else 0}
    s_and_b32 s{sT}, s2, 7
    s_lshl_b32 s{sT}, s{sT}, 2
    s_add_u32 s{sRB}, s{sRB}, s{sT}
    s_lshl_b32 s{sT}, s{sW}, 2
    s_add_u32 s{sROT}, s{sROT}, s{sT}
    s_and_b32 s{sT}, s{sW}, 1
    s_lshl_b32 s{sT2}, s{sRB}, 1
    s_add_u32 s{sT3}, s{sT2}, s{sT}
    s_lshl_b32 s{sPQ0}, s{sT3}, 15
    s_add_u32 s{sPQ0}, s{sPQ0}, {PQ_OFF}
    s_lshl_b32 s{sWO}, s{sCB}, 7
    s_lshl_b32 m0, s{sW}, 14
    """)
    assert PQ_OFF % 0x10000 == 0
    srd_consts(k, SX, S*D*2)
    srd_consts(k, SW, D*D*2)
    srd_consts(k, SWS, WS_USED)
    k.e(f"""
    s_mov_b32 s{sEPS}, 0x{EPS_PHI:x}
    s_mov_b32 s{sONE}, 0x{ONES_BF:x}
    s_mov_b32 s{sLN2}, 0x{LN2:x}
    s_waitcnt lgkmcnt(0)
    """)
    k.stamp(1)
    KVF, PQR, ACC, OA, XR = 16, 80, 144, 208, 248
    def ld_head(p):
        k.e(f"""
        s_xor_b32 s{sT}, s{sROT}, {p}
        s_lshl_b32 s{sKV}, s{sT}, 12
        s_lshl_b32 s{sT}, s{sT}, 11
        s_add_u32 s{sT}, s{sT}, s{sPQ0}
        s_xor_b32 s{sT2}, s{sT}, 0x8000
        """)
        for q in range(4):
            k.vop(f"buffer_load_dwordx4 {vr(KVF+16*p+4*q,4)}, v2, s[{SWS}:{SWS+3}], s{sKV} offen offset:{q*512}", f"kv{p}")
        for rt in range(2):
            for f in range(2):
                k.vop(f"buffer_load_dwordx4 {vr(PQR+16*p+8*rt+4*f,4)}, v1, s[{SWS}:{SWS+3}], s{sT if rt == 0 else sT2} offen offset:{f*1024}", f"pq{p}")
    def ld_wo(p):
        k.e(f"""
        s_xor_b32 s{sT}, s{sROT}, {p}
        s_mul_i32 s{sT}, s{sT}, {28*896}
        s_add_u32 s{sT}, s{sT}, s{sWO}
        """)
        for u in range(4):
            k.vop(f"buffer_load_dwordx4 v3, s[{SW}:{SW+3}], s{sT} offen offset:{u*1024} lds", f"wo{p}")
            if u < 3: k.e(f"s_add_u32 s{sT}, s{sT}, {7168-1024}")
        k.e("s_add_u32 m0, m0, 4096")
    ld_head(0); ld_head(1)
    def ld_x():
        k.e(f"""
        v_and_b32 v6, 31, v0
        v_mul_u32_u24 v4, 896, v6
        v_lshl_add_u32 v4, v9, 5, v4
        s_mul_i32 s{sT}, s{sT3}, {32*896}
        s_add_u32 s{sT}, s{sT}, s{sWO}
        s_lshr_b32 s{sT2}, s{sW}, 1
        s_lshl_b32 s{sT2}, s{sT2}, 6
        s_add_u32 s{sT}, s{sT}, s{sT2}
        """)
        k.vop(f"buffer_load_dwordx4 {vr(XR,4)}, v4, s[{SX}:{SX+3}], s{sT} offen", "x")
        k.vop(f"buffer_load_dwordx4 {vr(XR+4,4)}, v4, s[{SX}:{SX+3}], s{sT} offen offset:16", "x")
    AW0, AW1 = 14, 15
    k.e(f"""
    v_bfe_u32 v7, v0, 2, 2
    v_mad_u32_u24 v5, v9, 14, v7
    v_lshlrev_b32 v5, 7, v5
    v_lshrrev_b32 v7, 1, v7
    v_xor_b32 v7, v7, v9
    v_bfe_u32 v8, v0, 7, 1
    v_xor_b32 v7, v7, v8
    v_lshl_add_u32 v5, v7, 6, v5
    v_and_b32 v7, 1, v0
    v_lshl_add_u32 v5, v7, 5, v5
    v_bfe_u32 v7, v0, 4, 1
    v_lshl_add_u32 v5, v7, 4, v5
    v_bfe_u32 v7, v0, 1, 1
    v_lshl_add_u32 v5, v7, 3, v5
    v_lshrrev_b32 v7, 6, v0
    v_lshl_add_u32 v{AW0}, v7, 14, v5
    v_xor_b32 v{AW1}, 64, v{AW0}
    """)
    def o_stage(p):
        k.wait_vm(f"kv{p}")
        if p == 0: k.stamp(2)
        if p == 3: k.stamp(3)
        b = KVF+16*p
        for i in range(8):
            k.e(f"v_cvt_pk_bf16_f32 v{b+i}, v{b+2*i}, v{b+2*i+1}")
        k.wait_vm(f"pq{p}")
        k.e("s_nop 0")
        for rt in range(2):
            for f in range(2):
                k.e(f"v_mfma_f32_32x32x16_bf16 {vr(OA+16*rt,16)}, {vr(b+4*f,4)}, {vr(PQR+16*p+8*rt+4*f,4)}, {'0' if f == 0 else vr(OA+16*rt,16)}")
    def norm_stage(p):
        for rt in range(2):
            o = OA+16*rt
            d = PQR+16*p+8*rt
            k.e(f"v_add_f32 v{o+14}, s{sEPS}, v{o+14}")
            k.e(f"v_rcp_f32 v{o+14}, v{o+14}")
            k.e(f"v_mov_b32 v{d+7}, 0")
            k.e(f"v_mul_f32 v{o+14}, s{sLN2}, v{o+14}")
            for i in range(0, 14, 2):
                k.e(f"v_pk_mul_f32 {vr(o+i,2)}, {vr(o+i,2)}, {vr(o+14,2)} op_sel_hi:[1,0]")
            for i in range(0, 14, 2):
                k.e(f"v_cvt_pk_bf16_f32 v{d+i//2}, v{o+i}, v{o+i+1}")
    def w_reads(p):
        k.wait_vm(f"wo{p}")
        for f in range(2):
            for ct in range(2):
                for ri in range(2):
                    k.e(f"ds_read_b64_tr_b16 {vr(KVF+16*p+8*f+4*ct+2*ri,2)}, v{AW0 if ct == 0 else AW1} offset:{(32*p+8*f+4*ri)*128}")
    def main_stage(p):
        for f in range(2):
            for ct in range(2):
                k.e(f"s_waitcnt lgkmcnt({6-4*f-2*ct})")
                for rt in range(2):
                    a = ACC+16*(2*ct+rt)
                    first = (p == 0 and f == 0)
                    k.e(f"v_mfma_f32_32x32x16_bf16 {vr(a,16)}, {vr(KVF+16*p+8*f+4*ct,4)}, {vr(PQR+16*p+8*rt+4*f,4)}, {'0' if first else vr(a,16)}")
    def wpf():
        if not WPF: return
        k.e(f"""
        s_lshr_b32 s{sT}, s{sW}, 1
        s_lshl_b32 s{sT}, s{sT}, 3
        s_add_u32 s{sT}, s{sT}, 32
        s_load_dwordx2 s[{SP}:{SP+1}], s[0:1], s{sT}
        s_mov_b32 s{SP+2}, {D*F*2}
        s_mov_b32 s{SP+3}, 0x20000
        s_lshr_b32 s{sT}, s2, 3
        s_mul_i32 s{sT}, s{sT}, {16*3584}
        s_and_b32 s{sT2}, s2, 3
        s_mul_i32 s{sT2}, s{sT2}, 896
        s_add_u32 s{sT}, s{sT}, s{sT2}
        v_bfe_u32 v10, v0, 3, 4
        v_mul_u32_u24 v10, 3584, v10
        v_and_b32 v11, 7, v0
        v_min_u32 v11, 6, v11
        v_lshl_add_u32 v10, v11, 7, v10
        s_waitcnt lgkmcnt(0)
        """)
        k.vop(f"buffer_load_dword v{DUM}, v10, s[{SP}:{SP+3}], s{sT} offen", "pf")
    for p in range(4):
        o_stage(p)
        if p == 0: ld_wo(0); ld_head(2)
        if p == 1: ld_wo(1); ld_head(3)
        if p == 2: ld_wo(2); ld_wo(3); ld_x()
        if p > 0:
            main_stage(p-1)
        if p == 3: wpf()
        norm_stage(p)
        w_reads(p)
    k.stamp(4)
    k.e("s_nop 1")
    main_stage(3)
    k.e(f"""
    v_lshrrev_b32 v7, 6, v0
    s_movk_i32 s{sT}, 12288
    v_add_u32 v6, {RED}, v1
    v_mad_u32_u24 v8, v7, s{sT}, v6
    """)
    for tp in range(1, 4):
        k.e(f"v_xor_b32 v{10+tp}, {tp}, v7")
        k.e(f"v_mad_u32_u24 v{10+tp}, v{10+tp}, s{sT}, v6")
    k.nop(4)
    for tp in range(1, 4):
        for a in range(4):
            k.e(f"ds_write_b128 v{10+tp}, {vr(ACC+16*tp+4*a,4)} offset:{(tp-1)*4096+a*1024}")
    k.e(f"""
    s_lshl_b32 s{sT}, s{sCB}, 1
    s_lshr_b32 s{sT2}, s{sW}, 1
    s_add_u32 s{sT}, s{sT}, s{sT2}
    s_mul_i32 s{sT2}, s{sT3}, 14
    s_add_u32 s{sT}, s{sT}, s{sT2}
    s_lshl_b32 s{sT2}, s{sT}, 8
    s_add_u32 s{sT2}, s{sT2}, {ST_OFF}
    s_lshl_b32 s{sT}, s{sT}, 11
    s_add_u32 s{sT}, s{sT}, {HF_OFF}
    """)
    k.wait_vm("x")
    XU = 80
    for i in range(8):
        k.e(f"v_lshlrev_b32 v{XU+2*i}, 16, v{XR+i}")
        k.e(f"v_and_b32 v{XU+2*i+1}, 0xffff0000, v{XR+i}")
    for i in range(0, 16, 2):
        k.e(f"v_pk_add_f32 {vr(ACC+i,2)}, {vr(ACC+i,2)}, {vr(XU+i,2)}")
    k.e("""
    v_mov_b32 v10, 0
    v_mov_b32 v11, 0
    s_waitcnt lgkmcnt(0)
    s_barrier
    """)
    k.stamp(5)
    for j in range(3):
        for a in range(4):
            k.e(f"ds_read_b128 {vr(16+16*j+4*a,4)}, v8 offset:{j*4096+a*1024}")
    for j in range(3):
        k.e(f"s_waitcnt lgkmcnt({8-4*j})")
        for i in range(0, 16, 2):
            k.e(f"v_pk_add_f32 {vr(ACC+i,2)}, {vr(ACC+i,2)}, {vr(16+16*j+i,2)}")
    HO = 96
    for i in range(8):
        k.e(f"v_cvt_pk_bf16_f32 v{HO+i}, v{ACC+2*i}, v{ACC+2*i+1}")
    k.e(f"""
    buffer_store_dwordx4 {vr(HO,4)}, v1, s[{SWS}:{SWS+3}], s{sT} offen {STF}
    buffer_store_dwordx4 {vr(HO+4,4)}, v1, s[{SWS}:{SWS+3}], s{sT} offen offset:1024 {STF}
    """)
    for i in range(8):
        k.e(f"v_dot2c_f32_bf16 v10, s{sONE}, v{HO+i}")
        k.e(f"v_dot2c_f32_bf16 v11, v{HO+i}, v{HO+i}")
    k.e(f"""
    v_and_b32 v6, 31, v0
    v_lshlrev_b32 v6, 3, v6
    s_nop 1
    v_mov_b32 v12, v10
    v_mov_b32 v13, v11
    s_nop 1
    v_permlane32_swap_b32 v10, v12
    v_permlane32_swap_b32 v11, v13
    s_nop 0
    v_add_f32 v10, v10, v12
    v_add_f32 v11, v11, v13
    s_mov_b32 exec_hi, 0
    buffer_store_dwordx2 v[10:11], v6, s[{SWS}:{SWS+3}], s{sT2} offen
    """)
    k.stamp(6)
    k.end(SWS, 1, 7)
    k.label(k.L('cs'))
    k.e(f"""
    s_cmp_ge_u32 s2, 252
    s_cbranch_scc1 {k.L('end')}
    s_load_dwordx4 s[16:19], s[0:1], 32
    v_lshrrev_b32 v5, 6, v0
    v_bfe_u32 v6, v0, 3, 3
    v_readfirstlane_b32 s{sW}, v5
    v_and_b32 v7, 7, v0
    v_mul_u32_u24 v1, 3584, v6
    v_lshl_add_u32 v1, v7, 4, v1
    s_sub_u32 s{sCB}, s2, 224
    s_and_b32 s{sT}, s{sW}, 1
    s_mul_i32 s{sT}, s{sT}, {224*3584}
    s_lshl_b32 s{sT2}, s{sCB}, 7
    s_add_u32 s{sT}, s{sT}, s{sT2}
    s_mov_b32 s{sEPS}, 0x3f80
    s_mov_b32 s{sONE}, 0x3f800000
    """)
    srd_consts(k, SW, D*F*2)
    srd_consts(k, SWS, WS_USED)
    k.e(f"""
    s_waitcnt lgkmcnt(0)
    s_cmp_ge_u32 s{sW}, 2
    s_cselect_b32 s{SW}, s18, s16
    s_cselect_b32 s{SW+1}, s19, s17
    """)
    for i in range(8):
        k.e(f"v_mov_b32 v{8+i}, 0")
    NL = 7
    def lds_(b):
        for u in range(NL):
            k.e(f"buffer_load_dwordx4 {vr(16+28*b+4*u,4)}, v1, s[{SW}:{SW+3}], s{sT} offen")
            k.e(f"s_add_u32 s{sT}, s{sT}, {8*3584}")
    def acc_(b, outstanding):
        for u in range(NL):
            k.e(f"s_waitcnt vmcnt({outstanding+NL-1-u})")
            for j in range(4):
                k.e(f"v_dot2c_f32_bf16 v{8+2*j}, s{sEPS}, v{16+28*b+4*u+j}")
                k.e(f"v_dot2c_f32_bf16 v{9+2*j}, s{sONE}, v{16+28*b+4*u+j}")
    lds_(0)
    k.e(f"s_mov_b32 s{sRB}, 0")
    k.label(k.L('csl'))
    lds_(1)
    acc_(0, NL)
    k.e(f"s_cmp_eq_u32 s{sRB}, 1\ns_cbranch_scc1 {k.L('cs2')}")
    lds_(0)
    acc_(1, NL)
    k.e(f"s_mov_b32 s{sRB}, 1\ns_branch {k.L('csl')}")
    k.label(k.L('cs2'))
    acc_(1, 0)
    k.e(f"""
    v_lshlrev_b32 v2, 5, v0
    v_bfe_u32 v3, v0, 6, 1
    v_lshlrev_b32 v3, 12, v3
    v_and_b32 v4, 63, v0
    v_lshl_add_u32 v3, v4, 2, v3
    ds_write_b128 v2, v[8:11]
    ds_write_b128 v2, v[12:15] offset:16
    s_waitcnt lgkmcnt(0)
    s_barrier
    s_cmp_ge_u32 s{sW}, 2
    s_cbranch_scc1 {k.L('end')}
    """)
    for i in range(8):
        k.e(f"ds_read2st64_b32 {vr(16+2*i,2)}, v3 offset0:{2*i} offset1:{2*i+1}")
    k.e(f"""
    s_mul_i32 s{sT}, s{sW}, {1792*4}
    s_lshl_b32 s{sT2}, s{sCB}, 8
    s_add_u32 s{sT}, s{sT}, s{sT2}
    s_add_u32 s{sT}, s{sT}, {CS_OFF}
    v_lshlrev_b32 v4, 2, v4
    s_waitcnt lgkmcnt(0)
    """)
    for stp in (8, 4, 2, 1):
        for i in range(stp):
            k.e(f"v_add_f32 v{16+i}, v{16+i}, v{16+i+stp}")
    k.e(f"buffer_store_dword v16, v4, s[{SWS}:{SWS+3}], s{sT} offen")
    k.end(SWS, 1, 1)
    k.label(k.L('end'))
    k.e("s_endpgm")
    return k, dict(vgpr=256, sgpr=64, grid=256, block=256, lds=RED+49152)

def gen_c():
    k = K("kc")
    SG, SU, SWS, SP = 4, 8, 12, 32
    sW, sRB, sFB, sT, sT2, sRT, sWOFF, sH, sCG, sM6, sP1, sT3 = 20, 21, 22, 23, 24, 25, 26, 27, 28, 29, 30, 31
    DUM = 252
    k.stamp(0)
    k.e(f"""
    s_cmp_ge_u32 s2, 224
    s_cbranch_scc1 {k.L('end')}
    s_load_dwordx2 s[{SG}:{SG+1}], s[0:1], 32
    s_load_dwordx2 s[{SU}:{SU+1}], s[0:1], 40
    s_load_dwordx2 s[{SWS}:{SWS+1}], s[0:1], 72
    s_load_dwordx2 s[{SP}:{SP+1}], s[0:1], 48
    v_lshrrev_b32 v5, 6, v0
    v_and_b32 v1, 63, v0
    v_readfirstlane_b32 s{sW}, v5
    v_lshlrev_b32 v1, 4, v1
    v_lshrrev_b32 v6, 3, v0
    v_and_b32 v8, 7, v0
    v_bfe_u32 v7, v0, 4, 1
    v_lshlrev_b32 v7, 2, v7
    v_xor_b32 v7, v7, v8
    v_mul_u32_u24 v3, 3584, v6
    v_lshl_add_u32 v3, v7, 4, v3
    s_lshr_b32 s{sT2}, s2, 3
    """)
    div7(k, sRB, sFB, sT2)
    if ROT:
        k.e(f"s_lshl_b32 s{sT}, s{sRB}, 1\ns_add_u32 s{sT}, s{sT}, s{sFB}")
        div7(k, sT2, sCG, sT)
    else:
        k.e(f"s_mov_b32 s{sCG}, 0")
    k.e(f"""
    s_and_b32 s{sT2}, s2, 4
    s_add_u32 s{sRB}, s{sRB}, s{sT2}
    s_and_b32 s{sT2}, s2, 3
    s_mul_i32 s{sT2}, s{sT2}, 7
    s_add_u32 s{sFB}, s{sFB}, s{sT2}
    s_lshl_b32 s{sRT}, s{sRB}, 3
    s_add_u32 s{sRT}, s{sRT}, s{sW}
    s_lshl_b32 s{sWOFF}, s{sFB}, 7
    s_mul_i32 s{sT}, s{sCG}, {64*3584}
    s_add_u32 s{sWOFF}, s{sWOFF}, s{sT}
    s_mul_i32 s{sH}, s{sRT}, 28672
    s_lshl_b32 s{sT}, s{sCG}, 12
    s_add_u32 s{sH}, s{sH}, s{sT}
    s_add_u32 s{sH}, s{sH}, {HF_OFF}
    s_lshl_b32 m0, s{sW}, 11
    """)
    srd_consts(k, SG, D*F*2)
    srd_consts(k, SU, D*F*2+1024)
    srd_consts(k, SWS, WS_USED)
    k.e(f"""
    s_waitcnt lgkmcnt(0)
    s_sub_u32 s{SU}, s{SU}, 1024
    s_subb_u32 s{SU+1}, s{SU+1}, 0
    """)
    HFR, ACC, WF, STR, CSR = 16, 128, 192, 208, 224
    k.stamp(1)
    def chunk_loads(c):
        L = []
        def w0():
            if c > 0:
                k.e(f"""
                s_add_u32 m0, m0, 16384
                s_add_u32 s{sCG}, s{sCG}, 1
                s_cmp_eq_u32 s{sCG}, 7
                s_cselect_b32 s{sT3}, s{sM6}, s{sP1}
                s_add_u32 s{sWOFF}, s{sWOFF}, s{sT3}
                """)
            k.vop(f"buffer_load_dwordx4 v3, s[{SG}:{SG+3}], s{sWOFF} offen lds", f"w{c}")
        def w1():
            k.vop(f"buffer_load_dwordx4 v3, s[{SU}:{SU+3}], s{sWOFF} offen offset:1024 lds", f"w{c}")
        L += [w0, w1]
        for j in range(4):
            def hj(j=j):
                if j == 0 and c > 0:
                    k.e(f"""
                    s_cmp_eq_u32 s{sCG}, 7
                    s_cselect_b32 s{sT3}, {(-6*4096) & 0xffffffff}, s{sK4}
                    s_add_u32 s{sH}, s{sH}, s{sT3}
                    """)
                k.vop(f"buffer_load_dwordx4 {vr(HFR+16*c+4*j,4)}, v1, s[{SWS}:{SWS+3}], s{sH} offen offset:{j*1024}", f"h{c}")
            L.append(hj)
        return L
    sK4 = 19
    for f in chunk_loads(0): f()
    k.e(f"""
    s_mov_b32 s{sM6}, {(-6*64*3584) & 0xffffffff}
    s_mov_b32 s{sP1}, {64*3584}
    s_movk_i32 s{sK4}, 4096
    s_barrier
    """)
    for f in chunk_loads(1): f()
    srd_consts(k, SP, F*D*2)
    k.e(f"""
    v_bfe_u32 v9, v0, 5, 1
    v_and_b32 v6, 31, v0
    v_mul_u32_u24 v4, 1792, v9
    v_lshl_add_u32 v4, v6, 3, v4
    s_mul_i32 s{sT}, s{sRT}, 3584
    s_add_u32 s{sT}, s{sT}, {ST_OFF}
    v_bfe_u32 v7, v0, 2, 1
    v_bfe_u32 v8, v0, 3, 2
    v_lshlrev_b32 v7, 4, v7
    v_lshl_add_u32 v7, v8, 2, v7
    v_and_b32 v8, 3, v0
    v_add_lshl_u32 v2, v7, v8, 2
    s_lshl_b32 s{sT2}, s{sFB}, 8
    s_add_u32 s{sT2}, s{sT2}, {CS_OFF}
    s_add_u32 s{sRB}, s{sT2}, 7168
    v_min_u32 v14, 447, v0
    v_lshlrev_b32 v14, 7, v14
    s_lshr_b32 s18, s2, 3
    s_mul_i32 s18, s18, {448*128}
    """)
    stl = []
    for u in range(7):
        stl.append(lambda u=u: k.vop(f"buffer_load_dwordx2 {vr(STR+2*u,2)}, v4, s[{SWS}:{SWS+3}], s{sT} offen offset:{u*256}", "st"))
    for q in range(4):
        stl.append(lambda q=q: k.vop(f"buffer_load_dword v{CSR+q}, v2, s[{SWS}:{SWS+3}], s{sT2 if q < 2 else sRB} offen offset:{(q&1)*128}", "st"))
    AW0, AW1 = 10, 11
    k.e(f"""
    v_bfe_u32 v7, v0, 2, 2
    v_lshlrev_b32 v5, 12, v9
    v_lshl_add_u32 v5, v7, 7, v5
    v_lshrrev_b32 v7, 1, v7
    v_lshl_add_u32 v5, v7, 6, v5
    v_and_b32 v7, 1, v0
    v_lshl_add_u32 v5, v7, 5, v5
    v_bfe_u32 v7, v0, 4, 1
    v_lshl_add_u32 v5, v7, 4, v5
    v_bfe_u32 v7, v0, 1, 1
    v_lshl_add_u32 v{AW0}, v7, 3, v5
    v_xor_b32 v{AW1}, 64, v{AW0}
    v_add_u32 v12, 0x10000, v{AW0}
    v_add_u32 v13, 0x10000, v{AW1}
    """)
    KS = CKS
    units = [(kap, tau) for kap in range(KS) for tau in range(4)]
    units += [(kap, tau) for kap in range(KS, 28) for tau in (0, 2)] + [('x', 0), ('x', 2)]
    nA = len(units)
    units += [(kap, tau) for kap in range(KS, 28) for tau in (1, 3)] + [('x', 1), ('x', 3)]
    NU = len(units)
    DEP = 4
    T, XE, WE = 228, 232, 236
    C1, IR2 = STR+4, STR+2
    pend = []
    for c in range(2, 7):
        for i, f in enumerate(chunk_loads(c)):
            pend.append(((c-2)*CLP + 2*i, f))
    for i, f in enumerate(stl): pend.append((2*i+13, f))
    if WPF:
        pend.append((5*CLP+8, lambda: k.vop(f"buffer_load_dword v{DUM}, v14, s[{SP}:{SP+3}], s18 offen", "pf")))
    pend.sort(key=lambda x: x[0])
    kk = K("tmp")
    for u in range(1, 7):
        kk.e(f"v_add_f32 v{STR}, v{STR}, v{STR+2*u}")
        kk.e(f"v_add_f32 v{STR+1}, v{STR+1}, v{STR+2*u+1}")
    kk.e(f"""
    v_cmp_eq_u32 vcc, 0, v9
    v_mov_b32 v{STR+2}, v{STR}
    v_mov_b32 v{STR+3}, v{STR+1}
    v_cndmask_b32 v{CSR}, 0, v{CSR}, vcc
    v_cndmask_b32 v{CSR+1}, 0, v{CSR+1}, vcc
    v_permlane32_swap_b32 v{STR}, v{STR+2}
    v_permlane32_swap_b32 v{STR+1}, v{STR+3}
    v_cndmask_b32 v{CSR+2}, 0, v{CSR+2}, vcc
    v_cndmask_b32 v{CSR+3}, 0, v{CSR+3}, vcc
    v_add_f32 v{STR}, v{STR}, v{STR+2}
    v_add_f32 v{STR+1}, v{STR+1}, v{STR+3}
    v_mul_f32 v{STR}, 0x{INV_D|0x80000000:x}, v{STR}
    v_mul_f32 v{STR+1}, 0x{INV_D:x}, v{STR+1}
    v_fma_f32 v{STR+1}, -v{STR}, v{STR}, v{STR+1}
    v_max_f32 v{STR+1}, 0, v{STR+1}
    v_add_f32 v{STR+2}, 0x{EPS_LN:x}, v{STR+1}
    v_rsq_f32 v{STR+4}, v{STR+2}
    """)
    hilo_x(kk, XE, STR, T)
    kk.e(f"v_mov_b32 v{XE+2}, 0\nv_mov_b32 v{XE+3}, 0")
    kk.e(f"v_mul_f32 v{STR+4}, 0x{LOG2E|0x80000000:x}, v{STR+4}")
    for tau in range(4):
        hilo_w(kk, WE+4*tau, CSR+tau, T+1)
    kk.e(f"""
    v_bfe_u32 v7, v0, 4, 1
    v_mul_u32_u24 v4, 57344, v7
    v_lshl_add_u32 v4, v9, 9, v4
    v_and_b32 v7, 15, v0
    v_lshl_add_u32 v4, v7, 4, v4
    s_mul_i32 s{sT}, s{sRT}, 114688
    s_lshl_b32 s{sT2}, s{sFB}, 11
    s_add_u32 s{sT}, s{sT}, s{sT2}
    s_add_u32 s{sT}, s{sT}, {ACT_OFF}
    """)
    side1 = [l.strip() for l in kk.lines]
    def epi(ct, packed):
        kk = K("tmp")
        O = 16 + 8*ct
        g, u = ACC+16*ct, ACC+32+16*ct
        for i in range(0, 16, 2):
            t = 32 + (i % 8)
            if packed:
                kk.e(f"v_pk_mul_f32 {vr(t,2)}, {vr(g+i,2)}, {vr(C1,2)} op_sel_hi:[1,0]")
                kk.e(f"v_pk_mul_f32 {vr(g+i,2)}, {vr(g+i,2)}, {vr(u+i,2)}")
                kk.e(f"v_exp_f32 v{t}, v{t}")
                kk.e(f"v_exp_f32 v{t+1}, v{t+1}")
                kk.e("s_nop 0")
                kk.e(f"v_pk_fma_f32 {vr(t,2)}, {vr(t,2)}, {vr(IR2,2)}, {vr(IR2,2)} op_sel_hi:[1,0,0]")
                kk.e(f"v_rcp_f32 v{t}, v{t}")
                kk.e(f"v_rcp_f32 v{t+1}, v{t+1}")
                kk.e("s_nop 0")
                kk.e(f"v_pk_mul_f32 {vr(g+i,2)}, {vr(g+i,2)}, {vr(t,2)}")
            else:
                kk.e(f"v_mul_f32 v{t}, v{g+i}, v{C1}")
                kk.e(f"v_mul_f32 v{t+1}, v{g+i+1}, v{C1}")
                kk.e(f"v_exp_f32 v{t}, v{t}")
                kk.e(f"v_mul_f32 v{g+i}, v{g+i}, v{u+i}")
                kk.e(f"v_exp_f32 v{t+1}, v{t+1}")
                kk.e(f"v_mul_f32 v{g+i+1}, v{g+i+1}, v{u+i+1}")
                kk.e(f"v_fma_f32 v{t}, v{t}, v{IR2}, v{IR2}")
                kk.e(f"v_fma_f32 v{t+1}, v{t+1}, v{IR2}, v{IR2}")
                kk.e(f"v_rcp_f32 v{t}, v{t}")
                kk.e(f"v_rcp_f32 v{t+1}, v{t+1}")
                kk.e(f"v_mul_f32 v{g+i}, v{g+i}, v{t}")
                kk.e(f"v_mul_f32 v{g+i+1}, v{g+i+1}, v{t+1}")
            kk.e(f"v_cvt_pk_bf16_f32 v{O+i//2}, v{g+i}, v{g+i+1}")
            if i % 8 == 6:
                f = i // 8
                kk.e(f"buffer_store_dwordx4 {vr(O+4*f,4)}, v4, s[{SWS}:{SWS+3}], s{sT} offen offset:{ct*1024+f*256} {STF}")
        return [l.strip() for l in kk.lines]
    side2 = epi(0, False)
    s1_start = nA - 2 - (len(side1)+3)//4 - 1
    s2_start = nA + 3
    gated = {0}
    hw = set()
    def rd(u):
        kap, tau = units[u]
        if kap == 'x': return
        c = kap >> 2
        if c not in gated:
            gated.add(c)
            k.wait_vm(f"w{c}")
            k.e("s_barrier")
            if c == 3: k.stamp(3)
            if c == 6: k.stamp(4)
        cc, tl, f = kap >> 2, (kap >> 1) & 1, kap & 1
        m, ct = tau >> 1, tau & 1
        o = cc*16384 + tl*8192 + f*2048 + m*1024
        a = AW0 + ct
        if o >= 0x10000: o -= 0x10000; a += 2
        for ri in range(2):
            k.e(f"ds_read_b64_tr_b16 {vr(WF+4*(u%DEP)+2*ri,2)}, v{a} offset:{o+ri*512}")
    k.wait_vm("w0")
    k.e("s_barrier")
    k.stamp(2)
    for u in range(DEP): rd(u)
    started = set()
    for u in range(NU):
        kap, tau = units[u]
        a = ACC+16*tau
        if kap == 'x':
            assert not side1
            k.e(f"v_mfma_f32_32x32x16_bf16 {vr(a,16)}, {vr(WE+4*tau,4)}, {vr(XE,4)}, {vr(a,16)}")
        else:
            if (kap >> 2) not in hw:
                hw.add(kap >> 2)
                k.wait_vm(f"h{kap>>2}")
            nout = sum(1 for v in range(u+1, min(u+DEP, NU)) if units[v][0] != 'x')
            k.e(f"s_waitcnt lgkmcnt({2*nout})")
            k.e(f"v_mfma_f32_32x32x16_bf16 {vr(a,16)}, {vr(WF+4*(u%DEP),4)}, {vr(HFR+4*kap,4)}, {'0' if tau not in started else vr(a,16)}")
            started.add(tau)
        if u+DEP < NU: rd(u+DEP)
        while pend and pend[0][0] <= u:
            pend.pop(0)[1]()
        if u >= s1_start and side1:
            if u == s1_start: k.wait_vm("st")
            for _ in range(4):
                if side1: k.e(side1.pop(0))
        if u >= s2_start and side2:
            for _ in range(5 if len(side2) > 4*(NU-u) else 4):
                if side2: k.e(side2.pop(0))
    k.stamp(5)
    for l in side2: k.e(l)
    k.nop(max(0, 12-len(side2)))
    for l in epi(1, True): k.e(l)
    k.stamp(6)
    k.end(SWS, 2, 7)
    k.label(k.L('end'))
    k.e("s_endpgm")
    return k, dict(vgpr=256, sgpr=64, grid=256, block=512, lds=114688)

def gen_d():
    k = K("kd")
    SW, SO, SWS = 4, 8, 12
    sW, sRB, sCB, sT, sT2, sWOFF, sA, sKH, sCG, sM, sP, sT3 = 20, 21, 22, 23, 24, 25, 26, 27, 28, 29, 30, 31
    NSLOT = 8
    RED = 8*16384
    k.stamp(0)
    k.e(f"""
    s_cmp_ge_u32 s2, 224
    s_cbranch_scc1 {k.L('end')}
    s_load_dwordx2 s[{SW}:{SW+1}], s[0:1], 48
    s_load_dwordx2 s[{SO}:{SO+1}], s[0:1], 56
    s_load_dwordx2 s[{SWS}:{SWS+1}], s[0:1], 72
    v_lshrrev_b32 v5, 6, v0
    v_and_b32 v1, 63, v0
    v_readfirstlane_b32 s{sW}, v5
    v_lshlrev_b32 v1, 4, v1
    v_lshrrev_b32 v6, 3, v0
    v_and_b32 v8, 7, v0
    v_bfe_u32 v7, v0, 4, 1
    v_bfe_u32 v9, v0, 6, 1
    v_lshl_add_u32 v7, v9, 1, v7
    v_lshlrev_b32 v7, 1, v7
    v_xor_b32 v7, v7, v8
    v_mul_u32_u24 v2, 896, v6
    v_lshl_add_u32 v2, v7, 4, v2
    v_add_u32 v3, {896*896-1024}, v2
    s_lshr_b32 s{sT2}, s2, 3
    """)
    div7(k, sRB, sCB, sT2)
    if ROT:
        k.e(f"""
        s_mul_i32 s{sT}, s{sRB}, 7
        s_lshr_b32 s{sT}, s{sT}, 1
        s_lshl_b32 s{sCG}, s{sCB}, 1
        s_add_u32 s{sCG}, s{sCG}, s{sT}
        s_cmp_ge_u32 s{sCG}, 14
        s_cselect_b32 s{sT}, 14, 0
        s_sub_u32 s{sCG}, s{sCG}, s{sT}
        """)
    else:
        k.e(f"s_mov_b32 s{sCG}, 0")
    k.e(f"""
    s_and_b32 s{sT}, s2, 7
    s_lshl_b32 s{sT}, s{sT}, 2
    s_add_u32 s{sRB}, s{sRB}, s{sT}
    s_lshl_b32 s{sWOFF}, s{sCB}, 7
    s_mul_i32 s{sT}, s{sCG}, {64*896}
    s_add_u32 s{sWOFF}, s{sWOFF}, s{sT}
    s_lshr_b32 s{sKH}, s{sW}, 2
    s_lshl_b32 s{sT}, s{sRB}, 2
    s_and_b32 s{sT2}, s{sW}, 3
    s_add_u32 s{sT}, s{sT}, s{sT2}
    s_lshl_b32 s{sT}, s{sT}, 1
    s_add_u32 s{sT}, s{sT}, s{sKH}
    s_mul_i32 s{sA}, s{sT}, 28672
    s_lshl_b32 s{sT}, s{sCG}, 11
    s_add_u32 s{sA}, s{sA}, s{sT}
    s_add_u32 s{sA}, s{sA}, {ACT_OFF}
    s_lshl_b32 m0, s{sW}, 11
    s_mov_b32 s{sM}, {(-13*64*896) & 0xffffffff}
    s_mov_b32 s{sP}, {64*896}
    s_movk_i32 s19, 2048
    """)
    srd_consts(k, SW, F*D*2)
    srd_consts(k, SO, S*D*2)
    srd_consts(k, SWS, WS_USED)
    k.e("s_waitcnt lgkmcnt(0)")
    AF, ACC, WF, HR = 16, 128, 144, 176
    k.stamp(1)
    def issue_stage(j):
        k.vop(f"buffer_load_dwordx4 v2, s[{SW}:{SW+3}], s{sWOFF} offen lds", f"w{j}")
        k.vop(f"buffer_load_dwordx4 v3, s[{SW}:{SW+3}], s{sWOFF} offen offset:1024 lds", f"w{j}")
        for ks in range(2):
            k.vop(f"buffer_load_dwordx4 {vr(AF+8*j+4*ks,4)}, v1, s[{SWS}:{SWS+3}], s{sA} offen offset:{ks*1024}", f"a{j}")
        if j < 13:
            if (j+1) % NSLOT: k.e("s_add_u32 m0, m0, 16384")
            else: k.e(f"s_lshl_b32 m0, s{sW}, 11")
            k.e(f"""
            s_add_u32 s{sCG}, s{sCG}, 1
            s_cmp_eq_u32 s{sCG}, 14
            s_cselect_b32 s{sT3}, s{sM}, s{sP}
            s_add_u32 s{sWOFF}, s{sWOFF}, s{sT3}
            s_cmp_eq_u32 s{sCG}, 14
            s_cselect_b32 s{sT3}, {(-13*2048) & 0xffffffff}, s19
            s_add_u32 s{sA}, s{sA}, s{sT3}
            """)
    for j in range(DDEP):
        issue_stage(j)
        if j < DDEP-1: k.e("s_barrier")
    AW = 8
    k.e(f"""
    v_bfe_u32 v5, v0, 4, 2
    v_lshlrev_b32 v6, 11, v5
    v_bfe_u32 v7, v0, 8, 1
    v_lshl_add_u32 v6, v7, 10, v6
    v_xor_b32 v5, v5, v7
    v_and_b32 v5, 1, v5
    v_bfe_u32 v7, v0, 2, 2
    v_lshl_add_u32 v6, v7, 7, v6
    v_lshrrev_b32 v7, 1, v7
    v_lshl_add_u32 v5, v5, 1, v7
    v_lshl_add_u32 v6, v5, 5, v6
    v_and_b32 v7, 3, v0
    v_lshl_add_u32 v{AW}, v7, 3, v6
    v_xor_b32 v{AW+1}, 32, v{AW}
    v_xor_b32 v{AW+2}, 64, v{AW}
    v_xor_b32 v{AW+3}, 96, v{AW}
    v_add_u32 v{AW+4}, 0x10000, v{AW}
    v_add_u32 v{AW+5}, 0x10000, v{AW+1}
    v_add_u32 v{AW+6}, 0x10000, v{AW+2}
    v_add_u32 v{AW+7}, 0x10000, v{AW+3}
    """)
    def reads(u):
        t, tt = u >> 2, u & 3
        j, ks = t >> 1, t & 1
        o = (j % NSLOT)*16384 + ks*8192
        a = AW+tt
        if o >= 0x10000: o -= 0x10000; a += 4
        b = WF + 4*(u & 7)
        for ri in range(2):
            k.e(f"ds_read_b64_tr_b16 {vr(b+2*ri,2)}, v{a} offset:{o+ri*512}")
    def stage_gate(j):
        k.wait_vm(f"w{j}")
        k.e("s_barrier")
        if j == 0: k.stamp(2)
        if j == 7: k.stamp(3)
        if j == 13: k.stamp(4)
    def late(js):
        if js < 14:
            issue_stage(js)
            if js == 13:
                k.e(f"""
                v_bfe_u32 v5, v0, 5, 1
                v_lshlrev_b32 v5, 10, v5
                v_and_b32 v6, 15, v0
                v_lshl_add_u32 v5, v6, 4, v5
                v_bfe_u32 v7, v0, 4, 1
                v_lshl_add_u32 v5, v7, 3, v5
                s_lshl_b32 s{sT}, s{sRB}, 1
                s_bfe_u32 s{sT2}, s{sW}, 0x10001
                s_add_u32 s{sT}, s{sT}, s{sT2}
                s_mul_i32 s{sT}, s{sT}, 14
                s_lshl_b32 s{sT2}, s{sCB}, 1
                s_add_u32 s{sT}, s{sT}, s{sT2}
                s_add_u32 s{sT}, s{sT}, s{sKH}
                s_lshl_b32 s{sT}, s{sT}, 11
                s_and_b32 s{sT2}, s{sW}, 1
                s_lshl_b32 s{sT2}, s{sT2}, 8
                s_add_u32 s{sT}, s{sT}, s{sT2}
                s_add_u32 s{sT}, s{sT}, {HF_OFF}
                """)
                k.vop(f"buffer_load_dwordx2 {vr(HR,2)}, v5, s[{SWS}:{SWS+3}], s{sT} offen", "h")
                k.vop(f"buffer_load_dwordx2 {vr(HR+2,2)}, v5, s[{SWS}:{SWS+3}], s{sT} offen offset:512", "h")
                k.e(f"""
                v_lshrrev_b32 v5, 6, v0
                v_lshl_add_u32 v6, v5, 11, v1
                v_add_u32 v6, {RED}, v6
                v_xor_b32 v7, 0x2000, v6
                v_and_b32 v5, 15, v0
                v_mul_u32_u24 v4, 896, v5
                v_bfe_u32 v5, v0, 4, 2
                v_lshl_add_u32 v4, v5, 3, v4
                s_lshl_b32 s{sT}, s{sRB}, 2
                s_and_b32 s{sT2}, s{sW}, 3
                s_add_u32 s{sT}, s{sT}, s{sT2}
                s_mul_i32 s{sT}, s{sT}, {16*896}
                s_lshl_b32 s{sT2}, s{sCB}, 7
                s_add_u32 s{sT}, s{sT}, s{sT2}
                s_lshl_b32 s{sT2}, s{sKH}, 6
                s_add_u32 s{sT}, s{sT}, s{sT2}
                """)
    DEP = 6
    NU = 112
    stage_gate(0)
    for u in range(DEP): reads(u)
    for u in range(NU):
        t, tt = u >> 2, u & 3
        if u+DEP < NU:
            if (u+DEP) % 8 == 0:
                late((u+DEP)//8 - 1 + DDEP)
                stage_gate((u+DEP)//8)
            reads(u+DEP)
        if u % 8 == 0:
            k.wait_vm(f"a{u//8}")
        k.e(f"s_waitcnt lgkmcnt({2*min(DEP, NU-1-u)})")
        a = ACC+4*tt
        k.e(f"v_mfma_f32_16x16x32_bf16 {vr(a,4)}, {vr(WF+4*(u&7),4)}, {vr(AF+4*t,4)}, {'0' if t == 0 else vr(a,4)}")
    k.stamp(5)
    k.wait_vm("h")
    for i in range(4):
        k.e(f"v_lshlrev_b32 v{16+2*i}, 16, v{HR+i}")
        k.e(f"v_and_b32 v{17+2*i}, 0xffff0000, v{HR+i}")
    k.e(f"""
    ds_write_b128 v7, {vr(ACC+8,4)}
    ds_write_b128 v7, {vr(ACC+12,4)} offset:1024
    """)
    for i in range(0, 8, 2):
        k.e(f"v_pk_add_f32 {vr(ACC+i,2)}, {vr(ACC+i,2)}, {vr(16+i,2)}")
    k.e(f"""
    s_waitcnt lgkmcnt(0)
    s_barrier
    ds_read_b128 v[24:27], v6
    ds_read_b128 v[28:31], v6 offset:1024
    s_waitcnt lgkmcnt(0)
    """)
    for i in range(0, 8, 2):
        k.e(f"v_pk_add_f32 {vr(ACC+i,2)}, {vr(ACC+i,2)}, {vr(24+i,2)}")
    for i in range(4):
        k.e(f"v_cvt_pk_bf16_f32 v{32+i}, v{ACC+2*i}, v{ACC+2*i+1}")
    k.e(f"""
    buffer_store_dwordx2 v[32:33], v4, s[{SO}:{SO+3}], s{sT} offen
    buffer_store_dwordx2 v[34:35], v4, s[{SO}:{SO+3}], s{sT} offen offset:32
    """)
    k.stamp(6)
    k.end(SWS, 3, 7)
    k.label(k.L('end'))
    k.e("s_endpgm")
    return k, dict(vgpr=184, sgpr=64, grid=256, block=512, lds=RED+16384)

HEADER = open("sequential_preLN__linear_attn_block__swiglu_ffn__prompt.s.ref").read().split("; Override launch geometry")[0]

def build(kernels):
    out = [HEADER.rstrip()]
    for k, m in kernels:
        out.append(f"; @launch kernel={k.name}_kernel grid=({m['grid']},1,1) block=({m['block']},1,1) lds={m['lds']}")
    out.append('.amdgcn_target "amdgcn-amd-amdhsa--gfx950"')
    out.append(".text")
    for k, m in kernels:
        n = f"{k.name}_kernel"
        out += [f".globl {n}", ".p2align 8", f".type {n},@function", f"{n}:"]
        out += k.lines
    out.append("Lcode_end:")
    out.append('.section .rodata,"a"')
    for k, m in kernels:
        n = f"{k.name}_kernel"
        acc = (min(m['vgpr'], 256)+3)//4*4
        out += [".p2align 6", f".amdhsa_kernel {n}",
                f"  .amdhsa_next_free_vgpr {m['vgpr']}",
                f"  .amdhsa_next_free_sgpr {m['sgpr']}",
                f"  .amdhsa_accum_offset {m.get('accum', acc)}",
                "  .amdhsa_group_segment_fixed_size 0",
                "  .amdhsa_kernarg_size 80",
                "  .amdhsa_user_sgpr_count 2",
                "  .amdhsa_user_sgpr_kernarg_segment_ptr 1",
                "  .amdhsa_system_sgpr_workgroup_id_x 1",
                ".end_amdhsa_kernel"]
    return "\n".join(out) + "\n"

if __name__ == "__main__":
    ks = [gen_a(), gen_b(), gen_c(), gen_d()]
    open(sys.argv[1] if len(sys.argv) > 1 else "sequential_preLN__linear_attn_block__swiglu_ffn__prompt.s", "w").write(build(ks))
```

```python
import sys, os
sys.path.insert(0, "dev")
os.environ.setdefault('STF', 'sc1')
os.environ['ZFL'] = '1'
import gen3
from gen3 import *

HPACE = env('HPACE', 8)
APRE = env('APRE', 4)
WSZ = (STAMP_OFF + 8*65536*2) if STAMPS else WS_USED

def flush(k, sws, kid, n, tv):
    if not STAMPS: return
    k.e("s_waitcnt lgkmcnt(0)")
    k.e("s_mov_b64 exec, 1")
    for i in range(8):
        k.e(f"v_mov_b32 v{tv+i}, s{40+2*i}" if i < n else f"v_mov_b32 v{tv+i}, 0")
    k.e(f"""
    v_lshrrev_b32 v{tv+8}, 6, v0
    v_lshlrev_b32 v{tv+8}, 5, v{tv+8}
    s_lshl_b32 s38, s2, 8
    s_add_u32 s38, s38, {STAMP_OFF + kid*65536*2}
    buffer_store_dwordx4 {vr(tv,4)}, v{tv+8}, s[{sws}:{sws+3}], s38 offen
    buffer_store_dwordx4 {vr(tv+4,4)}, v{tv+8}, s[{sws}:{sws+3}], s38 offen offset:16
    s_mov_b64 exec, -1
    """)

PSLEEP = env('PSLEEP', 1)
def poll(k, name, soff, target, va, vt, sws, scnt, sW, pw):
    k.e(f"""
    s_cmp_lg_u32 s{sW}, {pw}
    s_cbranch_scc1 {k.L(name+'ok')}
    s_mov_b32 s{scnt}, 0x200000
    v_mov_b32 v{va}, 0
    """)
    k.label(k.L(name))
    k.e(f"""
    buffer_load_dword v{vt}, v{va}, s[{sws}:{sws+3}], s{soff} offen sc1
    s_waitcnt vmcnt(0)
    v_cmp_gt_u32 vcc, {target}, v{vt}
    s_cbranch_vccz {k.L(name+'ok')}
    s_sleep {PSLEEP}
    s_sub_u32 s{scnt}, s{scnt}, 1
    s_cbranch_scc0 {k.L(name)}
    """)
    k.label(k.L(name+'ok'))
    k.e("s_waitcnt vmcnt(0)\ns_barrier")
    k.vm = []

def signal(k, name, soff, n, stride_log2, va, vt, sws, sW):
    k.e(f"""
    s_cmp_lg_u32 s{sW}, 0
    s_cbranch_scc1 {k.L(name)}
    v_lshlrev_b32 v{va}, {stride_log2}, v0
    v_mov_b32 v{vt}, 1
    s_mov_b64 exec, {(1 << n) - 1}
    buffer_atomic_add v{vt}, v{va}, s[{sws}:{sws+3}], s{soff} offen sc1
    s_mov_b64 exec, -1
    """)
    k.label(k.L(name))

def gen_f():
    k = K("kf")
    SX, SW, SWS, SG, SU, SD, SO = 4, 8, 12, 56, 60, 64, 68
    sW, sRB, sCB, sT, sT2, sT3, sEPS, sONE, sKV, sPQ0, sWO, sROT, sLN2 = 20, 21, 22, 23, 24, 25, 26, 27, 28, 29, 30, 31, 19
    sFB, sRT, sCG, sWOFF, sH, sQ, sDCG, sDW, sA, sKH, sCNT = 16, 17, 18, 32, 33, 34, 35, 36, 37, 39, 72
    BB = 98304
    k.stamp(0)
    k.e(f"""
    s_cmp_ge_u32 s2, 256
    s_cbranch_scc1 {k.L('end')}
    s_load_dwordx2 s[{SWS}:{SWS+1}], s[0:1], 72
    s_load_dwordx2 s[{SG}:{SG+1}], s[0:1], 32
    s_load_dwordx2 s[{SU}:{SU+1}], s[0:1], 40
    s_cmp_ge_u32 s2, 224
    s_cbranch_scc1 {k.L('cs')}
    s_load_dwordx2 s[{SX}:{SX+1}], s[0:1], 0
    s_load_dwordx2 s[{SW}:{SW+1}], s[0:1], 16
    s_load_dwordx2 s[{SD}:{SD+1}], s[0:1], 48
    s_load_dwordx2 s[{SO}:{SO+1}], s[0:1], 56
    v_lshrrev_b32 v5, 6, v0
    v_and_b32 v1, 63, v0
    v_readfirstlane_b32 s{sW}, v5
    v_lshlrev_b32 v1, 4, v1
    v_bfe_u32 v9, v0, 5, 1
    s_lshr_b32 s{sT2}, s2, 3
    """)
    div7(k, sQ, sCB, sT2)
    k.e(f"""
    s_and_b32 s{sT}, s2, 7
    s_lshl_b32 s{sT}, s{sT}, 2
    s_add_u32 s{sRB}, s{sQ}, s{sT}
    s_lshl_b32 s{sWO}, s{sCB}, 7
    """)
    srd_consts(k, SWS, WSZ)
    k.e(f"""
    s_cmp_ge_u32 s{sW}, 4
    s_cbranch_scc1 {k.L('ld')}
    """)
    k.e(f"""
    v_bfe_u32 v6, v0, 3, 2
    v_and_b32 v7, 3, v0
    v_lshl_add_u32 v6, v6, 2, v7
    v_bfe_u32 v7, v0, 2, 1
    v_mad_u32_u24 v7, v7, 14, v6
    v_cmp_gt_u32 vcc, 14, v6
    v_bfe_u32 v6, v0, 3, 3
    v_and_b32 v8, 7, v0
    v_cndmask_b32 v7, 28, v7, vcc
    v_lshlrev_b32 v2, 4, v7
    v_lshl_add_u32 v2, v9, 11, v2
    v_bfe_u32 v7, v0, 4, 1
    v_lshlrev_b32 v7, 2, v7
    v_xor_b32 v7, v7, v8
    v_mul_u32_u24 v3, 896, v6
    v_lshl_add_u32 v3, v7, 4, v3
    s_add_u32 s{sROT}, s{sQ}, s{sCB}
    s_and_b32 s{sROT}, s{sROT}, 3
    s_lshl_b32 s{sT}, s{sW}, 2
    s_add_u32 s{sROT}, s{sROT}, s{sT}
    s_and_b32 s{sT}, s{sW}, 1
    s_lshl_b32 s{sT2}, s{sRB}, 1
    s_add_u32 s{sT3}, s{sT2}, s{sT}
    s_lshl_b32 s{sPQ0}, s{sT3}, 15
    s_add_u32 s{sPQ0}, s{sPQ0}, {PQ_OFF}
    s_lshl_b32 s{sT}, s{sW}, 14
    s_add_u32 m0, s{sT}, {BB}
    """)
    srd_consts(k, SX, S*D*2)
    srd_consts(k, SW, D*D*2)
    k.e(f"""
    s_mov_b32 s{sEPS}, 0x{EPS_PHI:x}
    s_mov_b32 s{sONE}, 0x{ONES_BF:x}
    s_mov_b32 s{sLN2}, 0x{LN2:x}
    s_waitcnt lgkmcnt(0)
    """)
    k.stamp(1)
    KVF, PQR, ACC, OA, XR = 16, 80, 144, 208, 248
    def ld_head(p):
        k.e(f"""
        s_xor_b32 s{sT}, s{sROT}, {p}
        s_lshl_b32 s{sKV}, s{sT}, 12
        s_lshl_b32 s{sT}, s{sT}, 11
        s_add_u32 s{sT}, s{sT}, s{sPQ0}
        s_xor_b32 s{sT2}, s{sT}, 0x8000
        """)
        for q in range(4):
            k.vop(f"buffer_load_dwordx4 {vr(KVF+16*p+4*q,4)}, v2, s[{SWS}:{SWS+3}], s{sKV} offen offset:{q*512}", f"kv{p}")
        for rt in range(2):
            for f in range(2):
                k.vop(f"buffer_load_dwordx4 {vr(PQR+16*p+8*rt+4*f,4)}, v1, s[{SWS}:{SWS+3}], s{sT if rt == 0 else sT2} offen offset:{f*1024}", f"pq{p}")
    def ld_wo(p):
        k.e(f"""
        s_xor_b32 s{sT}, s{sROT}, {p}
        s_mul_i32 s{sT}, s{sT}, {28*896}
        s_add_u32 s{sT}, s{sT}, s{sWO}
        """)
        for u in range(4):
            k.vop(f"buffer_load_dwordx4 v3, s[{SW}:{SW+3}], s{sT} offen offset:{u*1024} lds", f"wo{p}")
            if u < 3: k.e(f"s_add_u32 s{sT}, s{sT}, {7168-1024}")
        k.e("s_add_u32 m0, m0, 4096")
    ld_head(0); ld_head(1)
    def ld_x():
        k.e(f"""
        v_and_b32 v6, 31, v0
        v_mul_u32_u24 v4, 896, v6
        v_lshl_add_u32 v4, v9, 5, v4
        s_mul_i32 s{sT}, s{sT3}, {32*896}
        s_add_u32 s{sT}, s{sT}, s{sWO}
        s_lshr_b32 s{sT2}, s{sW}, 1
        s_lshl_b32 s{sT2}, s{sT2}, 6
        s_add_u32 s{sT}, s{sT}, s{sT2}
        """)
        k.vop(f"buffer_load_dwordx4 {vr(XR,4)}, v4, s[{SX}:{SX+3}], s{sT} offen", "x")
        k.vop(f"buffer_load_dwordx4 {vr(XR+4,4)}, v4, s[{SX}:{SX+3}], s{sT} offen offset:16", "x")
    AW0, AW1 = 14, 15
    k.e(f"""
    v_bfe_u32 v7, v0, 2, 2
    v_mad_u32_u24 v5, v9, 14, v7
    v_lshlrev_b32 v5, 7, v5
    v_lshrrev_b32 v7, 1, v7
    v_xor_b32 v7, v7, v9
    v_bfe_u32 v8, v0, 7, 1
    v_xor_b32 v7, v7, v8
    v_lshl_add_u32 v5, v7, 6, v5
    v_and_b32 v7, 1, v0
    v_lshl_add_u32 v5, v7, 5, v5
    v_bfe_u32 v7, v0, 4, 1
    v_lshl_add_u32 v5, v7, 4, v5
    v_bfe_u32 v7, v0, 1, 1
    v_lshl_add_u32 v5, v7, 3, v5
    v_lshrrev_b32 v7, 6, v0
    v_lshl_add_u32 v5, v7, 14, v5
    v_add_u32 v{AW0}, {BB}, v5
    v_xor_b32 v{AW1}, 64, v{AW0}
    """)
    def o_stage(p):
        k.wait_vm(f"kv{p}")
        if p == 0: k.stamp(2)
        if p == 3: k.stamp(3)
        b = KVF+16*p
        for i in range(8):
            k.e(f"v_cvt_pk_bf16_f32 v{b+i}, v{b+2*i}, v{b+2*i+1}")
        k.wait_vm(f"pq{p}")
        k.e("s_nop 0")
        for rt in range(2):
            for f in range(2):
                k.e(f"v_mfma_f32_32x32x16_bf16 {vr(OA+16*rt,16)}, {vr(b+4*f,4)}, {vr(PQR+16*p+8*rt+4*f,4)}, {'0' if f == 0 else vr(OA+16*rt,16)}")
    def norm_stage(p):
        for rt in range(2):
            o = OA+16*rt
            d = PQR+16*p+8*rt
            k.e(f"v_add_f32 v{o+14}, s{sEPS}, v{o+14}")
            k.e(f"v_rcp_f32 v{o+14}, v{o+14}")
            k.e(f"v_mov_b32 v{d+7}, 0")
            k.e(f"v_mul_f32 v{o+14}, s{sLN2}, v{o+14}")
            for i in range(0, 14, 2):
                k.e(f"v_pk_mul_f32 {vr(o+i,2)}, {vr(o+i,2)}, {vr(o+14,2)} op_sel_hi:[1,0]")
            for i in range(0, 14, 2):
                k.e(f"v_cvt_pk_bf16_f32 v{d+i//2}, v{o+i}, v{o+i+1}")
    def w_reads(p):
        k.wait_vm(f"wo{p}")
        for f in range(2):
            for ct in range(2):
                for ri in range(2):
                    k.e(f"ds_read_b64_tr_b16 {vr(KVF+16*p+8*f+4*ct+2*ri,2)}, v{AW0 if ct == 0 else AW1} offset:{(32*p+8*f+4*ri)*128}")
    def main_stage(p):
        for f in range(2):
            for ct in range(2):
                k.e(f"s_waitcnt lgkmcnt({6-4*f-2*ct})")
                for rt in range(2):
                    a = ACC+16*(2*ct+rt)
                    first = (p == 0 and f == 0)
                    k.e(f"v_mfma_f32_32x32x16_bf16 {vr(a,16)}, {vr(KVF+16*p+8*f+4*ct,4)}, {vr(PQR+16*p+8*rt+4*f,4)}, {'0' if first else vr(a,16)}")
    for p in range(4):
        o_stage(p)
        if p == 0: ld_wo(0); ld_head(2)
        if p == 1: ld_wo(1); ld_head(3)
        if p == 2:
            ld_wo(2); ld_wo(3); ld_x()
            k.e("s_barrier")
        if p > 0:
            main_stage(p-1)
        norm_stage(p)
        w_reads(p)
    k.stamp(4)
    k.e("s_nop 1")
    main_stage(3)
    k.e(f"""
    v_lshrrev_b32 v7, 6, v0
    v_add_u32 v6, {BB}, v1
    v_lshl_add_u32 v8, v7, 14, v6
    """)
    for tp in range(1, 4):
        k.e(f"v_xor_b32 v{10+tp}, {tp}, v7")
        k.e(f"v_lshl_add_u32 v{10+tp}, v{10+tp}, 14, v6")
    k.e(f"""
    s_lshl_b32 s{sT}, s{sCB}, 1
    s_lshr_b32 s{sT2}, s{sW}, 1
    s_add_u32 s{sKV}, s{sT}, s{sT2}
    s_mul_i32 s{sT2}, s{sT3}, 14
    s_add_u32 s{sT}, s{sKV}, s{sT2}
    s_lshl_b32 s{sT2}, s{sT}, 8
    s_add_u32 s{sT2}, s{sT2}, {ST_OFF}
    s_lshl_b32 s{sT}, s{sT}, 11
    s_add_u32 s{sT}, s{sT}, {HF_OFF}
    """)
    for tp in range(1, 4):
        for a in range(4):
            k.e(f"ds_write_b128 v8, {vr(ACC+16*tp+4*a,4)} offset:{(tp-1)*4096+a*1024}")
    k.wait_vm("x")
    XU = 80
    for i in range(8):
        k.e(f"v_lshlrev_b32 v{XU+2*i}, 16, v{XR+i}")
        k.e(f"v_and_b32 v{XU+2*i+1}, 0xffff0000, v{XR+i}")
    for i in range(0, 16, 2):
        k.e(f"v_pk_add_f32 {vr(ACC+i,2)}, {vr(ACC+i,2)}, {vr(XU+i,2)}")
    k.e("""
    v_mov_b32 v4, 0
    v_mov_b32 v5, 0
    s_waitcnt lgkmcnt(0)
    s_barrier
    """)
    k.stamp(5)
    for tp in range(1, 4):
        for a in range(4):
            k.e(f"ds_read_b128 {vr(16*tp+4*a,4)}, v{10+tp} offset:{(tp-1)*4096+a*1024}")
    for j in range(3):
        k.e(f"s_waitcnt lgkmcnt({8-4*j})")
        for i in range(0, 16, 2):
            k.e(f"v_pk_add_f32 {vr(ACC+i,2)}, {vr(ACC+i,2)}, {vr(16+16*j+i,2)}")
    HO = 96
    for i in range(8):
        k.e(f"v_cvt_pk_bf16_f32 v{HO+i}, v{ACC+2*i}, v{ACC+2*i+1}")
    k.e(f"""
    buffer_store_dwordx4 {vr(HO,4)}, v1, s[{SWS}:{SWS+3}], s{sT} offen sc1
    buffer_store_dwordx4 {vr(HO+4,4)}, v1, s[{SWS}:{SWS+3}], s{sT} offen offset:1024 sc1
    """)
    for i in range(8):
        k.e(f"v_dot2c_f32_bf16 v4, s{sONE}, v{HO+i}")
        k.e(f"v_dot2c_f32_bf16 v5, v{HO+i}, v{HO+i}")
    k.e(f"""
    v_and_b32 v6, 31, v0
    v_lshlrev_b32 v6, 3, v6
    s_lshr_b32 s{sT}, s{sRB}, 2
    v_mov_b32 v12, v4
    v_mov_b32 v13, v5
    s_mul_i32 s{sT}, s{sT}, {28*128}
    s_add_u32 s{sT}, s{sT}, {FL_OFF}
    v_permlane32_swap_b32 v4, v12
    v_permlane32_swap_b32 v5, v13
    s_nop 0
    v_add_f32 v4, v4, v12
    v_add_f32 v5, v5, v13
    s_mov_b32 exec_hi, 0
    buffer_store_dwordx2 v[4:5], v6, s[{SWS}:{SWS+3}], s{sT2} offen sc1
    s_mov_b64 exec, -1
    """)
    k.stamp(6)
    k.e("s_waitcnt vmcnt(0)\ns_barrier")
    signal(k, 'sg1', sT, 28, 7, 7, 8, SWS, sW)
    k.stamp(7)
    flush(k, SWS, 1, 8, 16)
    k.e(f"s_branch {k.L('cc')}")
    def c_setup_scalar():
        k.e(f"""
        s_lshl_b32 s{sT}, s{sQ}, 1
        s_add_u32 s{sT}, s{sT}, s{sCB}
        """)
        div7(k, sT2, sCG, sT)
        k.e(f"""
        s_and_b32 s{sT2}, s2, 3
        s_mul_i32 s{sT2}, s{sT2}, 7
        s_add_u32 s{sFB}, s{sCB}, s{sT2}
        """)
        srd_consts(k, SG, D*F*2)
        srd_consts(k, SU, D*F*2+1024)
    k.label(k.L('ld'))
    k.vm = []
    c_setup_scalar()
    k.e(f"""
    v_bfe_u32 v6, v0, 3, 3
    v_bfe_u32 v7, v0, 6, 2
    v_lshl_add_u32 v6, v7, 4, v6
    v_and_b32 v8, 7, v0
    v_bfe_u32 v7, v0, 4, 1
    v_lshlrev_b32 v7, 2, v7
    v_xor_b32 v7, v7, v8
    v_mul_u32_u24 v2, 3584, v6
    v_lshl_add_u32 v2, v7, 4, v2
    v_add_u32 v3, {8*3584-2048}, v2
    s_lshl_b32 s{sWOFF}, s{sFB}, 7
    s_mul_i32 s{sT}, s{sCG}, {64*3584}
    s_add_u32 s{sWOFF}, s{sWOFF}, s{sT}
    s_mov_b32 s{sH}, s{sCG}
    s_and_b32 s{sT}, s{sW}, 3
    s_lshl_b32 m0, s{sT}, 12
    s_waitcnt lgkmcnt(0)
    s_sub_u32 s{SU}, s{SU}, 1024
    s_subb_u32 s{SU+1}, s{SU+1}, 0
    s_barrier
    """)
    for c in range(6):
        k.e(f"""
        buffer_load_dwordx4 v2, s[{SG}:{SG+3}], s{sWOFF} offen lds
        buffer_load_dwordx4 v2, s[{SU}:{SU+3}], s{sWOFF} offen offset:1024 lds
        buffer_load_dwordx4 v3, s[{SG}:{SG+3}], s{sWOFF} offen offset:2048 lds
        buffer_load_dwordx4 v3, s[{SU}:{SU+3}], s{sWOFF} offen offset:3072 lds
        """)
        if c < 5:
            k.e(f"""
            s_add_u32 m0, m0, 16384
            s_add_u32 s{sH}, s{sH}, 1
            s_cmp_eq_u32 s{sH}, 7
            s_cselect_b32 s{sT}, -6, 1
            s_mul_i32 s{sT}, s{sT}, {64*3584}
            s_add_u32 s{sWOFF}, s{sWOFF}, s{sT}
            """)
        if c == 2: k.e("s_barrier")
    k.e("s_barrier")
    k.e(f"s_branch {k.L('cj')}")
    k.label(k.L('cc'))
    c_setup_scalar()
    k.e(f"""
    s_sub_u32 s{SU}, s{SU}, 1024
    s_subb_u32 s{SU+1}, s{SU+1}, 0
    """)
    k.label(k.L('cj'))
    k.vm = []
    k.stamp(0)
    HFR, ACC, WF, STR, CSR = 16, 128, 192, 208, 224
    k.e(f"""
    s_and_b32 s{sT}, s2, 4
    s_add_u32 s{sT}, s{sT}, s{sQ}
    s_lshl_b32 s{sRT}, s{sT}, 3
    s_add_u32 s{sRT}, s{sRT}, s{sW}
    s_mul_i32 s{sPQ0}, s{sT}, 28
    s_add_u32 s{sT3}, s{sPQ0}, s{sFB}
    s_lshl_b32 s{sT3}, s{sT3}, 7
    s_add_u32 s{sT3}, s{sT3}, {FL_OFF}
    s_mul_i32 s{sH}, s{sRT}, 28672
    s_lshl_b32 s{sT}, s{sCG}, 12
    s_add_u32 s{sH}, s{sH}, s{sT}
    s_add_u32 s{sH}, s{sH}, {HF_OFF}
    """)
    AW0, AW1 = 10, 11
    k.e(f"""
    s_add_u32 s{sT}, s{sCG}, 6
    s_cmp_ge_u32 s{sT}, 7
    s_cselect_b32 s{sT2}, 7, 0
    s_sub_u32 s{sT}, s{sT}, s{sT2}
    s_mul_i32 s{sT}, s{sT}, {64*3584}
    s_lshl_b32 s{sWOFF}, s{sFB}, 7
    s_add_u32 s{sWOFF}, s{sWOFF}, s{sT}
    v_lshrrev_b32 v6, 3, v0
    v_and_b32 v8, 7, v0
    v_bfe_u32 v7, v0, 4, 1
    v_lshlrev_b32 v4, 2, v7
    v_xor_b32 v4, v4, v8
    v_mul_u32_u24 v3, 3584, v6
    v_lshl_add_u32 v3, v4, 4, v3
    v_bfe_u32 v4, v0, 6, 1
    v_lshl_add_u32 v7, v4, 1, v7
    v_lshlrev_b32 v7, 1, v7
    v_xor_b32 v7, v7, v8
    v_mul_u32_u24 v14, 896, v6
    v_lshl_add_u32 v14, v7, 4, v14
    v_add_u32 v15, {896*896-1024}, v14
    v_bfe_u32 v7, v0, 2, 2
    v_lshlrev_b32 v6, 12, v9
    v_lshl_add_u32 v6, v7, 7, v6
    v_lshrrev_b32 v7, 1, v7
    v_lshl_add_u32 v6, v7, 6, v6
    v_and_b32 v7, 1, v0
    v_lshl_add_u32 v6, v7, 5, v6
    v_bfe_u32 v7, v0, 4, 1
    v_lshl_add_u32 v6, v7, 4, v6
    v_bfe_u32 v7, v0, 1, 1
    v_lshl_add_u32 v{AW0}, v7, 3, v6
    v_xor_b32 v{AW1}, 64, v{AW0}
    v_add_u32 v12, 0x10000, v{AW0}
    v_add_u32 v13, 0x10000, v{AW1}
    v_and_b32 v6, 31, v0
    v_mul_u32_u24 v4, 1792, v9
    v_lshl_add_u32 v4, v6, 3, v4
    v_bfe_u32 v7, v0, 2, 1
    v_bfe_u32 v8, v0, 3, 2
    v_lshlrev_b32 v7, 4, v7
    v_lshl_add_u32 v7, v8, 2, v7
    v_and_b32 v8, 3, v0
    v_add_lshl_u32 v2, v7, v8, 2
    s_mul_i32 s{sT}, s{sQ}, 7
    s_lshr_b32 s{sT}, s{sT}, 1
    s_lshl_b32 s{sDCG}, s{sCB}, 1
    s_add_u32 s{sDCG}, s{sDCG}, s{sT}
    s_cmp_ge_u32 s{sDCG}, 14
    s_cselect_b32 s{sT}, 14, 0
    s_sub_u32 s{sDCG}, s{sDCG}, s{sT}
    s_mul_i32 s{sT}, s{sDCG}, {64*896}
    s_add_u32 s{sDW}, s{sWO}, s{sT}
    s_mov_b32 s{sROT}, s{sDCG}
    s_mul_i32 s{sT}, s{sRT}, 3584
    s_add_u32 s{sT}, s{sT}, {ST_OFF}
    s_lshl_b32 s{sT2}, s{sFB}, 8
    s_add_u32 s{sT2}, s{sT2}, {CS_OFF}
    s_add_u32 s{sKV}, s{sT2}, 7168
    """)
    srd_consts(k, SD, F*D*2)
    srd_consts(k, SO, S*D*2)
    poll(k, 'p1', sT3, 29, 5, 6, SWS, sCNT, sW, 4)
    k.stamp(1)
    def h_loads(c):
        L = []
        for j in range(4):
            def hj(j=j):
                if j == 0 and c > 0:
                    k.e(f"""
                    s_add_u32 s{sCG}, s{sCG}, 1
                    s_cmp_eq_u32 s{sCG}, 7
                    s_cselect_b32 s{sT3}, -6, 1
                    s_lshl_b32 s{sT3}, s{sT3}, 12
                    s_add_u32 s{sH}, s{sH}, s{sT3}
                    """)
                k.vop(f"buffer_load_dwordx4 {vr(HFR+16*c+4*j,4)}, v1, s[{SWS}:{SWS+3}], s{sH} offen offset:{j*1024} sc1", f"h{c}")
            L.append(hj)
        return L
    dslot = [7, 8, 9, 0, 1, 2, 3, 4, 5, 6, 7, 8, 9, 0]
    def wd_dma(j):
        k.e(f"""
        s_lshl_b32 s{sT3}, s{sW}, 11
        s_add_u32 m0, s{sT3}, {dslot[j]*16384}
        """)
        if j > 0:
            k.e(f"""
            s_add_u32 s{sDCG}, s{sDCG}, 1
            s_cmp_eq_u32 s{sDCG}, 14
            s_cselect_b32 s{sT3}, -13, 1
            s_mul_i32 s{sT3}, s{sT3}, {64*896}
            s_add_u32 s{sDW}, s{sDW}, s{sT3}
            """)
        else:
            k.e("s_nop 0")
        k.vop(f"buffer_load_dwordx4 v14, s[{SD}:{SD+3}], s{sDW} offen lds", f"w{j}")
        k.vop(f"buffer_load_dwordx4 v15, s[{SD}:{SD+3}], s{sDW} offen offset:1024 lds", f"w{j}")
    def w6():
        k.e(f"""
        s_lshl_b32 s{sT3}, s{sW}, 11
        s_add_u32 m0, s{sT3}, {6*16384}
        s_nop 0
        """)
        k.vop(f"buffer_load_dwordx4 v3, s[{SG}:{SG+3}], s{sWOFF} offen lds", "wc6")
        k.vop(f"buffer_load_dwordx4 v3, s[{SU}:{SU+3}], s{sWOFF} offen offset:1024 lds", "wc6")
    for f in h_loads(0): f()
    k.e("s_barrier")
    for f in h_loads(1): f()
    stl = []
    for u in range(7):
        stl.append(lambda u=u: k.vop(f"buffer_load_dwordx2 {vr(STR+2*u,2)}, v4, s[{SWS}:{SWS+3}], s{sT} offen offset:{u*256} sc1", "st"))
    for q in range(4):
        stl.append(lambda q=q: k.vop(f"buffer_load_dword v{CSR+q}, v2, s[{SWS}:{SWS+3}], s{sT2 if q < 2 else sKV} offen offset:{(q&1)*128} sc1", "st"))
    KS = CKS
    units = [(kap, tau) for kap in range(KS) for tau in range(4)]
    units += [(kap, tau) for kap in range(KS, 28) for tau in (0, 2)] + [('x', 0), ('x', 2)]
    nA = len(units)
    units += [(kap, tau) for kap in range(KS, 28) for tau in (1, 3)] + [('x', 1), ('x', 3)]
    NU = len(units)
    DEP = 4
    T, XE, WE = 228, 232, 236
    C1, IR2 = STR+4, STR+2
    g6 = next(u for u in range(NU) if units[u][0] != 'x' and units[u][0] >= 24) - DEP
    assert g6 >= 4*KS and KS >= 16
    pend = []
    for c in range(2, 7):
        for i, f in enumerate(h_loads(c)):
            pend.append(((c-2)*HPACE + 2*i, f))
    e0 = 5*HPACE
    pend.append((e0, w6))
    for i, f in enumerate(stl): pend.append((e0+2+i, f))
    for j in range(3): pend.append((e0+14+4*j, lambda j=j: wd_dma(j)))
    for j in range(3, 7): pend.append((g6+2+5*(j-3), lambda j=j: wd_dma(j)))
    pend.sort(key=lambda x: x[0])
    kk = K("tmp")
    for u in range(1, 7):
        kk.e(f"v_add_f32 v{STR}, v{STR}, v{STR+2*u}")
        kk.e(f"v_add_f32 v{STR+1}, v{STR+1}, v{STR+2*u+1}")
    kk.e(f"""
    v_cmp_eq_u32 vcc, 0, v9
    v_mov_b32 v{STR+2}, v{STR}
    v_mov_b32 v{STR+3}, v{STR+1}
    v_cndmask_b32 v{CSR}, 0, v{CSR}, vcc
    v_cndmask_b32 v{CSR+1}, 0, v{CSR+1}, vcc
    v_permlane32_swap_b32 v{STR}, v{STR+2}
    v_permlane32_swap_b32 v{STR+1}, v{STR+3}
    v_cndmask_b32 v{CSR+2}, 0, v{CSR+2}, vcc
    v_cndmask_b32 v{CSR+3}, 0, v{CSR+3}, vcc
    v_add_f32 v{STR}, v{STR}, v{STR+2}
    v_add_f32 v{STR+1}, v{STR+1}, v{STR+3}
    v_mul_f32 v{STR}, 0x{INV_D|0x80000000:x}, v{STR}
    v_mul_f32 v{STR+1}, 0x{INV_D:x}, v{STR+1}
    v_fma_f32 v{STR+1}, -v{STR}, v{STR}, v{STR+1}
    v_max_f32 v{STR+1}, 0, v{STR+1}
    v_add_f32 v{STR+2}, 0x{EPS_LN:x}, v{STR+1}
    v_rsq_f32 v{STR+4}, v{STR+2}
    """)
    hilo_x(kk, XE, STR, T)
    kk.e(f"v_mov_b32 v{XE+2}, 0\nv_mov_b32 v{XE+3}, 0")
    kk.e(f"v_mul_f32 v{STR+4}, 0x{LOG2E|0x80000000:x}, v{STR+4}")
    for tau in range(4):
        hilo_w(kk, WE+4*tau, CSR+tau, T+1)
    kk.e(f"""
    v_bfe_u32 v7, v0, 4, 1
    v_mul_u32_u24 v4, 57344, v7
    v_lshl_add_u32 v4, v9, 9, v4
    v_and_b32 v7, 15, v0
    v_lshl_add_u32 v4, v7, 4, v4
    s_mul_i32 s{sT}, s{sRT}, 114688
    s_lshl_b32 s{sT2}, s{sFB}, 11
    s_add_u32 s{sT}, s{sT}, s{sT2}
    s_add_u32 s{sT}, s{sT}, {ACT_OFF}
    """)
    side1 = [l.strip() for l in kk.lines]
    def epi(ct, packed):
        kk = K("tmp")
        O = 16 + 8*ct
        g, u = ACC+16*ct, ACC+32+16*ct
        for i in range(0, 16, 2):
            t = 32 + (i % 8)
            if packed:
                kk.e(f"v_pk_mul_f32 {vr(t,2)}, {vr(g+i,2)}, {vr(C1,2)} op_sel_hi:[1,0]")
                kk.e(f"v_pk_mul_f32 {vr(g+i,2)}, {vr(g+i,2)}, {vr(u+i,2)}")
                kk.e(f"v_exp_f32 v{t}, v{t}")
                kk.e(f"v_exp_f32 v{t+1}, v{t+1}")
                kk.e("s_nop 0")
                kk.e(f"v_pk_fma_f32 {vr(t,2)}, {vr(t,2)}, {vr(IR2,2)}, {vr(IR2,2)} op_sel_hi:[1,0,0]")
                kk.e(f"v_rcp_f32 v{t}, v{t}")
                kk.e(f"v_rcp_f32 v{t+1}, v{t+1}")
                kk.e("s_nop 0")
                kk.e(f"v_pk_mul_f32 {vr(g+i,2)}, {vr(g+i,2)}, {vr(t,2)}")
            else:
                kk.e(f"v_mul_f32 v{t}, v{g+i}, v{C1}")
                kk.e(f"v_mul_f32 v{t+1}, v{g+i+1}, v{C1}")
                kk.e(f"v_exp_f32 v{t}, v{t}")
                kk.e(f"v_mul_f32 v{g+i}, v{g+i}, v{u+i}")
                kk.e(f"v_exp_f32 v{t+1}, v{t+1}")
                kk.e(f"v_mul_f32 v{g+i+1}, v{g+i+1}, v{u+i+1}")
                kk.e(f"v_fma_f32 v{t}, v{t}, v{IR2}, v{IR2}")
                kk.e(f"v_fma_f32 v{t+1}, v{t+1}, v{IR2}, v{IR2}")
                kk.e(f"v_rcp_f32 v{t}, v{t}")
                kk.e(f"v_rcp_f32 v{t+1}, v{t+1}")
                kk.e(f"v_mul_f32 v{g+i}, v{g+i}, v{t}")
                kk.e(f"v_mul_f32 v{g+i+1}, v{g+i+1}, v{t+1}")
            kk.e(f"v_cvt_pk_bf16_f32 v{O+i//2}, v{g+i}, v{g+i+1}")
            if i % 8 == 6:
                f = i // 8
                kk.e(f"buffer_store_dwordx4 {vr(O+4*f,4)}, v4, s[{SWS}:{SWS+3}], s{sT} offen offset:{ct*1024+f*256} sc1")
        return [l.strip() for l in kk.lines]
    side2 = epi(0, False)
    s1_start = nA - 2 - (len(side1)+3)//4 - 1
    assert s1_start > e0+2+len(stl)
    s2_start = nA + 3
    hw = set()
    gate = dict(done=False)
    def rd(u):
        kap, tau = units[u]
        if kap == 'x': return
        if kap >= 24 and not gate['done']:
            gate['done'] = True
            k.wait_vm("wc6")
            k.e("s_barrier")
            k.stamp(4)
        cc, tl, f = kap >> 2, (kap >> 1) & 1, kap & 1
        m, ct = tau >> 1, tau & 1
        o = cc*16384 + tl*8192 + f*2048 + m*1024
        a = AW0 + ct
        if o >= 0x10000: o -= 0x10000; a += 2
        for ri in range(2):
            k.e(f"ds_read_b64_tr_b16 {vr(WF+4*(u%DEP)+2*ri,2)}, v{a} offset:{o+ri*512}")
    for u in range(DEP): rd(u)
    started = set()
    for u in range(NU):
        kap, tau = units[u]
        a = ACC+16*tau
        if kap == 'x':
            assert not side1
            k.e(f"v_mfma_f32_32x32x16_bf16 {vr(a,16)}, {vr(WE+4*tau,4)}, {vr(XE,4)}, {vr(a,16)}")
        else:
            if (kap >> 2) not in hw:
                hw.add(kap >> 2)
                k.wait_vm(f"h{kap>>2}")
                if kap == 0: k.stamp(2)
                if kap == 12: k.stamp(3)
            nout = sum(1 for v in range(u+1, min(u+DEP, NU)) if units[v][0] != 'x')
            k.e(f"s_waitcnt lgkmcnt({2*nout})")
            k.e(f"v_mfma_f32_32x32x16_bf16 {vr(a,16)}, {vr(WF+4*(u%DEP),4)}, {vr(HFR+4*kap,4)}, {'0' if tau not in started else vr(a,16)}")
            started.add(tau)
        if u+DEP < NU: rd(u+DEP)
        while pend and pend[0][0] <= u:
            pend.pop(0)[1]()
        if u >= s1_start and side1:
            if u == s1_start: k.wait_vm("st")
            for _ in range(4):
                if side1: k.e(side1.pop(0))
        if u >= s2_start and side2:
            for _ in range(5 if len(side2) > 4*(NU-u) else 4):
                if side2: k.e(side2.pop(0))
    assert not pend
    k.stamp(5)
    for l in side2: k.e(l)
    k.e(f"""
    s_lshl_b32 s{sT2}, s{sPQ0}, 7
    s_add_u32 s{sT2}, s{sT2}, {FL_OFF+32768}
    """)
    k.nop(max(0, 10-len(side2)))
    for l in epi(1, True): k.e(l)
    k.stamp(6)
    k.e("s_waitcnt vmcnt(0)\ns_barrier")
    signal(k, 'sg2', sT2, 28, 7, 7, 8, SWS, sW)
    k.stamp(7)
    flush(k, SWS, 2, 8, 40)
    k.vm = []
    k.stamp(0)
    AF, ACC, WF, HR, AW = 16, 128, 144, 176, 180
    RED = 2*16384
    for j in (7, 8, 9): wd_dma(j)
    k.e(f"""
    s_lshr_b32 s{sKH}, s{sW}, 2
    s_lshl_b32 s{sT}, s{sRB}, 2
    s_and_b32 s{sT2}, s{sW}, 3
    s_add_u32 s{sT}, s{sT}, s{sT2}
    s_mul_i32 s{sT2}, s{sRB}, 7
    s_add_u32 s{sT2}, s{sT2}, s{sCB}
    s_lshl_b32 s{sT2}, s{sT2}, 7
    s_add_u32 s{sT2}, s{sT2}, {FL_OFF+32768}
    s_lshl_b32 s{sT}, s{sT}, 1
    s_add_u32 s{sT}, s{sT}, s{sKH}
    s_mul_i32 s{sA}, s{sT}, 28672
    s_lshl_b32 s{sT}, s{sROT}, 11
    s_add_u32 s{sA}, s{sA}, s{sT}
    s_add_u32 s{sA}, s{sA}, {ACT_OFF}
    v_bfe_u32 v5, v0, 4, 2
    v_lshlrev_b32 v6, 11, v5
    v_bfe_u32 v7, v0, 8, 1
    v_lshl_add_u32 v6, v7, 10, v6
    v_xor_b32 v5, v5, v7
    v_and_b32 v5, 1, v5
    v_bfe_u32 v7, v0, 2, 2
    v_lshl_add_u32 v6, v7, 7, v6
    v_lshrrev_b32 v7, 1, v7
    v_lshl_add_u32 v5, v5, 1, v7
    v_lshl_add_u32 v6, v5, 5, v6
    v_and_b32 v7, 3, v0
    v_lshl_add_u32 v{AW}, v7, 3, v6
    v_xor_b32 v{AW+1}, 32, v{AW}
    v_xor_b32 v{AW+2}, 64, v{AW}
    v_xor_b32 v{AW+3}, 96, v{AW}
    """)
    for g in (1, 2):
        for i in range(4):
            k.e(f"v_add_u32 v{AW+4*g+i}, {g*0x10000}, v{AW+i}")
    k.e(f"""
    v_bfe_u32 v5, v0, 5, 1
    v_lshlrev_b32 v5, 10, v5
    v_and_b32 v6, 15, v0
    v_lshl_add_u32 v5, v6, 4, v5
    v_bfe_u32 v7, v0, 4, 1
    v_lshl_add_u32 v5, v7, 3, v5
    s_lshl_b32 s{sT}, s{sRB}, 1
    s_bfe_u32 s{sT3}, s{sW}, 0x10001
    s_add_u32 s{sT}, s{sT}, s{sT3}
    s_mul_i32 s{sT}, s{sT}, 14
    s_lshl_b32 s{sT3}, s{sCB}, 1
    s_add_u32 s{sT}, s{sT}, s{sT3}
    s_add_u32 s{sT}, s{sT}, s{sKH}
    s_lshl_b32 s{sT}, s{sT}, 11
    s_and_b32 s{sT3}, s{sW}, 1
    s_lshl_b32 s{sT3}, s{sT3}, 8
    s_add_u32 s{sT}, s{sT}, s{sT3}
    s_add_u32 s{sT}, s{sT}, {HF_OFF}
    buffer_load_dwordx2 {vr(HR,2)}, v5, s[{SWS}:{SWS+3}], s{sT} offen sc1
    buffer_load_dwordx2 {vr(HR+2,2)}, v5, s[{SWS}:{SWS+3}], s{sT} offen offset:512 sc1
    v_lshrrev_b32 v5, 6, v0
    v_lshl_add_u32 v6, v5, 11, v1
    v_add_u32 v6, {RED}, v6
    v_xor_b32 v7, 0x2000, v6
    v_and_b32 v5, 15, v0
    v_mul_u32_u24 v4, 896, v5
    v_bfe_u32 v5, v0, 4, 2
    v_lshl_add_u32 v4, v5, 3, v4
    s_lshl_b32 s{sT}, s{sRB}, 2
    s_and_b32 s{sT3}, s{sW}, 3
    s_add_u32 s{sT}, s{sT}, s{sT3}
    s_mul_i32 s{sT}, s{sT}, {16*896}
    s_add_u32 s{sT}, s{sT}, s{sWO}
    s_lshl_b32 s{sT3}, s{sKH}, 6
    s_add_u32 s{sT}, s{sT}, s{sT3}
    """)
    poll(k, 'p2', sT2, 28, 2, 3, SWS, sCNT, sW, 4)
    k.stamp(1)
    def lda(j):
        if j > 0:
            k.e(f"""
            s_add_u32 s{sROT}, s{sROT}, 1
            s_cmp_eq_u32 s{sROT}, 14
            s_cselect_b32 s{sT3}, -13, 1
            s_lshl_b32 s{sT3}, s{sT3}, 11
            s_add_u32 s{sA}, s{sA}, s{sT3}
            """)
        for ks in range(2):
            k.vop(f"buffer_load_dwordx4 {vr(AF+8*j+4*ks,4)}, v1, s[{SWS}:{SWS+3}], s{sA} offen offset:{ks*1024} sc1", f"a{j}")
    def reads(u):
        t, tt = u >> 2, u & 3
        j, ks = t >> 1, t & 1
        o = dslot[j]*16384 + ks*8192
        a = AW + tt + 4*(o >> 16)
        o &= 0xffff
        b = WF + 4*(u & 7)
        for ri in range(2):
            k.e(f"ds_read_b64_tr_b16 {vr(b+2*ri,2)}, v{a} offset:{o+ri*512}")
    for j in range(APRE): lda(j)
    DEP = 6
    NU = 112
    for u in range(DEP): reads(u)
    for u in range(NU):
        t, tt = u >> 2, u & 3
        if u+DEP < NU:
            if (u+DEP) % 8 == 0:
                jn = (u+DEP)//8
                if jn == 5:
                    k.e("s_barrier")
                    k.stamp(3)
                    for j in (10, 11, 12, 13): wd_dma(j)
                if jn == 10:
                    k.wait_vm("w13")
                    k.e("s_barrier")
                    k.stamp(4)
            reads(u+DEP)
        if u % 8 == 0:
            k.wait_vm(f"a{u//8}")
            if u == 0: k.stamp(2)
        k.e(f"s_waitcnt lgkmcnt({2*min(DEP, NU-1-u)})")
        a = ACC+4*tt
        k.e(f"v_mfma_f32_16x16x32_bf16 {vr(a,4)}, {vr(WF+4*(u&7),4)}, {vr(AF+4*t,4)}, {'0' if t == 0 else vr(a,4)}")
        if u % 8 == 7 and u//8 + APRE < 14:
            lda(u//8 + APRE)
    k.stamp(5)
    for i in range(4):
        k.e(f"v_lshlrev_b32 v{16+2*i}, 16, v{HR+i}")
        k.e(f"v_and_b32 v{17+2*i}, 0xffff0000, v{HR+i}")
    k.e(f"""
    ds_write_b128 v7, {vr(ACC+8,4)}
    ds_write_b128 v7, {vr(ACC+12,4)} offset:1024
    """)
    for i in range(0, 8, 2):
        k.e(f"v_pk_add_f32 {vr(ACC+i,2)}, {vr(ACC+i,2)}, {vr(16+i,2)}")
    k.e(f"""
    s_waitcnt lgkmcnt(0)
    s_barrier
    ds_read_b128 v[24:27], v6
    ds_read_b128 v[28:31], v6 offset:1024
    s_waitcnt lgkmcnt(0)
    """)
    for i in range(0, 8, 2):
        k.e(f"v_pk_add_f32 {vr(ACC+i,2)}, {vr(ACC+i,2)}, {vr(24+i,2)}")
    for i in range(4):
        k.e(f"v_cvt_pk_bf16_f32 v{32+i}, v{ACC+2*i}, v{ACC+2*i+1}")
    k.e(f"""
    buffer_store_dwordx2 v[32:33], v4, s[{SO}:{SO+3}], s{sT} offen
    buffer_store_dwordx2 v[34:35], v4, s[{SO}:{SO+3}], s{sT} offen offset:32
    """)
    k.stamp(6)
    k.end(SWS, 3, 7)
    k.label(k.L('cs'))
    k.e(f"""
    s_cmp_ge_u32 s2, 252
    s_cbranch_scc1 {k.L('end')}
    v_lshrrev_b32 v5, 6, v0
    v_bfe_u32 v6, v0, 3, 3
    v_readfirstlane_b32 s{sW}, v5
    v_and_b32 v7, 7, v0
    v_mul_u32_u24 v1, 3584, v6
    v_lshl_add_u32 v1, v7, 4, v1
    s_sub_u32 s{sCB}, s2, 224
    s_and_b32 s{sT}, s{sW}, 3
    s_mul_i32 s{sT}, s{sT}, {112*3584}
    s_lshl_b32 s{sT2}, s{sCB}, 7
    s_add_u32 s{sT}, s{sT}, s{sT2}
    s_mov_b32 s{sEPS}, 0x3f80
    s_mov_b32 s{sONE}, 0x3f800000
    """)
    srd_consts(k, SW, D*F*2)
    srd_consts(k, SWS, WSZ)
    k.e(f"""
    s_waitcnt lgkmcnt(0)
    s_cmp_ge_u32 s{sW}, 4
    s_cselect_b32 s{SW}, s{SU}, s{SG}
    s_cselect_b32 s{SW+1}, s{SU+1}, s{SG+1}
    """)
    for u in range(14):
        k.e(f"buffer_load_dwordx4 {vr(16+4*u,4)}, v1, s[{SW}:{SW+3}], s{sT} offen")
        k.e(f"s_add_u32 s{sT}, s{sT}, {8*3584}")
    for i in range(8):
        k.e(f"v_mov_b32 v{8+i}, 0")
    for u in range(14):
        k.e(f"s_waitcnt vmcnt({13-u})")
        for j in range(4):
            k.e(f"v_dot2c_f32_bf16 v{8+2*j}, s{sEPS}, v{16+4*u+j}")
            k.e(f"v_dot2c_f32_bf16 v{9+2*j}, s{sONE}, v{16+4*u+j}")
    k.e(f"""
    v_lshlrev_b32 v2, 5, v0
    v_and_b32 v4, 63, v0
    v_lshlrev_b32 v4, 2, v4
    v_add_u32 v3, 8192, v4
    s_nop 0
    ds_write_b128 v2, v[8:11]
    ds_write_b128 v2, v[12:15] offset:16
    s_waitcnt lgkmcnt(0)
    s_barrier
    s_cmp_ge_u32 s{sW}, 1
    s_cbranch_scc1 {k.L('end')}
    """)
    for m in range(2):
        for h in range(2):
            for i in range(8):
                k.e(f"ds_read2st64_b32 {vr(16+32*m+16*h+2*i,2)}, v{4 if m == 0 else 3} offset0:{16*h+2*i} offset1:{16*h+2*i+1}")
            k.e("s_waitcnt lgkmcnt(0)")
    k.e(f"""
    s_lshl_b32 s{sT}, s{sCB}, 8
    s_add_u32 s{sT}, s{sT}, {CS_OFF}
    s_add_u32 s{sT2}, s{sT}, 7168
    """)
    for m in range(2):
        for stp in (16, 8, 4, 2, 1):
            for i in range(stp):
                k.e(f"v_add_f32 v{16+32*m+i}, v{16+32*m+i}, v{16+32*m+i+stp}")
    k.e(f"""
    buffer_store_dword v16, v4, s[{SWS}:{SWS+3}], s{sT} offen sc1
    buffer_store_dword v48, v4, s[{SWS}:{SWS+3}], s{sT2} offen sc1
    s_lshl_b32 s{sT}, s{sCB}, 7
    s_add_u32 s{sT}, s{sT}, {FL_OFF}
    v_mul_u32_u24 v7, {28*128}, v0
    v_mov_b32 v8, 1
    s_mov_b64 exec, 0xff
    s_waitcnt vmcnt(0)
    buffer_atomic_add v8, v7, s[{SWS}:{SWS+3}], s{sT} offen sc1
    """)
    k.end(SWS, 1, 1)
    k.label(k.L('end'))
    k.e("s_endpgm")
    return k, dict(vgpr=256, sgpr=80, grid=256, block=512, lds=163840)

if __name__ == "__main__":
    ks = [gen_a(), gen_f()]
    open(sys.argv[1] if len(sys.argv) > 1 else "sequential_preLN__linear_attn_block__swiglu_ffn__prompt.s", "w").write(build(ks))
```

```python
from gen3 import *

def gen_a5():
    k = K("ka")
    SX, SW, SWS, SDB, SP = 4, 8, 12, 16, 32
    sW, sRB, sH, sx, skv, sq, sT, sT2, sEPS, sONE, sLN2, sCX, sCV, sROT = 20, 21, 22, 23, 24, 25, 26, 27, 28, 29, 30, 31, 56, 57
    XS, NXS = 0, 7
    VS, NVS = 114688, 5
    WQ = 0
    MISC = 155648
    PART = 32768
    CSX = MISC + 2048
    CNT = MISC + 6144
    DUM = 190
    AH = 2
    k.stamp(0)
    k.e(f"""
    s_cmp_ge_u32 s2, 256
    s_cbranch_scc1 {k.L('end')}
    s_load_dwordx2 s[{SX}:{SX+1}], s[0:1], 0
    s_load_dwordx2 s[{SW}:{SW+1}], s[0:1], 8
    s_load_dwordx2 s[{SDB}:{SDB+1}], s[0:1], 64
    s_load_dwordx2 s[{SWS}:{SWS+1}], s[0:1], 72
    s_load_dwordx2 s[{SP}:{SP+1}], s[0:1], 16
    """)
    if CPF:
        k.e(f"""
        s_getpc_b64 s[36:37]
        Lka_pc:
        s_lshr_b32 s{sT2}, s2, 3
        v_min_u32 v5, 7, v0
        v_lshlrev_b32 v5, 7, v5
        s_lshl_b32 s{sT}, s{sT2}, 10
        v_add_u32 v5, s{sT}, v5
        v_min_u32 v5, Lcode_end-Lka_pc-4, v5
        v_cmp_gt_u32 vcc, 8, v0
        s_and_saveexec_b64 s[38:39], vcc
        s_cbranch_execz {k.L('nocpf')}
        global_load_dword v{DUM}, v5, s[36:37]
        """)
        k.label(k.L('nocpf'))
        k.e("s_mov_b64 exec, -1")
    k.e(f"""
    v_lshrrev_b32 v5, 6, v0
    v_lshrrev_b32 v6, 3, v0
    v_readfirstlane_b32 s{sW}, v5
    v_and_b32 v7, 0x38, v6
    v_add_u32 v7, v6, v7
    v_and_b32 v8, 7, v0
    v_bfe_u32 v9, v0, 4, 2
    v_xor_b32 v9, v8, v9
    v_mul_u32_u24 v1, 896, v7
    v_lshl_add_u32 v1, v9, 4, v1
    v_xor_b32 v2, 64, v1
    v_add_u32 v2, 6144, v2
    s_bfe_u32 s{sRB}, s2, 0x20001
    s_lshl_b32 s{sRB}, s{sRB}, 2
    s_lshr_b32 s{sT}, s2, 6
    s_add_u32 s{sRB}, s{sRB}, s{sT}
    s_bfe_u32 s{sT2}, s2, 0x30003
    s_and_b32 s{sH}, s2, 1
    s_lshl_b32 s{sH}, s{sH}, 3
    s_add_u32 s{sH}, s{sH}, s{sT2}
    s_lshl_b32 s{sT}, s{sT}, 1
    s_add_u32 s{sT}, s{sT}, s{sT2}
    """)
    div7(k, sT2, sROT, sT)
    k.e(f"""
    s_mul_i32 s{sx}, s{sRB}, {128*896}
    s_lshl_b32 s{sT}, s{sROT}, 7
    s_add_u32 s{sx}, s{sx}, s{sT}
    s_mov_b32 s{sCX}, s{sROT}
    s_lshl_b32 m0, s{sW}, 11
    """)
    srd_consts(k, SX, S*D*2)
    srd_consts(k, SW, D*3*D*2)
    srd_consts(k, SP, D*D*2)
    k.e(f"""
    v_and_b32 v5, 63, v0
    v_min_u32 v10, 36, v5
    s_mul_i32 s{sT}, s2, 37
    v_add_lshl_u32 v10, v10, s{sT}, 7
    s_waitcnt lgkmcnt(0)
    """)
    k.stamp(1)
    if WPF:
        k.e(f"""
        s_cmp_lg_u32 s{sW}, 3
        s_cbranch_scc1 {k.L('nt1')}
        buffer_load_dword v{DUM}, v10, s[{SW}:{SW+3}], 0 offen
        """)
        k.label(k.L('nt1'))
    def issue_x(c):
        if c > 0:
            k.e(f"""
            s_lshl_b32 s{sT}, s{sW}, 11
            s_add_u32 m0, s{sT}, {XS + (c % NXS)*16384}
            s_add_u32 s{sCX}, s{sCX}, 1
            s_cmp_eq_u32 s{sCX}, 7
            s_cselect_b32 s{sT}, -6, 1
            s_lshl_b32 s{sT}, s{sT}, 7
            s_add_u32 s{sx}, s{sx}, s{sT}
            """)
        k.vop(f"buffer_load_dwordx4 v1, s[{SX}:{SX+3}], s{sx} offen lds", f"s{c}")
        k.vop(f"buffer_load_dwordx4 v2, s[{SX}:{SX+3}], s{sx} offen offset:1024 lds", f"s{c}")
    def issue_v(c):
        k.e(f"""
        s_lshl_b32 s{sT}, s{sW}, 10
        s_add_u32 m0, s{sT}, {VS + (c % NVS)*8192}
        """)
        if c > 0:
            k.e(f"""
            s_add_u32 s{sCV}, s{sCV}, 1
            s_cmp_eq_u32 s{sCV}, 7
            s_cselect_b32 s{sT}, -6, 1
            s_mul_i32 s{sT}, s{sT}, {64*2688}
            s_add_u32 s{skv}, s{skv}, s{sT}
            """)
        else:
            k.e("s_nop 0")
        k.vop(f"buffer_load_dwordx4 v3, s[{SW}:{SW+3}], s{skv} offen lds", f"s{c+AH}")
    def issue_stage(s):
        if s <= 6: issue_x(s)
        if AH <= s <= 6+AH: issue_v(s-AH)
    def issue_after(s):
        if s+3 <= 6: issue_x(s+3)
        if AH <= s+3 <= 6+AH: issue_v(s+3-AH)
    issue_stage(0)
    k.e("s_barrier")
    issue_stage(1)
    k.e(f"""
    v_bfe_u32 v9, v0, 4, 1
    v_lshlrev_b32 v9, 2, v9
    v_xor_b32 v9, v8, v9
    v_mul_u32_u24 v3, 2688, v6
    v_and_b32 v8, 3, v9
    v_lshl_add_u32 v3, v8, 4, v3
    v_lshrrev_b32 v9, 2, v9
    v_mul_u32_u24 v9, 896, v9
    v_add_u32 v3, v3, v9
    s_mul_i32 s{sq}, s{sH}, 56
    s_mul_i32 s{sT}, s{sROT}, {64*2688}
    s_add_u32 s{skv}, s{sq}, s{sT}
    s_add_u32 s{skv}, s{skv}, 896
    s_mov_b32 s{sCV}, s{sROT}
    """)
    k.e("s_barrier")
    issue_stage(2)
    srd_consts(k, SWS, WS_USED)
    srd_consts(k, SDB, 256)
    k.e(f"""
    s_mov_b32 s{sEPS}, 0x{EPS_PHI_L:x}
    s_mov_b32 s{sONE}, 0x{ONES_BF:x}
    s_mov_b32 s{sLN2}, 0x{LN2:x}
    v_mov_b32 v12, 0
    v_mov_b32 v13, 0
    v_mov_b32 v14, 0
    v_mov_b32 v15, 0
    v_mov_b32 v10, {CNT}
    ds_write_b128 v10, v[12:15]
    s_cmp_lt_u32 s{sW}, 4
    s_cbranch_scc1 {k.L('nozf')}
    v_and_b32 v10, 255, v0
    v_lshlrev_b32 v10, 4, v10
    s_cmp_lg_u32 s{sRB}, 0
    s_cbranch_scc1 {k.L('nozero')}
    s_lshl_b32 s{sT}, s{sH}, 12
    buffer_store_dwordx4 v[12:15], v10, s[{SWS}:{SWS+3}], s{sT} offen sc1
    """)
    k.label(k.L('nozero'))
    k.e(f"""
    s_lshr_b32 s{sT}, s2, 2
    s_cmp_lg_u32 s{sT}, 20
    s_cbranch_scc1 {k.L('nocs')}
    s_and_b32 s{sT}, s2, 3
    s_lshl_b32 s{sT}, s{sT}, 12
    s_add_u32 s{sT}, s{sT}, {CS_OFF}
    v_mov_b32 v16, -1
    v_mov_b32 v17, -1
    v_mov_b32 v18, -1
    v_mov_b32 v19, -1
    buffer_store_dwordx4 v[16:19], v10, s[{SWS}:{SWS+3}], s{sT} offen sc1
    """)
    k.label(k.L('nocs'))
    k.e(f"""
    s_lshr_b32 s{sT}, s2, 4
    s_cmp_lg_u32 s{sT}, 4
    s_cbranch_scc1 {k.L('nozf')}
    s_and_b32 s{sT}, s2, 15
    s_lshl_b32 s{sT}, s{sT}, 12
    s_add_u32 s{sT}, s{sT}, {FL_OFF}
    buffer_store_dwordx4 v[12:15], v10, s[{SWS}:{SWS+3}], s{sT} offen sc1
    """)
    k.label(k.L('nozf'))
    AX = 172
    k.e(f"""
    v_and_b32 v8, 31, v0
    v_bfe_u32 v9, v0, 5, 1
    v_bfe_u32 v14, v0, 6, 2
    v_lshl_add_u32 v15, v14, 5, v8
    v_lshlrev_b32 v10, 7, v15
    v_bfe_u32 v11, v8, 1, 3
    v_xor_b32 v11, v11, v9
    v_lshlrev_b32 v12, 1, v14
    v_xor_b32 v11, v11, v12
    v_mov_b32 v7, 1
    """)
    for p in range(4):
        k.e(f"v_xor_b32 v12, {2*p}, v11")
        k.e(f"v_lshl_add_u32 v{AX+p}, v12, 4, v10")
    k.e(f"v_add_u32 v{AX+4}, 0x10000, v{AX}\nv_add_u32 v{AX+5}, 0x10000, v{AX+1}\nv_add_u32 v{AX+6}, 0x10000, v{AX+2}\nv_add_u32 v{AX+7}, 0x10000, v{AX+3}")
    def xread(dst, c, p):
        o = XS + (c % NXS)*16384
        k.e(f"ds_read_b128 {vr(dst,4)}, v{AX+p+4*(o >> 16)} offset:{o & 0xffff}")
    def arrive(i):
        k.e(f"s_mov_b64 exec, 1\nds_add_u32 v6, v7 offset:{4*i}\ns_mov_b64 exec, -1")
    def lwait(name, i, target, vt):
        k.label(k.L(name))
        k.e(f"""
        ds_read_b32 v{vt}, v6 offset:{4*i}
        s_waitcnt lgkmcnt(0)
        v_cmp_gt_u32 vcc, {target}, v{vt}
        s_cbranch_vccnz {k.L(name)}
        """)
    k.e(f"""
    v_mov_b32 v6, {CNT}
    s_waitcnt lgkmcnt(0)
    s_cmp_ge_u32 s{sW}, 4
    s_cbranch_scc1 {k.L('q')}
    """)
    vm_split = list(k.vm)
    def wpf(qside):
        if not WPF or not qside: return
        k.e(f"""
        s_cmp_ge_u32 s{sW}, 6
        s_cbranch_scc1 {k.L('nopf')}
        s_lshr_b32 s{sT}, s2, 3
        s_lshl_b32 s{sT}, s{sT}, 1
        s_add_u32 s{sT}, s{sT}, s{sW}
        s_sub_u32 s{sT}, s{sT}, 4
        s_mul_i32 s{sT}, s{sT}, 49
        v_and_b32 v5, 63, v0
        v_min_u32 v5, 48, v5
        v_add_lshl_u32 v5, v5, s{sT}, 7
        buffer_load_dword v{DUM}, v5, s[{SP}:{SP+3}], 0 offen
        """)
        k.label(k.L('nopf'))
    ACK, ACV = 16, 32
    BUF = [48, 60, 72]
    AWK, AWV = 152, 156
    CSK, CSV = 160, 162
    RL, XE, WEK, WEV = 84, 100, 104, 108
    PKF, VF, KVA, T = 112, 120, 128, 144
    k.e(f"""
    s_setprio 2
    v_bfe_u32 v11, v0, 2, 2
    v_lshl_add_u32 v10, v9, 3, v11
    v_lshlrev_b32 v10, 7, v10
    v_bfe_u32 v12, v0, 4, 1
    v_lshl_add_u32 v10, v12, 5, v10
    v_and_b32 v12, 3, v0
    v_lshl_add_u32 v10, v12, 3, v10
    v_lshrrev_b32 v11, 1, v11
    v_lshl_add_u32 v10, v11, 6, v10
    v_lshl_add_u32 v10, v14, 11, v10
    v_add_u32 v{AWK}, {VS}, v10
    v_mov_b32 v{CSK}, 0
    v_mov_b32 v{CSK+1}, 0
    v_mov_b32 v{XE+2}, 0
    v_mov_b32 v{XE+3}, 0
    """)
    assert VS % 8192 == 0
    for p in range(1, 4):
        k.e(f"v_xor_b32 v{AWK+p}, {p << 11}, v{AWK}")
    for p in range(4):
        k.e(f"v_xor_b32 v{AWV+p}, 64, v{AWK+p}")
    k.e(f"""
    v_lshlrev_b32 v12, 3, v0
    v_add_u32 v12, {CSX}, v12
    v_and_b32 v13, 63, v0
    v_lshlrev_b32 v13, 3, v13
    v_add_u32 v13, {CSX}, v13
    v_lshlrev_b32 v10, 3, v15
    v_add_u32 v10, {MISC}, v10
    v_lshlrev_b32 v11, 7, v14
    v_lshl_add_u32 v11, v9, 4, v11
    v_add_u32 v11, {MISC+1024}, v11
    """)
    def kv_reads(c, p, b):
        o = (c % NVS)*8192
        xread(BUF[b], c, p)
        for ri in range(2):
            k.e(f"ds_read_b64_tr_b16 {vr(BUF[b]+4+2*ri,2)}, v{AWK+p} offset:{o+ri*512}")
        for ri in range(2):
            k.e(f"ds_read_b64_tr_b16 {vr(BUF[b]+8+2*ri,2)}, v{AWV+p} offset:{o+ri*512}")
    NS = 7+AH
    def gate(s):
        k.wait_vm(f"s{s}")
        k.e("s_barrier")
        if s == 0: k.stamp(2)
        if s == NS-1: k.stamp(3)
    def post_gate(s):
        issue_after(s)
        if s == NS-2:
            k.e(f"""
            v_mov_b32 v5, 0
            s_lshl_b32 s{sT2}, s{sH}, 4
            """)
            k.vop(f"buffer_load_dwordx4 {vr(T+4,4)}, v5, s[{SDB}:{SDB+3}], s{sT2} offen sc1", "poll")
    def rd(u):
        c, p = u >> 2, u & 3
        if p == 0: gate(c+AH)
        kv_reads(c, p, u % 3)
        if p == 0: post_gate(c+AH)
    for s_ in range(AH):
        gate(s_); post_gate(s_)
    for u in range(3): rd(u)
    for u in range(28):
        c, p = u >> 2, u & 3
        b = u % 3
        k.e(f"s_waitcnt lgkmcnt({5*min(2, 27-u)})")
        first = (u == 0)
        k.e(f"v_mfma_f32_32x32x16_bf16 {vr(ACK,16)}, {vr(BUF[b],4)}, {vr(BUF[b]+4,4)}, {'0' if first else vr(ACK,16)}")
        k.e(f"v_mfma_f32_32x32x16_bf16 {vr(ACV,16)}, {vr(BUF[b],4)}, {vr(BUF[b]+8,4)}, {'0' if first else vr(ACV,16)}")
        if p == 0:
            for j in range(4):
                k.e(f"v_dot2c_f32_bf16 v{CSK}, s{sONE}, v{BUF[b]+4+j}")
                k.e(f"v_dot2c_f32_bf16 v{CSK+1}, s{sONE}, v{BUF[b]+8+j}")
        if u+3 < 28: rd(u+3)
        if u == 25:
            k.e(f"ds_write_b64 v12, {vr(CSK,2)}")
            arrive(0)
        if u == 26:
            k.e(f"ds_read_b64 {vr(XE,2)}, v10")
            for a in range(4):
                k.e(f"ds_read_b128 {vr(RL+4*a,4)}, v11 offset:{a*32}")
            k.e(f"""
            v_and_b32 v10, 63, v0
            v_lshlrev_b32 v4, 2, v10
            v_lshlrev_b32 v10, 4, v10
            v_lshl_add_u32 v10, v14, 12, v10
            v_lshl_add_u32 v4, v14, 10, v4
            v_add_u32 v3, {PART}, v4
            s_lshl_b32 s{sT}, s{sH}, 12
            """)
    k.e(f"s_setprio {env('KVP', 0)}")
    lwait('w0', 0, 4, T)
    k.e(f"""
    ds_read2st64_b64 {vr(PKF,4)}, v13 offset0:0 offset1:1
    ds_read2st64_b64 {vr(PKF+4,4)}, v13 offset0:2 offset1:3
    s_waitcnt lgkmcnt(0)
    v_add_f32 v{PKF}, v{PKF}, v{PKF+2}
    v_add_f32 v{PKF+1}, v{PKF+1}, v{PKF+3}
    v_add_f32 v{PKF+4}, v{PKF+4}, v{PKF+6}
    v_add_f32 v{PKF+5}, v{PKF+5}, v{PKF+7}
    v_add_f32 v{CSK}, v{PKF}, v{PKF+4}
    v_add_f32 v{CSV}, v{PKF+1}, v{PKF+5}
    """)
    k.stamp(4)
    hilo_w(k, WEK, CSK, T)
    k.e("s_nop 1")
    k.e(f"v_mfma_f32_32x32x16_bf16 {vr(ACK,16)}, {vr(XE,4)}, {vr(WEK,4)}, {vr(ACK,16)}")
    hilo_w(k, WEV, CSV, T+1)
    k.e("s_nop 1")
    k.e(f"v_mfma_f32_32x32x16_bf16 {vr(ACV,16)}, {vr(XE,4)}, {vr(WEV,4)}, {vr(ACV,16)}")
    k.nop(3)
    for h in range(2):
        for i in range(8*h, 8*h+8, 2):
            phi_ops(k, ACK+i, ACK+i, RL+i, T, sEPS, sLN2)
            phi_ops(k, ACK+i+1, ACK+i+1, RL+i+1, T+1, sEPS, sLN2)
            k.e(f"v_cvt_pk_bf16_f32 v{PKF+i//2}, v{ACK+i}, v{ACK+i+1}")
        for i in range(8*h, 8*h+8, 2):
            k.e(f"v_pk_mul_f32 {vr(ACV+i,2)}, {vr(ACV+i,2)}, {vr(RL+i,2)}")
            k.e(f"v_cvt_pk_bf16_f32 v{VF+i//2}, v{ACV+i}, v{ACV+i+1}")
        k.e("s_mov_b32 exec_lo, 0x10000000\ns_mov_b32 exec_hi, 0x10000000")
        for j in range(4):
            k.e(f"v_mov_b32 v{VF+4*h+j}, s{sONE}")
        k.e("s_mov_b64 exec, -1\ns_nop 0")
        k.e(f"v_mfma_f32_32x32x16_bf16 {vr(KVA,16)}, {vr(PKF+4*h,4)}, {vr(VF+4*h,4)}, {'0' if h == 0 else vr(KVA,16)}")
    k.wait_vm("poll")
    k.label(k.L('poll'))
    k.e(f"""
    v_min_u32 v{T}, v{T+4}, v{T+5}
    v_min3_u32 v{T}, v{T}, v{T+6}, v{T+7}
    v_cmp_eq_u32 vcc, 0, v{T}
    s_cbranch_vccz {k.L('pollok')}
    s_sleep 2
    buffer_load_dwordx4 {vr(T+4,4)}, v5, s[{SDB}:{SDB+3}], s{sT2} offen sc1
    s_waitcnt vmcnt(0)
    s_branch {k.L('poll')}
    """)
    k.label(k.L('pollok'))
    k.nop(7)
    for a in range(4):
        k.e(f"ds_write_b128 v10, {vr(KVA+4*a,4)} offset:{PART+a*1024}")
    arrive(1)
    lwait('w1', 1, 4, T)
    k.stamp(5)
    for u in range(4):
        k.e(f"ds_read2st64_b32 {vr(ACK+4*u,2)}, v3 offset0:{u} offset1:{u+16}")
        k.e(f"ds_read2st64_b32 {vr(ACK+4*u+2,2)}, v3 offset0:{u+32} offset1:{u+48}")
    for u in range(4):
        k.e(f"s_waitcnt lgkmcnt({6-2*u})")
        k.e(f"v_add_f32 v{ACK+4*u}, v{ACK+4*u}, v{ACK+4*u+1}")
        k.e(f"v_add_f32 v{ACK+4*u+2}, v{ACK+4*u+2}, v{ACK+4*u+3}")
        k.e(f"v_add_f32 v{ACK+4*u}, v{ACK+4*u}, v{ACK+4*u+2}")
        if u == 2:
            k.e(f"s_cmp_eq_u32 s{sW}, 3\ns_cbranch_scc1 {k.L('kvend')}")
        k.e(f"buffer_atomic_add_f32 v{ACK+4*u}, v4, s[{SWS}:{SWS+3}], s{sT} offen offset:{u*256}")
    k.label(k.L('kvend'))
    k.stamp(6)
    k.end(SWS, 0, 7)
    k.label(k.L('q'))
    k.vm = list(vm_split)
    XQ, ACQ, WB = 16, 128, 144
    SUM, SQ, CSQ, AWQ, T = 160, 162, 164, 168, 188
    XE2, WE2, RS = 180, 184, 166
    k.e(f"""
    v_bfe_u32 v11, v0, 2, 2
    v_lshl_add_u32 v10, v9, 3, v11
    v_lshlrev_b32 v10, 6, v10
    v_and_b32 v11, 1, v0
    v_lshl_add_u32 v10, v11, 5, v10
    v_bfe_u32 v11, v0, 4, 1
    v_lshl_add_u32 v10, v11, 4, v10
    v_bfe_u32 v11, v0, 1, 1
    v_lshl_add_u32 v10, v11, 3, v10
    v_lshl_add_u32 v10, v14, 10, v10
    v_add_u32 v{AWQ}, {WQ}, v10
    v_xor_b32 v{AWQ+1}, 0x400, v{AWQ}
    v_xor_b32 v{AWQ+2}, 0x800, v{AWQ}
    v_xor_b32 v{AWQ+3}, 0xc00, v{AWQ}
    v_bfe_u32 v10, v0, 2, 4
    v_mul_u32_u24 v4, 2688, v10
    v_and_b32 v10, 3, v0
    v_lshl_add_u32 v4, v10, 4, v4
    """)
    assert WQ % 4096 == 0
    for r in (SUM, SUM+1, SQ, SQ+1, CSQ, CSQ+1):
        k.e(f"v_mov_b32 v{r}, 0")
    def wq_dma(part):
        pos0 = 4*part - 4
        k.e(f"""
        s_lshl_b32 s{sT}, s{sW}, 12
        s_add_i32 m0, s{sT}, {WQ + pos0*4096}
        s_add_u32 s{sT2}, s{sW}, s{sROT}
        s_add_i32 s{sT2}, s{sT2}, {pos0}
        s_cmp_ge_u32 s{sT2}, 7
        s_cselect_b32 s{sT}, 7, 0
        s_sub_u32 s{sT2}, s{sT2}, s{sT}
        """)
        if part:
            k.e(f"s_cmp_eq_u32 s{sW}, 7\ns_cselect_b32 s{sT2}, 8, s{sT2}")
        k.e(f"""
        s_mul_i32 s{sT2}, s{sT2}, {64*2688}
        s_add_u32 s{sT2}, s{sT2}, s{sq}
        """)
        for u in range(4):
            k.vop(f"buffer_load_dwordx4 v4, s[{SW}:{SW+3}], s{sT2} offen offset:{u*1024} lds", f"wq{part}")
            if u < 3: k.e(f"s_add_u32 s{sT2}, s{sT2}, {16*2688-1024}")
    for s in range(NS):
        gate(s)
        if s <= 6:
            for p in range(4):
                xread(XQ+16*s+4*p, s, p)
        issue_after(s)
        if s == 6: wq_dma(0)
        if s == 1: wpf(True)
        if s == 3:
            k.e(f"""
            s_cmp_lg_u32 s{sRB}, 0
            s_cbranch_scc1 {k.L('noflag')}
            s_lshl_b32 s{sT}, s{sH}, 2
            s_add_u32 s{sT}, s{sT}, s{sW}
            s_sub_u32 s{sT}, s{sT}, 4
            s_lshl_b32 s{sT}, s{sT}, 2
            v_mov_b32 v5, 0
            s_mov_b64 exec, 1
            buffer_store_dword v7, v5, s[{SDB}:{SDB+3}], s{sT} offen sc1
            s_mov_b64 exec, -1
            """)
            k.label(k.L('noflag'))
        if s <= 6:
            c = s
            for p in range(4):
                k.e(f"s_waitcnt lgkmcnt({3-p})")
                for j in range(4):
                    r = XQ+16*c+4*p+j
                    k.e(f"v_dot2c_f32_bf16 v{SUM+(j&1)}, s{sONE}, v{r}")
                    k.e(f"v_dot2c_f32_bf16 v{SQ+(j&1)}, v{r}, v{r}")
        if s == 7:
            k.e(f"""
            v_lshlrev_b32 v11, 2, v15
            v_lshlrev_b32 v10, 3, v15
            v_mov_b32 v{XE2+3}, 0
            v_add_f32 v{SUM}, v{SUM}, v{SUM+1}
            v_add_f32 v{SQ}, v{SQ}, v{SQ+1}
            v_mov_b32 v{SUM+1}, v{SUM}
            v_mov_b32 v{SQ+1}, v{SQ}
            v_add_u32 v10, {MISC}, v10
            v_add_u32 v11, {MISC+1024}, v11
            v_permlane32_swap_b32 v{SUM}, v{SUM+1}
            v_permlane32_swap_b32 v{SQ}, v{SQ+1}
            v_mov_b32 v{XE2+2}, 0
            v_add_f32 v{SUM}, v{SUM}, v{SUM+1}
            v_add_f32 v{SQ}, v{SQ}, v{SQ+1}
            v_mul_f32 v{SUM}, 0x{INV_D|0x80000000:x}, v{SUM}
            v_mul_f32 v{SQ}, 0x{INV_D:x}, v{SQ}
            v_fma_f32 v{SQ}, -v{SUM}, v{SUM}, v{SQ}
            v_max_f32 v{SQ}, 0, v{SQ}
            v_add_f32 v{SQ}, 0x{EPS_LN:x}, v{SQ}
            v_rsq_f32 v{RS}, v{SQ}
            """)
            hilo_x(k, XE2, SUM, T)
            k.e(f"""
            v_mul_f32 v{RS}, 0x{LOG2E:x}, v{RS}
            ds_write_b64 v10, {vr(XE2,2)}
            ds_write_b32 v11, v{RS}
            """)
        if s == 7:
            wq_dma(1)
            k.e("s_waitcnt lgkmcnt(0)")
            k.e(f"""
            v_lshlrev_b32 v12, 2, v0
            v_add_u32 v12, {CSX+1024}, v12
            v_and_b32 v10, 63, v0
            v_lshlrev_b32 v13, 2, v10
            v_add_u32 v13, {CSX+2048}, v13
            v_lshlrev_b32 v10, 4, v10
            s_lshl_b32 s{sT}, s{sRB}, 2
            s_add_u32 s{sT}, s{sT}, s{sW}
            s_sub_u32 s{sT}, s{sT}, 4
            s_lshl_b32 s{sT}, s{sT}, 4
            s_add_u32 s{sT}, s{sT}, s{sH}
            s_lshl_b32 s{sT}, s{sT}, 11
            s_add_u32 s{sT}, s{sT}, {PQ_OFF}
            """)
    NB = 4
    def wq_read(kap):
        c, p = kap >> 2, kap & 3
        b = WB + 4*(kap % NB)
        for ri in range(2):
            k.e(f"ds_read_b64_tr_b16 {vr(b+2*ri,2)}, v{AWQ+p} offset:{c*4096+ri*256}")
    def q_range(k0, k1, mid=None):
        for kap in range(k0, min(k0+NB-1, k1)):
            wq_read(kap)
        for kap in range(k0, k1):
            if kap+NB-1 < k1:
                wq_read(kap+NB-1)
            rem = min(k1-1-kap, NB-1)
            k.e(f"s_waitcnt lgkmcnt({2*rem})")
            b = WB + 4*(kap % NB)
            k.e(f"v_mfma_f32_32x32x16_bf16 {vr(ACQ,16)}, {vr(b,4)}, {vr(XQ+4*kap,4)}, {'0' if kap == 0 else vr(ACQ,16)}")
            if (kap & 3) == 0:
                for j in range(4):
                    k.e(f"v_dot2c_f32_bf16 v{CSQ+(j&1)}, s{sONE}, v{b+j}")
            if mid and kap == mid[0]: mid[1]()
    k.e(f"s_setprio {env('QP', 2)}")
    k.e("s_waitcnt vmcnt(4)")
    arrive(2)
    lwait('w2', 2, 4, T)
    k.stamp(4)
    q_range(0, 16)
    k.e("s_waitcnt vmcnt(0)")
    arrive(2)
    lwait('w3', 2, 8, T)
    k.stamp(5)
    def pub():
        k.e(f"""
        v_add_f32 v{CSQ}, v{CSQ}, v{CSQ+1}
        ds_write_b32 v12, v{CSQ}
        """)
        arrive(3)
    q_range(16, 28, mid=(26, pub))
    lwait('w4', 3, 4, T)
    k.e(f"""
    ds_read2st64_b32 {vr(WB,2)}, v13 offset0:0 offset1:1
    ds_read2st64_b32 {vr(WB+2,2)}, v13 offset0:2 offset1:3
    s_waitcnt lgkmcnt(0)
    v_add_f32 v{WB}, v{WB}, v{WB+1}
    v_add_f32 v{WB+2}, v{WB+2}, v{WB+3}
    v_add_f32 v{CSQ}, v{WB}, v{WB+2}
    """)
    hilo_w(k, WE2, CSQ, T)
    k.e(f"""
    s_nop 1
    v_mfma_f32_32x32x16_bf16 {vr(ACQ,16)}, {vr(WE2,4)}, {vr(XE2,4)}, {vr(ACQ,16)}
    """)
    k.nop(12)
    for i in range(0, 16, 2):
        phi_ops(k, ACQ+i, ACQ+i, RS, T, sEPS, sLN2)
        phi_ops(k, ACQ+i+1, ACQ+i+1, RS, T+1, sEPS, sLN2)
        k.e(f"v_cvt_pk_bf16_f32 v{WB+i//2}, v{ACQ+i}, v{ACQ+i+1}")
        if i == 6:
            k.e(f"buffer_store_dwordx4 {vr(WB,4)}, v10, s[{SWS}:{SWS+3}], s{sT} offen sc1")
    k.e(f"buffer_store_dwordx4 {vr(WB+4,4)}, v10, s[{SWS}:{SWS+3}], s{sT} offen offset:1024 sc1")
    k.stamp(6)
    k.end(SWS, 0, 7)
    k.label(k.L('end'))
    k.e("s_endpgm")
    return k, dict(vgpr=192, sgpr=64, grid=256, block=512, lds=163840)
```

```python
import sys, os
sys.path.insert(0, "dev")
os.environ.setdefault('STF', 'sc1')
os.environ['ZFL'] = '1'
import gen3
from gen3 import *

HPACE = env('HPACE', 8)
APRE = env('APRE', 4)
WSZ = (STAMP_OFF + 8*65536*2) if STAMPS else WS_USED

def flush(k, sws, kid, n, tv):
    if not STAMPS: return
    k.e("s_waitcnt lgkmcnt(0)")
    k.e("s_mov_b64 exec, 1")
    for i in range(8):
        k.e(f"v_mov_b32 v{tv+i}, s{40+2*i}" if i < n else f"v_mov_b32 v{tv+i}, 0")
    k.e(f"""
    v_lshrrev_b32 v{tv+8}, 6, v0
    v_lshlrev_b32 v{tv+8}, 5, v{tv+8}
    s_lshl_b32 s38, s2, 8
    s_add_u32 s38, s38, {STAMP_OFF + kid*65536*2}
    buffer_store_dwordx4 {vr(tv,4)}, v{tv+8}, s[{sws}:{sws+3}], s38 offen
    buffer_store_dwordx4 {vr(tv+4,4)}, v{tv+8}, s[{sws}:{sws+3}], s38 offen offset:16
    s_mov_b64 exec, -1
    """)

PSLEEP = env('PSLEEP', 1)
def poll(k, name, soff, target, va, vt, sws, scnt, sW, pw):
    k.e(f"""
    s_cmp_lg_u32 s{sW}, {pw}
    s_cbranch_scc1 {k.L(name+'ok')}
    s_mov_b32 s{scnt}, 0x200000
    v_mov_b32 v{va}, 0
    """)
    k.label(k.L(name))
    k.e(f"""
    buffer_load_dword v{vt}, v{va}, s[{sws}:{sws+3}], s{soff} offen sc1
    s_waitcnt vmcnt(0)
    v_cmp_gt_u32 vcc, {target}, v{vt}
    s_cbranch_vccz {k.L(name+'ok')}
    s_sleep {PSLEEP}
    s_sub_u32 s{scnt}, s{scnt}, 1
    s_cbranch_scc0 {k.L(name)}
    """)
    k.label(k.L(name+'ok'))
    k.e("s_waitcnt vmcnt(0)\ns_barrier")
    k.vm = []

def signal(k, name, soff, n, stride_log2, va, vt, sws, sW):
    k.e(f"""
    s_cmp_lg_u32 s{sW}, 0
    s_cbranch_scc1 {k.L(name)}
    v_lshlrev_b32 v{va}, {stride_log2}, v0
    v_mov_b32 v{vt}, 1
    s_mov_b64 exec, {(1 << n) - 1}
    buffer_atomic_add v{vt}, v{va}, s[{sws}:{sws+3}], s{soff} offen sc1
    s_mov_b64 exec, -1
    """)
    k.label(k.L(name))

def gen_f():
    k = K("kf")
    SX, SW, SWS, SG, SU, SD, SO = 4, 8, 12, 56, 60, 64, 68
    sW, sRB, sCB, sT, sT2, sT3, sEPS, sONE, sKV, sPQ0, sWO, sROT, sLN2 = 20, 21, 22, 23, 24, 25, 26, 27, 28, 29, 30, 31, 19
    sFB, sRT, sCG, sWOFF, sH, sQ, sDCG, sDW, sA, sKH, sCNT = 16, 17, 18, 32, 33, 34, 35, 36, 37, 39, 72
    BB = 98304
    k.stamp(0)
    k.e(f"""
    s_cmp_ge_u32 s2, 256
    s_cbranch_scc1 {k.L('end')}
    s_load_dwordx2 s[{SWS}:{SWS+1}], s[0:1], 72
    s_load_dwordx2 s[{SG}:{SG+1}], s[0:1], 32
    s_load_dwordx2 s[{SU}:{SU+1}], s[0:1], 40
    s_cmp_ge_u32 s2, 224
    s_cbranch_scc1 {k.L('cs')}
    s_load_dwordx2 s[{SX}:{SX+1}], s[0:1], 0
    s_load_dwordx2 s[{SW}:{SW+1}], s[0:1], 16
    s_load_dwordx2 s[{SD}:{SD+1}], s[0:1], 48
    s_load_dwordx2 s[{SO}:{SO+1}], s[0:1], 56
    v_lshrrev_b32 v5, 6, v0
    v_and_b32 v1, 63, v0
    v_readfirstlane_b32 s{sW}, v5
    v_lshlrev_b32 v1, 4, v1
    v_bfe_u32 v9, v0, 5, 1
    s_lshr_b32 s{sT2}, s2, 3
    """)
    div7(k, sQ, sCB, sT2)
    k.e(f"""
    s_and_b32 s{sT}, s2, 7
    s_lshl_b32 s{sT}, s{sT}, 2
    s_add_u32 s{sRB}, s{sQ}, s{sT}
    s_lshl_b32 s{sWO}, s{sCB}, 7
    """)
    srd_consts(k, SWS, WSZ)
    k.e(f"""
    s_cmp_ge_u32 s{sW}, 4
    s_cbranch_scc1 {k.L('ld')}
    """)
    k.e(f"""
    v_bfe_u32 v6, v0, 3, 2
    v_and_b32 v7, 3, v0
    v_lshl_add_u32 v6, v6, 2, v7
    v_bfe_u32 v7, v0, 2, 1
    v_mad_u32_u24 v7, v7, 14, v6
    v_cmp_gt_u32 vcc, 14, v6
    v_bfe_u32 v6, v0, 3, 3
    v_and_b32 v8, 7, v0
    v_cndmask_b32 v7, 28, v7, vcc
    v_lshlrev_b32 v2, 4, v7
    v_lshl_add_u32 v2, v9, 11, v2
    v_bfe_u32 v7, v0, 4, 1
    v_lshlrev_b32 v7, 2, v7
    v_xor_b32 v7, v7, v8
    v_mul_u32_u24 v3, 896, v6
    v_lshl_add_u32 v3, v7, 4, v3
    s_add_u32 s{sROT}, s{sQ}, s{sCB}
    s_and_b32 s{sROT}, s{sROT}, 3
    s_lshl_b32 s{sT}, s{sW}, 2
    s_add_u32 s{sROT}, s{sROT}, s{sT}
    s_and_b32 s{sT}, s{sW}, 1
    s_lshl_b32 s{sT2}, s{sRB}, 1
    s_add_u32 s{sT3}, s{sT2}, s{sT}
    s_lshl_b32 s{sPQ0}, s{sT3}, 15
    s_add_u32 s{sPQ0}, s{sPQ0}, {PQ_OFF}
    s_lshl_b32 s{sT}, s{sW}, 14
    s_add_u32 m0, s{sT}, {BB}
    """)
    srd_consts(k, SX, S*D*2)
    srd_consts(k, SW, D*D*2)
    k.e(f"""
    s_mov_b32 s{sEPS}, 0x{EPS_PHI:x}
    s_mov_b32 s{sONE}, 0x{ONES_BF:x}
    s_mov_b32 s{sLN2}, 0x{LN2:x}
    s_waitcnt lgkmcnt(0)
    """)
    k.stamp(1)
    KVF, PQR, ACC, OA, XR = 16, 80, 144, 208, 248
    def ld_head(p):
        k.e(f"""
        s_xor_b32 s{sT}, s{sROT}, {p}
        s_lshl_b32 s{sKV}, s{sT}, 12
        s_lshl_b32 s{sT}, s{sT}, 11
        s_add_u32 s{sT}, s{sT}, s{sPQ0}
        s_xor_b32 s{sT2}, s{sT}, 0x8000
        """)
        for q in range(4):
            k.vop(f"buffer_load_dwordx4 {vr(KVF+16*p+4*q,4)}, v2, s[{SWS}:{SWS+3}], s{sKV} offen offset:{q*512}", f"kv{p}")
        for rt in range(2):
            for f in range(2):
                k.vop(f"buffer_load_dwordx4 {vr(PQR+16*p+8*rt+4*f,4)}, v1, s[{SWS}:{SWS+3}], s{sT if rt == 0 else sT2} offen offset:{f*1024}", f"pq{p}")
    def ld_wo(p):
        k.e(f"""
        s_xor_b32 s{sT}, s{sROT}, {p}
        s_mul_i32 s{sT}, s{sT}, {28*896}
        s_add_u32 s{sT}, s{sT}, s{sWO}
        """)
        for u in range(4):
            k.vop(f"buffer_load_dwordx4 v3, s[{SW}:{SW+3}], s{sT} offen offset:{u*1024} lds", f"wo{p}")
            if u < 3: k.e(f"s_add_u32 s{sT}, s{sT}, {7168-1024}")
        k.e("s_add_u32 m0, m0, 4096")
    ld_head(0); ld_head(1)
    def ld_x():
        k.e(f"""
        v_and_b32 v6, 31, v0
        v_mul_u32_u24 v4, 896, v6
        v_lshl_add_u32 v4, v9, 5, v4
        s_mul_i32 s{sT}, s{sT3}, {32*896}
        s_add_u32 s{sT}, s{sT}, s{sWO}
        s_lshr_b32 s{sT2}, s{sW}, 1
        s_lshl_b32 s{sT2}, s{sT2}, 6
        s_add_u32 s{sT}, s{sT}, s{sT2}
        """)
        k.vop(f"buffer_load_dwordx4 {vr(XR,4)}, v4, s[{SX}:{SX+3}], s{sT} offen", "x")
        k.vop(f"buffer_load_dwordx4 {vr(XR+4,4)}, v4, s[{SX}:{SX+3}], s{sT} offen offset:16", "x")
    AW0, AW1 = 14, 15
    k.e(f"""
    v_bfe_u32 v7, v0, 2, 2
    v_mad_u32_u24 v5, v9, 14, v7
    v_lshlrev_b32 v5, 7, v5
    v_lshrrev_b32 v7, 1, v7
    v_xor_b32 v7, v7, v9
    v_bfe_u32 v8, v0, 7, 1
    v_xor_b32 v7, v7, v8
    v_lshl_add_u32 v5, v7, 6, v5
    v_and_b32 v7, 1, v0
    v_lshl_add_u32 v5, v7, 5, v5
    v_bfe_u32 v7, v0, 4, 1
    v_lshl_add_u32 v5, v7, 4, v5
    v_bfe_u32 v7, v0, 1, 1
    v_lshl_add_u32 v5, v7, 3, v5
    v_lshrrev_b32 v7, 6, v0
    v_lshl_add_u32 v5, v7, 14, v5
    v_add_u32 v{AW0}, {BB}, v5
    v_xor_b32 v{AW1}, 64, v{AW0}
    """)
    def o_stage(p):
        k.wait_vm(f"kv{p}")
        if p == 0: k.stamp(2)
        if p == 3: k.stamp(3)
        b = KVF+16*p
        for i in range(8):
            k.e(f"v_cvt_pk_bf16_f32 v{b+i}, v{b+2*i}, v{b+2*i+1}")
        k.wait_vm(f"pq{p}")
        k.e("s_nop 0")
        for rt in range(2):
            for f in range(2):
                k.e(f"v_mfma_f32_32x32x16_bf16 {vr(OA+16*rt,16)}, {vr(b+4*f,4)}, {vr(PQR+16*p+8*rt+4*f,4)}, {'0' if f == 0 else vr(OA+16*rt,16)}")
    def norm_stage(p):
        for rt in range(2):
            o = OA+16*rt
            d = PQR+16*p+8*rt
            k.e(f"v_add_f32 v{o+14}, s{sEPS}, v{o+14}")
            k.e(f"v_rcp_f32 v{o+14}, v{o+14}")
            k.e(f"v_mov_b32 v{d+7}, 0")
            k.e(f"v_mul_f32 v{o+14}, s{sLN2}, v{o+14}")
            for i in range(0, 14, 2):
                k.e(f"v_pk_mul_f32 {vr(o+i,2)}, {vr(o+i,2)}, {vr(o+14,2)} op_sel_hi:[1,0]")
            for i in range(0, 14, 2):
                k.e(f"v_cvt_pk_bf16_f32 v{d+i//2}, v{o+i}, v{o+i+1}")
    def w_reads(p):
        k.wait_vm(f"wo{p}")
        for f in range(2):
            for ct in range(2):
                for ri in range(2):
                    k.e(f"ds_read_b64_tr_b16 {vr(KVF+16*p+8*f+4*ct+2*ri,2)}, v{AW0 if ct == 0 else AW1} offset:{(32*p+8*f+4*ri)*128}")
    def main_stage(p):
        for f in range(2):
            for ct in range(2):
                k.e(f"s_waitcnt lgkmcnt({6-4*f-2*ct})")
                for rt in range(2):
                    a = ACC+16*(2*ct+rt)
                    first = (p == 0 and f == 0)
                    k.e(f"v_mfma_f32_32x32x16_bf16 {vr(a,16)}, {vr(KVF+16*p+8*f+4*ct,4)}, {vr(PQR+16*p+8*rt+4*f,4)}, {'0' if first else vr(a,16)}")
    for p in range(4):
        o_stage(p)
        if p == 0: ld_wo(0); ld_head(2)
        if p == 1: ld_wo(1); ld_head(3)
        if p == 2:
            ld_wo(2); ld_wo(3); ld_x()
            k.e("s_barrier")
        if p > 0:
            main_stage(p-1)
        norm_stage(p)
        w_reads(p)
    k.stamp(4)
    k.e("s_nop 1")
    main_stage(3)
    k.e(f"""
    v_lshrrev_b32 v7, 6, v0
    v_add_u32 v6, {BB}, v1
    v_lshl_add_u32 v8, v7, 14, v6
    """)
    for tp in range(1, 4):
        k.e(f"v_xor_b32 v{10+tp}, {tp}, v7")
        k.e(f"v_lshl_add_u32 v{10+tp}, v{10+tp}, 14, v6")
    k.e(f"""
    s_lshl_b32 s{sT}, s{sCB}, 1
    s_lshr_b32 s{sT2}, s{sW}, 1
    s_add_u32 s{sKV}, s{sT}, s{sT2}
    s_mul_i32 s{sT2}, s{sT3}, 14
    s_add_u32 s{sT}, s{sKV}, s{sT2}
    s_lshl_b32 s{sT2}, s{sT}, 8
    s_add_u32 s{sT2}, s{sT2}, {ST_OFF}
    s_lshl_b32 s{sT}, s{sT}, 11
    s_add_u32 s{sT}, s{sT}, {HF_OFF}
    """)
    for tp in range(1, 4):
        for a in range(4):
            k.e(f"ds_write_b128 v8, {vr(ACC+16*tp+4*a,4)} offset:{(tp-1)*4096+a*1024}")
    k.wait_vm("x")
    XU = 80
    for i in range(8):
        k.e(f"v_lshlrev_b32 v{XU+2*i}, 16, v{XR+i}")
        k.e(f"v_and_b32 v{XU+2*i+1}, 0xffff0000, v{XR+i}")
    for i in range(0, 16, 2):
        k.e(f"v_pk_add_f32 {vr(ACC+i,2)}, {vr(ACC+i,2)}, {vr(XU+i,2)}")
    k.e("""
    v_mov_b32 v4, 0
    v_mov_b32 v5, 0
    s_waitcnt lgkmcnt(0)
    s_barrier
    """)
    k.stamp(5)
    for tp in range(1, 4):
        for a in range(4):
            k.e(f"ds_read_b128 {vr(16*tp+4*a,4)}, v{10+tp} offset:{(tp-1)*4096+a*1024}")
    for j in range(3):
        k.e(f"s_waitcnt lgkmcnt({8-4*j})")
        for i in range(0, 16, 2):
            k.e(f"v_pk_add_f32 {vr(ACC+i,2)}, {vr(ACC+i,2)}, {vr(16+16*j+i,2)}")
    HO = 96
    for i in range(8):
        k.e(f"v_cvt_pk_bf16_f32 v{HO+i}, v{ACC+2*i}, v{ACC+2*i+1}")
    k.e(f"""
    buffer_store_dwordx4 {vr(HO,4)}, v1, s[{SWS}:{SWS+3}], s{sT} offen sc1
    buffer_store_dwordx4 {vr(HO+4,4)}, v1, s[{SWS}:{SWS+3}], s{sT} offen offset:1024 sc1
    """)
    for i in range(8):
        k.e(f"v_dot2c_f32_bf16 v4, s{sONE}, v{HO+i}")
        k.e(f"v_dot2c_f32_bf16 v5, v{HO+i}, v{HO+i}")
    k.e(f"""
    v_and_b32 v6, 31, v0
    v_lshlrev_b32 v6, 3, v6
    s_lshr_b32 s{sT}, s{sRB}, 2
    v_mov_b32 v12, v4
    v_mov_b32 v13, v5
    s_mul_i32 s{sT}, s{sT}, {28*128}
    s_add_u32 s{sT}, s{sT}, {FL_OFF}
    v_permlane32_swap_b32 v4, v12
    v_permlane32_swap_b32 v5, v13
    s_nop 0
    v_add_f32 v4, v4, v12
    v_add_f32 v5, v5, v13
    s_mov_b32 exec_hi, 0
    buffer_store_dwordx2 v[4:5], v6, s[{SWS}:{SWS+3}], s{sT2} offen sc1
    s_mov_b64 exec, -1
    """)
    k.stamp(6)
    k.e("s_waitcnt vmcnt(0)\ns_barrier")
    signal(k, 'sg1', sT, 28, 7, 7, 8, SWS, sW)
    k.stamp(7)
    flush(k, SWS, 1, 8, 16)
    k.e(f"s_branch {k.L('cc')}")
    def c_setup_scalar():
        k.e(f"""
        s_lshl_b32 s{sT}, s{sQ}, 1
        s_add_u32 s{sT}, s{sT}, s{sCB}
        """)
        div7(k, sT2, sCG, sT)
        k.e(f"""
        s_and_b32 s{sT2}, s2, 3
        s_mul_i32 s{sT2}, s{sT2}, 7
        s_add_u32 s{sFB}, s{sCB}, s{sT2}
        """)
        srd_consts(k, SG, D*F*2)
        srd_consts(k, SU, D*F*2+1024)
    k.label(k.L('ld'))
    k.vm = []
    c_setup_scalar()
    k.e(f"""
    v_bfe_u32 v6, v0, 3, 3
    v_bfe_u32 v7, v0, 6, 2
    v_lshl_add_u32 v6, v7, 4, v6
    v_and_b32 v8, 7, v0
    v_bfe_u32 v7, v0, 4, 1
    v_lshlrev_b32 v7, 2, v7
    v_xor_b32 v7, v7, v8
    v_mul_u32_u24 v2, 3584, v6
    v_lshl_add_u32 v2, v7, 4, v2
    v_add_u32 v3, {8*3584-2048}, v2
    s_lshl_b32 s{sWOFF}, s{sFB}, 7
    s_mul_i32 s{sT}, s{sCG}, {64*3584}
    s_add_u32 s{sWOFF}, s{sWOFF}, s{sT}
    s_mov_b32 s{sH}, s{sCG}
    s_and_b32 s{sT}, s{sW}, 3
    s_lshl_b32 m0, s{sT}, 12
    s_waitcnt lgkmcnt(0)
    s_sub_u32 s{SU}, s{SU}, 1024
    s_subb_u32 s{SU+1}, s{SU+1}, 0
    s_barrier
    """)
    for c in range(6):
        k.e(f"""
        buffer_load_dwordx4 v2, s[{SG}:{SG+3}], s{sWOFF} offen lds
        buffer_load_dwordx4 v2, s[{SU}:{SU+3}], s{sWOFF} offen offset:1024 lds
        buffer_load_dwordx4 v3, s[{SG}:{SG+3}], s{sWOFF} offen offset:2048 lds
        buffer_load_dwordx4 v3, s[{SU}:{SU+3}], s{sWOFF} offen offset:3072 lds
        """)
        if c < 5:
            k.e(f"""
            s_add_u32 m0, m0, 16384
            s_add_u32 s{sH}, s{sH}, 1
            s_cmp_eq_u32 s{sH}, 7
            s_cselect_b32 s{sT}, -6, 1
            s_mul_i32 s{sT}, s{sT}, {64*3584}
            s_add_u32 s{sWOFF}, s{sWOFF}, s{sT}
            """)
        if c == 2: k.e("s_barrier")
    k.e("s_barrier")
    k.e(f"s_branch {k.L('cj')}")
    k.label(k.L('cc'))
    c_setup_scalar()
    k.e(f"""
    s_sub_u32 s{SU}, s{SU}, 1024
    s_subb_u32 s{SU+1}, s{SU+1}, 0
    """)
    k.label(k.L('cj'))
    k.vm = []
    k.stamp(0)
    HFR, ACC, WF, STR, CSR = 16, 128, 192, 208, 224
    k.e(f"""
    s_and_b32 s{sT}, s2, 4
    s_add_u32 s{sT}, s{sT}, s{sQ}
    s_lshl_b32 s{sRT}, s{sT}, 3
    s_add_u32 s{sRT}, s{sRT}, s{sW}
    s_mul_i32 s{sPQ0}, s{sT}, 28
    s_add_u32 s{sT3}, s{sPQ0}, s{sFB}
    s_lshl_b32 s{sT3}, s{sT3}, 7
    s_add_u32 s{sT3}, s{sT3}, {FL_OFF}
    s_mul_i32 s{sH}, s{sRT}, 28672
    s_lshl_b32 s{sT}, s{sCG}, 12
    s_add_u32 s{sH}, s{sH}, s{sT}
    s_add_u32 s{sH}, s{sH}, {HF_OFF}
    """)
    AW0, AW1 = 10, 11
    k.e(f"""
    s_add_u32 s{sT}, s{sCG}, 6
    s_cmp_ge_u32 s{sT}, 7
    s_cselect_b32 s{sT2}, 7, 0
    s_sub_u32 s{sT}, s{sT}, s{sT2}
    s_mul_i32 s{sT}, s{sT}, {64*3584}
    s_lshl_b32 s{sWOFF}, s{sFB}, 7
    s_add_u32 s{sWOFF}, s{sWOFF}, s{sT}
    v_lshrrev_b32 v6, 3, v0
    v_and_b32 v8, 7, v0
    v_bfe_u32 v7, v0, 4, 1
    v_lshlrev_b32 v4, 2, v7
    v_xor_b32 v4, v4, v8
    v_mul_u32_u24 v3, 3584, v6
    v_lshl_add_u32 v3, v4, 4, v3
    v_bfe_u32 v4, v0, 6, 1
    v_lshl_add_u32 v7, v4, 1, v7
    v_lshlrev_b32 v7, 1, v7
    v_xor_b32 v7, v7, v8
    v_mul_u32_u24 v14, 896, v6
    v_lshl_add_u32 v14, v7, 4, v14
    v_add_u32 v15, {896*896-1024}, v14
    v_bfe_u32 v7, v0, 2, 2
    v_lshlrev_b32 v6, 12, v9
    v_lshl_add_u32 v6, v7, 7, v6
    v_lshrrev_b32 v7, 1, v7
    v_lshl_add_u32 v6, v7, 6, v6
    v_and_b32 v7, 1, v0
    v_lshl_add_u32 v6, v7, 5, v6
    v_bfe_u32 v7, v0, 4, 1
    v_lshl_add_u32 v6, v7, 4, v6
    v_bfe_u32 v7, v0, 1, 1
    v_lshl_add_u32 v{AW0}, v7, 3, v6
    v_xor_b32 v{AW1}, 64, v{AW0}
    v_add_u32 v12, 0x10000, v{AW0}
    v_add_u32 v13, 0x10000, v{AW1}
    v_and_b32 v6, 31, v0
    v_mul_u32_u24 v4, 1792, v9
    v_lshl_add_u32 v4, v6, 3, v4
    v_bfe_u32 v7, v0, 2, 1
    v_bfe_u32 v8, v0, 3, 2
    v_lshlrev_b32 v7, 4, v7
    v_lshl_add_u32 v7, v8, 2, v7
    v_and_b32 v8, 3, v0
    v_add_lshl_u32 v2, v7, v8, 2
    s_mul_i32 s{sT}, s{sQ}, 7
    s_lshr_b32 s{sT}, s{sT}, 1
    s_lshl_b32 s{sDCG}, s{sCB}, 1
    s_add_u32 s{sDCG}, s{sDCG}, s{sT}
    s_cmp_ge_u32 s{sDCG}, 14
    s_cselect_b32 s{sT}, 14, 0
    s_sub_u32 s{sDCG}, s{sDCG}, s{sT}
    s_mul_i32 s{sT}, s{sDCG}, {64*896}
    s_add_u32 s{sDW}, s{sWO}, s{sT}
    s_mov_b32 s{sROT}, s{sDCG}
    s_mul_i32 s{sT}, s{sRT}, 3584
    s_add_u32 s{sT}, s{sT}, {ST_OFF}
    s_lshl_b32 s{sT2}, s{sFB}, 8
    s_add_u32 s{sT2}, s{sT2}, {CS_OFF}
    s_add_u32 s{sKV}, s{sT2}, 7168
    """)
    srd_consts(k, SD, F*D*2)
    srd_consts(k, SO, S*D*2)
    poll(k, 'p1', sT3, 28, 5, 6, SWS, sCNT, sW, 4)
    k.stamp(1)
    def h_loads(c):
        L = []
        for j in range(4):
            def hj(j=j):
                if j == 0 and c > 0:
                    k.e(f"""
                    s_add_u32 s{sCG}, s{sCG}, 1
                    s_cmp_eq_u32 s{sCG}, 7
                    s_cselect_b32 s{sT3}, -6, 1
                    s_lshl_b32 s{sT3}, s{sT3}, 12
                    s_add_u32 s{sH}, s{sH}, s{sT3}
                    """)
                k.vop(f"buffer_load_dwordx4 {vr(HFR+16*c+4*j,4)}, v1, s[{SWS}:{SWS+3}], s{sH} offen offset:{j*1024} sc1", f"h{c}")
            L.append(hj)
        return L
    dslot = [7, 8, 9, 0, 1, 2, 3, 4, 5, 6, 7, 8, 9, 0]
    def wd_dma(j):
        k.e(f"""
        s_lshl_b32 s{sT3}, s{sW}, 11
        s_add_u32 m0, s{sT3}, {dslot[j]*16384}
        """)
        if j > 0:
            k.e(f"""
            s_add_u32 s{sDCG}, s{sDCG}, 1
            s_cmp_eq_u32 s{sDCG}, 14
            s_cselect_b32 s{sT3}, -13, 1
            s_mul_i32 s{sT3}, s{sT3}, {64*896}
            s_add_u32 s{sDW}, s{sDW}, s{sT3}
            """)
        else:
            k.e("s_nop 0")
        k.vop(f"buffer_load_dwordx4 v14, s[{SD}:{SD+3}], s{sDW} offen lds", f"w{j}")
        k.vop(f"buffer_load_dwordx4 v15, s[{SD}:{SD+3}], s{sDW} offen offset:1024 lds", f"w{j}")
    def w6():
        k.e(f"""
        s_lshl_b32 s{sT3}, s{sW}, 11
        s_add_u32 m0, s{sT3}, {6*16384}
        s_nop 0
        """)
        k.vop(f"buffer_load_dwordx4 v3, s[{SG}:{SG+3}], s{sWOFF} offen lds", "wc6")
        k.vop(f"buffer_load_dwordx4 v3, s[{SU}:{SU+3}], s{sWOFF} offen offset:1024 lds", "wc6")
    for f in h_loads(0): f()
    k.e("s_barrier")
    for f in h_loads(1): f()
    stl = []
    for u in range(7):
        stl.append(lambda u=u: k.vop(f"buffer_load_dwordx2 {vr(STR+2*u,2)}, v4, s[{SWS}:{SWS+3}], s{sT} offen offset:{u*256} sc1", "st"))
    for q in range(4):
        stl.append(lambda q=q: k.vop(f"buffer_load_dword v{CSR+q}, v2, s[{SWS}:{SWS+3}], s{sT2 if q < 2 else sKV} offen offset:{(q&1)*128} sc1", "st"))
    KS = CKS
    units = [(kap, tau) for kap in range(KS) for tau in range(4)]
    units += [(kap, tau) for kap in range(KS, 28) for tau in (0, 2)] + [('x', 0), ('x', 2)]
    nA = len(units)
    units += [(kap, tau) for kap in range(KS, 28) for tau in (1, 3)] + [('x', 1), ('x', 3)]
    NU = len(units)
    DEP = 4
    T, XE, WE = 228, 232, 236
    C1, IR2 = STR+4, STR+2
    g6 = next(u for u in range(NU) if units[u][0] != 'x' and units[u][0] >= 24) - DEP
    assert g6 >= 4*KS and KS >= 16
    pend = []
    for c in range(2, 7):
        for i, f in enumerate(h_loads(c)):
            pend.append(((c-2)*HPACE + 2*i, f))
    e0 = 5*HPACE
    pend.append((e0, w6))
    for i, f in enumerate(stl): pend.append((e0+2+i, f))
    for j in range(3): pend.append((e0+14+4*j, lambda j=j: wd_dma(j)))
    for j in range(3, 7): pend.append((g6+2+5*(j-3), lambda j=j: wd_dma(j)))
    pend.sort(key=lambda x: x[0])
    kk = K("tmp")
    for u in range(1, 7):
        kk.e(f"v_add_f32 v{STR}, v{STR}, v{STR+2*u}")
        kk.e(f"v_add_f32 v{STR+1}, v{STR+1}, v{STR+2*u+1}")
    kk.e(f"""
    v_cmp_eq_u32 vcc, 0, v9
    v_mov_b32 v{STR+2}, v{STR}
    v_mov_b32 v{STR+3}, v{STR+1}
    v_cndmask_b32 v{CSR}, 0, v{CSR}, vcc
    v_cndmask_b32 v{CSR+1}, 0, v{CSR+1}, vcc
    v_permlane32_swap_b32 v{STR}, v{STR+2}
    v_permlane32_swap_b32 v{STR+1}, v{STR+3}
    v_cndmask_b32 v{CSR+2}, 0, v{CSR+2}, vcc
    v_cndmask_b32 v{CSR+3}, 0, v{CSR+3}, vcc
    v_add_f32 v{STR}, v{STR}, v{STR+2}
    v_add_f32 v{STR+1}, v{STR+1}, v{STR+3}
    v_mul_f32 v{STR}, 0x{INV_D|0x80000000:x}, v{STR}
    v_mul_f32 v{STR+1}, 0x{INV_D:x}, v{STR+1}
    v_fma_f32 v{STR+1}, -v{STR}, v{STR}, v{STR+1}
    v_max_f32 v{STR+1}, 0, v{STR+1}
    v_add_f32 v{STR+2}, 0x{EPS_LN:x}, v{STR+1}
    v_rsq_f32 v{STR+4}, v{STR+2}
    """)
    hilo_x(kk, XE, STR, T)
    kk.e(f"v_mov_b32 v{XE+2}, 0\nv_mov_b32 v{XE+3}, 0")
    kk.e(f"v_mul_f32 v{STR+4}, 0x{LOG2E|0x80000000:x}, v{STR+4}")
    for tau in range(4):
        hilo_w(kk, WE+4*tau, CSR+tau, T+1)
    kk.e(f"""
    v_bfe_u32 v7, v0, 4, 1
    v_mul_u32_u24 v4, 57344, v7
    v_lshl_add_u32 v4, v9, 9, v4
    v_and_b32 v7, 15, v0
    v_lshl_add_u32 v4, v7, 4, v4
    s_mul_i32 s{sT}, s{sRT}, 114688
    s_lshl_b32 s{sT2}, s{sFB}, 11
    s_add_u32 s{sT}, s{sT}, s{sT2}
    s_add_u32 s{sT}, s{sT}, {ACT_OFF}
    """)
    side1 = [l.strip() for l in kk.lines]
    def epi(ct, packed):
        kk = K("tmp")
        O = 16 + 8*ct
        g, u = ACC+16*ct, ACC+32+16*ct
        for i in range(0, 16, 2):
            t = 32 + (i % 8)
            if packed:
                kk.e(f"v_pk_mul_f32 {vr(t,2)}, {vr(g+i,2)}, {vr(C1,2)} op_sel_hi:[1,0]")
                kk.e(f"v_pk_mul_f32 {vr(g+i,2)}, {vr(g+i,2)}, {vr(u+i,2)}")
                kk.e(f"v_exp_f32 v{t}, v{t}")
                kk.e(f"v_exp_f32 v{t+1}, v{t+1}")
                kk.e("s_nop 0")
                kk.e(f"v_pk_fma_f32 {vr(t,2)}, {vr(t,2)}, {vr(IR2,2)}, {vr(IR2,2)} op_sel_hi:[1,0,0]")
                kk.e(f"v_rcp_f32 v{t}, v{t}")
                kk.e(f"v_rcp_f32 v{t+1}, v{t+1}")
                kk.e("s_nop 0")
                kk.e(f"v_pk_mul_f32 {vr(g+i,2)}, {vr(g+i,2)}, {vr(t,2)}")
            else:
                kk.e(f"v_mul_f32 v{t}, v{g+i}, v{C1}")
                kk.e(f"v_mul_f32 v{t+1}, v{g+i+1}, v{C1}")
                kk.e(f"v_exp_f32 v{t}, v{t}")
                kk.e(f"v_mul_f32 v{g+i}, v{g+i}, v{u+i}")
                kk.e(f"v_exp_f32 v{t+1}, v{t+1}")
                kk.e(f"v_mul_f32 v{g+i+1}, v{g+i+1}, v{u+i+1}")
                kk.e(f"v_fma_f32 v{t}, v{t}, v{IR2}, v{IR2}")
                kk.e(f"v_fma_f32 v{t+1}, v{t+1}, v{IR2}, v{IR2}")
                kk.e(f"v_rcp_f32 v{t}, v{t}")
                kk.e(f"v_rcp_f32 v{t+1}, v{t+1}")
                kk.e(f"v_mul_f32 v{g+i}, v{g+i}, v{t}")
                kk.e(f"v_mul_f32 v{g+i+1}, v{g+i+1}, v{t+1}")
            kk.e(f"v_cvt_pk_bf16_f32 v{O+i//2}, v{g+i}, v{g+i+1}")
            if i % 8 == 6:
                f = i // 8
                kk.e(f"buffer_store_dwordx4 {vr(O+4*f,4)}, v4, s[{SWS}:{SWS+3}], s{sT} offen offset:{ct*1024+f*256} sc1")
        return [l.strip() for l in kk.lines]
    side2 = epi(0, False)
    s1_start = nA - 2 - (len(side1)+3)//4 - 1
    assert s1_start > e0+2+len(stl)
    s2_start = nA + 3
    hw = set()
    gate = dict(done=False)
    def rd(u):
        kap, tau = units[u]
        if kap == 'x': return
        if kap >= 24 and not gate['done']:
            gate['done'] = True
            k.wait_vm("wc6")
            k.e("s_barrier")
            k.stamp(4)
        cc, tl, f = kap >> 2, (kap >> 1) & 1, kap & 1
        m, ct = tau >> 1, tau & 1
        o = cc*16384 + tl*8192 + f*2048 + m*1024
        a = AW0 + ct
        if o >= 0x10000: o -= 0x10000; a += 2
        for ri in range(2):
            k.e(f"ds_read_b64_tr_b16 {vr(WF+4*(u%DEP)+2*ri,2)}, v{a} offset:{o+ri*512}")
    for u in range(DEP): rd(u)
    started = set()
    for u in range(NU):
        kap, tau = units[u]
        a = ACC+16*tau
        if kap == 'x':
            assert not side1
            k.e(f"v_mfma_f32_32x32x16_bf16 {vr(a,16)}, {vr(WE+4*tau,4)}, {vr(XE,4)}, {vr(a,16)}")
        else:
            if (kap >> 2) not in hw:
                hw.add(kap >> 2)
                k.wait_vm(f"h{kap>>2}")
                if kap == 0: k.stamp(2)
                if kap == 12: k.stamp(3)
            nout = sum(1 for v in range(u+1, min(u+DEP, NU)) if units[v][0] != 'x')
            k.e(f"s_waitcnt lgkmcnt({2*nout})")
            k.e(f"v_mfma_f32_32x32x16_bf16 {vr(a,16)}, {vr(WF+4*(u%DEP),4)}, {vr(HFR+4*kap,4)}, {'0' if tau not in started else vr(a,16)}")
            started.add(tau)
        if u+DEP < NU: rd(u+DEP)
        while pend and pend[0][0] <= u:
            pend.pop(0)[1]()
        if u >= s1_start and side1:
            if u == s1_start:
                k.wait_vm("st")
                k.e(f"s_mov_b32 s{sCNT}, 0x100000")
                k.label(k.L('csw'))
                k.e(f"""
                v_max_u32 v{T}, v{CSR}, v{CSR+1}
                v_max3_u32 v{T}, v{T}, v{CSR+2}, v{CSR+3}
                v_cmp_eq_u32 vcc, -1, v{T}
                s_cbranch_vccz {k.L('cswok')}
                s_sleep 4
                """)
                for q in range(4):
                    k.e(f"buffer_load_dword v{CSR+q}, v2, s[{SWS}:{SWS+3}], s{sT2 if q < 2 else sKV} offen offset:{(q&1)*128} sc1")
                k.e(f"""
                s_waitcnt vmcnt(0)
                s_sub_u32 s{sCNT}, s{sCNT}, 1
                s_cbranch_scc0 {k.L('csw')}
                """)
                k.label(k.L('cswok'))
            for _ in range(4):
                if side1: k.e(side1.pop(0))
        if u >= s2_start and side2:
            for _ in range(5 if len(side2) > 4*(NU-u) else 4):
                if side2: k.e(side2.pop(0))
    assert not pend
    k.stamp(5)
    for l in side2: k.e(l)
    k.e(f"""
    s_lshl_b32 s{sT2}, s{sPQ0}, 7
    s_add_u32 s{sT2}, s{sT2}, {FL_OFF+32768}
    """)
    k.nop(max(0, 10-len(side2)))
    for l in epi(1, True): k.e(l)
    k.stamp(6)
    k.e("s_waitcnt vmcnt(0)\ns_barrier")
    signal(k, 'sg2', sT2, 28, 7, 7, 8, SWS, sW)
    k.stamp(7)
    flush(k, SWS, 2, 8, 40)
    k.vm = []
    k.stamp(0)
    AF, ACC, WF, HR, AW = 16, 128, 144, 176, 180
    RED = 2*16384
    for j in (7, 8, 9): wd_dma(j)
    k.e(f"""
    s_lshr_b32 s{sKH}, s{sW}, 2
    s_lshl_b32 s{sT}, s{sRB}, 2
    s_and_b32 s{sT2}, s{sW}, 3
    s_add_u32 s{sT}, s{sT}, s{sT2}
    s_mul_i32 s{sT2}, s{sRB}, 7
    s_add_u32 s{sT2}, s{sT2}, s{sCB}
    s_lshl_b32 s{sT2}, s{sT2}, 7
    s_add_u32 s{sT2}, s{sT2}, {FL_OFF+32768}
    s_lshl_b32 s{sT}, s{sT}, 1
    s_add_u32 s{sT}, s{sT}, s{sKH}
    s_mul_i32 s{sA}, s{sT}, 28672
    s_lshl_b32 s{sT}, s{sROT}, 11
    s_add_u32 s{sA}, s{sA}, s{sT}
    s_add_u32 s{sA}, s{sA}, {ACT_OFF}
    v_bfe_u32 v5, v0, 4, 2
    v_lshlrev_b32 v6, 11, v5
    v_bfe_u32 v7, v0, 8, 1
    v_lshl_add_u32 v6, v7, 10, v6
    v_xor_b32 v5, v5, v7
    v_and_b32 v5, 1, v5
    v_bfe_u32 v7, v0, 2, 2
    v_lshl_add_u32 v6, v7, 7, v6
    v_lshrrev_b32 v7, 1, v7
    v_lshl_add_u32 v5, v5, 1, v7
    v_lshl_add_u32 v6, v5, 5, v6
    v_and_b32 v7, 3, v0
    v_lshl_add_u32 v{AW}, v7, 3, v6
    v_xor_b32 v{AW+1}, 32, v{AW}
    v_xor_b32 v{AW+2}, 64, v{AW}
    v_xor_b32 v{AW+3}, 96, v{AW}
    """)
    for g in (1, 2):
        for i in range(4):
            k.e(f"v_add_u32 v{AW+4*g+i}, {g*0x10000}, v{AW+i}")
    k.e(f"""
    v_bfe_u32 v5, v0, 5, 1
    v_lshlrev_b32 v5, 10, v5
    v_and_b32 v6, 15, v0
    v_lshl_add_u32 v5, v6, 4, v5
    v_bfe_u32 v7, v0, 4, 1
    v_lshl_add_u32 v5, v7, 3, v5
    s_lshl_b32 s{sT}, s{sRB}, 1
    s_bfe_u32 s{sT3}, s{sW}, 0x10001
    s_add_u32 s{sT}, s{sT}, s{sT3}
    s_mul_i32 s{sT}, s{sT}, 14
    s_lshl_b32 s{sT3}, s{sCB}, 1
    s_add_u32 s{sT}, s{sT}, s{sT3}
    s_add_u32 s{sT}, s{sT}, s{sKH}
    s_lshl_b32 s{sT}, s{sT}, 11
    s_and_b32 s{sT3}, s{sW}, 1
    s_lshl_b32 s{sT3}, s{sT3}, 8
    s_add_u32 s{sT}, s{sT}, s{sT3}
    s_add_u32 s{sT}, s{sT}, {HF_OFF}
    buffer_load_dwordx2 {vr(HR,2)}, v5, s[{SWS}:{SWS+3}], s{sT} offen sc1
    buffer_load_dwordx2 {vr(HR+2,2)}, v5, s[{SWS}:{SWS+3}], s{sT} offen offset:512 sc1
    v_lshrrev_b32 v5, 6, v0
    v_lshl_add_u32 v6, v5, 11, v1
    v_add_u32 v6, {RED}, v6
    v_xor_b32 v7, 0x2000, v6
    v_and_b32 v5, 15, v0
    v_mul_u32_u24 v4, 896, v5
    v_bfe_u32 v5, v0, 4, 2
    v_lshl_add_u32 v4, v5, 3, v4
    s_lshl_b32 s{sT}, s{sRB}, 2
    s_and_b32 s{sT3}, s{sW}, 3
    s_add_u32 s{sT}, s{sT}, s{sT3}
    s_mul_i32 s{sT}, s{sT}, {16*896}
    s_add_u32 s{sT}, s{sT}, s{sWO}
    s_lshl_b32 s{sT3}, s{sKH}, 6
    s_add_u32 s{sT}, s{sT}, s{sT3}
    """)
    poll(k, 'p2', sT2, 28, 2, 3, SWS, sCNT, sW, 4)
    k.stamp(1)
    def lda(j):
        if j > 0:
            k.e(f"""
            s_add_u32 s{sROT}, s{sROT}, 1
            s_cmp_eq_u32 s{sROT}, 14
            s_cselect_b32 s{sT3}, -13, 1
            s_lshl_b32 s{sT3}, s{sT3}, 11
            s_add_u32 s{sA}, s{sA}, s{sT3}
            """)
        for ks in range(2):
            k.vop(f"buffer_load_dwordx4 {vr(AF+8*j+4*ks,4)}, v1, s[{SWS}:{SWS+3}], s{sA} offen offset:{ks*1024} sc1", f"a{j}")
    def reads(u):
        t, tt = u >> 2, u & 3
        j, ks = t >> 1, t & 1
        o = dslot[j]*16384 + ks*8192
        a = AW + tt + 4*(o >> 16)
        o &= 0xffff
        b = WF + 4*(u & 7)
        for ri in range(2):
            k.e(f"ds_read_b64_tr_b16 {vr(b+2*ri,2)}, v{a} offset:{o+ri*512}")
    for j in range(APRE): lda(j)
    DEP = 6
    NU = 112
    for u in range(DEP): reads(u)
    for u in range(NU):
        t, tt = u >> 2, u & 3
        if u+DEP < NU:
            if (u+DEP) % 8 == 0:
                jn = (u+DEP)//8
                if jn == 5:
                    k.e("s_barrier")
                    k.stamp(3)
                    for j in (10, 11, 12, 13): wd_dma(j)
                if jn == 10:
                    k.wait_vm("w13")
                    k.e("s_barrier")
                    k.stamp(4)
            reads(u+DEP)
        if u % 8 == 0:
            k.wait_vm(f"a{u//8}")
            if u == 0: k.stamp(2)
        k.e(f"s_waitcnt lgkmcnt({2*min(DEP, NU-1-u)})")
        a = ACC+4*tt
        k.e(f"v_mfma_f32_16x16x32_bf16 {vr(a,4)}, {vr(WF+4*(u&7),4)}, {vr(AF+4*t,4)}, {'0' if t == 0 else vr(a,4)}")
        if u % 8 == 7 and u//8 + APRE < 14:
            lda(u//8 + APRE)
    k.stamp(5)
    for i in range(4):
        k.e(f"v_lshlrev_b32 v{16+2*i}, 16, v{HR+i}")
        k.e(f"v_and_b32 v{17+2*i}, 0xffff0000, v{HR+i}")
    k.e(f"""
    ds_write_b128 v7, {vr(ACC+8,4)}
    ds_write_b128 v7, {vr(ACC+12,4)} offset:1024
    """)
    for i in range(0, 8, 2):
        k.e(f"v_pk_add_f32 {vr(ACC+i,2)}, {vr(ACC+i,2)}, {vr(16+i,2)}")
    k.e(f"""
    s_waitcnt lgkmcnt(0)
    s_barrier
    ds_read_b128 v[24:27], v6
    ds_read_b128 v[28:31], v6 offset:1024
    s_waitcnt lgkmcnt(0)
    """)
    for i in range(0, 8, 2):
        k.e(f"v_pk_add_f32 {vr(ACC+i,2)}, {vr(ACC+i,2)}, {vr(24+i,2)}")
    for i in range(4):
        k.e(f"v_cvt_pk_bf16_f32 v{32+i}, v{ACC+2*i}, v{ACC+2*i+1}")
    k.e(f"""
    buffer_store_dwordx2 v[32:33], v4, s[{SO}:{SO+3}], s{sT} offen
    buffer_store_dwordx2 v[34:35], v4, s[{SO}:{SO+3}], s{sT} offen offset:32
    """)
    k.stamp(6)
    k.end(SWS, 3, 7)
    k.label(k.L('cs'))
    k.e(f"""
    s_load_dwordx2 s[{SD}:{SD+1}], s[0:1], 48
    s_mov_b32 s{SD+2}, {F*D*2}
    s_mov_b32 s{SD+3}, 0x20000
    s_sub_u32 s{sCB}, s2, 224
    s_mul_i32 s{sQ}, s{sCB}, {392*128}
    v_min_u32 v2, 391, v0
    v_lshlrev_b32 v2, 7, v2
    s_cmp_lt_u32 s2, 252
    s_cbranch_scc1 {k.L('cs1')}
    s_waitcnt lgkmcnt(0)
    buffer_load_dword v100, v2, s[{SD}:{SD+3}], s{sQ} offen
    s_endpgm
    """)
    k.label(k.L('cs1'))
    k.e(f"""
    v_lshrrev_b32 v5, 6, v0
    v_bfe_u32 v6, v0, 3, 3
    v_readfirstlane_b32 s{sW}, v5
    v_and_b32 v7, 7, v0
    v_mul_u32_u24 v1, 3584, v6
    v_lshl_add_u32 v1, v7, 4, v1
    s_sub_u32 s{sCB}, s2, 224
    s_and_b32 s{sT}, s{sW}, 3
    s_mul_i32 s{sT}, s{sT}, {112*3584}
    s_lshl_b32 s{sT2}, s{sCB}, 7
    s_add_u32 s{sT}, s{sT}, s{sT2}
    s_mov_b32 s{sEPS}, 0x3f80
    s_mov_b32 s{sONE}, 0x3f800000
    """)
    srd_consts(k, SW, D*F*2)
    srd_consts(k, SWS, WSZ)
    k.e(f"""
    s_waitcnt lgkmcnt(0)
    s_cmp_ge_u32 s{sW}, 4
    s_cselect_b32 s{SW}, s{SU}, s{SG}
    s_cselect_b32 s{SW+1}, s{SU+1}, s{SG+1}
    """)
    for u in range(14):
        k.e(f"buffer_load_dwordx4 {vr(16+4*u,4)}, v1, s[{SW}:{SW+3}], s{sT} offen")
        k.e(f"s_add_u32 s{sT}, s{sT}, {8*3584}")
    for i in range(8):
        k.e(f"v_mov_b32 v{8+i}, 0")
    for u in range(14):
        k.e(f"s_waitcnt vmcnt({13-u})")
        for j in range(4):
            k.e(f"v_dot2c_f32_bf16 v{8+2*j}, s{sEPS}, v{16+4*u+j}")
            k.e(f"v_dot2c_f32_bf16 v{9+2*j}, s{sONE}, v{16+4*u+j}")
    k.e(f"""
    s_cmp_eq_u32 s{sW}, 0
    s_cbranch_scc1 {k.L('cs2')}
    buffer_load_dword v100, v2, s[{SD}:{SD+3}], s{sQ} offen
    """)
    k.label(k.L('cs2'))
    k.e(f"""
    v_mov_b32 v101, v2
    v_lshlrev_b32 v2, 5, v0
    v_and_b32 v4, 63, v0
    v_lshlrev_b32 v4, 2, v4
    v_add_u32 v3, 8192, v4
    s_nop 0
    ds_write_b128 v2, v[8:11]
    ds_write_b128 v2, v[12:15] offset:16
    s_waitcnt lgkmcnt(0)
    s_barrier
    s_cmp_ge_u32 s{sW}, 1
    s_cbranch_scc1 {k.L('end')}
    """)
    for m in range(2):
        for h in range(2):
            for i in range(8):
                k.e(f"ds_read2st64_b32 {vr(16+32*m+16*h+2*i,2)}, v{4 if m == 0 else 3} offset0:{16*h+2*i} offset1:{16*h+2*i+1}")
            k.e("s_waitcnt lgkmcnt(0)")
    k.e(f"""
    s_lshl_b32 s{sT}, s{sCB}, 8
    s_add_u32 s{sT}, s{sT}, {CS_OFF}
    s_add_u32 s{sT2}, s{sT}, 7168
    """)
    for m in range(2):
        for stp in (16, 8, 4, 2, 1):
            for i in range(stp):
                k.e(f"v_add_f32 v{16+32*m+i}, v{16+32*m+i}, v{16+32*m+i+stp}")
    k.e(f"""
    buffer_store_dword v16, v4, s[{SWS}:{SWS+3}], s{sT} offen sc1
    buffer_store_dword v48, v4, s[{SWS}:{SWS+3}], s{sT2} offen sc1
    buffer_load_dword v100, v101, s[{SD}:{SD+3}], s{sQ} offen
    """)
    k.end(SWS, 1, 1)
    k.label(k.L('end'))
    k.e("s_endpgm")
    return k, dict(vgpr=256, sgpr=80, grid=256, block=512, lds=163840)

if __name__ == "__main__":
    from gen5a import gen_a5
    ks = [gen_a5() if env('A5', 1) else gen_a(), gen_f()]
    open(sys.argv[1] if len(sys.argv) > 1 else "sequential_preLN__linear_attn_block__swiglu_ffn__prompt.s", "w").write(build(ks))
```

```python
from gen3 import *

def gen_a5():
    k = K("ka")
    SX, SW, SWS, SDB, SP = 4, 8, 12, 16, 32
    sW, sRB, sH, sx, skv, sq, sT, sT2, sEPS, sONE, sLN2, sCX, sCV, sROT = 20, 21, 22, 23, 24, 25, 26, 27, 28, 29, 30, 31, 56, 57
    XS, NXS = 0, 7
    VS, NVS = 114688, 5
    WQ = 0
    MISC = 155648
    PART = 32768
    CSX = MISC + 2048
    CNT = MISC + 6144
    DUM = 190
    AH = 2
    k.stamp(0)
    k.e(f"""
    s_cmp_ge_u32 s2, 256
    s_cbranch_scc1 {k.L('end')}
    s_load_dwordx2 s[{SX}:{SX+1}], s[0:1], 0
    s_load_dwordx2 s[{SW}:{SW+1}], s[0:1], 8
    s_load_dwordx2 s[{SDB}:{SDB+1}], s[0:1], 64
    s_load_dwordx2 s[{SWS}:{SWS+1}], s[0:1], 72
    s_load_dwordx2 s[{SP}:{SP+1}], s[0:1], 16
    """)
    if CPF:
        k.e(f"""
        s_getpc_b64 s[36:37]
        Lka_pc:
        s_lshr_b32 s{sT2}, s2, 3
        v_min_u32 v5, 7, v0
        v_lshlrev_b32 v5, 7, v5
        s_lshl_b32 s{sT}, s{sT2}, 10
        v_add_u32 v5, s{sT}, v5
        v_min_u32 v5, Lcode_end-Lka_pc-4, v5
        v_cmp_gt_u32 vcc, 8, v0
        s_and_saveexec_b64 s[38:39], vcc
        s_cbranch_execz {k.L('nocpf')}
        global_load_dword v{DUM}, v5, s[36:37]
        """)
        k.label(k.L('nocpf'))
        k.e("s_mov_b64 exec, -1")
    k.e(f"""
    v_lshrrev_b32 v5, 6, v0
    v_lshrrev_b32 v6, 3, v0
    v_readfirstlane_b32 s{sW}, v5
    v_and_b32 v7, 0x38, v6
    v_add_u32 v7, v6, v7
    v_and_b32 v8, 7, v0
    v_bfe_u32 v9, v0, 4, 2
    v_xor_b32 v9, v8, v9
    v_mul_u32_u24 v1, 896, v7
    v_lshl_add_u32 v1, v9, 4, v1
    v_xor_b32 v2, 64, v1
    v_add_u32 v2, 6144, v2
    s_bfe_u32 s{sRB}, s2, 0x20001
    s_lshl_b32 s{sRB}, s{sRB}, 2
    s_lshr_b32 s{sT}, s2, 6
    s_add_u32 s{sRB}, s{sRB}, s{sT}
    s_bfe_u32 s{sT2}, s2, 0x30003
    s_and_b32 s{sH}, s2, 1
    s_lshl_b32 s{sH}, s{sH}, 3
    s_add_u32 s{sH}, s{sH}, s{sT2}
    s_lshl_b32 s{sT}, s{sT}, 1
    s_add_u32 s{sT}, s{sT}, s{sT2}
    """)
    div7(k, sT2, sROT, sT)
    k.e(f"""
    s_mul_i32 s{sx}, s{sRB}, {128*896}
    s_lshl_b32 s{sT}, s{sROT}, 7
    s_add_u32 s{sx}, s{sx}, s{sT}
    s_mov_b32 s{sCX}, s{sROT}
    s_lshl_b32 m0, s{sW}, 11
    """)
    srd_consts(k, SX, S*D*2)
    srd_consts(k, SW, D*3*D*2)
    srd_consts(k, SP, D*D*2)
    k.e(f"""
    v_and_b32 v5, 63, v0
    v_min_u32 v10, 36, v5
    s_mul_i32 s{sT}, s2, 37
    v_add_lshl_u32 v10, v10, s{sT}, 7
    s_waitcnt lgkmcnt(0)
    """)
    k.stamp(1)
    if WPF:
        k.e(f"""
        s_cmp_lg_u32 s{sW}, 3
        s_cbranch_scc1 {k.L('nt1')}
        buffer_load_dword v{DUM}, v10, s[{SW}:{SW+3}], 0 offen
        """)
        k.label(k.L('nt1'))
    def issue_x(c):
        if c > 0:
            k.e(f"""
            s_lshl_b32 s{sT}, s{sW}, 11
            s_add_u32 m0, s{sT}, {XS + (c % NXS)*16384}
            s_add_u32 s{sCX}, s{sCX}, 1
            s_cmp_eq_u32 s{sCX}, 7
            s_cselect_b32 s{sT}, -6, 1
            s_lshl_b32 s{sT}, s{sT}, 7
            s_add_u32 s{sx}, s{sx}, s{sT}
            """)
        k.vop(f"buffer_load_dwordx4 v1, s[{SX}:{SX+3}], s{sx} offen lds", f"s{c}")
        k.vop(f"buffer_load_dwordx4 v2, s[{SX}:{SX+3}], s{sx} offen offset:1024 lds", f"s{c}")
    def issue_v(c):
        k.e(f"""
        s_lshl_b32 s{sT}, s{sW}, 10
        s_add_u32 m0, s{sT}, {VS + (c % NVS)*8192}
        """)
        if c > 0:
            k.e(f"""
            s_add_u32 s{sCV}, s{sCV}, 1
            s_cmp_eq_u32 s{sCV}, 7
            s_cselect_b32 s{sT}, -6, 1
            s_mul_i32 s{sT}, s{sT}, {64*2688}
            s_add_u32 s{skv}, s{skv}, s{sT}
            """)
        else:
            k.e("s_nop 0")
        k.vop(f"buffer_load_dwordx4 v3, s[{SW}:{SW+3}], s{skv} offen lds", f"s{c+AH}")
    def issue_stage(s):
        if s <= 6: issue_x(s)
        if AH <= s <= 6+AH: issue_v(s-AH)
    def issue_after(s):
        if s+3 <= 6: issue_x(s+3)
        if AH <= s+3 <= 6+AH: issue_v(s+3-AH)
    issue_stage(0)
    k.e("s_barrier")
    issue_stage(1)
    k.e(f"""
    v_bfe_u32 v9, v0, 4, 1
    v_lshlrev_b32 v9, 2, v9
    v_xor_b32 v9, v8, v9
    v_mul_u32_u24 v3, 2688, v6
    v_and_b32 v8, 3, v9
    v_lshl_add_u32 v3, v8, 4, v3
    v_lshrrev_b32 v9, 2, v9
    v_mul_u32_u24 v9, 896, v9
    v_add_u32 v3, v3, v9
    s_mul_i32 s{sq}, s{sH}, 56
    s_and_b32 s{sq}, s{sq}, -16
    s_mul_i32 s{sT}, s{sROT}, {64*2688}
    s_add_u32 s{skv}, s{sq}, s{sT}
    s_add_u32 s{skv}, s{skv}, 896
    s_mov_b32 s{sCV}, s{sROT}
    """)
    k.e("s_barrier")
    issue_stage(2)
    srd_consts(k, SWS, WS_USED)
    srd_consts(k, SDB, 256)
    k.e(f"""
    s_mov_b32 s{sEPS}, 0x{EPS_PHI_L:x}
    s_mov_b32 s{sONE}, 0x{ONES_BF:x}
    s_mov_b32 s{sLN2}, 0x{LN2:x}
    v_mov_b32 v12, 0
    v_mov_b32 v13, 0
    v_mov_b32 v14, 0
    v_mov_b32 v15, 0
    v_mov_b32 v10, {CNT}
    ds_write_b128 v10, v[12:15]
    s_cmp_lt_u32 s{sW}, 4
    s_cbranch_scc1 {k.L('nozf')}
    v_and_b32 v10, 255, v0
    v_lshlrev_b32 v10, 4, v10
    s_cmp_lg_u32 s{sRB}, 0
    s_cbranch_scc1 {k.L('nozero')}
    s_lshl_b32 s{sT}, s{sH}, 12
    buffer_store_dwordx4 v[12:15], v10, s[{SWS}:{SWS+3}], s{sT} offen sc1
    """)
    k.label(k.L('nozero'))
    k.e(f"""
    s_lshr_b32 s{sT}, s2, 2
    s_cmp_lg_u32 s{sT}, 20
    s_cbranch_scc1 {k.L('nocs')}
    s_and_b32 s{sT}, s2, 3
    s_lshl_b32 s{sT}, s{sT}, 12
    s_add_u32 s{sT}, s{sT}, {CS_OFF}
    v_mov_b32 v16, -1
    v_mov_b32 v17, -1
    v_mov_b32 v18, -1
    v_mov_b32 v19, -1
    buffer_store_dwordx4 v[16:19], v10, s[{SWS}:{SWS+3}], s{sT} offen sc1
    """)
    k.label(k.L('nocs'))
    k.e(f"""
    s_lshr_b32 s{sT}, s2, 4
    s_cmp_lg_u32 s{sT}, 4
    s_cbranch_scc1 {k.L('nozf')}
    s_and_b32 s{sT}, s2, 15
    s_lshl_b32 s{sT}, s{sT}, 12
    s_add_u32 s{sT}, s{sT}, {FL_OFF}
    buffer_store_dwordx4 v[12:15], v10, s[{SWS}:{SWS+3}], s{sT} offen sc1
    """)
    k.label(k.L('nozf'))
    AX = 172
    k.e(f"""
    v_and_b32 v8, 31, v0
    v_bfe_u32 v9, v0, 5, 1
    v_bfe_u32 v14, v0, 6, 2
    v_lshl_add_u32 v15, v14, 5, v8
    v_lshlrev_b32 v10, 7, v15
    v_bfe_u32 v11, v8, 1, 3
    v_xor_b32 v11, v11, v9
    v_lshlrev_b32 v12, 1, v14
    v_xor_b32 v11, v11, v12
    v_mov_b32 v7, 1
    """)
    for p in range(4):
        k.e(f"v_xor_b32 v12, {2*p}, v11")
        k.e(f"v_lshl_add_u32 v{AX+p}, v12, 4, v10")
    k.e(f"v_add_u32 v{AX+4}, 0x10000, v{AX}\nv_add_u32 v{AX+5}, 0x10000, v{AX+1}\nv_add_u32 v{AX+6}, 0x10000, v{AX+2}\nv_add_u32 v{AX+7}, 0x10000, v{AX+3}")
    def xread(dst, c, p):
        o = XS + (c % NXS)*16384
        k.e(f"ds_read_b128 {vr(dst,4)}, v{AX+p+4*(o >> 16)} offset:{o & 0xffff}")
    def arrive(i):
        k.e(f"s_mov_b64 exec, 1\nds_add_u32 v6, v7 offset:{4*i}\ns_mov_b64 exec, -1")
    def lwait(name, i, target, vt):
        k.label(k.L(name))
        k.e(f"""
        ds_read_b32 v{vt}, v6 offset:{4*i}
        s_waitcnt lgkmcnt(0)
        v_cmp_gt_u32 vcc, {target}, v{vt}
        s_cbranch_vccnz {k.L(name)}
        """)
    k.e(f"""
    v_mov_b32 v6, {CNT}
    s_waitcnt lgkmcnt(0)
    s_cmp_ge_u32 s{sW}, 4
    s_cbranch_scc1 {k.L('q')}
    """)
    vm_split = list(k.vm)
    def wpf(qside):
        if not WPF or not qside: return
        k.e(f"""
        s_cmp_ge_u32 s{sW}, 6
        s_cbranch_scc1 {k.L('nopf')}
        s_lshr_b32 s{sT}, s2, 3
        s_lshl_b32 s{sT}, s{sT}, 1
        s_add_u32 s{sT}, s{sT}, s{sW}
        s_sub_u32 s{sT}, s{sT}, 4
        s_mul_i32 s{sT}, s{sT}, 49
        v_and_b32 v5, 63, v0
        v_min_u32 v5, 48, v5
        v_add_lshl_u32 v5, v5, s{sT}, 7
        buffer_load_dword v{DUM}, v5, s[{SP}:{SP+3}], 0 offen
        """)
        k.label(k.L('nopf'))
    ACK, ACV = 16, 32
    BUF = [48, 60, 72]
    AWK, AWV = 152, 156
    CSK, CSV = 160, 162
    RL, XE, WEK, WEV = 84, 100, 104, 108
    PKF, VF, KVA, T = 112, 120, 128, 144
    k.e(f"""
    s_setprio 2
    v_bfe_u32 v11, v0, 2, 2
    v_lshl_add_u32 v10, v9, 3, v11
    v_lshlrev_b32 v10, 7, v10
    v_bfe_u32 v12, v0, 4, 1
    v_and_b32 v13, 3, v0
    v_lshl_add_u32 v12, v12, 2, v13
    s_and_b32 s{sT}, s{sH}, 1
    v_add_u32 v12, s{sT}, v12
    v_and_b32 v12, 7, v12
    v_lshl_add_u32 v10, v12, 3, v10
    v_lshrrev_b32 v11, 1, v11
    v_lshl_add_u32 v10, v11, 6, v10
    v_lshl_add_u32 v10, v14, 11, v10
    v_add_u32 v{AWK}, {VS}, v10
    v_mov_b32 v{CSK}, 0
    v_mov_b32 v{CSK+1}, 0
    v_mov_b32 v{XE+2}, 0
    v_mov_b32 v{XE+3}, 0
    """)
    assert VS % 8192 == 0
    for p in range(1, 4):
        k.e(f"v_xor_b32 v{AWK+p}, {p << 11}, v{AWK}")
    for p in range(4):
        k.e(f"v_xor_b32 v{AWV+p}, 64, v{AWK+p}")
    k.e(f"""
    v_lshlrev_b32 v12, 3, v0
    v_add_u32 v12, {CSX}, v12
    v_and_b32 v13, 63, v0
    v_lshlrev_b32 v13, 3, v13
    v_add_u32 v13, {CSX}, v13
    v_lshlrev_b32 v10, 3, v15
    v_add_u32 v10, {MISC}, v10
    v_lshlrev_b32 v11, 7, v14
    v_lshl_add_u32 v11, v9, 4, v11
    v_add_u32 v11, {MISC+1024}, v11
    """)
    def kv_reads(c, p, b):
        o = (c % NVS)*8192
        xread(BUF[b], c, p)
        for ri in range(2):
            k.e(f"ds_read_b64_tr_b16 {vr(BUF[b]+4+2*ri,2)}, v{AWK+p} offset:{o+ri*512}")
        for ri in range(2):
            k.e(f"ds_read_b64_tr_b16 {vr(BUF[b]+8+2*ri,2)}, v{AWV+p} offset:{o+ri*512}")
    NS = 7+AH
    def gate(s):
        k.wait_vm(f"s{s}")
        k.e("s_barrier")
        if s == 0: k.stamp(2)
        if s == NS-1: k.stamp(3)
    def post_gate(s):
        issue_after(s)
        if s == NS-2:
            k.e(f"""
            v_mov_b32 v5, 0
            s_lshl_b32 s{sT2}, s{sH}, 4
            """)
            k.vop(f"buffer_load_dwordx4 {vr(T+4,4)}, v5, s[{SDB}:{SDB+3}], s{sT2} offen sc1", "poll")
    def rd(u):
        c, p = u >> 2, u & 3
        if p == 0: gate(c+AH)
        kv_reads(c, p, u % 3)
        if p == 0: post_gate(c+AH)
    for s_ in range(AH):
        gate(s_); post_gate(s_)
    for u in range(3): rd(u)
    for u in range(28):
        c, p = u >> 2, u & 3
        b = u % 3
        k.e(f"s_waitcnt lgkmcnt({5*min(2, 27-u)})")
        first = (u == 0)
        k.e(f"v_mfma_f32_32x32x16_bf16 {vr(ACK,16)}, {vr(BUF[b],4)}, {vr(BUF[b]+4,4)}, {'0' if first else vr(ACK,16)}")
        k.e(f"v_mfma_f32_32x32x16_bf16 {vr(ACV,16)}, {vr(BUF[b],4)}, {vr(BUF[b]+8,4)}, {'0' if first else vr(ACV,16)}")
        if p == 0:
            for j in range(4):
                k.e(f"v_dot2c_f32_bf16 v{CSK}, s{sONE}, v{BUF[b]+4+j}")
                k.e(f"v_dot2c_f32_bf16 v{CSK+1}, s{sONE}, v{BUF[b]+8+j}")
        if u+3 < 28: rd(u+3)
        if u == 25:
            k.e(f"ds_write_b64 v12, {vr(CSK,2)}")
            arrive(0)
        if u == 26:
            k.e(f"ds_read_b64 {vr(XE,2)}, v10")
            for a in range(4):
                k.e(f"ds_read_b128 {vr(RL+4*a,4)}, v11 offset:{a*32}")
            k.e(f"""
            v_and_b32 v10, 63, v0
            v_lshlrev_b32 v4, 2, v10
            v_lshlrev_b32 v10, 4, v10
            v_lshl_add_u32 v10, v14, 12, v10
            v_lshl_add_u32 v4, v14, 10, v4
            v_add_u32 v3, {PART}, v4
            s_lshl_b32 s{sT}, s{sH}, 12
            """)
    k.e(f"s_setprio {env('KVP', 0)}")
    lwait('w0', 0, 4, T)
    k.e(f"""
    ds_read2st64_b64 {vr(PKF,4)}, v13 offset0:0 offset1:1
    ds_read2st64_b64 {vr(PKF+4,4)}, v13 offset0:2 offset1:3
    s_waitcnt lgkmcnt(0)
    v_add_f32 v{PKF}, v{PKF}, v{PKF+2}
    v_add_f32 v{PKF+1}, v{PKF+1}, v{PKF+3}
    v_add_f32 v{PKF+4}, v{PKF+4}, v{PKF+6}
    v_add_f32 v{PKF+5}, v{PKF+5}, v{PKF+7}
    v_add_f32 v{CSK}, v{PKF}, v{PKF+4}
    v_add_f32 v{CSV}, v{PKF+1}, v{PKF+5}
    """)
    k.stamp(4)
    hilo_w(k, WEK, CSK, T)
    k.e("s_nop 1")
    k.e(f"v_mfma_f32_32x32x16_bf16 {vr(ACK,16)}, {vr(XE,4)}, {vr(WEK,4)}, {vr(ACK,16)}")
    hilo_w(k, WEV, CSV, T+1)
    k.e("s_nop 1")
    k.e(f"v_mfma_f32_32x32x16_bf16 {vr(ACV,16)}, {vr(XE,4)}, {vr(WEV,4)}, {vr(ACV,16)}")
    k.nop(3)
    for h in range(2):
        for i in range(8*h, 8*h+8, 2):
            phi_ops(k, ACK+i, ACK+i, RL+i, T, sEPS, sLN2)
            phi_ops(k, ACK+i+1, ACK+i+1, RL+i+1, T+1, sEPS, sLN2)
            k.e(f"v_cvt_pk_bf16_f32 v{PKF+i//2}, v{ACK+i}, v{ACK+i+1}")
        for i in range(8*h, 8*h+8, 2):
            k.e(f"v_pk_mul_f32 {vr(ACV+i,2)}, {vr(ACV+i,2)}, {vr(RL+i,2)}")
            k.e(f"v_cvt_pk_bf16_f32 v{VF+i//2}, v{ACV+i}, v{ACV+i+1}")
        k.e("s_mov_b32 exec_lo, 0x10000000\ns_mov_b32 exec_hi, 0x10000000")
        for j in range(4):
            k.e(f"v_mov_b32 v{VF+4*h+j}, s{sONE}")
        k.e("s_mov_b64 exec, -1\ns_nop 0")
        k.e(f"v_mfma_f32_32x32x16_bf16 {vr(KVA,16)}, {vr(PKF+4*h,4)}, {vr(VF+4*h,4)}, {'0' if h == 0 else vr(KVA,16)}")
    k.wait_vm("poll")
    k.label(k.L('poll'))
    k.e(f"""
    v_min_u32 v{T}, v{T+4}, v{T+5}
    v_min3_u32 v{T}, v{T}, v{T+6}, v{T+7}
    v_cmp_eq_u32 vcc, 0, v{T}
    s_cbranch_vccz {k.L('pollok')}
    s_sleep 2
    buffer_load_dwordx4 {vr(T+4,4)}, v5, s[{SDB}:{SDB+3}], s{sT2} offen sc1
    s_waitcnt vmcnt(0)
    s_branch {k.L('poll')}
    """)
    k.label(k.L('pollok'))
    k.nop(7)
    for a in range(4):
        k.e(f"ds_write_b128 v10, {vr(KVA+4*a,4)} offset:{PART+a*1024}")
    arrive(1)
    lwait('w1', 1, 4, T)
    k.stamp(5)
    for u in range(4):
        k.e(f"ds_read2st64_b32 {vr(ACK+4*u,2)}, v3 offset0:{u} offset1:{u+16}")
        k.e(f"ds_read2st64_b32 {vr(ACK+4*u+2,2)}, v3 offset0:{u+32} offset1:{u+48}")
    for u in range(4):
        k.e(f"s_waitcnt lgkmcnt({6-2*u})")
        k.e(f"v_add_f32 v{ACK+4*u}, v{ACK+4*u}, v{ACK+4*u+1}")
        k.e(f"v_add_f32 v{ACK+4*u+2}, v{ACK+4*u+2}, v{ACK+4*u+3}")
        k.e(f"v_add_f32 v{ACK+4*u}, v{ACK+4*u}, v{ACK+4*u+2}")
        if u == 2:
            k.e(f"s_cmp_eq_u32 s{sW}, 3\ns_cbranch_scc1 {k.L('kvend')}")
        k.e(f"buffer_atomic_add_f32 v{ACK+4*u}, v4, s[{SWS}:{SWS+3}], s{sT} offen offset:{u*256}")
    k.label(k.L('kvend'))
    k.stamp(6)
    k.end(SWS, 0, 7)
    k.label(k.L('q'))
    k.vm = list(vm_split)
    XQ, ACQ, WB = 16, 128, 144
    SUM, SQ, CSQ, AWQ, T = 160, 162, 164, 168, 188
    XE2, WE2, RS = 180, 184, 166
    k.e(f"""
    v_bfe_u32 v11, v0, 2, 2
    v_lshl_add_u32 v10, v9, 3, v11
    v_lshlrev_b32 v10, 6, v10
    v_and_b32 v11, 1, v0
    v_bfe_u32 v12, v0, 4, 1
    v_lshl_add_u32 v11, v11, 1, v12
    v_bfe_u32 v12, v0, 1, 1
    v_lshl_add_u32 v11, v11, 1, v12
    s_and_b32 s{sT}, s{sH}, 1
    v_add_u32 v11, s{sT}, v11
    v_and_b32 v11, 7, v11
    v_lshl_add_u32 v10, v11, 3, v10
    v_lshl_add_u32 v10, v14, 10, v10
    v_add_u32 v{AWQ}, {WQ}, v10
    v_xor_b32 v{AWQ+1}, 0x400, v{AWQ}
    v_xor_b32 v{AWQ+2}, 0x800, v{AWQ}
    v_xor_b32 v{AWQ+3}, 0xc00, v{AWQ}
    v_bfe_u32 v10, v0, 2, 4
    v_mul_u32_u24 v4, 2688, v10
    v_and_b32 v10, 3, v0
    v_lshl_add_u32 v4, v10, 4, v4
    """)
    assert WQ % 4096 == 0
    for r in (SUM, SUM+1, SQ, SQ+1, CSQ, CSQ+1):
        k.e(f"v_mov_b32 v{r}, 0")
    def wq_dma(part):
        pos0 = 4*part - 4
        k.e(f"""
        s_lshl_b32 s{sT}, s{sW}, 12
        s_add_i32 m0, s{sT}, {WQ + pos0*4096}
        s_add_u32 s{sT2}, s{sW}, s{sROT}
        s_add_i32 s{sT2}, s{sT2}, {pos0}
        s_cmp_ge_u32 s{sT2}, 7
        s_cselect_b32 s{sT}, 7, 0
        s_sub_u32 s{sT2}, s{sT2}, s{sT}
        """)
        if part:
            k.e(f"s_cmp_eq_u32 s{sW}, 7\ns_cselect_b32 s{sT2}, 8, s{sT2}")
        k.e(f"""
        s_mul_i32 s{sT2}, s{sT2}, {64*2688}
        s_add_u32 s{sT2}, s{sT2}, s{sq}
        """)
        for u in range(4):
            k.vop(f"buffer_load_dwordx4 v4, s[{SW}:{SW+3}], s{sT2} offen offset:{u*1024} lds", f"wq{part}")
            if u < 3: k.e(f"s_add_u32 s{sT2}, s{sT2}, {16*2688-1024}")
    for s in range(NS):
        gate(s)
        if s <= 6:
            for p in range(4):
                xread(XQ+16*s+4*p, s, p)
        issue_after(s)
        if s == 6: wq_dma(0)
        if s == 1: wpf(True)
        if s == 3:
            k.e(f"""
            s_cmp_lg_u32 s{sRB}, 0
            s_cbranch_scc1 {k.L('noflag')}
            s_lshl_b32 s{sT}, s{sH}, 2
            s_add_u32 s{sT}, s{sT}, s{sW}
            s_sub_u32 s{sT}, s{sT}, 4
            s_lshl_b32 s{sT}, s{sT}, 2
            v_mov_b32 v5, 0
            s_mov_b64 exec, 1
            buffer_store_dword v7, v5, s[{SDB}:{SDB+3}], s{sT} offen sc1
            s_mov_b64 exec, -1
            """)
            k.label(k.L('noflag'))
        if s <= 6:
            c = s
            for p in range(4):
                k.e(f"s_waitcnt lgkmcnt({3-p})")
                for j in range(4):
                    r = XQ+16*c+4*p+j
                    k.e(f"v_dot2c_f32_bf16 v{SUM+(j&1)}, s{sONE}, v{r}")
                    k.e(f"v_dot2c_f32_bf16 v{SQ+(j&1)}, v{r}, v{r}")
        if s == 7:
            k.e(f"""
            v_lshlrev_b32 v11, 2, v15
            v_lshlrev_b32 v10, 3, v15
            v_mov_b32 v{XE2+3}, 0
            v_add_f32 v{SUM}, v{SUM}, v{SUM+1}
            v_add_f32 v{SQ}, v{SQ}, v{SQ+1}
            v_mov_b32 v{SUM+1}, v{SUM}
            v_mov_b32 v{SQ+1}, v{SQ}
            v_add_u32 v10, {MISC}, v10
            v_add_u32 v11, {MISC+1024}, v11
            v_permlane32_swap_b32 v{SUM}, v{SUM+1}
            v_permlane32_swap_b32 v{SQ}, v{SQ+1}
            v_mov_b32 v{XE2+2}, 0
            v_add_f32 v{SUM}, v{SUM}, v{SUM+1}
            v_add_f32 v{SQ}, v{SQ}, v{SQ+1}
            v_mul_f32 v{SUM}, 0x{INV_D|0x80000000:x}, v{SUM}
            v_mul_f32 v{SQ}, 0x{INV_D:x}, v{SQ}
            v_fma_f32 v{SQ}, -v{SUM}, v{SUM}, v{SQ}
            v_max_f32 v{SQ}, 0, v{SQ}
            v_add_f32 v{SQ}, 0x{EPS_LN:x}, v{SQ}
            v_rsq_f32 v{RS}, v{SQ}
            """)
            hilo_x(k, XE2, SUM, T)
            k.e(f"""
            v_mul_f32 v{RS}, 0x{LOG2E:x}, v{RS}
            ds_write_b64 v10, {vr(XE2,2)}
            ds_write_b32 v11, v{RS}
            """)
        if s == 7:
            wq_dma(1)
            k.e("s_waitcnt lgkmcnt(0)")
            k.e(f"""
            v_lshlrev_b32 v12, 2, v0
            v_add_u32 v12, {CSX+1024}, v12
            v_and_b32 v10, 63, v0
            v_lshlrev_b32 v13, 2, v10
            v_add_u32 v13, {CSX+2048}, v13
            v_lshlrev_b32 v10, 4, v10
            s_lshl_b32 s{sT}, s{sRB}, 2
            s_add_u32 s{sT}, s{sT}, s{sW}
            s_sub_u32 s{sT}, s{sT}, 4
            s_lshl_b32 s{sT}, s{sT}, 4
            s_add_u32 s{sT}, s{sT}, s{sH}
            s_lshl_b32 s{sT}, s{sT}, 11
            s_add_u32 s{sT}, s{sT}, {PQ_OFF}
            """)
    NB = 4
    def wq_read(kap):
        c, p = kap >> 2, kap & 3
        b = WB + 4*(kap % NB)
        for ri in range(2):
            k.e(f"ds_read_b64_tr_b16 {vr(b+2*ri,2)}, v{AWQ+p} offset:{c*4096+ri*256}")
    def q_range(k0, k1, mid=None):
        for kap in range(k0, min(k0+NB-1, k1)):
            wq_read(kap)
        for kap in range(k0, k1):
            if kap+NB-1 < k1:
                wq_read(kap+NB-1)
            rem = min(k1-1-kap, NB-1)
            k.e(f"s_waitcnt lgkmcnt({2*rem})")
            b = WB + 4*(kap % NB)
            k.e(f"v_mfma_f32_32x32x16_bf16 {vr(ACQ,16)}, {vr(b,4)}, {vr(XQ+4*kap,4)}, {'0' if kap == 0 else vr(ACQ,16)}")
            if (kap & 3) == 0:
                for j in range(4):
                    k.e(f"v_dot2c_f32_bf16 v{CSQ+(j&1)}, s{sONE}, v{b+j}")
            if mid and kap == mid[0]: mid[1]()
    k.e(f"s_setprio {env('QP', 2)}")
    k.e("s_waitcnt vmcnt(4)")
    arrive(2)
    lwait('w2', 2, 4, T)
    k.stamp(4)
    q_range(0, 16)
    k.e("s_waitcnt vmcnt(0)")
    arrive(2)
    lwait('w3', 2, 8, T)
    k.stamp(5)
    def pub():
        k.e(f"""
        v_add_f32 v{CSQ}, v{CSQ}, v{CSQ+1}
        ds_write_b32 v12, v{CSQ}
        """)
        arrive(3)
    q_range(16, 28, mid=(26, pub))
    lwait('w4', 3, 4, T)
    k.e(f"""
    ds_read2st64_b32 {vr(WB,2)}, v13 offset0:0 offset1:1
    ds_read2st64_b32 {vr(WB+2,2)}, v13 offset0:2 offset1:3
    s_waitcnt lgkmcnt(0)
    v_add_f32 v{WB}, v{WB}, v{WB+1}
    v_add_f32 v{WB+2}, v{WB+2}, v{WB+3}
    v_add_f32 v{CSQ}, v{WB}, v{WB+2}
    """)
    hilo_w(k, WE2, CSQ, T)
    k.e(f"""
    s_nop 1
    v_mfma_f32_32x32x16_bf16 {vr(ACQ,16)}, {vr(WE2,4)}, {vr(XE2,4)}, {vr(ACQ,16)}
    """)
    k.nop(12)
    for i in range(0, 16, 2):
        phi_ops(k, ACQ+i, ACQ+i, RS, T, sEPS, sLN2)
        phi_ops(k, ACQ+i+1, ACQ+i+1, RS, T+1, sEPS, sLN2)
        k.e(f"v_cvt_pk_bf16_f32 v{WB+i//2}, v{ACQ+i}, v{ACQ+i+1}")
        if i == 6:
            k.e(f"buffer_store_dwordx4 {vr(WB,4)}, v10, s[{SWS}:{SWS+3}], s{sT} offen sc1")
    k.e(f"buffer_store_dwordx4 {vr(WB+4,4)}, v10, s[{SWS}:{SWS+3}], s{sT} offen offset:1024 sc1")
    k.stamp(6)
    k.end(SWS, 0, 7)
    k.label(k.L('end'))
    k.e("s_endpgm")
    return k, dict(vgpr=192, sgpr=64, grid=256, block=512, lds=163840)
```

```python
from gen3 import *

def gen_a6():
    k = K("ka")
    SX, SW, SWS, SDB, SP = 4, 8, 12, 16, 32
    sW, sRB, sH, sx, skv, sq, sT, sT2, sEPS, sONE, sLN2, sCX, sCV, sROT = 20, 21, 22, 23, 24, 25, 26, 27, 28, 29, 30, 31, 56, 57
    XS, NXS = 0, 7
    VS, NVS = 114688, 5
    WQ = 0
    MISC = 155648
    PART = 65536
    CSX = MISC + 2048
    CNT = MISC + 6144
    DUM = 222
    AH = 2
    k.stamp(0)
    k.e(f"""
    s_cmp_ge_u32 s2, 256
    s_cbranch_scc1 {k.L('end')}
    s_load_dwordx2 s[{SX}:{SX+1}], s[0:1], 0
    s_load_dwordx2 s[{SW}:{SW+1}], s[0:1], 8
    s_load_dwordx2 s[{SDB}:{SDB+1}], s[0:1], 64
    s_load_dwordx2 s[{SWS}:{SWS+1}], s[0:1], 72
    s_load_dwordx2 s[{SP}:{SP+1}], s[0:1], 16
    """)
    if CPF:
        k.e(f"""
        s_getpc_b64 s[36:37]
        Lka_pc:
        s_lshr_b32 s{sT2}, s2, 3
        v_min_u32 v5, 7, v0
        v_lshlrev_b32 v5, 7, v5
        s_lshl_b32 s{sT}, s{sT2}, 10
        v_add_u32 v5, s{sT}, v5
        v_min_u32 v5, Lcode_end-Lka_pc-4, v5
        v_cmp_gt_u32 vcc, 8, v0
        s_and_saveexec_b64 s[38:39], vcc
        s_cbranch_execz {k.L('nocpf')}
        global_load_dword v{DUM}, v5, s[36:37]
        """)
        k.label(k.L('nocpf'))
        k.e("s_mov_b64 exec, -1")
    k.e(f"""
    v_lshrrev_b32 v5, 6, v0
    v_lshrrev_b32 v6, 3, v0
    v_readfirstlane_b32 s{sW}, v5
    v_and_b32 v7, 0x38, v6
    v_add_u32 v7, v6, v7
    v_and_b32 v8, 7, v0
    v_bfe_u32 v9, v0, 4, 2
    v_xor_b32 v9, v8, v9
    v_mul_u32_u24 v1, 896, v7
    v_lshl_add_u32 v1, v9, 4, v1
    v_xor_b32 v2, 64, v1
    v_add_u32 v2, 6144, v2
    s_bfe_u32 s{sRB}, s2, 0x20001
    s_lshl_b32 s{sRB}, s{sRB}, 2
    s_lshr_b32 s{sT}, s2, 6
    s_add_u32 s{sRB}, s{sRB}, s{sT}
    s_bfe_u32 s{sT2}, s2, 0x30003
    s_and_b32 s{sH}, s2, 1
    s_lshl_b32 s{sH}, s{sH}, 3
    s_add_u32 s{sH}, s{sH}, s{sT2}
    s_lshl_b32 s{sT}, s{sT}, 1
    s_add_u32 s{sT}, s{sT}, s{sT2}
    """)
    div7(k, sT2, sROT, sT)
    k.e(f"""
    s_mul_i32 s{sx}, s{sRB}, {128*896}
    s_lshl_b32 s{sT}, s{sROT}, 7
    s_add_u32 s{sx}, s{sx}, s{sT}
    s_mov_b32 s{sCX}, s{sROT}
    s_lshl_b32 m0, s{sW}, 11
    """)
    srd_consts(k, SX, S*D*2)
    srd_consts(k, SW, D*3*D*2)
    srd_consts(k, SP, D*D*2)
    k.e(f"""
    v_and_b32 v5, 63, v0
    v_min_u32 v10, 36, v5
    s_mul_i32 s{sT}, s2, 37
    v_add_lshl_u32 v10, v10, s{sT}, 7
    s_waitcnt lgkmcnt(0)
    """)
    k.stamp(1)
    if WPF:
        k.e(f"""
        s_cmp_lg_u32 s{sW}, 3
        s_cbranch_scc1 {k.L('nt1')}
        buffer_load_dword v{DUM}, v10, s[{SW}:{SW+3}], 0 offen
        """)
        k.label(k.L('nt1'))
    def issue_x(c):
        if c > 0:
            k.e(f"""
            s_lshl_b32 s{sT}, s{sW}, 11
            s_add_u32 m0, s{sT}, {XS + (c % NXS)*16384}
            s_add_u32 s{sCX}, s{sCX}, 1
            s_cmp_eq_u32 s{sCX}, 7
            s_cselect_b32 s{sT}, -6, 1
            s_lshl_b32 s{sT}, s{sT}, 7
            s_add_u32 s{sx}, s{sx}, s{sT}
            """)
        k.vop(f"buffer_load_dwordx4 v1, s[{SX}:{SX+3}], s{sx} offen lds", f"s{c}")
        k.vop(f"buffer_load_dwordx4 v2, s[{SX}:{SX+3}], s{sx} offen offset:1024 lds", f"s{c}")
    def issue_v(c):
        k.e(f"""
        s_lshl_b32 s{sT}, s{sW}, 10
        s_add_u32 m0, s{sT}, {VS + (c % NVS)*8192}
        """)
        if c > 0:
            k.e(f"""
            s_add_u32 s{sCV}, s{sCV}, 1
            s_cmp_eq_u32 s{sCV}, 7
            s_cselect_b32 s{sT}, -6, 1
            s_mul_i32 s{sT}, s{sT}, {64*2688}
            s_add_u32 s{skv}, s{skv}, s{sT}
            """)
        else:
            k.e("s_nop 0")
        k.vop(f"buffer_load_dwordx4 v3, s[{SW}:{SW+3}], s{skv} offen lds", f"s{c+AH}")
    def issue_stage(s):
        if s <= 6: issue_x(s)
        if AH <= s <= 6+AH: issue_v(s-AH)
    def issue_after(s):
        if s+3 <= 6: issue_x(s+3)
        if AH <= s+3 <= 6+AH: issue_v(s+3-AH)
    issue_stage(0)
    k.e("s_barrier")
    issue_stage(1)
    k.e(f"""
    v_bfe_u32 v9, v0, 4, 1
    v_lshlrev_b32 v9, 2, v9
    v_xor_b32 v9, v8, v9
    v_mul_u32_u24 v3, 2688, v6
    v_and_b32 v8, 3, v9
    v_lshl_add_u32 v3, v8, 4, v3
    v_lshrrev_b32 v9, 2, v9
    v_mul_u32_u24 v9, 896, v9
    v_add_u32 v3, v3, v9
    s_mul_i32 s{sq}, s{sH}, 56
    s_and_b32 s{sq}, s{sq}, -16
    s_mul_i32 s{sT}, s{sROT}, {64*2688}
    s_add_u32 s{skv}, s{sq}, s{sT}
    s_add_u32 s{skv}, s{skv}, 896
    s_mov_b32 s{sCV}, s{sROT}
    """)
    k.e("s_barrier")
    issue_stage(2)
    srd_consts(k, SWS, WS_USED)
    srd_consts(k, SDB, 256)
    k.e(f"""
    s_mov_b32 s{sEPS}, 0x{EPS_PHI_L:x}
    s_mov_b32 s{sONE}, 0x{ONES_BF:x}
    s_mov_b32 s{sLN2}, 0x{LN2:x}
    v_mov_b32 v12, 0
    v_mov_b32 v13, 0
    v_mov_b32 v14, 0
    v_mov_b32 v15, 0
    v_mov_b32 v10, {CNT}
    ds_write_b128 v10, v[12:15]
    s_cmp_lt_u32 s{sW}, 4
    s_cbranch_scc1 {k.L('nozf')}
    v_and_b32 v10, 255, v0
    v_lshlrev_b32 v10, 4, v10
    s_cmp_lg_u32 s{sRB}, 0
    s_cbranch_scc1 {k.L('nozero')}
    s_lshl_b32 s{sT}, s{sH}, 12
    buffer_store_dwordx4 v[12:15], v10, s[{SWS}:{SWS+3}], s{sT} offen sc1
    """)
    k.label(k.L('nozero'))
    k.e(f"""
    s_lshr_b32 s{sT}, s2, 2
    s_cmp_lg_u32 s{sT}, 20
    s_cbranch_scc1 {k.L('nocs')}
    s_and_b32 s{sT}, s2, 3
    s_lshl_b32 s{sT}, s{sT}, 12
    s_add_u32 s{sT}, s{sT}, {CS_OFF}
    v_mov_b32 v16, -1
    v_mov_b32 v17, -1
    v_mov_b32 v18, -1
    v_mov_b32 v19, -1
    buffer_store_dwordx4 v[16:19], v10, s[{SWS}:{SWS+3}], s{sT} offen sc1
    """)
    k.label(k.L('nocs'))
    k.e(f"""
    s_lshr_b32 s{sT}, s2, 4
    s_cmp_lg_u32 s{sT}, 4
    s_cbranch_scc1 {k.L('nozf')}
    s_and_b32 s{sT}, s2, 15
    s_lshl_b32 s{sT}, s{sT}, 12
    s_add_u32 s{sT}, s{sT}, {FL_OFF}
    buffer_store_dwordx4 v[12:15], v10, s[{SWS}:{SWS+3}], s{sT} offen sc1
    """)
    k.label(k.L('nozf'))
    AX = 208
    k.e(f"""
    v_and_b32 v8, 31, v0
    v_bfe_u32 v9, v0, 5, 1
    v_bfe_u32 v14, v0, 6, 2
    v_lshl_add_u32 v15, v14, 5, v8
    v_lshlrev_b32 v10, 7, v15
    v_bfe_u32 v11, v8, 1, 3
    v_xor_b32 v11, v11, v9
    v_lshlrev_b32 v12, 1, v14
    v_xor_b32 v11, v11, v12
    v_mov_b32 v7, 1
    """)
    for p in range(4):
        k.e(f"v_xor_b32 v12, {2*p}, v11")
        k.e(f"v_lshl_add_u32 v{AX+p}, v12, 4, v10")
    k.e(f"v_add_u32 v{AX+4}, 0x10000, v{AX}\nv_add_u32 v{AX+5}, 0x10000, v{AX+1}\nv_add_u32 v{AX+6}, 0x10000, v{AX+2}\nv_add_u32 v{AX+7}, 0x10000, v{AX+3}")
    def xread(dst, c, p):
        o = XS + (c % NXS)*16384
        k.e(f"ds_read_b128 {vr(dst,4)}, v{AX+p+4*(o >> 16)} offset:{o & 0xffff}")
    def arrive(i):
        k.e(f"s_mov_b64 exec, 1\nds_add_u32 v6, v7 offset:{4*i}\ns_mov_b64 exec, -1")
    def lwait(name, i, target, vt):
        k.label(k.L(name))
        k.e(f"""
        ds_read_b32 v{vt}, v6 offset:{4*i}
        s_waitcnt lgkmcnt(0)
        v_cmp_gt_u32 vcc, {target}, v{vt}
        s_cbranch_vccnz {k.L(name)}
        """)
    k.e(f"""
    v_mov_b32 v6, {CNT}
    s_waitcnt lgkmcnt(0)
    s_cmp_ge_u32 s{sW}, 4
    s_cbranch_scc1 {k.L('q')}
    """)
    vm_split = list(k.vm)
    def wpf(qside):
        if not WPF or not qside: return
        k.e(f"""
        s_cmp_ge_u32 s{sW}, 6
        s_cbranch_scc1 {k.L('nopf')}
        s_lshr_b32 s{sT}, s2, 3
        s_lshl_b32 s{sT}, s{sT}, 1
        s_add_u32 s{sT}, s{sT}, s{sW}
        s_sub_u32 s{sT}, s{sT}, 4
        s_mul_i32 s{sT}, s{sT}, 49
        v_and_b32 v5, 63, v0
        v_min_u32 v5, 48, v5
        v_add_lshl_u32 v5, v5, s{sT}, 7
        buffer_load_dword v{DUM}, v5, s[{SP}:{SP+3}], 0 offen
        """)
        k.label(k.L('nopf'))
    ACK, ACV = 16, 32
    BUF = [48, 60, 72]
    AWK, AWV = 152, 156
    CSK, CSV = 160, 162
    RL, XE, WEK, WEV = 84, 100, 104, 108
    PKF, VF, KVA, T = 112, 120, 128, 144
    k.e(f"""
    s_setprio 2
    v_bfe_u32 v11, v0, 2, 2
    v_lshl_add_u32 v10, v9, 3, v11
    v_lshlrev_b32 v10, 7, v10
    v_bfe_u32 v12, v0, 4, 1
    v_and_b32 v13, 3, v0
    v_lshl_add_u32 v12, v12, 2, v13
    s_and_b32 s{sT}, s{sH}, 1
    v_add_u32 v12, s{sT}, v12
    v_and_b32 v12, 7, v12
    v_lshl_add_u32 v10, v12, 3, v10
    v_lshrrev_b32 v11, 1, v11
    v_lshl_add_u32 v10, v11, 6, v10
    v_lshl_add_u32 v10, v14, 11, v10
    v_add_u32 v{AWK}, {VS}, v10
    v_mov_b32 v{CSK}, 0
    v_mov_b32 v{CSK+1}, 0
    v_mov_b32 v{XE+2}, 0
    v_mov_b32 v{XE+3}, 0
    """)
    assert VS % 8192 == 0
    for p in range(1, 4):
        k.e(f"v_xor_b32 v{AWK+p}, {p << 11}, v{AWK}")
    for p in range(4):
        k.e(f"v_xor_b32 v{AWV+p}, 64, v{AWK+p}")
    k.e(f"""
    v_lshlrev_b32 v12, 3, v0
    v_add_u32 v12, {CSX}, v12
    v_and_b32 v13, 63, v0
    v_lshlrev_b32 v13, 3, v13
    v_add_u32 v13, {CSX}, v13
    v_lshlrev_b32 v10, 3, v15
    v_add_u32 v10, {MISC}, v10
    v_lshlrev_b32 v11, 7, v14
    v_lshl_add_u32 v11, v9, 4, v11
    v_add_u32 v11, {MISC+1024}, v11
    """)
    def kv_reads(c, p, b):
        o = (c % NVS)*8192
        xread(BUF[b], c, p)
        for ri in range(2):
            k.e(f"ds_read_b64_tr_b16 {vr(BUF[b]+4+2*ri,2)}, v{AWK+p} offset:{o+ri*512}")
        for ri in range(2):
            k.e(f"ds_read_b64_tr_b16 {vr(BUF[b]+8+2*ri,2)}, v{AWV+p} offset:{o+ri*512}")
    NS = 7+AH
    def gate(s):
        k.wait_vm(f"s{s}")
        k.e("s_barrier")
        if s == 0: k.stamp(2)
        if s == NS-1: k.stamp(3)
    def post_gate(s):
        issue_after(s)
        if s == NS-2:
            k.e(f"""
            v_mov_b32 v5, 0
            s_lshl_b32 s{sT2}, s{sH}, 4
            """)
            k.vop(f"buffer_load_dwordx4 {vr(T+4,4)}, v5, s[{SDB}:{SDB+3}], s{sT2} offen sc1", "poll")
    def rd(u):
        c, p = u >> 2, u & 3
        if p == 0: gate(c+AH)
        kv_reads(c, p, u % 3)
        if p == 0: post_gate(c+AH)
    for s_ in range(AH):
        gate(s_); post_gate(s_)
    for u in range(3): rd(u)
    for u in range(28):
        c, p = u >> 2, u & 3
        b = u % 3
        k.e(f"s_waitcnt lgkmcnt({5*min(2, 27-u)})")
        first = (u == 0)
        k.e(f"v_mfma_f32_32x32x16_bf16 {vr(ACK,16)}, {vr(BUF[b],4)}, {vr(BUF[b]+4,4)}, {'0' if first else vr(ACK,16)}")
        k.e(f"v_mfma_f32_32x32x16_bf16 {vr(ACV,16)}, {vr(BUF[b],4)}, {vr(BUF[b]+8,4)}, {'0' if first else vr(ACV,16)}")
        if p == 0:
            for j in range(4):
                k.e(f"v_dot2c_f32_bf16 v{CSK}, s{sONE}, v{BUF[b]+4+j}")
                k.e(f"v_dot2c_f32_bf16 v{CSK+1}, s{sONE}, v{BUF[b]+8+j}")
        if u+3 < 28: rd(u+3)
        if u == 25:
            k.e(f"ds_write_b64 v12, {vr(CSK,2)}")
            arrive(0)
        if u == 26:
            k.e(f"ds_read_b64 {vr(XE,2)}, v10")
            for a in range(4):
                k.e(f"ds_read_b128 {vr(RL+4*a,4)}, v11 offset:{a*32}")
            k.e(f"""
            v_and_b32 v10, 63, v0
            v_lshlrev_b32 v4, 2, v10
            v_lshlrev_b32 v10, 4, v10
            v_lshl_add_u32 v10, v14, 12, v10
            v_add_u32 v10, {PART}, v10
            v_lshl_add_u32 v4, v14, 10, v4
            v_add_u32 v3, {PART}, v4
            s_lshl_b32 s{sT}, s{sH}, 12
            """)
    k.e(f"s_setprio {env('KVP', 0)}")
    lwait('w0', 0, 4, T)
    k.e(f"""
    ds_read2st64_b64 {vr(PKF,4)}, v13 offset0:0 offset1:1
    ds_read2st64_b64 {vr(PKF+4,4)}, v13 offset0:2 offset1:3
    s_waitcnt lgkmcnt(0)
    v_add_f32 v{PKF}, v{PKF}, v{PKF+2}
    v_add_f32 v{PKF+1}, v{PKF+1}, v{PKF+3}
    v_add_f32 v{PKF+4}, v{PKF+4}, v{PKF+6}
    v_add_f32 v{PKF+5}, v{PKF+5}, v{PKF+7}
    v_add_f32 v{CSK}, v{PKF}, v{PKF+4}
    v_add_f32 v{CSV}, v{PKF+1}, v{PKF+5}
    """)
    k.stamp(4)
    hilo_w(k, WEK, CSK, T)
    k.e("s_nop 1")
    k.e(f"v_mfma_f32_32x32x16_bf16 {vr(ACK,16)}, {vr(XE,4)}, {vr(WEK,4)}, {vr(ACK,16)}")
    hilo_w(k, WEV, CSV, T+1)
    k.e("s_nop 1")
    k.e(f"v_mfma_f32_32x32x16_bf16 {vr(ACV,16)}, {vr(XE,4)}, {vr(WEV,4)}, {vr(ACV,16)}")
    k.nop(3)
    for h in range(2):
        for i in range(8*h, 8*h+8, 2):
            phi_ops(k, ACK+i, ACK+i, RL+i, T, sEPS, sLN2)
            phi_ops(k, ACK+i+1, ACK+i+1, RL+i+1, T+1, sEPS, sLN2)
            k.e(f"v_cvt_pk_bf16_f32 v{PKF+i//2}, v{ACK+i}, v{ACK+i+1}")
        for i in range(8*h, 8*h+8, 2):
            k.e(f"v_pk_mul_f32 {vr(ACV+i,2)}, {vr(ACV+i,2)}, {vr(RL+i,2)}")
            k.e(f"v_cvt_pk_bf16_f32 v{VF+i//2}, v{ACV+i}, v{ACV+i+1}")
        k.e("s_mov_b32 exec_lo, 0x10000000\ns_mov_b32 exec_hi, 0x10000000")
        for j in range(4):
            k.e(f"v_mov_b32 v{VF+4*h+j}, s{sONE}")
        k.e("s_mov_b64 exec, -1\ns_nop 0")
        k.e(f"v_mfma_f32_32x32x16_bf16 {vr(KVA,16)}, {vr(PKF+4*h,4)}, {vr(VF+4*h,4)}, {'0' if h == 0 else vr(KVA,16)}")
    k.wait_vm("poll")
    k.label(k.L('poll'))
    k.e(f"""
    v_min_u32 v{T}, v{T+4}, v{T+5}
    v_min3_u32 v{T}, v{T}, v{T+6}, v{T+7}
    v_cmp_eq_u32 vcc, 0, v{T}
    s_cbranch_vccz {k.L('pollok')}
    s_sleep 2
    buffer_load_dwordx4 {vr(T+4,4)}, v5, s[{SDB}:{SDB+3}], s{sT2} offen sc1
    s_waitcnt vmcnt(0)
    s_branch {k.L('poll')}
    """)
    k.label(k.L('pollok'))
    k.nop(7)
    for a in range(4):
        k.e(f"ds_write_b128 v10, {vr(KVA+4*a,4)} offset:{a*1024}")
    arrive(1)
    lwait('w1', 1, 4, T)
    k.stamp(5)
    for u in range(4):
        k.e(f"ds_read2st64_b32 {vr(ACK+4*u,2)}, v3 offset0:{u} offset1:{u+16}")
        k.e(f"ds_read2st64_b32 {vr(ACK+4*u+2,2)}, v3 offset0:{u+32} offset1:{u+48}")
    for u in range(4):
        k.e(f"s_waitcnt lgkmcnt({6-2*u})")
        k.e(f"v_add_f32 v{ACK+4*u}, v{ACK+4*u}, v{ACK+4*u+1}")
        k.e(f"v_add_f32 v{ACK+4*u+2}, v{ACK+4*u+2}, v{ACK+4*u+3}")
        k.e(f"v_add_f32 v{ACK+4*u}, v{ACK+4*u}, v{ACK+4*u+2}")
        if u == 2:
            k.e(f"s_cmp_eq_u32 s{sW}, 3\ns_cbranch_scc1 {k.L('kvend')}")
        k.e(f"buffer_atomic_add_f32 v{ACK+4*u}, v4, s[{SWS}:{SWS+3}], s{sT} offen offset:{u*256}")
    k.label(k.L('kvend'))
    k.stamp(6)
    k.end(SWS, 0, 7)
    k.label(k.L('q'))
    XQ, ACQ, WB = 16, 128, 160
    SUM, SQ, CSQ, RS, T = 184, 186, 188, 190, 216
    AWQ, XE2, WE2 = 192, 200, 204
    QMASK = sum(1 << h for h in (0, 3, 5, 7, 8, 10, 12, 14))
    for r in (SUM, SUM+1, SQ, SQ+1, CSQ, CSQ+1):
        k.e(f"v_mov_b32 v{r}, 0")
    k.e(f"""
    s_lshr_b32 s{sT}, {QMASK}, s{sH}
    s_bitcmp1_b32 s{sT}, 0
    s_cbranch_scc1 {k.L('qf')}
    """)
    def wq_dma(pos):
        k.e(f"""
        s_lshl_b32 s{sT}, s{sW}, 11
        s_add_i32 m0, s{sT}, {WQ + pos*8192 - 8192}
        s_add_u32 s{sT2}, s{sROT}, {pos}
        s_cmp_ge_u32 s{sT2}, 7
        s_cselect_b32 s{sT}, 7, 0
        s_sub_u32 s{sT2}, s{sT2}, s{sT}
        s_mul_i32 s{sT2}, s{sT2}, {64*2688}
        s_add_u32 s{sT2}, s{sT2}, s{sq}
        s_add_u32 s{sT}, s{sT2}, {8*2688-1024}
        """)
        k.vop(f"buffer_load_dwordx4 v4, s[{SW}:{SW+3}], s{sT2} offen lds", f"wq{pos}")
        k.vop(f"buffer_load_dwordx4 v4, s[{SW}:{SW+3}], s{sT} offen offset:1024 lds", f"wq{pos}")
    def q_stream(full):
        tag = 'f' if full else 's'
        k.vm = list(vm_split)
        for s in range(NS):
            gate(s)
            if s <= 6:
                for p in range(4):
                    xread(XQ+16*s+4*p, s, p)
            issue_after(s)
            if s == 1 and WPF:
                k.e(f"""
                s_cmp_ge_u32 s{sW}, 6
                s_cbranch_scc1 {k.L('nopf'+tag)}
                s_lshr_b32 s{sT}, s2, 3
                s_lshl_b32 s{sT}, s{sT}, 1
                s_add_u32 s{sT}, s{sT}, s{sW}
                s_sub_u32 s{sT}, s{sT}, 4
                s_mul_i32 s{sT}, s{sT}, 49
                v_and_b32 v5, 63, v0
                v_min_u32 v5, 48, v5
                v_add_lshl_u32 v5, v5, s{sT}, 7
                buffer_load_dword v{DUM}, v5, s[{SP}:{SP+3}], 0 offen
                """)
                k.label(k.L('nopf'+tag))
            if s == 3:
                k.e(f"""
                s_cmp_lg_u32 s{sRB}, 0
                s_cbranch_scc1 {k.L('noflag'+tag)}
                s_lshl_b32 s{sT}, s{sH}, 2
                s_add_u32 s{sT}, s{sT}, s{sW}
                s_sub_u32 s{sT}, s{sT}, 4
                s_lshl_b32 s{sT}, s{sT}, 2
                v_mov_b32 v5, 0
                s_mov_b64 exec, 1
                buffer_store_dword v7, v5, s[{SDB}:{SDB+3}], s{sT} offen sc1
                s_mov_b64 exec, -1
                """)
                k.label(k.L('noflag'+tag))
            if s <= 6:
                for p in range(4):
                    k.e(f"s_waitcnt lgkmcnt({3-p})")
                    for j in range(4):
                        r = XQ+16*s+4*p+j
                        k.e(f"v_dot2c_f32_bf16 v{SUM+(j&1)}, s{sONE}, v{r}")
                        k.e(f"v_dot2c_f32_bf16 v{SQ+(j&1)}, v{r}, v{r}")
            if s == 7:
                k.e(f"""
                v_lshlrev_b32 v11, 2, v15
                v_lshlrev_b32 v10, 3, v15
                v_mov_b32 v{XE2+3}, 0
                v_add_f32 v{SUM}, v{SUM}, v{SUM+1}
                v_add_f32 v{SQ}, v{SQ}, v{SQ+1}
                v_mov_b32 v{SUM+1}, v{SUM}
                v_mov_b32 v{SQ+1}, v{SQ}
                v_add_u32 v10, {MISC}, v10
                v_add_u32 v11, {MISC+1024}, v11
                v_permlane32_swap_b32 v{SUM}, v{SUM+1}
                v_permlane32_swap_b32 v{SQ}, v{SQ+1}
                v_mov_b32 v{XE2+2}, 0
                v_add_f32 v{SUM}, v{SUM}, v{SUM+1}
                v_add_f32 v{SQ}, v{SQ}, v{SQ+1}
                v_mul_f32 v{SUM}, 0x{INV_D|0x80000000:x}, v{SUM}
                v_mul_f32 v{SQ}, 0x{INV_D:x}, v{SQ}
                v_fma_f32 v{SQ}, -v{SUM}, v{SUM}, v{SQ}
                v_max_f32 v{SQ}, 0, v{SQ}
                v_add_f32 v{SQ}, 0x{EPS_LN:x}, v{SQ}
                v_rsq_f32 v{RS}, v{SQ}
                """)
                hilo_x(k, XE2, SUM, T)
                k.e(f"""
                v_mul_f32 v{RS}, 0x{LOG2E:x}, v{RS}
                ds_write_b64 v10, {vr(XE2,2)}
                ds_write_b32 v11, v{RS}
                """)
            if full:
                for pos in QISS.get(s, ()): wq_dma(pos)
            if s == 7:
                k.e("s_waitcnt lgkmcnt(0)")
    QISS = {5: (0, 1), 6: (2, 3), 7: (4, 5), 8: (6,)}
    q_stream(False)
    k.stamp(4); k.stamp(5); k.stamp(6)
    k.end(SWS, 0, 7)
    k.label(k.L('qf'))
    k.e(f"""
    v_bfe_u32 v11, v0, 2, 2
    v_lshl_add_u32 v10, v9, 3, v11
    v_lshlrev_b32 v10, 7, v10
    v_lshl_add_u32 v10, v14, 11, v10
    v_lshrrev_b32 v11, 1, v11
    v_lshlrev_b32 v13, 3, v11
    v_and_b32 v11, 1, v0
    v_bfe_u32 v12, v0, 4, 1
    v_lshl_add_u32 v11, v11, 1, v12
    v_bfe_u32 v12, v0, 1, 1
    v_lshl_add_u32 v11, v11, 1, v12
    v_xor_b32 v12, v11, v13
    v_lshl_add_u32 v{AWQ}, v12, 3, v10
    v_add_u32 v11, 7, v11
    v_xor_b32 v12, v11, v13
    v_lshl_add_u32 v{AWQ+4}, v12, 3, v10
    v_bfe_u32 v10, v0, 3, 3
    v_lshl_add_u32 v10, v14, 4, v10
    v_mul_u32_u24 v4, 2688, v10
    v_bfe_u32 v10, v0, 4, 1
    v_lshlrev_b32 v10, 2, v10
    v_and_b32 v11, 7, v0
    v_xor_b32 v10, v10, v11
    v_min_u32 v10, 6, v10
    v_lshl_add_u32 v4, v10, 4, v4
    s_lshr_b32 s{sT}, s{sH}, 1
    s_mul_i32 s{sq}, s{sT}, 112
    """)
    assert WQ == 0
    for tl in range(2):
        for p in range(1, 4):
            k.e(f"v_xor_b32 v{AWQ+4*tl+p}, {p << 11}, v{AWQ+4*tl}")
    q_stream(True)
    k.e(f"""
    s_setprio {env('QP', 2)}
    v_lshlrev_b32 v12, 3, v0
    v_add_u32 v12, {CSX}, v12
    v_and_b32 v10, 63, v0
    v_lshlrev_b32 v13, 3, v10
    v_add_u32 v13, {CSX+2048}, v13
    v_lshlrev_b32 v10, 4, v10
    s_lshl_b32 s{sT}, s{sRB}, 2
    s_add_u32 s{sT}, s{sT}, s{sW}
    s_sub_u32 s{sT}, s{sT}, 4
    s_lshl_b32 s{sT}, s{sT}, 4
    s_and_b32 s{sT2}, s{sH}, 14
    s_add_u32 s{sT}, s{sT}, s{sT2}
    s_lshl_b32 s{sT}, s{sT}, 11
    s_add_u32 s{sT}, s{sT}, {PQ_OFF}
    """)
    NB = 3
    def wq_read(kap):
        c, p = kap >> 2, kap & 3
        b = WB + 8*(kap % NB)
        for tl in range(2):
            for ri in range(2):
                k.e(f"ds_read_b64_tr_b16 {vr(b+4*tl+2*ri,2)}, v{AWQ+4*tl+p} offset:{c*8192+ri*512}")
    def q_range(k0, k1, mid=None):
        for kap in range(k0, min(k0+NB-1, k1)):
            wq_read(kap)
        for kap in range(k0, k1):
            if kap+NB-1 < k1:
                wq_read(kap+NB-1)
            rem = min(k1-1-kap, NB-1)
            k.e(f"s_waitcnt lgkmcnt({4*rem})")
            b = WB + 8*(kap % NB)
            for tl in range(2):
                k.e(f"v_mfma_f32_32x32x16_bf16 {vr(ACQ+16*tl,16)}, {vr(b+4*tl,4)}, {vr(XQ+4*kap,4)}, {'0' if kap == 0 else vr(ACQ+16*tl,16)}")
            if (kap & 3) == 0:
                for j in range(4):
                    k.e(f"v_dot2c_f32_bf16 v{CSQ}, s{sONE}, v{b+j}")
                    k.e(f"v_dot2c_f32_bf16 v{CSQ+1}, s{sONE}, v{b+4+j}")
            if mid and kap == mid[0]: mid[1]()
    def pub():
        k.e(f"ds_write_b64 v12, {vr(CSQ,2)}")
        arrive(3)
    parts = [(0, 3), (3, 5), (5, 7)]
    for n, (p0, p1) in enumerate(parts):
        k.wait_vm(f"wq{p1-1}")
        arrive(2)
        lwait(f'wq{n}', 2, 4*(n+1), T)
        if n == 0: k.stamp(4)
        if n == 2: k.stamp(5)
        q_range(4*p0, 4*p1, mid=(25, pub) if n == 2 else None)
    lwait('w4', 3, 4, T)
    k.e(f"""
    ds_read2st64_b64 {vr(WB,4)}, v13 offset0:0 offset1:1
    ds_read2st64_b64 {vr(WB+4,4)}, v13 offset0:2 offset1:3
    s_waitcnt lgkmcnt(0)
    v_add_f32 v{WB}, v{WB}, v{WB+2}
    v_add_f32 v{WB+1}, v{WB+1}, v{WB+3}
    v_add_f32 v{WB+4}, v{WB+4}, v{WB+6}
    v_add_f32 v{WB+5}, v{WB+5}, v{WB+7}
    v_add_f32 v{CSQ}, v{WB}, v{WB+4}
    v_add_f32 v{CSQ+1}, v{WB+1}, v{WB+5}
    """)
    hilo_w(k, WE2, CSQ, T)
    k.e(f"""
    s_nop 1
    v_mfma_f32_32x32x16_bf16 {vr(ACQ,16)}, {vr(WE2,4)}, {vr(XE2,4)}, {vr(ACQ,16)}
    """)
    hilo_w(k, WB+16, CSQ+1, T)
    k.e(f"""
    s_nop 1
    v_mfma_f32_32x32x16_bf16 {vr(ACQ+16,16)}, {vr(WB+16,4)}, {vr(XE2,4)}, {vr(ACQ+16,16)}
    """)
    k.nop(3)
    for tl in range(2):
        for i in range(0, 16, 2):
            a = ACQ+16*tl+i
            phi_ops(k, a, a, RS, T, sEPS, sLN2)
            phi_ops(k, a+1, a+1, RS, T+1, sEPS, sLN2)
            k.e(f"v_cvt_pk_bf16_f32 v{WB+8*tl+i//2}, v{a}, v{a+1}")
            if i % 8 == 6:
                k.e(f"buffer_store_dwordx4 {vr(WB+8*tl+4*(i//8),4)}, v10, s[{SWS}:{SWS+3}], s{sT} offen offset:{tl*2048+(i//8)*1024} sc1")
    k.stamp(6)
    k.end(SWS, 0, 7)
    k.label(k.L('end'))
    k.e("s_endpgm")
    return k, dict(vgpr=224, sgpr=64, grid=256, block=512, lds=163840)
```

```python
from gen3 import *

def gen_a7():
    k = K("ka")
    SX, SW, SWS, SDB, SP = 4, 8, 12, 16, 32
    sW, sRB, sH, sx, skv, sq, sT, sT2, sEPS, sONE, sLN2, sCX, sCQ, sROT, sT3 = 20, 21, 22, 23, 24, 25, 26, 27, 28, 29, 30, 31, 56, 57, 58
    NXS, NVS, NQS = 6, 5, 4
    QL = env('QL', 2)
    XS = 0
    VS = NXS*16384
    QS = VS + NVS*8192
    MISC = QS + NQS*4096
    assert MISC + 8192 <= 163840
    PART = 0
    CSX = MISC
    CNT = MISC + 4096
    DUM = 126
    LA = env('ALA', 2)
    k.stamp(0)
    k.e(f"""
    s_cmp_ge_u32 s2, 256
    s_cbranch_scc1 {k.L('end')}
    s_load_dwordx2 s[{SX}:{SX+1}], s[0:1], 0
    s_load_dwordx2 s[{SW}:{SW+1}], s[0:1], 8
    s_load_dwordx2 s[{SDB}:{SDB+1}], s[0:1], 64
    s_load_dwordx2 s[{SWS}:{SWS+1}], s[0:1], 72
    s_load_dwordx2 s[{SP}:{SP+1}], s[0:1], 16
    """)
    if CPF:
        k.e(f"""
        s_getpc_b64 s[36:37]
        Lka_pc:
        s_lshr_b32 s{sT2}, s2, 3
        v_min_u32 v5, 7, v0
        v_lshlrev_b32 v5, 7, v5
        s_lshl_b32 s{sT}, s{sT2}, 10
        v_add_u32 v5, s{sT}, v5
        v_min_u32 v5, Lcode_end-Lka_pc-4, v5
        v_cmp_gt_u32 vcc, 8, v0
        s_and_saveexec_b64 s[38:39], vcc
        s_cbranch_execz {k.L('nocpf')}
        global_load_dword v{DUM}, v5, s[36:37]
        """)
        k.label(k.L('nocpf'))
        k.e("s_mov_b64 exec, -1")
    k.e(f"""
    v_lshrrev_b32 v5, 6, v0
    v_lshrrev_b32 v6, 3, v0
    v_readfirstlane_b32 s{sW}, v5
    v_and_b32 v7, 0x38, v6
    v_add_u32 v7, v6, v7
    v_and_b32 v8, 7, v0
    v_bfe_u32 v9, v0, 4, 2
    v_xor_b32 v9, v8, v9
    v_mul_u32_u24 v1, 896, v7
    v_lshl_add_u32 v1, v9, 4, v1
    v_xor_b32 v2, 64, v1
    v_add_u32 v2, 6144, v2
    v_bfe_u32 v9, v0, 4, 1
    v_lshlrev_b32 v9, 2, v9
    v_xor_b32 v9, v8, v9
    v_mul_u32_u24 v3, 2688, v6
    v_and_b32 v10, 3, v9
    v_lshl_add_u32 v3, v10, 4, v3
    v_lshrrev_b32 v9, 2, v9
    v_mul_u32_u24 v9, 896, v9
    v_add_u32 v3, v3, v9
    v_bfe_u32 v10, v0, 2, 6
    v_mul_u32_u24 v4, 2688, v10
    v_and_b32 v10, 3, v0
    v_lshl_add_u32 v4, v10, 4, v4
    s_bfe_u32 s{sRB}, s2, 0x20001
    s_lshl_b32 s{sRB}, s{sRB}, 2
    s_lshr_b32 s{sT}, s2, 6
    s_add_u32 s{sRB}, s{sRB}, s{sT}
    s_bfe_u32 s{sT2}, s2, 0x30003
    s_and_b32 s{sH}, s2, 1
    s_lshl_b32 s{sH}, s{sH}, 3
    s_add_u32 s{sH}, s{sH}, s{sT2}
    s_lshl_b32 s{sT}, s{sT}, 1
    s_add_u32 s{sT}, s{sT}, s{sT2}
    """)
    div7(k, sT2, sROT, sT)
    k.e(f"""
    s_mul_i32 s{sx}, s{sRB}, {128*896}
    s_lshl_b32 s{sT}, s{sROT}, 7
    s_add_u32 s{sx}, s{sx}, s{sT}
    s_mov_b32 s{sCX}, s{sROT}
    s_mul_i32 s{sT}, s{sROT}, {64*2688}
    s_mul_i32 s{skv}, s{sH}, 56
    s_and_b32 s{skv}, s{skv}, -16
    s_add_u32 s{skv}, s{skv}, s{sT}
    s_add_u32 s{skv}, s{skv}, 896
    s_xor_b32 s{sq}, s{sH}, 1
    s_mul_i32 s{sq}, s{sq}, 56
    s_and_b32 s{sq}, s{sq}, -16
    s_add_u32 s{sq}, s{sq}, s{sT}
    """)
    srd_consts(k, SX, S*D*2)
    srd_consts(k, SW, D*3*D*2)
    k.e("s_waitcnt lgkmcnt(0)")
    k.stamp(1)
    def issue(c, qside):
        if c <= 6:
            if c > 0:
                k.e(f"""
                s_add_u32 s{sCX}, s{sCX}, 1
                s_cmp_eq_u32 s{sCX}, 7
                s_cselect_b32 s{sT}, -6, 1
                s_lshl_b32 s{sT2}, s{sT}, 7
                s_add_u32 s{sx}, s{sx}, s{sT2}
                s_mul_i32 s{sT}, s{sT}, {64*2688}
                s_add_u32 s{skv}, s{skv}, s{sT}
                """)
            k.e(f"""
            s_lshl_b32 s{sT}, s{sW}, 11
            s_add_u32 m0, s{sT}, {XS + (c % NXS)*16384}
            s_lshl_b32 s{sT}, s{sW}, 10
            """)
            k.vop(f"buffer_load_dwordx4 v1, s[{SX}:{SX+3}], s{sx} offen lds", f"s{c}")
            k.vop(f"buffer_load_dwordx4 v2, s[{SX}:{SX+3}], s{sx} offen offset:1024 lds", f"s{c}")
            k.e(f"s_add_u32 m0, s{sT}, {VS + (c % NVS)*8192}\ns_nop 0")
            k.vop(f"buffer_load_dwordx4 v3, s[{SW}:{SW+3}], s{skv} offen lds", f"s{c}")
        cq = c-QL
        if qside and 0 <= cq <= 6:
            k.e(f"""
            s_lshl_b32 s{sT}, s{sW}, 10
            s_add_u32 m0, s{sT}, {QS + (cq % NQS)*4096 - 4096}
            """)
            if cq > 0:
                k.e(f"""
                s_add_u32 s{sROT}, s{sROT}, 1
                s_cmp_eq_u32 s{sROT}, 7
                s_cselect_b32 s{sT}, -6, 1
                s_mul_i32 s{sT}, s{sT}, {64*2688}
                s_add_u32 s{sq}, s{sq}, s{sT}
                """)
            else:
                k.e("s_nop 0")
            k.vop(f"buffer_load_dwordx4 v4, s[{SW}:{SW+3}], s{sq} offen lds", f"s{c}")
    AX = 112
    def common2():
        srd_consts(k, SWS, WS_USED)
        srd_consts(k, SDB, 256)
        k.e(f"""
        s_mov_b32 s{sEPS}, 0x{EPS_PHI_L:x}
        s_mov_b32 s{sONE}, 0x{ONES_BF:x}
        s_mov_b32 s{sLN2}, 0x{LN2:x}
        v_and_b32 v8, 31, v0
        v_bfe_u32 v9, v0, 5, 1
        v_bfe_u32 v14, v0, 6, 2
        v_lshl_add_u32 v15, v14, 5, v8
        v_lshlrev_b32 v10, 7, v15
        v_bfe_u32 v11, v8, 1, 3
        v_xor_b32 v11, v11, v9
        v_lshlrev_b32 v12, 1, v14
        v_xor_b32 v11, v11, v12
        v_mov_b32 v7, 1
        v_mov_b32 v6, {CNT}
        v_mov_b32 v5, 0
        """)
        for p in range(4):
            k.e(f"v_xor_b32 v12, {2*p}, v11")
            k.e(f"v_lshl_add_u32 v{AX+p}, v12, 4, v10")
        for p in range(4):
            k.e(f"v_add_u32 v{AX+4+p}, 0x10000, v{AX+p}")
    def xread(dst, c, p):
        o = XS + (c % NXS)*16384
        k.e(f"ds_read_b128 {vr(dst,4)}, v{AX+p+4*(o >> 16)} offset:{o & 0xffff}")
    def arrive(i):
        k.e(f"s_mov_b64 exec, 1\nds_add_u32 v6, v7 offset:{4*i}\ns_mov_b64 exec, -1")
    def lwait(name, i, target, vt):
        k.label(k.L(name))
        k.e(f"""
        ds_read_b32 v{vt}, v6 offset:{4*i}
        s_waitcnt lgkmcnt(0)
        v_cmp_gt_u32 vcc, {target}, v{vt}
        s_cbranch_vccnz {k.L(name)}
        """)
    def gate(s):
        k.wait_vm(f"s{s}")
        k.e("s_barrier")
        if s == 0: k.stamp(2)
        if s == 6: k.stamp(3)
    def dpoll_issue(vt, soff, tag):
        k.vop(f"buffer_load_dword v{vt}, v5, s[{SDB}:{SDB+3}], s{soff} offen sc1", tag)
    def dpoll_check(name, vt, soff, target, tag):
        k.wait_vm(tag)
        k.label(k.L(name))
        k.e(f"""
        v_cmp_ne_u32 vcc, {target}, v{vt}
        s_cbranch_vccz {k.L(name+'ok')}
        s_sleep 2
        buffer_load_dword v{vt}, v5, s[{SDB}:{SDB+3}], s{soff} offen sc1
        s_waitcnt vmcnt(0)
        s_branch {k.L(name)}
        """)
        k.label(k.L(name+'ok'))
    def rec_issue(R, nonce=True):
        k.e(f"""
        s_lshl_b32 s{sCQ}, s{sRB}, 11
        s_add_u32 s{sCQ}, s{sCQ}, {S1X_OFF}
        """)
        if nonce: k.e(f"ds_read_b64 {vr(R+4,2)}, v6 offset:16")
        k.vop(f"buffer_load_dwordx4 {vr(R,4)}, v10, s[{SWS}:{SWS+3}], s{sCQ} offen sc1", "st")
    def rec_check(name, R, XE_):
        k.wait_vm("st")
        k.label(k.L(name))
        k.e(f"""
        v_cmp_ne_u64 vcc, {vr(R+2,2)}, {vr(R+4,2)}
        s_cbranch_vccz {k.L(name+'ok')}
        s_sleep 2
        buffer_load_dwordx4 {vr(R,4)}, v10, s[{SWS}:{SWS+3}], s{sCQ} offen sc1
        s_waitcnt vmcnt(0)
        s_branch {k.L(name)}
        """)
        k.label(k.L(name+'ok'))
        k.e(f"""
        v_lshrrev_b32 v{XE_+1}, 16, v{R}
        v_and_b32 v{XE_}, 0xffff, v{R}
        v_lshl_or_b32 v{XE_}, v{XE_}, 16, v{XE_}
        """)
    k.e(f"""
    s_cmp_ge_u32 s{sW}, 4
    s_cbranch_scc1 {k.L('q')}
    """)
    k.e(f"""
    s_or_b32 s{sT}, s2, s{sW}
    s_cmp_lg_u32 s{sT}, 0
    s_cbranch_scc1 {k.L('nn')}
    s_memrealtime s[60:61]
    s_mov_b32 s{SDB+2}, 256
    s_mov_b32 s{SDB+3}, 0x20000
    v_mov_b32 v5, 0
    s_waitcnt lgkmcnt(0)
    s_or_b32 s60, s60, 1
    v_mov_b32 v10, s60
    v_mov_b32 v11, s61
    s_mov_b64 exec, 1
    buffer_store_dwordx2 v[10:11], v5, s[{SDB}:{SDB+3}], 0 offen offset:128 sc1
    s_mov_b64 exec, -1
    """)
    k.label(k.L('nn'))
    issue(0, False)
    k.e("s_barrier")
    for c in range(1, LA+1): issue(c, False)
    common2()
    ACK, ACV = 16, 32
    BUF = [48, 60, 72]
    RL, XE, WEK, WEV = 84, 100, 104, 108
    AWK, AWV = 128, 132
    CSK, PL = 120, 122
    PKF, VF, KVA, T = 48, 56, 64, 124
    k.e(f"""
    s_setprio 1
    v_bfe_u32 v11, v0, 2, 2
    v_lshl_add_u32 v10, v9, 3, v11
    v_lshlrev_b32 v10, 7, v10
    v_bfe_u32 v12, v0, 4, 1
    v_and_b32 v13, 3, v0
    v_lshl_add_u32 v12, v12, 2, v13
    s_and_b32 s{sT}, s{sH}, 1
    v_add_u32 v12, s{sT}, v12
    v_and_b32 v12, 7, v12
    v_lshl_add_u32 v10, v12, 3, v10
    v_lshrrev_b32 v11, 1, v11
    v_lshl_add_u32 v10, v11, 6, v10
    v_lshl_add_u32 v10, v14, 11, v10
    v_add_u32 v{AWK}, {VS}, v10
    v_mov_b32 v{CSK}, 0
    v_mov_b32 v{CSK+1}, 0
    v_mov_b32 v{XE+2}, 0
    v_mov_b32 v{XE+3}, 0
    """)
    assert VS % 8192 == 0
    for p in range(1, 4):
        k.e(f"v_xor_b32 v{AWK+p}, {p << 11}, v{AWK}")
    for p in range(4):
        k.e(f"v_xor_b32 v{AWV+p}, 64, v{AWK+p}")
    k.e(f"""
    v_lshlrev_b32 v12, 3, v0
    v_add_u32 v12, {CSX}, v12
    v_and_b32 v13, 63, v0
    v_lshlrev_b32 v13, 3, v13
    v_add_u32 v13, {CSX}, v13
    v_lshlrev_b32 v10, 4, v15
    v_lshlrev_b32 v11, 7, v14
    v_lshl_add_u32 v11, v9, 4, v11
    v_add_u32 v11, {CNT+1024}, v11
    v_lshlrev_b32 v4, 2, v15
    v_add_u32 v4, {CNT+1024}, v4
    s_lshl_b32 s{sT3}, s{sH}, 2
    """)
    def kv_reads(c, p, b):
        o = (c % NVS)*8192
        xread(BUF[b], c, p)
        for ri in range(2):
            k.e(f"ds_read_b64_tr_b16 {vr(BUF[b]+4+2*ri,2)}, v{AWK+p} offset:{o+ri*512}")
        for ri in range(2):
            k.e(f"ds_read_b64_tr_b16 {vr(BUF[b]+8+2*ri,2)}, v{AWV+p} offset:{o+ri*512}")
    def rd(u):
        c, p = u >> 2, u & 3
        if p == 0: gate(c)
        kv_reads(c, p, u % 3)
        if p == 0 and c > 0 and c+LA <= 6: issue(c+LA, False)
        if p == 0 and c == 5:
            dpoll_issue(PL+1, sT3, "p2")
            rec_issue(WEK, False)
    for u in range(3): rd(u)
    for u in range(28):
        c, p = u >> 2, u & 3
        b = u % 3
        k.e(f"s_waitcnt lgkmcnt({5*min(2, 27-u)})")
        first = (u == 0)
        k.e(f"v_mfma_f32_32x32x16_bf16 {vr(ACK,16)}, {vr(BUF[b],4)}, {vr(BUF[b]+4,4)}, {'0' if first else vr(ACK,16)}")
        k.e(f"v_mfma_f32_32x32x16_bf16 {vr(ACV,16)}, {vr(BUF[b],4)}, {vr(BUF[b]+8,4)}, {'0' if first else vr(ACV,16)}")
        if p == 0:
            for j in range(4):
                k.e(f"v_dot2c_f32_bf16 v{CSK}, s{sONE}, v{BUF[b]+4+j}")
                k.e(f"v_dot2c_f32_bf16 v{CSK+1}, s{sONE}, v{BUF[b]+8+j}")
        if u+3 < 28: rd(u+3)
        if u == 25:
            k.e(f"ds_read_b64 {vr(WEK+4,2)}, v6 offset:16")
            k.e(f"ds_write_b64 v12, {vr(CSK,2)}")
            arrive(0)
        if u == 26:
            k.e("s_waitcnt lgkmcnt(2)")
            rec_check('c1', WEK, XE)
            k.e(f"ds_write_b32 v4, v{WEK+1}")
            for a in range(4):
                k.e(f"ds_read_b128 {vr(RL+4*a,4)}, v11 offset:{a*32}")
            PARTA = VS + 2*8192
            k.e(f"""
            v_and_b32 v10, 63, v0
            v_lshlrev_b32 v4, 2, v10
            v_lshlrev_b32 v10, 4, v10
            v_lshl_add_u32 v10, v14, 12, v10
            v_add_u32 v10, {PARTA}, v10
            v_lshl_add_u32 v4, v14, 10, v4
            v_add_u32 v3, {PARTA}, v4
            s_lshl_b32 s{sT}, s{sH}, 12
            """)
    lwait('w0', 0, 4, T)
    k.e(f"""
    ds_read2st64_b64 {vr(PKF,4)}, v13 offset0:0 offset1:1
    ds_read2st64_b64 {vr(PKF+4,4)}, v13 offset0:2 offset1:3
    s_waitcnt lgkmcnt(0)
    v_add_f32 v{PKF}, v{PKF}, v{PKF+2}
    v_add_f32 v{PKF+1}, v{PKF+1}, v{PKF+3}
    v_add_f32 v{PKF+4}, v{PKF+4}, v{PKF+6}
    v_add_f32 v{PKF+5}, v{PKF+5}, v{PKF+7}
    v_add_f32 v{CSK}, v{PKF}, v{PKF+4}
    v_add_f32 v{CSK+1}, v{PKF+1}, v{PKF+5}
    """)
    k.stamp(4)
    hilo_w(k, WEK, CSK, T)
    k.e("s_nop 1")
    k.e(f"v_mfma_f32_32x32x16_bf16 {vr(ACK,16)}, {vr(XE,4)}, {vr(WEK,4)}, {vr(ACK,16)}")
    hilo_w(k, WEV, CSK+1, T+1)
    k.e("s_nop 1")
    k.e(f"v_mfma_f32_32x32x16_bf16 {vr(ACV,16)}, {vr(XE,4)}, {vr(WEV,4)}, {vr(ACV,16)}")
    k.nop(3)
    for h in range(2):
        for i in range(8*h, 8*h+8, 2):
            phi_ops(k, ACK+i, ACK+i, RL+i, T, sEPS, sLN2)
            phi_ops(k, ACK+i+1, ACK+i+1, RL+i+1, T+1, sEPS, sLN2)
            k.e(f"v_cvt_pk_bf16_f32 v{PKF+i//2}, v{ACK+i}, v{ACK+i+1}")
        for i in range(8*h, 8*h+8, 2):
            k.e(f"v_pk_mul_f32 {vr(ACV+i,2)}, {vr(ACV+i,2)}, {vr(RL+i,2)}")
            k.e(f"v_cvt_pk_bf16_f32 v{VF+i//2}, v{ACV+i}, v{ACV+i+1}")
        k.e("s_mov_b32 exec_lo, 0x10000000\ns_mov_b32 exec_hi, 0x10000000")
        for j in range(4):
            k.e(f"v_mov_b32 v{VF+4*h+j}, s{sONE}")
        k.e("s_mov_b64 exec, -1\ns_nop 0")
        k.e(f"v_mfma_f32_32x32x16_bf16 {vr(KVA,16)}, {vr(PKF+4*h,4)}, {vr(VF+4*h,4)}, {'0' if h == 0 else vr(KVA,16)}")
    dpoll_check('c2', PL+1, sT3, 0x01010101, "p2")
    k.nop(9)
    for a in range(4):
        k.e(f"ds_write_b128 v10, {vr(KVA+4*a,4)} offset:{a*1024}")
    arrive(1)
    lwait('w1', 1, 4, T)
    k.stamp(5)
    for u in range(4):
        k.e(f"ds_read2st64_b32 {vr(ACK+4*u,2)}, v3 offset0:{u} offset1:{u+16}")
        k.e(f"ds_read2st64_b32 {vr(ACK+4*u+2,2)}, v3 offset0:{u+32} offset1:{u+48}")
    for u in range(4):
        k.e(f"s_waitcnt lgkmcnt({6-2*u})")
        k.e(f"v_add_f32 v{ACK+4*u}, v{ACK+4*u}, v{ACK+4*u+1}")
        k.e(f"v_add_f32 v{ACK+4*u+2}, v{ACK+4*u+2}, v{ACK+4*u+3}")
        k.e(f"v_add_f32 v{ACK+4*u}, v{ACK+4*u}, v{ACK+4*u+2}")
        if u == 2:
            k.e(f"s_cmp_eq_u32 s{sW}, 3\ns_cbranch_scc1 {k.L('kvend')}")
        k.e(f"buffer_atomic_add_f32 v{ACK+4*u}, v4, s[{SWS}:{SWS+3}], s{sT} offen offset:{u*256}")
    k.label(k.L('kvend'))
    k.stamp(6)
    k.end(SWS, 0, 7)
    k.label(k.L('q'))
    k.vm = []
    ACQ, QB, SR = 16, 32, 64
    CSQ, RS, T, PL = 96, 98, 100, 102
    AWQ, XE2, WE2 = 104, 108, 120
    k.e(f"""
    s_cmp_lg_u32 s{sW}, 7
    s_cbranch_scc1 {k.L('ns1')}
    v_bfe_u32 v10, v0, 3, 3
    v_mul_u32_u24 v10, 896, v10
    v_lshl_add_u32 v10, v8, 4, v10
    s_lshl_b32 s{sT}, s{sRB}, 4
    s_add_u32 s{sT}, s{sT}, s{sH}
    s_mul_i32 s{sT}, s{sT}, {8*896}
    """)
    for j in range(7):
        k.e(f"buffer_load_dwordx4 {vr(SR+4*j,4)}, v10, s[{SX}:{SX+3}], s{sT} offen offset:{j*128}")
    k.label(k.L('ns1'))
    issue(0, True)
    k.e("s_barrier")
    for c in range(1, LA+1): issue(c, True)
    common2()
    srd_consts(k, SP, D*D*2)
    k.e(f"""
    v_mov_b32 v16, 0
    v_mov_b32 v17, 0
    v_mov_b32 v18, 0
    v_mov_b32 v19, 0
    ds_write_b128 v6, v[16:19]
    v_and_b32 v10, 255, v0
    v_lshlrev_b32 v10, 4, v10
    s_cmp_lg_u32 s{sRB}, 0
    s_cbranch_scc1 {k.L('nozero')}
    s_lshl_b32 s{sT}, s{sH}, 12
    buffer_store_dwordx4 v[16:19], v10, s[{SWS}:{SWS+3}], s{sT} offen sc1
    """)
    k.label(k.L('nozero'))
    k.e(f"""
    s_lshr_b32 s{sT}, s2, 4
    s_cmp_lg_u32 s{sT}, 4
    s_cbranch_scc1 {k.L('nozf')}
    s_and_b32 s{sT}, s2, 15
    s_lshl_b32 s{sT}, s{sT}, 12
    s_add_u32 s{sT}, s{sT}, {FL_OFF}
    buffer_store_dwordx4 v[16:19], v10, s[{SWS}:{SWS+3}], s{sT} offen sc1
    """)
    k.label(k.L('nozf'))
    k.e(f"""
    s_lshr_b32 s{sT}, s2, 2
    s_cmp_lg_u32 s{sT}, 20
    s_cbranch_scc1 {k.L('nocs')}
    s_and_b32 s{sT}, s2, 3
    s_lshl_b32 s{sT}, s{sT}, 12
    s_add_u32 s{sT}, s{sT}, {CS_OFF}
    v_mov_b32 v20, -1
    v_mov_b32 v21, -1
    v_mov_b32 v22, -1
    v_mov_b32 v23, -1
    buffer_store_dwordx4 v[20:23], v10, s[{SWS}:{SWS+3}], s{sT} offen sc1
    """)
    k.label(k.L('nocs'))
    k.e(f"""
    v_bfe_u32 v11, v0, 2, 2
    v_lshl_add_u32 v10, v9, 3, v11
    v_lshlrev_b32 v10, 6, v10
    v_and_b32 v11, 1, v0
    v_bfe_u32 v12, v0, 4, 1
    v_lshl_add_u32 v11, v11, 1, v12
    v_bfe_u32 v12, v0, 1, 1
    v_lshl_add_u32 v11, v11, 1, v12
    s_and_b32 s{sT}, s{sH}, 1
    s_xor_b32 s{sT}, s{sT}, 1
    v_add_u32 v11, s{sT}, v11
    v_and_b32 v11, 7, v11
    v_lshl_add_u32 v10, v11, 3, v10
    v_lshl_add_u32 v10, v14, 10, v10
    v_add_u32 v{AWQ}, {QS}, v10
    v_xor_b32 v{AWQ+1}, 0x400, v{AWQ}
    v_xor_b32 v{AWQ+2}, 0x800, v{AWQ}
    v_xor_b32 v{AWQ+3}, 0xc00, v{AWQ}
    v_mov_b32 v{CSQ}, 0
    v_mov_b32 v{CSQ+1}, 0
    v_mov_b32 v{XE2+2}, 0
    v_mov_b32 v{XE2+3}, 0
    v_lshlrev_b32 v12, 2, v0
    v_add_u32 v12, {CSX+1024}, v12
    v_and_b32 v13, 63, v0
    v_lshlrev_b32 v13, 2, v13
    v_add_u32 v13, {CSX+2048}, v13
    v_lshlrev_b32 v10, 4, v15
    s_waitcnt lgkmcnt(0)
    """)
    assert QS % 4096 == 0
    def stats_rows():
        A, B_ = 92, 93
        k.e(f"""
        s_cmp_lg_u32 s{sW}, 7
        s_cbranch_scc1 {k.L('ns2')}
        buffer_load_dwordx2 v[94:95], v5, s[{SDB}:{SDB+3}], 0 offen offset:128 sc1
        v_mov_b32 v{A}, 0
        v_mov_b32 v{B_}, 0
        """)
        for r in range(SR, SR+28):
            k.e(f"v_dot2c_f32_bf16 v{A}, s{sONE}, v{r}")
            k.e(f"v_dot2c_f32_bf16 v{B_}, v{r}, v{r}")
        k.e("s_nop 2")
        for ctl in ("quad_perm:[1,0,3,2]", "quad_perm:[2,3,0,1]", "row_half_mirror"):
            k.e(f"""
            v_add_f32_dpp v{A}, v{A}, v{A} {ctl} row_mask:0xf bank_mask:0xf
            v_add_f32_dpp v{B_}, v{B_}, v{B_} {ctl} row_mask:0xf bank_mask:0xf
            s_nop 1
            """)
        k.e(f"""
        v_mul_f32 v{A}, 0x{INV_D|0x80000000:x}, v{A}
        v_mul_f32 v{B_}, 0x{INV_D:x}, v{B_}
        v_fma_f32 v{B_}, -v{A}, v{A}, v{B_}
        v_max_f32 v{B_}, 0, v{B_}
        v_add_f32 v{B_}, 0x{EPS_LN:x}, v{B_}
        v_rsq_f32 v{B_}, v{B_}
        """)
        hilo_x(k, SR, A, SR+2)
        k.e(f"""
        v_mul_f32 v{B_}, 0x{LOG2E:x}, v{B_}
        v_and_b32 v{SR}, 0xffff, v{SR}
        v_lshl_or_b32 v{A}, v{SR+1}, 16, v{SR}
        """)
        k.label(k.L('ns2'))
    def q_reads(u):
        c, p = u >> 2, u & 3
        b = QB + 8*(u % 4)
        xread(b, c, p)
        for ri in range(2):
            k.e(f"ds_read_b64_tr_b16 {vr(b+4+2*ri,2)}, v{AWQ+p} offset:{(c % NQS)*4096+ri*256}")
    def qgate(c):
        if c <= 6: gate(c)
        else:
            k.wait_vm(f"s{c}")
            arrive(2)
            lwait(f'qg{c}', 2, 4*(c-6), T)
    def qpost(c):
        if c == 0: stats_rows()
        if c == 2:
            k.e(f"""
            s_cmp_lg_u32 s{sW}, 7
            s_cbranch_scc1 {k.L('nf2')}
            s_waitcnt vmcnt(4)
            """)
            k.label(k.L('nw'))
            k.e(f"""
            v_cmp_ne_u32 vcc, 0, v94
            s_cbranch_vccnz {k.L('nwok')}
            s_sleep 2
            buffer_load_dwordx2 v[94:95], v5, s[{SDB}:{SDB+3}], 0 offen offset:128 sc1
            s_waitcnt vmcnt(0)
            s_branch {k.L('nw')}
            """)
            k.label(k.L('nwok'))
            k.e(f"""
            v_and_b32 v{SR+2}, 0x38, v0
            v_lshlrev_b32 v{SR+2}, 1, v{SR+2}
            s_lshl_b32 s{sT}, s{sRB}, 4
            s_add_u32 s{sT}, s{sT}, s{sH}
            s_lshl_b32 s{sT}, s{sT}, 7
            s_add_u32 s{sT}, s{sT}, {S1X_OFF}
            ds_write_b64 v6, v[94:95] offset:16
            s_mov_b32 exec_lo, 0x01010101
            s_mov_b32 exec_hi, 0x01010101
            buffer_store_dwordx4 v[92:95], v{SR+2}, s[{SWS}:{SWS+3}], s{sT} offen sc1
            s_mov_b64 exec, -1
            """)
            k.label(k.L('nf2'))
        if c == LA+1:
            k.e(f"""
            s_cmp_lg_u32 s{sRB}, 0
            s_cbranch_scc1 {k.L('nf1')}
            s_lshl_b32 s{sT}, s{sH}, 2
            s_add_u32 s{sT}, s{sT}, s{sW}
            s_sub_u32 s{sT}, s{sT}, 4
            s_mov_b64 exec, 1
            buffer_store_byte v7, v5, s[{SDB}:{SDB+3}], s{sT} offen sc1
            s_mov_b64 exec, -1
            """)
            k.label(k.L('nf1'))
        if c > 0 and c+LA <= 6+QL: issue(c+LA, True)
        if c == 1 and WPF:
            k.e(f"""
            s_cmp_ge_u32 s{sW}, 6
            s_cbranch_scc1 {k.L('nopf')}
            s_lshr_b32 s{sT}, s2, 3
            s_lshl_b32 s{sT}, s{sT}, 1
            s_add_u32 s{sT}, s{sT}, s{sW}
            s_sub_u32 s{sT}, s{sT}, 4
            s_mul_i32 s{sT}, s{sT}, 49
            v_and_b32 v{T}, 63, v0
            v_min_u32 v{T}, 48, v{T}
            v_add_lshl_u32 v{T}, v{T}, s{sT}, 7
            buffer_load_dword v{DUM}, v{T}, s[{SP}:{SP+3}], 0 offen
            """)
            k.label(k.L('nopf'))
        if c == 5+QL:
            rec_issue(SR)
    def qrd(u):
        c, p = u >> 2, u & 3
        if p == 0: qgate(c+QL)
        q_reads(u)
        if p == 0: qpost(c+QL)
    for c in range(QL):
        qgate(c); qpost(c)
    for u in range(3): qrd(u)
    for u in range(28):
        c, p = u >> 2, u & 3
        b = QB + 8*(u % 4)
        if u+3 < 28: qrd(u+3)
        k.e(f"s_waitcnt lgkmcnt({3*min(3, 27-u)})")
        k.e(f"v_mfma_f32_32x32x16_bf16 {vr(ACQ,16)}, {vr(b+4,4)}, {vr(b,4)}, {'0' if u == 0 else vr(ACQ,16)}")
        if p == 0:
            for j in range(4):
                k.e(f"v_dot2c_f32_bf16 v{CSQ+(j&1)}, s{sONE}, v{b+4+j}")
        if u == 25:
            k.e(f"""
            s_nop 0
            v_add_f32 v{CSQ}, v{CSQ}, v{CSQ+1}
            ds_write_b32 v12, v{CSQ}
            """)
            arrive(3)
        if u == 26:
            rec_check('c3', SR, XE2)
            k.e(f"""
            v_mov_b32 v{RS}, v{SR+1}
            v_and_b32 v10, 63, v0
            v_lshlrev_b32 v10, 4, v10
            s_lshl_b32 s{sT}, s{sRB}, 2
            s_add_u32 s{sT}, s{sT}, s{sW}
            s_sub_u32 s{sT}, s{sT}, 4
            s_lshl_b32 s{sT}, s{sT}, 4
            s_xor_b32 s{sT2}, s{sH}, 1
            s_add_u32 s{sT}, s{sT}, s{sT2}
            s_lshl_b32 s{sT}, s{sT}, 11
            s_add_u32 s{sT}, s{sT}, {PQ_OFF}
            """)
    k.stamp(4)
    lwait('w4', 3, 4, T)
    WB = QB
    k.e(f"""
    ds_read2st64_b32 {vr(WB,2)}, v13 offset0:0 offset1:1
    ds_read2st64_b32 {vr(WB+2,2)}, v13 offset0:2 offset1:3
    s_waitcnt lgkmcnt(0)
    v_add_f32 v{WB}, v{WB}, v{WB+1}
    v_add_f32 v{WB+2}, v{WB+2}, v{WB+3}
    v_add_f32 v{CSQ}, v{WB}, v{WB+2}
    """)
    hilo_w(k, WE2, CSQ, T)
    k.e(f"""
    s_nop 1
    v_mfma_f32_32x32x16_bf16 {vr(ACQ,16)}, {vr(WE2,4)}, {vr(XE2,4)}, {vr(ACQ,16)}
    """)
    k.stamp(5)
    k.nop(12)
    for i in range(0, 16, 2):
        phi_ops(k, ACQ+i, ACQ+i, RS, T, sEPS, sLN2)
        phi_ops(k, ACQ+i+1, ACQ+i+1, RS, T+1, sEPS, sLN2)
        k.e(f"v_cvt_pk_bf16_f32 v{WB+i//2}, v{ACQ+i}, v{ACQ+i+1}")
        if i == 6:
            k.e(f"buffer_store_dwordx4 {vr(WB,4)}, v10, s[{SWS}:{SWS+3}], s{sT} offen sc1")
    k.e(f"buffer_store_dwordx4 {vr(WB+4,4)}, v10, s[{SWS}:{SWS+3}], s{sT} offen offset:1024 sc1")
    k.stamp(6)
    k.end(SWS, 0, 7)
    k.label(k.L('end'))
    k.e("s_endpgm")
    return k, dict(vgpr=136, sgpr=64, grid=256, block=512, lds=MISC+8192)
```

```python
from gen3 import *

def gen_a8():
    k = K("ka")
    SX, SW, SWS, SDB, SP = 4, 8, 12, 16, 32
    sW, sRB, sH, sx, skv, sq, sT, sT2, sEPS, sONE, sLN2, sCX, sCV, sROT = 20, 21, 22, 23, 24, 25, 26, 27, 28, 29, 30, 31, 56, 57
    XS, NXS = 0, 7
    VS, NVS = 114688, 5
    WQ = 0
    MISC = 155648
    PART = 32768
    CSX = MISC + 2048
    CNT = MISC + 6144
    DUM = 190
    AH = 2
    QX = env('QX', 1)
    QE = env('QE', 2)
    k.stamp(0)
    k.e(f"""
    s_cmp_ge_u32 s2, 256
    s_cbranch_scc1 {k.L('end')}
    s_load_dwordx2 s[{SX}:{SX+1}], s[0:1], 0
    s_load_dwordx2 s[{SW}:{SW+1}], s[0:1], 8
    s_load_dwordx2 s[{SDB}:{SDB+1}], s[0:1], 64
    s_load_dwordx2 s[{SWS}:{SWS+1}], s[0:1], 72
    s_load_dwordx2 s[{SP}:{SP+1}], s[0:1], 16
    """)
    if CPF:
        k.e(f"""
        s_getpc_b64 s[36:37]
        Lka_pc:
        s_lshr_b32 s{sT2}, s2, 3
        v_min_u32 v5, 7, v0
        v_lshlrev_b32 v5, 7, v5
        s_lshl_b32 s{sT}, s{sT2}, 10
        v_add_u32 v5, s{sT}, v5
        v_min_u32 v5, Lcode_end-Lka_pc-4, v5
        v_cmp_gt_u32 vcc, 8, v0
        s_and_saveexec_b64 s[38:39], vcc
        s_cbranch_execz {k.L('nocpf')}
        global_load_dword v{DUM}, v5, s[36:37]
        """)
        k.label(k.L('nocpf'))
        k.e("s_mov_b64 exec, -1")
    k.e(f"""
    v_lshrrev_b32 v5, 6, v0
    v_lshrrev_b32 v6, 3, v0
    v_readfirstlane_b32 s{sW}, v5
    v_and_b32 v7, 0x38, v6
    v_add_u32 v7, v6, v7
    v_and_b32 v8, 7, v0
    v_bfe_u32 v9, v0, 4, 2
    v_xor_b32 v9, v8, v9
    v_mul_u32_u24 v1, 896, v7
    v_lshl_add_u32 v1, v9, 4, v1
    v_xor_b32 v2, 64, v1
    v_add_u32 v2, 6144, v2
    s_bfe_u32 s{sRB}, s2, 0x20001
    s_lshl_b32 s{sRB}, s{sRB}, 2
    s_lshr_b32 s{sT}, s2, 6
    s_add_u32 s{sRB}, s{sRB}, s{sT}
    s_bfe_u32 s{sT2}, s2, 0x30003
    s_and_b32 s{sH}, s2, 1
    s_lshl_b32 s{sH}, s{sH}, 3
    s_add_u32 s{sH}, s{sH}, s{sT2}
    s_lshl_b32 s{sT}, s{sT}, 1
    s_add_u32 s{sT}, s{sT}, s{sT2}
    """)
    div7(k, sT2, sROT, sT)
    k.e(f"""
    s_mul_i32 s{sx}, s{sRB}, {128*896}
    s_lshl_b32 s{sT}, s{sROT}, 7
    s_add_u32 s{sx}, s{sx}, s{sT}
    s_mov_b32 s{sCX}, s{sROT}
    s_lshl_b32 m0, s{sW}, 11
    """)
    srd_consts(k, SX, S*D*2)
    srd_consts(k, SW, D*3*D*2)
    srd_consts(k, SP, D*D*2)
    k.e(f"""
    v_and_b32 v5, 63, v0
    v_min_u32 v10, 36, v5
    s_mul_i32 s{sT}, s2, 37
    v_add_lshl_u32 v10, v10, s{sT}, 7
    s_waitcnt lgkmcnt(0)
    """)
    k.stamp(1)
    if WPF:
        k.e(f"""
        s_cmp_lg_u32 s{sW}, 3
        s_cbranch_scc1 {k.L('nt1')}
        buffer_load_dword v{DUM}, v10, s[{SW}:{SW+3}], 0 offen
        """)
        k.label(k.L('nt1'))
    def issue_x(c):
        if c > 0:
            k.e(f"""
            s_lshl_b32 s{sT}, s{sW}, 11
            s_add_u32 m0, s{sT}, {XS + (c % NXS)*16384}
            s_add_u32 s{sCX}, s{sCX}, 1
            s_cmp_eq_u32 s{sCX}, 7
            s_cselect_b32 s{sT}, -6, 1
            s_lshl_b32 s{sT}, s{sT}, 7
            s_add_u32 s{sx}, s{sx}, s{sT}
            """)
        k.vop(f"buffer_load_dwordx4 v1, s[{SX}:{SX+3}], s{sx} offen lds", f"s{c}")
        k.vop(f"buffer_load_dwordx4 v2, s[{SX}:{SX+3}], s{sx} offen offset:1024 lds", f"s{c}")
    def issue_v(c):
        k.e(f"""
        s_lshl_b32 s{sT}, s{sW}, 10
        s_add_u32 m0, s{sT}, {VS + (c % NVS)*8192}
        """)
        if c > 0:
            k.e(f"""
            s_add_u32 s{sCV}, s{sCV}, 1
            s_cmp_eq_u32 s{sCV}, 7
            s_cselect_b32 s{sT}, -6, 1
            s_mul_i32 s{sT}, s{sT}, {64*2688}
            s_add_u32 s{skv}, s{skv}, s{sT}
            """)
        else:
            k.e("s_nop 0")
        k.vop(f"buffer_load_dwordx4 v3, s[{SW}:{SW+3}], s{skv} offen lds", f"s{c+AH}")
    def issue_stage(s):
        if s <= 6: issue_x(s)
        if AH <= s <= 6+AH: issue_v(s-AH)
    def issue_after(s):
        if s+3 <= 6: issue_x(s+3)
        if AH <= s+3 <= 6+AH: issue_v(s+3-AH)
    issue_stage(0)
    k.e("s_barrier")
    issue_stage(1)
    k.e(f"""
    v_bfe_u32 v9, v0, 4, 1
    v_lshlrev_b32 v9, 2, v9
    v_xor_b32 v9, v8, v9
    v_mul_u32_u24 v3, 2688, v6
    v_and_b32 v8, 3, v9
    v_lshl_add_u32 v3, v8, 4, v3
    v_lshrrev_b32 v9, 2, v9
    v_mul_u32_u24 v9, 896, v9
    v_add_u32 v3, v3, v9
    s_mul_i32 s{sq}, s{sH}, 56
    s_and_b32 s{sq}, s{sq}, -16
    s_mul_i32 s{sT}, s{sROT}, {64*2688}
    s_add_u32 s{skv}, s{sq}, s{sT}
    s_add_u32 s{skv}, s{skv}, 896
    s_mov_b32 s{sCV}, s{sROT}
    s_xor_b32 s{sq}, s{sH}, {QX}
    s_mul_i32 s{sq}, s{sq}, 56
    s_and_b32 s{sq}, s{sq}, -16
    """)
    k.e("s_barrier")
    issue_stage(2)
    srd_consts(k, SWS, WS_USED)
    srd_consts(k, SDB, 256)
    k.e(f"""
    s_mov_b32 s{sEPS}, 0x{EPS_PHI_L:x}
    s_mov_b32 s{sONE}, 0x{ONES_BF:x}
    s_mov_b32 s{sLN2}, 0x{LN2:x}
    v_mov_b32 v12, 0
    v_mov_b32 v13, 0
    v_mov_b32 v14, 0
    v_mov_b32 v15, 0
    v_mov_b32 v10, {CNT}
    ds_write_b128 v10, v[12:15]
    s_cmp_lt_u32 s{sW}, 4
    s_cbranch_scc1 {k.L('nozf')}
    v_and_b32 v10, 255, v0
    v_lshlrev_b32 v10, 4, v10
    s_cmp_lg_u32 s{sRB}, 0
    s_cbranch_scc1 {k.L('nozero')}
    s_lshl_b32 s{sT}, s{sH}, 12
    buffer_store_dwordx4 v[12:15], v10, s[{SWS}:{SWS+3}], s{sT} offen sc1
    """)
    k.label(k.L('nozero'))
    k.e(f"""
    s_lshr_b32 s{sT}, s2, 2
    s_cmp_lg_u32 s{sT}, 20
    s_cbranch_scc1 {k.L('nocs')}
    s_and_b32 s{sT}, s2, 3
    s_lshl_b32 s{sT}, s{sT}, 12
    s_add_u32 s{sT}, s{sT}, {CS_OFF}
    v_mov_b32 v16, -1
    v_mov_b32 v17, -1
    v_mov_b32 v18, -1
    v_mov_b32 v19, -1
    buffer_store_dwordx4 v[16:19], v10, s[{SWS}:{SWS+3}], s{sT} offen sc1
    """)
    k.label(k.L('nocs'))
    k.e(f"""
    s_lshr_b32 s{sT}, s2, 4
    s_cmp_lg_u32 s{sT}, 4
    s_cbranch_scc1 {k.L('nozf')}
    s_and_b32 s{sT}, s2, 15
    s_lshl_b32 s{sT}, s{sT}, 12
    s_add_u32 s{sT}, s{sT}, {FL_OFF}
    buffer_store_dwordx4 v[12:15], v10, s[{SWS}:{SWS+3}], s{sT} offen sc1
    """)
    k.label(k.L('nozf'))
    AX = 172
    k.e(f"""
    v_and_b32 v8, 31, v0
    v_bfe_u32 v9, v0, 5, 1
    v_bfe_u32 v14, v0, 6, 2
    v_lshl_add_u32 v15, v14, 5, v8
    v_lshlrev_b32 v10, 7, v15
    v_bfe_u32 v11, v8, 1, 3
    v_xor_b32 v11, v11, v9
    v_lshlrev_b32 v12, 1, v14
    v_xor_b32 v11, v11, v12
    v_mov_b32 v7, 1
    """)
    for p in range(4):
        k.e(f"v_xor_b32 v12, {2*p}, v11")
        k.e(f"v_lshl_add_u32 v{AX+p}, v12, 4, v10")
    k.e(f"v_add_u32 v{AX+4}, 0x10000, v{AX}\nv_add_u32 v{AX+5}, 0x10000, v{AX+1}\nv_add_u32 v{AX+6}, 0x10000, v{AX+2}\nv_add_u32 v{AX+7}, 0x10000, v{AX+3}")
    def xread(dst, c, p):
        o = XS + (c % NXS)*16384
        k.e(f"ds_read_b128 {vr(dst,4)}, v{AX+p+4*(o >> 16)} offset:{o & 0xffff}")
    def arrive(i):
        k.e(f"s_mov_b64 exec, 1\nds_add_u32 v6, v7 offset:{4*i}\ns_mov_b64 exec, -1")
    def lwait(name, i, target, vt):
        k.label(k.L(name))
        k.e(f"""
        ds_read_b32 v{vt}, v6 offset:{4*i}
        s_waitcnt lgkmcnt(0)
        v_cmp_gt_u32 vcc, {target}, v{vt}
        s_cbranch_vccnz {k.L(name)}
        """)
    k.e(f"""
    v_mov_b32 v6, {CNT}
    s_waitcnt lgkmcnt(0)
    s_cmp_ge_u32 s{sW}, 4
    s_cbranch_scc1 {k.L('q')}
    """)
    vm_split = list(k.vm)
    def wpf(qside):
        if not WPF or not qside: return
        k.e(f"""
        s_cmp_ge_u32 s{sW}, 6
        s_cbranch_scc1 {k.L('nopf')}
        s_lshr_b32 s{sT}, s2, 3
        s_lshl_b32 s{sT}, s{sT}, 1
        s_add_u32 s{sT}, s{sT}, s{sW}
        s_sub_u32 s{sT}, s{sT}, 4
        s_mul_i32 s{sT}, s{sT}, 49
        v_and_b32 v5, 63, v0
        v_min_u32 v5, 48, v5
        v_add_lshl_u32 v5, v5, s{sT}, 7
        buffer_load_dword v{DUM}, v5, s[{SP}:{SP+3}], 0 offen
        """)
        k.label(k.L('nopf'))
    ACK, ACV = 16, 32
    BUF = [48, 60, 72]
    AWK, AWV = 152, 156
    CSK, CSV = 160, 162
    RL, XE, WEK, WEV = 84, 100, 104, 108
    PKF, VF, KVA, T = 112, 120, 128, 144
    k.e(f"""
    s_setprio 2
    v_bfe_u32 v11, v0, 2, 2
    v_lshl_add_u32 v10, v9, 3, v11
    v_lshlrev_b32 v10, 7, v10
    v_bfe_u32 v12, v0, 4, 1
    v_and_b32 v13, 3, v0
    v_lshl_add_u32 v12, v12, 2, v13
    s_and_b32 s{sT}, s{sH}, 1
    v_add_u32 v12, s{sT}, v12
    v_and_b32 v12, 7, v12
    v_lshl_add_u32 v10, v12, 3, v10
    v_lshrrev_b32 v11, 1, v11
    v_lshl_add_u32 v10, v11, 6, v10
    v_lshl_add_u32 v10, v14, 11, v10
    v_add_u32 v{AWK}, {VS}, v10
    v_mov_b32 v{CSK}, 0
    v_mov_b32 v{CSK+1}, 0
    v_mov_b32 v{XE+2}, 0
    v_mov_b32 v{XE+3}, 0
    """)
    assert VS % 8192 == 0
    for p in range(1, 4):
        k.e(f"v_xor_b32 v{AWK+p}, {p << 11}, v{AWK}")
    for p in range(4):
        k.e(f"v_xor_b32 v{AWV+p}, 64, v{AWK+p}")
    k.e(f"""
    v_lshlrev_b32 v12, 3, v0
    v_add_u32 v12, {CSX}, v12
    v_and_b32 v13, 63, v0
    v_lshlrev_b32 v13, 3, v13
    v_add_u32 v13, {CSX}, v13
    v_lshlrev_b32 v10, 3, v15
    v_add_u32 v10, {MISC}, v10
    v_lshlrev_b32 v11, 7, v14
    v_lshl_add_u32 v11, v9, 4, v11
    v_add_u32 v11, {MISC+1024}, v11
    """)
    def kv_reads(c, p, b):
        o = (c % NVS)*8192
        xread(BUF[b], c, p)
        for ri in range(2):
            k.e(f"ds_read_b64_tr_b16 {vr(BUF[b]+4+2*ri,2)}, v{AWK+p} offset:{o+ri*512}")
        for ri in range(2):
            k.e(f"ds_read_b64_tr_b16 {vr(BUF[b]+8+2*ri,2)}, v{AWV+p} offset:{o+ri*512}")
    NS = 7+AH
    def gate(s):
        k.wait_vm(f"s{s}")
        k.e("s_barrier")
        if s == 0: k.stamp(2)
        if s == NS-1: k.stamp(3)
    def post_gate(s):
        issue_after(s)
        if s == NS-2:
            k.e(f"""
            v_mov_b32 v5, 0
            s_lshl_b32 s{sT2}, s{sH}, 4
            """)
            k.vop(f"buffer_load_dwordx4 {vr(T+4,4)}, v5, s[{SDB}:{SDB+3}], s{sT2} offen sc1", "poll")
    def rd(u):
        c, p = u >> 2, u & 3
        if p == 0: gate(c+AH)
        kv_reads(c, p, u % 3)
        if p == 0: post_gate(c+AH)
    for s_ in range(AH):
        gate(s_); post_gate(s_)
    for u in range(3): rd(u)
    for u in range(28):
        c, p = u >> 2, u & 3
        b = u % 3
        k.e(f"s_waitcnt lgkmcnt({5*min(2, 27-u)})")
        first = (u == 0)
        k.e(f"v_mfma_f32_32x32x16_bf16 {vr(ACK,16)}, {vr(BUF[b],4)}, {vr(BUF[b]+4,4)}, {'0' if first else vr(ACK,16)}")
        k.e(f"v_mfma_f32_32x32x16_bf16 {vr(ACV,16)}, {vr(BUF[b],4)}, {vr(BUF[b]+8,4)}, {'0' if first else vr(ACV,16)}")
        if p == 0:
            for j in range(4):
                k.e(f"v_dot2c_f32_bf16 v{CSK}, s{sONE}, v{BUF[b]+4+j}")
                k.e(f"v_dot2c_f32_bf16 v{CSK+1}, s{sONE}, v{BUF[b]+8+j}")
        if u+3 < 28: rd(u+3)
        if u == 25:
            k.e(f"ds_write_b64 v12, {vr(CSK,2)}")
            arrive(0)
        if u == 26:
            k.e(f"ds_read_b64 {vr(XE,2)}, v10")
            for a in range(4):
                k.e(f"ds_read_b128 {vr(RL+4*a,4)}, v11 offset:{a*32}")
            k.e(f"""
            v_and_b32 v10, 63, v0
            v_lshlrev_b32 v4, 2, v10
            v_lshlrev_b32 v10, 4, v10
            v_lshl_add_u32 v10, v14, 12, v10
            v_lshl_add_u32 v4, v14, 10, v4
            v_add_u32 v3, {PART}, v4
            s_lshl_b32 s{sT}, s{sH}, 12
            """)
    k.e(f"s_setprio {env('KVP', 0)}")
    lwait('w0', 0, 4, T)
    k.e(f"""
    ds_read2st64_b64 {vr(PKF,4)}, v13 offset0:0 offset1:1
    ds_read2st64_b64 {vr(PKF+4,4)}, v13 offset0:2 offset1:3
    s_waitcnt lgkmcnt(0)
    v_add_f32 v{PKF}, v{PKF}, v{PKF+2}
    v_add_f32 v{PKF+1}, v{PKF+1}, v{PKF+3}
    v_add_f32 v{PKF+4}, v{PKF+4}, v{PKF+6}
    v_add_f32 v{PKF+5}, v{PKF+5}, v{PKF+7}
    v_add_f32 v{CSK}, v{PKF}, v{PKF+4}
    v_add_f32 v{CSV}, v{PKF+1}, v{PKF+5}
    """)
    k.stamp(4)
    hilo_w(k, WEK, CSK, T)
    k.e("s_nop 1")
    k.e(f"v_mfma_f32_32x32x16_bf16 {vr(ACK,16)}, {vr(XE,4)}, {vr(WEK,4)}, {vr(ACK,16)}")
    hilo_w(k, WEV, CSV, T+1)
    k.e("s_nop 1")
    k.e(f"v_mfma_f32_32x32x16_bf16 {vr(ACV,16)}, {vr(XE,4)}, {vr(WEV,4)}, {vr(ACV,16)}")
    k.nop(3)
    for h in range(2):
        for i in range(8*h, 8*h+8, 2):
            phi_ops(k, ACK+i, ACK+i, RL+i, T, sEPS, sLN2)
            phi_ops(k, ACK+i+1, ACK+i+1, RL+i+1, T+1, sEPS, sLN2)
            k.e(f"v_cvt_pk_bf16_f32 v{PKF+i//2}, v{ACK+i}, v{ACK+i+1}")
        for i in range(8*h, 8*h+8, 2):
            k.e(f"v_pk_mul_f32 {vr(ACV+i,2)}, {vr(ACV+i,2)}, {vr(RL+i,2)}")
            k.e(f"v_cvt_pk_bf16_f32 v{VF+i//2}, v{ACV+i}, v{ACV+i+1}")
        k.e("s_mov_b32 exec_lo, 0x10000000\ns_mov_b32 exec_hi, 0x10000000")
        for j in range(4):
            k.e(f"v_mov_b32 v{VF+4*h+j}, s{sONE}")
        k.e("s_mov_b64 exec, -1\ns_nop 0")
        k.e(f"v_mfma_f32_32x32x16_bf16 {vr(KVA,16)}, {vr(PKF+4*h,4)}, {vr(VF+4*h,4)}, {'0' if h == 0 else vr(KVA,16)}")
    k.wait_vm("poll")
    k.label(k.L('poll'))
    k.e(f"""
    v_min_u32 v{T}, v{T+4}, v{T+5}
    v_min3_u32 v{T}, v{T}, v{T+6}, v{T+7}
    v_cmp_eq_u32 vcc, 0, v{T}
    s_cbranch_vccz {k.L('pollok')}
    s_sleep 2
    buffer_load_dwordx4 {vr(T+4,4)}, v5, s[{SDB}:{SDB+3}], s{sT2} offen sc1
    s_waitcnt vmcnt(0)
    s_branch {k.L('poll')}
    """)
    k.label(k.L('pollok'))
    k.nop(7)
    for a in range(4):
        k.e(f"ds_write_b128 v10, {vr(KVA+4*a,4)} offset:{PART+a*1024}")
    arrive(1)
    lwait('w1', 1, 4, T)
    k.stamp(5)
    for u in range(4):
        k.e(f"ds_read2st64_b32 {vr(ACK+4*u,2)}, v3 offset0:{u} offset1:{u+16}")
        k.e(f"ds_read2st64_b32 {vr(ACK+4*u+2,2)}, v3 offset0:{u+32} offset1:{u+48}")
    for u in range(4):
        k.e(f"s_waitcnt lgkmcnt({6-2*u})")
        k.e(f"v_add_f32 v{ACK+4*u}, v{ACK+4*u}, v{ACK+4*u+1}")
        k.e(f"v_add_f32 v{ACK+4*u+2}, v{ACK+4*u+2}, v{ACK+4*u+3}")
        k.e(f"v_add_f32 v{ACK+4*u}, v{ACK+4*u}, v{ACK+4*u+2}")
        if u == 2:
            k.e(f"s_cmp_eq_u32 s{sW}, 3\ns_cbranch_scc1 {k.L('kvend')}")
        k.e(f"buffer_atomic_add_f32 v{ACK+4*u}, v4, s[{SWS}:{SWS+3}], s{sT} offen offset:{u*256}")
    k.label(k.L('kvend'))
    k.stamp(6)
    k.end(SWS, 0, 7)
    k.label(k.L('q'))
    k.vm = list(vm_split)
    XQ, ACQ, WB = 16, 128, 144
    SUM, SQ, CSQ, AWQ, T = 160, 162, 164, 168, 188
    XE2, WE2, RS = 180, 184, 166
    k.e(f"""
    v_bfe_u32 v11, v0, 2, 2
    v_lshl_add_u32 v10, v9, 3, v11
    v_lshlrev_b32 v10, 6, v10
    v_and_b32 v11, 1, v0
    v_bfe_u32 v12, v0, 4, 1
    v_lshl_add_u32 v11, v11, 1, v12
    v_bfe_u32 v12, v0, 1, 1
    v_lshl_add_u32 v11, v11, 1, v12
    s_and_b32 s{sT}, s{sH}, 1
    s_xor_b32 s{sT}, s{sT}, {QX}
    v_add_u32 v11, s{sT}, v11
    v_and_b32 v11, 7, v11
    v_lshl_add_u32 v10, v11, 3, v10
    v_lshl_add_u32 v10, v14, 10, v10
    v_add_u32 v{AWQ}, {WQ}, v10
    v_xor_b32 v{AWQ+1}, 0x400, v{AWQ}
    v_xor_b32 v{AWQ+2}, 0x800, v{AWQ}
    v_xor_b32 v{AWQ+3}, 0xc00, v{AWQ}
    v_bfe_u32 v10, v0, 2, 6
    v_mul_u32_u24 v4, 2688, v10
    v_and_b32 v10, 3, v0
    v_lshl_add_u32 v4, v10, 4, v4
    """)
    assert WQ % 4096 == 0
    for r in (SUM, SUM+1, SQ, SQ+1, CSQ, CSQ+1):
        k.e(f"v_mov_b32 v{r}, 0")
    def wq_dma(pos):
        k.e(f"""
        s_lshl_b32 s{sT}, s{sW}, 10
        s_add_i32 m0, s{sT}, {WQ + pos*4096 - 4096}
        s_add_u32 s{sT2}, s{sROT}, {pos}
        s_cmp_ge_u32 s{sT2}, 7
        s_cselect_b32 s{sT}, 7, 0
        s_sub_u32 s{sT2}, s{sT2}, s{sT}
        s_mul_i32 s{sT2}, s{sT2}, {64*2688}
        s_add_u32 s{sT2}, s{sT2}, s{sq}
        """)
        k.vop(f"buffer_load_dwordx4 v4, s[{SW}:{SW+3}], s{sT2} offen lds", f"wq{pos}")
    NB = 4
    def wq_read(kap):
        c, p = kap >> 2, kap & 3
        b = WB + 4*(kap % NB)
        for ri in range(2):
            k.e(f"ds_read_b64_tr_b16 {vr(b+2*ri,2)}, v{AWQ+p} offset:{c*4096+ri*256}")
    def q_range(k0, k1, mid=None):
        for kap in range(k0, min(k0+NB-1, k1)):
            wq_read(kap)
        for kap in range(k0, k1):
            if kap+NB-1 < k1:
                wq_read(kap+NB-1)
            rem = min(k1-1-kap, NB-1)
            k.e(f"s_waitcnt lgkmcnt({2*rem})")
            b = WB + 4*(kap % NB)
            k.e(f"v_mfma_f32_32x32x16_bf16 {vr(ACQ,16)}, {vr(b,4)}, {vr(XQ+4*kap,4)}, {'0' if kap == 0 else vr(ACQ,16)}")
            if (kap & 3) == 0:
                for j in range(4):
                    k.e(f"v_dot2c_f32_bf16 v{CSQ+(j&1)}, s{sONE}, v{b+j}")
            if mid and kap == mid[0]: mid[1]()
    for s in range(NS):
        gate(s)
        if s <= 6:
            for p in range(4):
                xread(XQ+16*s+4*p, s, p)
        if s == 4:
            for pos in range(QE): wq_dma(pos)
        issue_after(s)
        if s == 6:
            for pos in range(QE, 7): wq_dma(pos)
        if s == 1: wpf(True)
        if s == 3:
            k.e(f"""
            s_cmp_lg_u32 s{sRB}, 0
            s_cbranch_scc1 {k.L('noflag')}
            s_lshl_b32 s{sT}, s{sH}, 2
            s_add_u32 s{sT}, s{sT}, s{sW}
            s_sub_u32 s{sT}, s{sT}, 4
            s_lshl_b32 s{sT}, s{sT}, 2
            v_mov_b32 v5, 0
            s_mov_b64 exec, 1
            buffer_store_dword v7, v5, s[{SDB}:{SDB+3}], s{sT} offen sc1
            s_mov_b64 exec, -1
            """)
            k.label(k.L('noflag'))
        if s <= 6:
            c = s
            for p in range(4):
                k.e(f"s_waitcnt lgkmcnt({3-p})")
                for j in range(4):
                    r = XQ+16*c+4*p+j
                    k.e(f"v_dot2c_f32_bf16 v{SUM+(j&1)}, s{sONE}, v{r}")
                    k.e(f"v_dot2c_f32_bf16 v{SQ+(j&1)}, v{r}, v{r}")
        if s == 7:
            k.e(f"""
            v_lshlrev_b32 v11, 2, v15
            v_lshlrev_b32 v10, 3, v15
            v_mov_b32 v{XE2+3}, 0
            v_add_f32 v{SUM}, v{SUM}, v{SUM+1}
            v_add_f32 v{SQ}, v{SQ}, v{SQ+1}
            v_mov_b32 v{SUM+1}, v{SUM}
            v_mov_b32 v{SQ+1}, v{SQ}
            v_add_u32 v10, {MISC}, v10
            v_add_u32 v11, {MISC+1024}, v11
            v_permlane32_swap_b32 v{SUM}, v{SUM+1}
            v_permlane32_swap_b32 v{SQ}, v{SQ+1}
            v_mov_b32 v{XE2+2}, 0
            v_add_f32 v{SUM}, v{SUM}, v{SUM+1}
            v_add_f32 v{SQ}, v{SQ}, v{SQ+1}
            v_mul_f32 v{SUM}, 0x{INV_D|0x80000000:x}, v{SUM}
            v_mul_f32 v{SQ}, 0x{INV_D:x}, v{SQ}
            v_fma_f32 v{SQ}, -v{SUM}, v{SUM}, v{SQ}
            v_max_f32 v{SQ}, 0, v{SQ}
            v_add_f32 v{SQ}, 0x{EPS_LN:x}, v{SQ}
            v_rsq_f32 v{RS}, v{SQ}
            """)
            hilo_x(k, XE2, SUM, T)
            k.e(f"""
            v_mul_f32 v{RS}, 0x{LOG2E:x}, v{RS}
            ds_write_b64 v10, {vr(XE2,2)}
            ds_write_b32 v11, v{RS}
            """)
        if s == 7:
            k.e("s_waitcnt lgkmcnt(0)")
            if QE: q_range(0, 4*QE)
            k.e(f"""
            v_lshlrev_b32 v12, 2, v0
            v_add_u32 v12, {CSX+1024}, v12
            v_and_b32 v10, 63, v0
            v_lshlrev_b32 v13, 2, v10
            v_add_u32 v13, {CSX+2048}, v13
            v_lshlrev_b32 v10, 4, v10
            s_lshl_b32 s{sT}, s{sRB}, 2
            s_add_u32 s{sT}, s{sT}, s{sW}
            s_sub_u32 s{sT}, s{sT}, 4
            s_lshl_b32 s{sT}, s{sT}, 4
            s_xor_b32 s{sT2}, s{sH}, {QX}
            s_add_u32 s{sT}, s{sT}, s{sT2}
            s_lshl_b32 s{sT}, s{sT}, 11
            s_add_u32 s{sT}, s{sT}, {PQ_OFF}
            """)
    k.e(f"s_setprio {env('QP', 2)}")
    def pub():
        k.e(f"""
        v_add_f32 v{CSQ}, v{CSQ}, v{CSQ+1}
        ds_write_b32 v12, v{CSQ}
        """)
        arrive(3)
    pm = (QE+7+1)//2
    for n, (p0, p1) in enumerate([(QE, pm), (pm, 7)]):
        k.wait_vm(f"wq{p1-1}")
        arrive(2)
        lwait(f'wq{n}', 2, 4*(n+1), T)
        k.stamp(4+n)
        q_range(4*p0, 4*p1, mid=(26, pub) if n == 1 else None)
    lwait('w4', 3, 4, T)
    k.e(f"""
    ds_read2st64_b32 {vr(WB,2)}, v13 offset0:0 offset1:1
    ds_read2st64_b32 {vr(WB+2,2)}, v13 offset0:2 offset1:3
    s_waitcnt lgkmcnt(0)
    v_add_f32 v{WB}, v{WB}, v{WB+1}
    v_add_f32 v{WB+2}, v{WB+2}, v{WB+3}
    v_add_f32 v{CSQ}, v{WB}, v{WB+2}
    """)
    hilo_w(k, WE2, CSQ, T)
    k.e(f"""
    s_nop 1
    v_mfma_f32_32x32x16_bf16 {vr(ACQ,16)}, {vr(WE2,4)}, {vr(XE2,4)}, {vr(ACQ,16)}
    """)
    k.nop(12)
    for i in range(0, 16, 2):
        phi_ops(k, ACQ+i, ACQ+i, RS, T, sEPS, sLN2)
        phi_ops(k, ACQ+i+1, ACQ+i+1, RS, T+1, sEPS, sLN2)
        k.e(f"v_cvt_pk_bf16_f32 v{WB+i//2}, v{ACQ+i}, v{ACQ+i+1}")
        if i == 6:
            k.e(f"buffer_store_dwordx4 {vr(WB,4)}, v10, s[{SWS}:{SWS+3}], s{sT} offen sc1")
    k.e(f"buffer_store_dwordx4 {vr(WB+4,4)}, v10, s[{SWS}:{SWS+3}], s{sT} offen offset:1024 sc1")
    k.stamp(6)
    k.end(SWS, 0, 7)
    k.label(k.L('end'))
    k.e("s_endpgm")
    return k, dict(vgpr=192, sgpr=64, grid=256, block=512, lds=163840)
```

```python
import sys, os
sys.path.insert(0, "dev")
os.environ.setdefault('STF', 'sc1')
os.environ['ZFL'] = '1'
import gen3
from gen3 import *

HPACE = env('HPACE', 8)
APRE = env('APRE', 4)
WSZ = (STAMP_OFF + 8*65536*2) if STAMPS else WS_USED

def flush(k, sws, kid, n, tv):
    if not STAMPS: return
    k.e("s_waitcnt lgkmcnt(0)")
    k.e("s_mov_b64 exec, 1")
    for i in range(8):
        k.e(f"v_mov_b32 v{tv+i}, s{40+2*i}" if i < n else f"v_mov_b32 v{tv+i}, 0")
    k.e(f"""
    v_lshrrev_b32 v{tv+8}, 6, v0
    v_lshlrev_b32 v{tv+8}, 5, v{tv+8}
    s_lshl_b32 s38, s2, 8
    s_add_u32 s38, s38, {STAMP_OFF + kid*65536*2}
    buffer_store_dwordx4 {vr(tv,4)}, v{tv+8}, s[{sws}:{sws+3}], s38 offen
    buffer_store_dwordx4 {vr(tv+4,4)}, v{tv+8}, s[{sws}:{sws+3}], s38 offen offset:16
    s_mov_b64 exec, -1
    """)

PSLEEP = env('PSLEEP', 1)
def poll(k, name, soff, target, va, vt, sws, scnt, sW, pw):
    k.e(f"""
    s_cmp_lg_u32 s{sW}, {pw}
    s_cbranch_scc1 {k.L(name+'ok')}
    s_mov_b32 s{scnt}, 0x200000
    v_mov_b32 v{va}, 0
    """)
    k.label(k.L(name))
    k.e(f"""
    buffer_load_dword v{vt}, v{va}, s[{sws}:{sws+3}], s{soff} offen sc1
    s_waitcnt vmcnt(0)
    v_cmp_gt_u32 vcc, {target}, v{vt}
    s_cbranch_vccz {k.L(name+'ok')}
    s_sleep {PSLEEP}
    s_sub_u32 s{scnt}, s{scnt}, 1
    s_cbranch_scc0 {k.L(name)}
    """)
    k.label(k.L(name+'ok'))
    k.e("s_waitcnt vmcnt(0)\ns_barrier")
    k.vm = []

def signal(k, name, soff, n, stride_log2, va, vt, sws, sW):
    k.e(f"""
    s_cmp_lg_u32 s{sW}, 0
    s_cbranch_scc1 {k.L(name)}
    v_lshlrev_b32 v{va}, {stride_log2}, v0
    v_mov_b32 v{vt}, 1
    s_mov_b64 exec, {(1 << n) - 1}
    buffer_atomic_add v{vt}, v{va}, s[{sws}:{sws+3}], s{soff} offen sc1
    s_mov_b64 exec, -1
    """)
    k.label(k.L(name))

def gen_f():
    k = K("kf")
    SX, SW, SWS, SG, SU, SD, SO = 4, 8, 12, 56, 60, 64, 68
    sW, sRB, sCB, sT, sT2, sT3, sEPS, sONE, sKV, sPQ0, sWO, sROT, sLN2 = 20, 21, 22, 23, 24, 25, 26, 27, 28, 29, 30, 31, 19
    sFB, sRT, sCG, sWOFF, sH, sQ, sDCG, sDW, sA, sKH, sCNT = 16, 17, 18, 32, 33, 34, 35, 36, 37, 39, 72
    BB = 98304
    k.stamp(0)
    k.e(f"""
    s_cmp_ge_u32 s2, 256
    s_cbranch_scc1 {k.L('end')}
    s_load_dwordx2 s[{SWS}:{SWS+1}], s[0:1], 72
    s_load_dwordx2 s[{SG}:{SG+1}], s[0:1], 32
    s_load_dwordx2 s[{SU}:{SU+1}], s[0:1], 40
    s_cmp_ge_u32 s2, 224
    s_cbranch_scc1 {k.L('cs')}
    s_load_dwordx2 s[{SX}:{SX+1}], s[0:1], 0
    s_load_dwordx2 s[{SW}:{SW+1}], s[0:1], 16
    s_load_dwordx2 s[{SD}:{SD+1}], s[0:1], 48
    s_load_dwordx2 s[{SO}:{SO+1}], s[0:1], 56
    v_lshrrev_b32 v5, 6, v0
    v_and_b32 v1, 63, v0
    v_readfirstlane_b32 s{sW}, v5
    v_lshlrev_b32 v1, 4, v1
    v_bfe_u32 v9, v0, 5, 1
    s_lshr_b32 s{sT2}, s2, 3
    """)
    div7(k, sQ, sCB, sT2)
    k.e(f"""
    s_and_b32 s{sT}, s2, 7
    s_lshl_b32 s{sT}, s{sT}, 2
    s_add_u32 s{sRB}, s{sQ}, s{sT}
    s_lshl_b32 s{sWO}, s{sCB}, 7
    """)
    srd_consts(k, SWS, WSZ)
    k.e(f"""
    s_cmp_ge_u32 s{sW}, 4
    s_cbranch_scc1 {k.L('ld')}
    """)
    k.e(f"""
    v_bfe_u32 v6, v0, 3, 2
    v_and_b32 v7, 3, v0
    v_lshl_add_u32 v6, v6, 2, v7
    v_bfe_u32 v7, v0, 2, 1
    v_mad_u32_u24 v7, v7, 14, v6
    v_cmp_gt_u32 vcc, 14, v6
    v_bfe_u32 v6, v0, 3, 3
    v_and_b32 v8, 7, v0
    v_cndmask_b32 v7, 28, v7, vcc
    v_lshlrev_b32 v2, 4, v7
    v_lshl_add_u32 v2, v9, 11, v2
    v_bfe_u32 v7, v0, 4, 1
    v_lshlrev_b32 v7, 2, v7
    v_xor_b32 v7, v7, v8
    v_mul_u32_u24 v3, 896, v6
    v_lshl_add_u32 v3, v7, 4, v3
    s_add_u32 s{sROT}, s{sQ}, s{sCB}
    s_and_b32 s{sROT}, s{sROT}, 3
    s_lshl_b32 s{sT}, s{sW}, 2
    s_add_u32 s{sROT}, s{sROT}, s{sT}
    s_and_b32 s{sT}, s{sW}, 1
    s_lshl_b32 s{sT2}, s{sRB}, 1
    s_add_u32 s{sT3}, s{sT2}, s{sT}
    s_lshl_b32 s{sPQ0}, s{sT3}, 15
    s_add_u32 s{sPQ0}, s{sPQ0}, {PQ_OFF}
    s_lshl_b32 s{sT}, s{sW}, 14
    s_add_u32 m0, s{sT}, {BB}
    """)
    srd_consts(k, SX, S*D*2)
    srd_consts(k, SW, D*D*2)
    k.e(f"""
    s_mov_b32 s{sEPS}, 0x{EPS_PHI:x}
    s_mov_b32 s{sONE}, 0x{ONES_BF:x}
    s_mov_b32 s{sLN2}, 0x{LN2:x}
    s_waitcnt lgkmcnt(0)
    """)
    k.stamp(1)
    KVF, PQR, ACC, OA, XR = 16, 80, 144, 208, 248
    def ld_head(p):
        k.e(f"""
        s_xor_b32 s{sT}, s{sROT}, {p}
        s_lshl_b32 s{sKV}, s{sT}, 12
        s_lshl_b32 s{sT}, s{sT}, 11
        s_add_u32 s{sT}, s{sT}, s{sPQ0}
        s_xor_b32 s{sT2}, s{sT}, 0x8000
        """)
        for q in range(4):
            k.vop(f"buffer_load_dwordx4 {vr(KVF+16*p+4*q,4)}, v2, s[{SWS}:{SWS+3}], s{sKV} offen offset:{q*512}", f"kv{p}")
        for rt in range(2):
            for f in range(2):
                k.vop(f"buffer_load_dwordx4 {vr(PQR+16*p+8*rt+4*f,4)}, v1, s[{SWS}:{SWS+3}], s{sT if rt == 0 else sT2} offen offset:{f*1024}", f"pq{p}")
    def ld_wo(p):
        k.e(f"""
        s_xor_b32 s{sT}, s{sROT}, {p}
        s_mul_i32 s{sT}, s{sT}, {28*896}
        s_add_u32 s{sT}, s{sT}, s{sWO}
        """)
        for u in range(4):
            k.vop(f"buffer_load_dwordx4 v3, s[{SW}:{SW+3}], s{sT} offen offset:{u*1024} lds", f"wo{p}")
            if u < 3: k.e(f"s_add_u32 s{sT}, s{sT}, {7168-1024}")
        k.e("s_add_u32 m0, m0, 4096")
    ld_head(0); ld_head(1)
    def ld_x():
        k.e(f"""
        v_and_b32 v6, 31, v0
        v_mul_u32_u24 v4, 896, v6
        v_lshl_add_u32 v4, v9, 5, v4
        s_mul_i32 s{sT}, s{sT3}, {32*896}
        s_add_u32 s{sT}, s{sT}, s{sWO}
        s_lshr_b32 s{sT2}, s{sW}, 1
        s_lshl_b32 s{sT2}, s{sT2}, 6
        s_add_u32 s{sT}, s{sT}, s{sT2}
        """)
        k.vop(f"buffer_load_dwordx4 {vr(XR,4)}, v4, s[{SX}:{SX+3}], s{sT} offen", "x")
        k.vop(f"buffer_load_dwordx4 {vr(XR+4,4)}, v4, s[{SX}:{SX+3}], s{sT} offen offset:16", "x")
    AW0, AW1 = 14, 15
    k.e(f"""
    v_bfe_u32 v7, v0, 2, 2
    v_mad_u32_u24 v5, v9, 14, v7
    v_lshlrev_b32 v5, 7, v5
    v_lshrrev_b32 v7, 1, v7
    v_xor_b32 v7, v7, v9
    v_bfe_u32 v8, v0, 7, 1
    v_xor_b32 v7, v7, v8
    v_lshl_add_u32 v5, v7, 6, v5
    v_and_b32 v7, 1, v0
    v_lshl_add_u32 v5, v7, 5, v5
    v_bfe_u32 v7, v0, 4, 1
    v_lshl_add_u32 v5, v7, 4, v5
    v_bfe_u32 v7, v0, 1, 1
    v_lshl_add_u32 v5, v7, 3, v5
    v_lshrrev_b32 v7, 6, v0
    v_lshl_add_u32 v5, v7, 14, v5
    v_add_u32 v{AW0}, {BB}, v5
    v_xor_b32 v{AW1}, 64, v{AW0}
    """)
    def o_stage(p):
        k.wait_vm(f"kv{p}")
        if p == 0: k.stamp(2)
        if p == 3: k.stamp(3)
        b = KVF+16*p
        for i in range(8):
            k.e(f"v_cvt_pk_bf16_f32 v{b+i}, v{b+2*i}, v{b+2*i+1}")
        k.wait_vm(f"pq{p}")
        k.e("s_nop 0")
        for rt in range(2):
            for f in range(2):
                k.e(f"v_mfma_f32_32x32x16_bf16 {vr(OA+16*rt,16)}, {vr(b+4*f,4)}, {vr(PQR+16*p+8*rt+4*f,4)}, {'0' if f == 0 else vr(OA+16*rt,16)}")
    def norm_stage(p):
        for rt in range(2):
            o = OA+16*rt
            d = PQR+16*p+8*rt
            k.e(f"v_add_f32 v{o+14}, s{sEPS}, v{o+14}")
            k.e(f"v_rcp_f32 v{o+14}, v{o+14}")
            k.e(f"v_mov_b32 v{d+7}, 0")
            k.e(f"v_mul_f32 v{o+14}, s{sLN2}, v{o+14}")
            for i in range(0, 14, 2):
                k.e(f"v_pk_mul_f32 {vr(o+i,2)}, {vr(o+i,2)}, {vr(o+14,2)} op_sel_hi:[1,0]")
            for i in range(0, 14, 2):
                k.e(f"v_cvt_pk_bf16_f32 v{d+i//2}, v{o+i}, v{o+i+1}")
    def w_reads(p):
        k.wait_vm(f"wo{p}")
        for f in range(2):
            for ct in range(2):
                for ri in range(2):
                    k.e(f"ds_read_b64_tr_b16 {vr(KVF+16*p+8*f+4*ct+2*ri,2)}, v{AW0 if ct == 0 else AW1} offset:{(32*p+8*f+4*ri)*128}")
    def main_stage(p):
        for f in range(2):
            for ct in range(2):
                k.e(f"s_waitcnt lgkmcnt({6-4*f-2*ct})")
                for rt in range(2):
                    a = ACC+16*(2*ct+rt)
                    first = (p == 0 and f == 0)
                    k.e(f"v_mfma_f32_32x32x16_bf16 {vr(a,16)}, {vr(KVF+16*p+8*f+4*ct,4)}, {vr(PQR+16*p+8*rt+4*f,4)}, {'0' if first else vr(a,16)}")
    for p in range(4):
        o_stage(p)
        if p == 0: ld_wo(0); ld_head(2)
        if p == 1: ld_wo(1); ld_head(3)
        if p == 2:
            ld_wo(2); ld_wo(3); ld_x()
            k.e("s_barrier")
        if p > 0:
            main_stage(p-1)
        norm_stage(p)
        w_reads(p)
    k.stamp(4)
    k.e("s_nop 1")
    main_stage(3)
    k.e(f"""
    v_lshrrev_b32 v7, 6, v0
    v_add_u32 v6, {BB}, v1
    v_lshl_add_u32 v8, v7, 14, v6
    """)
    for tp in range(1, 4):
        k.e(f"v_xor_b32 v{10+tp}, {tp}, v7")
        k.e(f"v_lshl_add_u32 v{10+tp}, v{10+tp}, 14, v6")
    k.e(f"""
    s_lshl_b32 s{sT}, s{sCB}, 1
    s_lshr_b32 s{sT2}, s{sW}, 1
    s_add_u32 s{sKV}, s{sT}, s{sT2}
    s_mul_i32 s{sT2}, s{sT3}, 14
    s_add_u32 s{sT}, s{sKV}, s{sT2}
    s_lshl_b32 s{sT2}, s{sT}, 8
    s_add_u32 s{sT2}, s{sT2}, {ST_OFF}
    s_lshl_b32 s{sT}, s{sT}, 11
    s_add_u32 s{sT}, s{sT}, {HF_OFF}
    """)
    for tp in range(1, 4):
        for a in range(4):
            k.e(f"ds_write_b128 v8, {vr(ACC+16*tp+4*a,4)} offset:{(tp-1)*4096+a*1024}")
    k.wait_vm("x")
    XU = 80
    for i in range(8):
        k.e(f"v_lshlrev_b32 v{XU+2*i}, 16, v{XR+i}")
        k.e(f"v_and_b32 v{XU+2*i+1}, 0xffff0000, v{XR+i}")
    for i in range(0, 16, 2):
        k.e(f"v_pk_add_f32 {vr(ACC+i,2)}, {vr(ACC+i,2)}, {vr(XU+i,2)}")
    k.e("""
    v_mov_b32 v4, 0
    v_mov_b32 v5, 0
    s_waitcnt lgkmcnt(0)
    s_barrier
    """)
    k.stamp(5)
    for tp in range(1, 4):
        for a in range(4):
            k.e(f"ds_read_b128 {vr(16*tp+4*a,4)}, v{10+tp} offset:{(tp-1)*4096+a*1024}")
    for j in range(3):
        k.e(f"s_waitcnt lgkmcnt({8-4*j})")
        for i in range(0, 16, 2):
            k.e(f"v_pk_add_f32 {vr(ACC+i,2)}, {vr(ACC+i,2)}, {vr(16+16*j+i,2)}")
    HO = 96
    for i in range(8):
        k.e(f"v_cvt_pk_bf16_f32 v{HO+i}, v{ACC+2*i}, v{ACC+2*i+1}")
    k.e(f"""
    buffer_store_dwordx4 {vr(HO,4)}, v1, s[{SWS}:{SWS+3}], s{sT} offen sc1
    buffer_store_dwordx4 {vr(HO+4,4)}, v1, s[{SWS}:{SWS+3}], s{sT} offen offset:1024 sc1
    """)
    for i in range(8):
        k.e(f"v_dot2c_f32_bf16 v4, s{sONE}, v{HO+i}")
        k.e(f"v_dot2c_f32_bf16 v5, v{HO+i}, v{HO+i}")
    k.e(f"""
    v_and_b32 v6, 31, v0
    v_lshlrev_b32 v6, 3, v6
    s_lshr_b32 s{sT}, s{sRB}, 2
    v_mov_b32 v12, v4
    v_mov_b32 v13, v5
    s_mul_i32 s{sT}, s{sT}, {28*128}
    s_add_u32 s{sT}, s{sT}, {FL_OFF}
    v_permlane32_swap_b32 v4, v12
    v_permlane32_swap_b32 v5, v13
    s_nop 0
    v_add_f32 v4, v4, v12
    v_add_f32 v5, v5, v13
    s_mov_b32 exec_hi, 0
    buffer_store_dwordx2 v[4:5], v6, s[{SWS}:{SWS+3}], s{sT2} offen sc1
    s_mov_b64 exec, -1
    """)
    k.stamp(6)
    k.e("s_waitcnt vmcnt(0)\ns_barrier")
    signal(k, 'sg1', sT, 28, 7, 7, 8, SWS, sW)
    k.stamp(7)
    flush(k, SWS, 1, 8, 16)
    k.e(f"s_branch {k.L('cc')}")
    def c_setup_scalar():
        k.e(f"""
        s_lshl_b32 s{sT}, s{sQ}, 1
        s_add_u32 s{sT}, s{sT}, s{sCB}
        """)
        div7(k, sT2, sCG, sT)
        k.e(f"""
        s_and_b32 s{sT2}, s2, 3
        s_mul_i32 s{sT2}, s{sT2}, 7
        s_add_u32 s{sFB}, s{sCB}, s{sT2}
        """)
        srd_consts(k, SG, D*F*2)
        srd_consts(k, SU, D*F*2+1024)
    k.label(k.L('ld'))
    k.vm = []
    c_setup_scalar()
    k.e(f"""
    v_bfe_u32 v6, v0, 3, 3
    v_bfe_u32 v7, v0, 6, 2
    v_lshl_add_u32 v6, v7, 4, v6
    v_and_b32 v8, 7, v0
    v_bfe_u32 v7, v0, 4, 1
    v_lshlrev_b32 v7, 2, v7
    v_xor_b32 v7, v7, v8
    v_mul_u32_u24 v2, 3584, v6
    v_lshl_add_u32 v2, v7, 4, v2
    v_add_u32 v3, {8*3584-2048}, v2
    s_lshl_b32 s{sWOFF}, s{sFB}, 7
    s_mul_i32 s{sT}, s{sCG}, {64*3584}
    s_add_u32 s{sWOFF}, s{sWOFF}, s{sT}
    s_mov_b32 s{sH}, s{sCG}
    s_and_b32 s{sT}, s{sW}, 3
    s_lshl_b32 m0, s{sT}, 12
    s_waitcnt lgkmcnt(0)
    s_sub_u32 s{SU}, s{SU}, 1024
    s_subb_u32 s{SU+1}, s{SU+1}, 0
    s_barrier
    """)
    for c in range(6):
        k.e(f"""
        buffer_load_dwordx4 v2, s[{SG}:{SG+3}], s{sWOFF} offen lds
        buffer_load_dwordx4 v2, s[{SU}:{SU+3}], s{sWOFF} offen offset:1024 lds
        buffer_load_dwordx4 v3, s[{SG}:{SG+3}], s{sWOFF} offen offset:2048 lds
        buffer_load_dwordx4 v3, s[{SU}:{SU+3}], s{sWOFF} offen offset:3072 lds
        """)
        if c < 5:
            k.e(f"""
            s_add_u32 m0, m0, 16384
            s_add_u32 s{sH}, s{sH}, 1
            s_cmp_eq_u32 s{sH}, 7
            s_cselect_b32 s{sT}, -6, 1
            s_mul_i32 s{sT}, s{sT}, {64*3584}
            s_add_u32 s{sWOFF}, s{sWOFF}, s{sT}
            """)
        if c == 2: k.e("s_barrier")
    k.e("s_barrier")
    k.e(f"s_branch {k.L('cj')}")
    k.label(k.L('cc'))
    c_setup_scalar()
    k.e(f"""
    s_sub_u32 s{SU}, s{SU}, 1024
    s_subb_u32 s{SU+1}, s{SU+1}, 0
    """)
    k.label(k.L('cj'))
    k.vm = []
    k.stamp(0)
    HFR, ACC, WF, STR, CSR = 16, 128, 192, 208, 224
    k.e(f"""
    s_and_b32 s{sT}, s2, 4
    s_add_u32 s{sT}, s{sT}, s{sQ}
    s_lshl_b32 s{sRT}, s{sT}, 3
    s_add_u32 s{sRT}, s{sRT}, s{sW}
    s_mul_i32 s{sPQ0}, s{sT}, 28
    s_add_u32 s{sT3}, s{sPQ0}, s{sFB}
    s_lshl_b32 s{sT3}, s{sT3}, 7
    s_add_u32 s{sT3}, s{sT3}, {FL_OFF}
    s_mul_i32 s{sH}, s{sRT}, 28672
    s_lshl_b32 s{sT}, s{sCG}, 12
    s_add_u32 s{sH}, s{sH}, s{sT}
    s_add_u32 s{sH}, s{sH}, {HF_OFF}
    """)
    AW0, AW1 = 10, 11
    k.e(f"""
    s_add_u32 s{sT}, s{sCG}, 6
    s_cmp_ge_u32 s{sT}, 7
    s_cselect_b32 s{sT2}, 7, 0
    s_sub_u32 s{sT}, s{sT}, s{sT2}
    s_mul_i32 s{sT}, s{sT}, {64*3584}
    s_lshl_b32 s{sWOFF}, s{sFB}, 7
    s_add_u32 s{sWOFF}, s{sWOFF}, s{sT}
    v_lshrrev_b32 v6, 3, v0
    v_and_b32 v8, 7, v0
    v_bfe_u32 v7, v0, 4, 1
    v_lshlrev_b32 v4, 2, v7
    v_xor_b32 v4, v4, v8
    v_mul_u32_u24 v3, 3584, v6
    v_lshl_add_u32 v3, v4, 4, v3
    v_bfe_u32 v4, v0, 6, 1
    v_lshl_add_u32 v7, v4, 1, v7
    v_lshlrev_b32 v7, 1, v7
    v_xor_b32 v7, v7, v8
    v_mul_u32_u24 v14, 896, v6
    v_lshl_add_u32 v14, v7, 4, v14
    v_add_u32 v15, {896*896-1024}, v14
    v_bfe_u32 v7, v0, 2, 2
    v_lshlrev_b32 v6, 12, v9
    v_lshl_add_u32 v6, v7, 7, v6
    v_lshrrev_b32 v7, 1, v7
    v_lshl_add_u32 v6, v7, 6, v6
    v_and_b32 v7, 1, v0
    v_lshl_add_u32 v6, v7, 5, v6
    v_bfe_u32 v7, v0, 4, 1
    v_lshl_add_u32 v6, v7, 4, v6
    v_bfe_u32 v7, v0, 1, 1
    v_lshl_add_u32 v{AW0}, v7, 3, v6
    v_xor_b32 v{AW1}, 64, v{AW0}
    v_add_u32 v12, 0x10000, v{AW0}
    v_add_u32 v13, 0x10000, v{AW1}
    v_and_b32 v6, 31, v0
    v_mul_u32_u24 v4, 1792, v9
    v_lshl_add_u32 v4, v6, 3, v4
    v_bfe_u32 v7, v0, 2, 1
    v_bfe_u32 v8, v0, 3, 2
    v_lshlrev_b32 v7, 4, v7
    v_lshl_add_u32 v7, v8, 2, v7
    v_and_b32 v8, 3, v0
    v_add_lshl_u32 v2, v7, v8, 2
    s_mul_i32 s{sT}, s{sQ}, 7
    s_lshr_b32 s{sT}, s{sT}, 1
    s_lshl_b32 s{sDCG}, s{sCB}, 1
    s_add_u32 s{sDCG}, s{sDCG}, s{sT}
    s_cmp_ge_u32 s{sDCG}, 14
    s_cselect_b32 s{sT}, 14, 0
    s_sub_u32 s{sDCG}, s{sDCG}, s{sT}
    s_mul_i32 s{sT}, s{sDCG}, {64*896}
    s_add_u32 s{sDW}, s{sWO}, s{sT}
    s_mov_b32 s{sROT}, s{sDCG}
    s_mul_i32 s{sT}, s{sRT}, 3584
    s_add_u32 s{sT}, s{sT}, {ST_OFF}
    s_lshl_b32 s{sT2}, s{sFB}, 8
    s_add_u32 s{sT2}, s{sT2}, {CS_OFF}
    s_add_u32 s{sKV}, s{sT2}, 7168
    """)
    srd_consts(k, SD, F*D*2)
    srd_consts(k, SO, S*D*2)
    poll(k, 'p1', sT3, 28, 5, 6, SWS, sCNT, sW, 4)
    k.stamp(1)
    def h_loads(c):
        L = []
        for j in range(4):
            def hj(j=j):
                if j == 0 and c > 0:
                    k.e(f"""
                    s_add_u32 s{sCG}, s{sCG}, 1
                    s_cmp_eq_u32 s{sCG}, 7
                    s_cselect_b32 s{sT3}, -6, 1
                    s_lshl_b32 s{sT3}, s{sT3}, 12
                    s_add_u32 s{sH}, s{sH}, s{sT3}
                    """)
                k.vop(f"buffer_load_dwordx4 {vr(HFR+16*c+4*j,4)}, v1, s[{SWS}:{SWS+3}], s{sH} offen offset:{j*1024} sc1", f"h{c}")
            L.append(hj)
        return L
    dslot = [7, 8, 9, 0, 1, 2, 3, 4, 5, 6, 7, 8, 9, 0]
    def wd_dma(j):
        k.e(f"""
        s_lshl_b32 s{sT3}, s{sW}, 11
        s_add_u32 m0, s{sT3}, {dslot[j]*16384}
        """)
        if j > 0:
            k.e(f"""
            s_add_u32 s{sDCG}, s{sDCG}, 1
            s_cmp_eq_u32 s{sDCG}, 14
            s_cselect_b32 s{sT3}, -13, 1
            s_mul_i32 s{sT3}, s{sT3}, {64*896}
            s_add_u32 s{sDW}, s{sDW}, s{sT3}
            """)
        else:
            k.e("s_nop 0")
        k.vop(f"buffer_load_dwordx4 v14, s[{SD}:{SD+3}], s{sDW} offen lds", f"w{j}")
        k.vop(f"buffer_load_dwordx4 v15, s[{SD}:{SD+3}], s{sDW} offen offset:1024 lds", f"w{j}")
    def w6():
        k.e(f"""
        s_lshl_b32 s{sT3}, s{sW}, 11
        s_add_u32 m0, s{sT3}, {6*16384}
        s_nop 0
        """)
        k.vop(f"buffer_load_dwordx4 v3, s[{SG}:{SG+3}], s{sWOFF} offen lds", "wc6")
        k.vop(f"buffer_load_dwordx4 v3, s[{SU}:{SU+3}], s{sWOFF} offen offset:1024 lds", "wc6")
    for f in h_loads(0): f()
    k.e("s_barrier")
    for f in h_loads(1): f()
    stl = []
    for u in range(7):
        stl.append(lambda u=u: k.vop(f"buffer_load_dwordx2 {vr(STR+2*u,2)}, v4, s[{SWS}:{SWS+3}], s{sT} offen offset:{u*256} sc1", "st"))
    for q in range(4):
        stl.append(lambda q=q: k.vop(f"buffer_load_dword v{CSR+q}, v2, s[{SWS}:{SWS+3}], s{sT2 if q < 2 else sKV} offen offset:{(q&1)*128} sc1", "st"))
    KS = CKS
    units = [(kap, tau) for kap in range(KS) for tau in range(4)]
    units += [(kap, tau) for kap in range(KS, 28) for tau in (0, 2)] + [('x', 0), ('x', 2)]
    nA = len(units)
    units += [(kap, tau) for kap in range(KS, 28) for tau in (1, 3)] + [('x', 1), ('x', 3)]
    NU = len(units)
    DEP = 4
    T, XE, WE = 228, 232, 236
    C1, IR2 = STR+4, STR+2
    g6 = next(u for u in range(NU) if units[u][0] != 'x' and units[u][0] >= 24) - DEP
    assert g6 >= 4*KS and KS >= 16
    pend = []
    for c in range(2, 7):
        for i, f in enumerate(h_loads(c)):
            pend.append(((c-2)*HPACE + 2*i, f))
    e0 = 5*HPACE
    pend.append((e0, w6))
    for i, f in enumerate(stl): pend.append((e0+2+i, f))
    for j in range(3): pend.append((e0+14+4*j, lambda j=j: wd_dma(j)))
    for j in range(3, 7): pend.append((g6+2+5*(j-3), lambda j=j: wd_dma(j)))
    pend.sort(key=lambda x: x[0])
    kk = K("tmp")
    for u in range(1, 7):
        kk.e(f"v_add_f32 v{STR}, v{STR}, v{STR+2*u}")
        kk.e(f"v_add_f32 v{STR+1}, v{STR+1}, v{STR+2*u+1}")
    kk.e(f"""
    v_cmp_eq_u32 vcc, 0, v9
    v_mov_b32 v{STR+2}, v{STR}
    v_mov_b32 v{STR+3}, v{STR+1}
    v_cndmask_b32 v{CSR}, 0, v{CSR}, vcc
    v_cndmask_b32 v{CSR+1}, 0, v{CSR+1}, vcc
    v_permlane32_swap_b32 v{STR}, v{STR+2}
    v_permlane32_swap_b32 v{STR+1}, v{STR+3}
    v_cndmask_b32 v{CSR+2}, 0, v{CSR+2}, vcc
    v_cndmask_b32 v{CSR+3}, 0, v{CSR+3}, vcc
    v_add_f32 v{STR}, v{STR}, v{STR+2}
    v_add_f32 v{STR+1}, v{STR+1}, v{STR+3}
    v_mul_f32 v{STR}, 0x{INV_D|0x80000000:x}, v{STR}
    v_mul_f32 v{STR+1}, 0x{INV_D:x}, v{STR+1}
    v_fma_f32 v{STR+1}, -v{STR}, v{STR}, v{STR+1}
    v_max_f32 v{STR+1}, 0, v{STR+1}
    v_add_f32 v{STR+2}, 0x{EPS_LN:x}, v{STR+1}
    v_rsq_f32 v{STR+4}, v{STR+2}
    """)
    hilo_x(kk, XE, STR, T)
    kk.e(f"v_mov_b32 v{XE+2}, 0\nv_mov_b32 v{XE+3}, 0")
    kk.e(f"v_mul_f32 v{STR+4}, 0x{LOG2E|0x80000000:x}, v{STR+4}")
    for tau in range(4):
        hilo_w(kk, WE+4*tau, CSR+tau, T+1)
    kk.e(f"""
    v_bfe_u32 v7, v0, 4, 1
    v_mul_u32_u24 v4, 57344, v7
    v_lshl_add_u32 v4, v9, 9, v4
    v_and_b32 v7, 15, v0
    v_lshl_add_u32 v4, v7, 4, v4
    s_mul_i32 s{sT}, s{sRT}, 114688
    s_lshl_b32 s{sT2}, s{sFB}, 11
    s_add_u32 s{sT}, s{sT}, s{sT2}
    s_add_u32 s{sT}, s{sT}, {ACT_OFF}
    """)
    side1 = [l.strip() for l in kk.lines]
    def epi(ct, packed):
        kk = K("tmp")
        O = 16 + 8*ct
        g, u = ACC+16*ct, ACC+32+16*ct
        for i in range(0, 16, 2):
            t = 32 + (i % 8)
            if packed:
                kk.e(f"v_pk_mul_f32 {vr(t,2)}, {vr(g+i,2)}, {vr(C1,2)} op_sel_hi:[1,0]")
                kk.e(f"v_pk_mul_f32 {vr(g+i,2)}, {vr(g+i,2)}, {vr(u+i,2)}")
                kk.e(f"v_exp_f32 v{t}, v{t}")
                kk.e(f"v_exp_f32 v{t+1}, v{t+1}")
                kk.e("s_nop 0")
                kk.e(f"v_pk_fma_f32 {vr(t,2)}, {vr(t,2)}, {vr(IR2,2)}, {vr(IR2,2)} op_sel_hi:[1,0,0]")
                kk.e(f"v_rcp_f32 v{t}, v{t}")
                kk.e(f"v_rcp_f32 v{t+1}, v{t+1}")
                kk.e("s_nop 0")
                kk.e(f"v_pk_mul_f32 {vr(g+i,2)}, {vr(g+i,2)}, {vr(t,2)}")
            else:
                kk.e(f"v_mul_f32 v{t}, v{g+i}, v{C1}")
                kk.e(f"v_mul_f32 v{t+1}, v{g+i+1}, v{C1}")
                kk.e(f"v_exp_f32 v{t}, v{t}")
                kk.e(f"v_mul_f32 v{g+i}, v{g+i}, v{u+i}")
                kk.e(f"v_exp_f32 v{t+1}, v{t+1}")
                kk.e(f"v_mul_f32 v{g+i+1}, v{g+i+1}, v{u+i+1}")
                kk.e(f"v_fma_f32 v{t}, v{t}, v{IR2}, v{IR2}")
                kk.e(f"v_fma_f32 v{t+1}, v{t+1}, v{IR2}, v{IR2}")
                kk.e(f"v_rcp_f32 v{t}, v{t}")
                kk.e(f"v_rcp_f32 v{t+1}, v{t+1}")
                kk.e(f"v_mul_f32 v{g+i}, v{g+i}, v{t}")
                kk.e(f"v_mul_f32 v{g+i+1}, v{g+i+1}, v{t+1}")
            kk.e(f"v_cvt_pk_bf16_f32 v{O+i//2}, v{g+i}, v{g+i+1}")
            if i % 8 == 6:
                f = i // 8
                kk.e(f"buffer_store_dwordx4 {vr(O+4*f,4)}, v4, s[{SWS}:{SWS+3}], s{sT} offen offset:{ct*1024+f*256} sc1")
        return [l.strip() for l in kk.lines]
    side2 = epi(0, False)
    s1_start = nA - 2 - (len(side1)+3)//4 - 1
    assert s1_start > e0+2+len(stl)
    s2_start = nA + 3
    hw = set()
    gate = dict(done=False)
    def rd(u):
        kap, tau = units[u]
        if kap == 'x': return
        if kap >= 24 and not gate['done']:
            gate['done'] = True
            k.wait_vm("wc6")
            k.e("s_barrier")
            k.stamp(4)
        cc, tl, f = kap >> 2, (kap >> 1) & 1, kap & 1
        m, ct = tau >> 1, tau & 1
        o = cc*16384 + tl*8192 + f*2048 + m*1024
        a = AW0 + ct
        if o >= 0x10000: o -= 0x10000; a += 2
        for ri in range(2):
            k.e(f"ds_read_b64_tr_b16 {vr(WF+4*(u%DEP)+2*ri,2)}, v{a} offset:{o+ri*512}")
    for u in range(DEP): rd(u)
    started = set()
    for u in range(NU):
        kap, tau = units[u]
        a = ACC+16*tau
        if kap == 'x':
            assert not side1
            k.e(f"v_mfma_f32_32x32x16_bf16 {vr(a,16)}, {vr(WE+4*tau,4)}, {vr(XE,4)}, {vr(a,16)}")
        else:
            if (kap >> 2) not in hw:
                hw.add(kap >> 2)
                k.wait_vm(f"h{kap>>2}")
                if kap == 0: k.stamp(2)
                if kap == 12: k.stamp(3)
            nout = sum(1 for v in range(u+1, min(u+DEP, NU)) if units[v][0] != 'x')
            k.e(f"s_waitcnt lgkmcnt({2*nout})")
            k.e(f"v_mfma_f32_32x32x16_bf16 {vr(a,16)}, {vr(WF+4*(u%DEP),4)}, {vr(HFR+4*kap,4)}, {'0' if tau not in started else vr(a,16)}")
            started.add(tau)
        if u+DEP < NU: rd(u+DEP)
        while pend and pend[0][0] <= u:
            pend.pop(0)[1]()
        if u >= s1_start and side1:
            if u == s1_start:
                k.wait_vm("st")
                k.e(f"s_mov_b32 s{sCNT}, 0x100000")
                k.label(k.L('csw'))
                k.e(f"""
                v_max_u32 v{T}, v{CSR}, v{CSR+1}
                v_max3_u32 v{T}, v{T}, v{CSR+2}, v{CSR+3}
                v_cmp_eq_u32 vcc, -1, v{T}
                s_cbranch_vccz {k.L('cswok')}
                s_sleep 4
                """)
                for q in range(4):
                    k.e(f"buffer_load_dword v{CSR+q}, v2, s[{SWS}:{SWS+3}], s{sT2 if q < 2 else sKV} offen offset:{(q&1)*128} sc1")
                k.e(f"""
                s_waitcnt vmcnt(0)
                s_sub_u32 s{sCNT}, s{sCNT}, 1
                s_cbranch_scc0 {k.L('csw')}
                """)
                k.label(k.L('cswok'))
            for _ in range(4):
                if side1: k.e(side1.pop(0))
        if u >= s2_start and side2:
            for _ in range(5 if len(side2) > 4*(NU-u) else 4):
                if side2: k.e(side2.pop(0))
    assert not pend
    k.stamp(5)
    for l in side2: k.e(l)
    k.e(f"""
    s_lshl_b32 s{sT2}, s{sPQ0}, 7
    s_add_u32 s{sT2}, s{sT2}, {FL_OFF+32768}
    """)
    k.nop(max(0, 10-len(side2)))
    for l in epi(1, True): k.e(l)
    k.stamp(6)
    k.e("s_waitcnt vmcnt(0)\ns_barrier")
    signal(k, 'sg2', sT2, 28, 7, 7, 8, SWS, sW)
    k.stamp(7)
    flush(k, SWS, 2, 8, 40)
    k.vm = []
    k.stamp(0)
    AF, ACC, WF, HR, AW = 16, 128, 144, 176, 180
    RED = 2*16384
    for j in (7, 8, 9): wd_dma(j)
    k.e(f"""
    s_lshr_b32 s{sKH}, s{sW}, 2
    s_lshl_b32 s{sT}, s{sRB}, 2
    s_and_b32 s{sT2}, s{sW}, 3
    s_add_u32 s{sT}, s{sT}, s{sT2}
    s_mul_i32 s{sT2}, s{sRB}, 7
    s_add_u32 s{sT2}, s{sT2}, s{sCB}
    s_lshl_b32 s{sT2}, s{sT2}, 7
    s_add_u32 s{sT2}, s{sT2}, {FL_OFF+32768}
    s_lshl_b32 s{sT}, s{sT}, 1
    s_add_u32 s{sT}, s{sT}, s{sKH}
    s_mul_i32 s{sA}, s{sT}, 28672
    s_lshl_b32 s{sT}, s{sROT}, 11
    s_add_u32 s{sA}, s{sA}, s{sT}
    s_add_u32 s{sA}, s{sA}, {ACT_OFF}
    v_bfe_u32 v5, v0, 4, 2
    v_lshlrev_b32 v6, 11, v5
    v_bfe_u32 v7, v0, 8, 1
    v_lshl_add_u32 v6, v7, 10, v6
    v_xor_b32 v5, v5, v7
    v_and_b32 v5, 1, v5
    v_bfe_u32 v7, v0, 2, 2
    v_lshl_add_u32 v6, v7, 7, v6
    v_lshrrev_b32 v7, 1, v7
    v_lshl_add_u32 v5, v5, 1, v7
    v_lshl_add_u32 v6, v5, 5, v6
    v_and_b32 v7, 3, v0
    v_lshl_add_u32 v{AW}, v7, 3, v6
    v_xor_b32 v{AW+1}, 32, v{AW}
    v_xor_b32 v{AW+2}, 64, v{AW}
    v_xor_b32 v{AW+3}, 96, v{AW}
    """)
    for g in (1, 2):
        for i in range(4):
            k.e(f"v_add_u32 v{AW+4*g+i}, {g*0x10000}, v{AW+i}")
    k.e(f"""
    v_bfe_u32 v5, v0, 5, 1
    v_lshlrev_b32 v5, 10, v5
    v_and_b32 v6, 15, v0
    v_lshl_add_u32 v5, v6, 4, v5
    v_bfe_u32 v7, v0, 4, 1
    v_lshl_add_u32 v5, v7, 3, v5
    s_lshl_b32 s{sT}, s{sRB}, 1
    s_bfe_u32 s{sT3}, s{sW}, 0x10001
    s_add_u32 s{sT}, s{sT}, s{sT3}
    s_mul_i32 s{sT}, s{sT}, 14
    s_lshl_b32 s{sT3}, s{sCB}, 1
    s_add_u32 s{sT}, s{sT}, s{sT3}
    s_add_u32 s{sT}, s{sT}, s{sKH}
    s_lshl_b32 s{sT}, s{sT}, 11
    s_and_b32 s{sT3}, s{sW}, 1
    s_lshl_b32 s{sT3}, s{sT3}, 8
    s_add_u32 s{sT}, s{sT}, s{sT3}
    s_add_u32 s{sT}, s{sT}, {HF_OFF}
    buffer_load_dwordx2 {vr(HR,2)}, v5, s[{SWS}:{SWS+3}], s{sT} offen sc1
    buffer_load_dwordx2 {vr(HR+2,2)}, v5, s[{SWS}:{SWS+3}], s{sT} offen offset:512 sc1
    v_lshrrev_b32 v5, 6, v0
    v_lshl_add_u32 v6, v5, 11, v1
    v_add_u32 v6, {RED}, v6
    v_xor_b32 v7, 0x2000, v6
    v_and_b32 v5, 15, v0
    v_mul_u32_u24 v4, 896, v5
    v_bfe_u32 v5, v0, 4, 2
    v_lshl_add_u32 v4, v5, 3, v4
    s_lshl_b32 s{sT}, s{sRB}, 2
    s_and_b32 s{sT3}, s{sW}, 3
    s_add_u32 s{sT}, s{sT}, s{sT3}
    s_mul_i32 s{sT}, s{sT}, {16*896}
    s_add_u32 s{sT}, s{sT}, s{sWO}
    s_lshl_b32 s{sT3}, s{sKH}, 6
    s_add_u32 s{sT}, s{sT}, s{sT3}
    """)
    poll(k, 'p2', sT2, 28, 2, 3, SWS, sCNT, sW, 4)
    k.stamp(1)
    def lda(j):
        if j > 0:
            k.e(f"""
            s_add_u32 s{sROT}, s{sROT}, 1
            s_cmp_eq_u32 s{sROT}, 14
            s_cselect_b32 s{sT3}, -13, 1
            s_lshl_b32 s{sT3}, s{sT3}, 11
            s_add_u32 s{sA}, s{sA}, s{sT3}
            """)
        for ks in range(2):
            k.vop(f"buffer_load_dwordx4 {vr(AF+8*j+4*ks,4)}, v1, s[{SWS}:{SWS+3}], s{sA} offen offset:{ks*1024} sc1", f"a{j}")
    def reads(u):
        t, tt = u >> 2, u & 3
        j, ks = t >> 1, t & 1
        o = dslot[j]*16384 + ks*8192
        a = AW + tt + 4*(o >> 16)
        o &= 0xffff
        b = WF + 4*(u & 7)
        for ri in range(2):
            k.e(f"ds_read_b64_tr_b16 {vr(b+2*ri,2)}, v{a} offset:{o+ri*512}")
    for j in range(APRE): lda(j)
    DEP = 6
    NU = 112
    for u in range(DEP): reads(u)
    for u in range(NU):
        t, tt = u >> 2, u & 3
        if u+DEP < NU:
            if (u+DEP) % 8 == 0:
                jn = (u+DEP)//8
                if jn == 5:
                    k.e("s_barrier")
                    k.stamp(3)
                    for j in (10, 11, 12, 13): wd_dma(j)
                if jn == 10:
                    k.wait_vm("w13")
                    k.e("s_barrier")
                    k.stamp(4)
            reads(u+DEP)
        if u % 8 == 0:
            k.wait_vm(f"a{u//8}")
            if u == 0: k.stamp(2)
        k.e(f"s_waitcnt lgkmcnt({2*min(DEP, NU-1-u)})")
        a = ACC+4*tt
        k.e(f"v_mfma_f32_16x16x32_bf16 {vr(a,4)}, {vr(WF+4*(u&7),4)}, {vr(AF+4*t,4)}, {'0' if t == 0 else vr(a,4)}")
        if u % 8 == 7 and u//8 + APRE < 14:
            lda(u//8 + APRE)
    k.stamp(5)
    for i in range(4):
        k.e(f"v_lshlrev_b32 v{16+2*i}, 16, v{HR+i}")
        k.e(f"v_and_b32 v{17+2*i}, 0xffff0000, v{HR+i}")
    k.e(f"""
    ds_write_b128 v7, {vr(ACC+8,4)}
    ds_write_b128 v7, {vr(ACC+12,4)} offset:1024
    """)
    for i in range(0, 8, 2):
        k.e(f"v_pk_add_f32 {vr(ACC+i,2)}, {vr(ACC+i,2)}, {vr(16+i,2)}")
    k.e(f"""
    s_waitcnt lgkmcnt(0)
    s_barrier
    ds_read_b128 v[24:27], v6
    ds_read_b128 v[28:31], v6 offset:1024
    s_waitcnt lgkmcnt(0)
    """)
    for i in range(0, 8, 2):
        k.e(f"v_pk_add_f32 {vr(ACC+i,2)}, {vr(ACC+i,2)}, {vr(24+i,2)}")
    for i in range(4):
        k.e(f"v_cvt_pk_bf16_f32 v{32+i}, v{ACC+2*i}, v{ACC+2*i+1}")
    k.e(f"""
    buffer_store_dwordx2 v[32:33], v4, s[{SO}:{SO+3}], s{sT} offen
    buffer_store_dwordx2 v[34:35], v4, s[{SO}:{SO+3}], s{sT} offen offset:32
    """)
    k.stamp(6)
    k.end(SWS, 3, 7)
    k.label(k.L('cs'))
    k.e(f"""
    s_load_dwordx2 s[{SD}:{SD+1}], s[0:1], 48
    s_mov_b32 s{SD+2}, {F*D*2}
    s_mov_b32 s{SD+3}, 0x20000
    s_sub_u32 s{sCB}, s2, 224
    s_mul_i32 s{sQ}, s{sCB}, {392*128}
    v_min_u32 v2, 391, v0
    v_lshlrev_b32 v2, 7, v2
    s_cmp_lt_u32 s2, 252
    s_cbranch_scc1 {k.L('cs1')}
    s_waitcnt lgkmcnt(0)
    buffer_load_dword v100, v2, s[{SD}:{SD+3}], s{sQ} offen
    s_endpgm
    """)
    k.label(k.L('cs1'))
    k.e(f"""
    v_lshrrev_b32 v5, 6, v0
    v_bfe_u32 v6, v0, 3, 3
    v_readfirstlane_b32 s{sW}, v5
    v_and_b32 v7, 7, v0
    v_mul_u32_u24 v1, 3584, v6
    v_lshl_add_u32 v1, v7, 4, v1
    s_sub_u32 s{sCB}, s2, 224
    s_and_b32 s{sT}, s{sW}, 3
    s_mul_i32 s{sT}, s{sT}, {112*3584}
    s_lshl_b32 s{sT2}, s{sCB}, 7
    s_add_u32 s{sT}, s{sT}, s{sT2}
    s_mov_b32 s{sEPS}, 0x3f80
    s_mov_b32 s{sONE}, 0x3f800000
    """)
    srd_consts(k, SW, D*F*2)
    srd_consts(k, SWS, WSZ)
    k.e(f"""
    s_waitcnt lgkmcnt(0)
    s_cmp_ge_u32 s{sW}, 4
    s_cselect_b32 s{SW}, s{SU}, s{SG}
    s_cselect_b32 s{SW+1}, s{SU+1}, s{SG+1}
    """)
    for u in range(14):
        k.e(f"buffer_load_dwordx4 {vr(16+4*u,4)}, v1, s[{SW}:{SW+3}], s{sT} offen")
        k.e(f"s_add_u32 s{sT}, s{sT}, {8*3584}")
    for i in range(8):
        k.e(f"v_mov_b32 v{8+i}, 0")
    for u in range(14):
        k.e(f"s_waitcnt vmcnt({13-u})")
        for j in range(4):
            k.e(f"v_dot2c_f32_bf16 v{8+2*j}, s{sEPS}, v{16+4*u+j}")
            k.e(f"v_dot2c_f32_bf16 v{9+2*j}, s{sONE}, v{16+4*u+j}")
    k.e(f"""
    s_cmp_eq_u32 s{sW}, 0
    s_cbranch_scc1 {k.L('cs2')}
    buffer_load_dword v100, v2, s[{SD}:{SD+3}], s{sQ} offen
    """)
    k.label(k.L('cs2'))
    k.e(f"""
    v_mov_b32 v101, v2
    v_lshlrev_b32 v2, 5, v0
    v_and_b32 v4, 63, v0
    v_lshlrev_b32 v4, 2, v4
    v_add_u32 v3, 8192, v4
    s_nop 0
    ds_write_b128 v2, v[8:11]
    ds_write_b128 v2, v[12:15] offset:16
    s_waitcnt lgkmcnt(0)
    s_barrier
    s_cmp_ge_u32 s{sW}, 1
    s_cbranch_scc1 {k.L('end')}
    """)
    for m in range(2):
        for h in range(2):
            for i in range(8):
                k.e(f"ds_read2st64_b32 {vr(16+32*m+16*h+2*i,2)}, v{4 if m == 0 else 3} offset0:{16*h+2*i} offset1:{16*h+2*i+1}")
            k.e("s_waitcnt lgkmcnt(0)")
    k.e(f"""
    s_lshl_b32 s{sT}, s{sCB}, 8
    s_add_u32 s{sT}, s{sT}, {CS_OFF}
    s_add_u32 s{sT2}, s{sT}, 7168
    """)
    for m in range(2):
        for stp in (16, 8, 4, 2, 1):
            for i in range(stp):
                k.e(f"v_add_f32 v{16+32*m+i}, v{16+32*m+i}, v{16+32*m+i+stp}")
    k.e(f"""
    buffer_store_dword v16, v4, s[{SWS}:{SWS+3}], s{sT} offen sc1
    buffer_store_dword v48, v4, s[{SWS}:{SWS+3}], s{sT2} offen sc1
    buffer_load_dword v100, v101, s[{SD}:{SD+3}], s{sQ} offen
    """)
    k.end(SWS, 1, 1)
    k.label(k.L('end'))
    k.e("s_endpgm")
    return k, dict(vgpr=256, sgpr=80, grid=256, block=512, lds=163840)

if __name__ == "__main__":
    from gen5a import gen_a5
    from gen6a import gen_a6
    from gen7a import gen_a7
    from gen8a import gen_a8
    ks = [{5: gen_a5, 6: gen_a6, 7: gen_a7, 8: gen_a8}[env('AV', 8)](), gen_f()]
    open(sys.argv[1] if len(sys.argv) > 1 else "sequential_preLN__linear_attn_block__swiglu_ffn__prompt.s", "w").write(build(ks))
```

```python
from gen3 import *

def gen_a8():
    k = K("ka")
    SX, SW, SWS, SDB, SP = 4, 8, 12, 16, 32
    sW, sRB, sH, sx, skv, sq, sT, sT2, sEPS, sONE, sLN2, sCX, sCV, sROT = 20, 21, 22, 23, 24, 25, 26, 27, 28, 29, 30, 31, 56, 57
    XS, NXS = 0, 7
    VS, NVS = 114688, 5
    WQ = 0
    MISC = 155648
    PART = 32768
    CSX = MISC + 2048
    CNT = MISC + 6144
    DUM = 190
    AH = 2
    QX = env('QX', 1)
    QE = env('QE', 0)
    k.stamp(0)
    k.e(f"""
    s_cmp_ge_u32 s2, 256
    s_cbranch_scc1 {k.L('end')}
    s_load_dwordx2 s[{SX}:{SX+1}], s[0:1], 0
    s_load_dwordx2 s[{SW}:{SW+1}], s[0:1], 8
    s_load_dwordx2 s[{SDB}:{SDB+1}], s[0:1], 64
    s_load_dwordx2 s[{SWS}:{SWS+1}], s[0:1], 72
    s_load_dwordx2 s[{SP}:{SP+1}], s[0:1], 16
    """)
    if CPF:
        k.e(f"""
        s_getpc_b64 s[36:37]
        Lka_pc:
        s_lshr_b32 s{sT2}, s2, 3
        v_min_u32 v5, 7, v0
        v_lshlrev_b32 v5, 7, v5
        s_lshl_b32 s{sT}, s{sT2}, 10
        v_add_u32 v5, s{sT}, v5
        v_min_u32 v5, Lcode_end-Lka_pc-4, v5
        v_cmp_gt_u32 vcc, 8, v0
        s_and_saveexec_b64 s[38:39], vcc
        s_cbranch_execz {k.L('nocpf')}
        global_load_dword v{DUM}, v5, s[36:37]
        """)
        k.label(k.L('nocpf'))
        k.e("s_mov_b64 exec, -1")
    k.e(f"""
    v_lshrrev_b32 v5, 6, v0
    v_lshrrev_b32 v6, 3, v0
    v_readfirstlane_b32 s{sW}, v5
    v_and_b32 v7, 0x38, v6
    v_add_u32 v7, v6, v7
    v_and_b32 v8, 7, v0
    v_bfe_u32 v9, v0, 4, 2
    v_xor_b32 v9, v8, v9
    v_mul_u32_u24 v1, 896, v7
    v_lshl_add_u32 v1, v9, 4, v1
    v_xor_b32 v2, 64, v1
    v_add_u32 v2, 6144, v2
    s_bfe_u32 s{sRB}, s2, 0x20001
    s_lshl_b32 s{sRB}, s{sRB}, 2
    s_lshr_b32 s{sT}, s2, 6
    s_add_u32 s{sRB}, s{sRB}, s{sT}
    s_bfe_u32 s{sT2}, s2, 0x30003
    s_and_b32 s{sH}, s2, 1
    s_lshl_b32 s{sH}, s{sH}, 3
    s_add_u32 s{sH}, s{sH}, s{sT2}
    s_lshl_b32 s{sT}, s{sT}, 1
    s_add_u32 s{sT}, s{sT}, s{sT2}
    """)
    div7(k, sT2, sROT, sT)
    k.e(f"""
    s_mul_i32 s{sx}, s{sRB}, {128*896}
    s_lshl_b32 s{sT}, s{sROT}, 7
    s_add_u32 s{sx}, s{sx}, s{sT}
    s_mov_b32 s{sCX}, s{sROT}
    s_lshl_b32 m0, s{sW}, 11
    """)
    srd_consts(k, SX, S*D*2)
    srd_consts(k, SW, D*3*D*2)
    srd_consts(k, SP, D*D*2)
    k.e(f"""
    v_and_b32 v5, 63, v0
    v_min_u32 v10, 36, v5
    s_mul_i32 s{sT}, s2, 37
    v_add_lshl_u32 v10, v10, s{sT}, 7
    s_waitcnt lgkmcnt(0)
    """)
    k.stamp(1)
    if WPF:
        k.e(f"""
        s_cmp_lg_u32 s{sW}, 3
        s_cbranch_scc1 {k.L('nt1')}
        buffer_load_dword v{DUM}, v10, s[{SW}:{SW+3}], 0 offen
        """)
        k.label(k.L('nt1'))
    def issue_x(c):
        if c > 0:
            k.e(f"""
            s_lshl_b32 s{sT}, s{sW}, 11
            s_add_u32 m0, s{sT}, {XS + (c % NXS)*16384}
            s_add_u32 s{sCX}, s{sCX}, 1
            s_cmp_eq_u32 s{sCX}, 7
            s_cselect_b32 s{sT}, -6, 1
            s_lshl_b32 s{sT}, s{sT}, 7
            s_add_u32 s{sx}, s{sx}, s{sT}
            """)
        k.vop(f"buffer_load_dwordx4 v1, s[{SX}:{SX+3}], s{sx} offen lds", f"s{c}")
        k.vop(f"buffer_load_dwordx4 v2, s[{SX}:{SX+3}], s{sx} offen offset:1024 lds", f"s{c}")
    def issue_v(c):
        k.e(f"""
        s_lshl_b32 s{sT}, s{sW}, 10
        s_add_u32 m0, s{sT}, {VS + (c % NVS)*8192}
        """)
        if c > 0:
            k.e(f"""
            s_add_u32 s{sCV}, s{sCV}, 1
            s_cmp_eq_u32 s{sCV}, 7
            s_cselect_b32 s{sT}, -6, 1
            s_mul_i32 s{sT}, s{sT}, {64*2688}
            s_add_u32 s{skv}, s{skv}, s{sT}
            """)
        else:
            k.e("s_nop 0")
        k.vop(f"buffer_load_dwordx4 v3, s[{SW}:{SW+3}], s{skv} offen lds", f"s{c+AH}")
    def issue_stage(s):
        if s <= 6: issue_x(s)
        if AH <= s <= 6+AH: issue_v(s-AH)
    def issue_after(s):
        if s+3 <= 6: issue_x(s+3)
        if AH <= s+3 <= 6+AH: issue_v(s+3-AH)
    srd_consts(k, SWS, WS_USED)
    k.e(f"""
    s_and_b32 s{sT}, s2, 0xfffffff1
    s_cmp_lg_u32 s{sT}, 0
    s_cbranch_scc1 {k.L('nozero')}
    v_mov_b32 v12, 0
    v_mov_b32 v13, 0
    v_mov_b32 v14, 0
    v_mov_b32 v15, 0
    v_lshlrev_b32 v10, 4, v0
    s_lshl_b32 s{sT}, s2, 12
    buffer_store_dwordx4 v[12:15], v10, s[{SWS}:{SWS+3}], s{sT} offen sc1
    """)
    k.label(k.L('nozero'))
    issue_stage(0)
    k.e("s_barrier")
    issue_stage(1)
    k.e(f"""
    v_bfe_u32 v9, v0, 4, 1
    v_lshlrev_b32 v9, 2, v9
    v_xor_b32 v9, v8, v9
    v_mul_u32_u24 v3, 2688, v6
    v_and_b32 v8, 3, v9
    v_lshl_add_u32 v3, v8, 4, v3
    v_lshrrev_b32 v9, 2, v9
    v_mul_u32_u24 v9, 896, v9
    v_add_u32 v3, v3, v9
    s_mul_i32 s{sq}, s{sH}, 56
    s_and_b32 s{sq}, s{sq}, -16
    s_mul_i32 s{sT}, s{sROT}, {64*2688}
    s_add_u32 s{skv}, s{sq}, s{sT}
    s_add_u32 s{skv}, s{skv}, 896
    s_mov_b32 s{sCV}, s{sROT}
    s_xor_b32 s{sq}, s{sH}, {QX}
    s_mul_i32 s{sq}, s{sq}, 56
    s_and_b32 s{sq}, s{sq}, -16
    """)
    k.e("s_barrier")
    issue_stage(2)
    srd_consts(k, SDB, 256)
    k.e(f"""
    s_mov_b32 s{sEPS}, 0x{EPS_PHI_L:x}
    s_mov_b32 s{sONE}, 0x{ONES_BF:x}
    s_mov_b32 s{sLN2}, 0x{LN2:x}
    v_mov_b32 v12, 0
    v_mov_b32 v13, 0
    v_mov_b32 v14, 0
    v_mov_b32 v15, 0
    v_mov_b32 v10, {CNT}
    ds_write_b128 v10, v[12:15]
    s_cmp_lt_u32 s{sW}, 4
    s_cbranch_scc1 {k.L('nozf')}
    v_and_b32 v10, 255, v0
    v_lshlrev_b32 v10, 4, v10
    s_lshr_b32 s{sT}, s{sRB}, 2
    s_or_b32 s{sT}, s{sT}, s{sH}
    s_cmp_lg_u32 s{sT}, 0
    s_cbranch_scc1 {k.L('nocs')}
    s_lshl_b32 s{sT}, s{sRB}, 12
    s_add_u32 s{sT}, s{sT}, {CS_OFF}
    v_mov_b32 v16, -1
    v_mov_b32 v17, -1
    v_mov_b32 v18, -1
    v_mov_b32 v19, -1
    buffer_store_dwordx4 v[16:19], v10, s[{SWS}:{SWS+3}], s{sT} offen sc1
    """)
    k.label(k.L('nocs'))
    k.e(f"""
    s_cmp_lg_u32 s{sH}, 14
    s_cbranch_scc1 {k.L('nozf')}
    s_lshl_b32 s{sT}, s{sRB}, 12
    s_add_u32 s{sT}, s{sT}, {FL_OFF}
    buffer_store_dwordx4 v[12:15], v10, s[{SWS}:{SWS+3}], s{sT} offen sc1
    """)
    k.label(k.L('nozf'))
    AX = 172
    k.e(f"""
    v_and_b32 v8, 31, v0
    v_bfe_u32 v9, v0, 5, 1
    v_bfe_u32 v14, v0, 6, 2
    v_lshl_add_u32 v15, v14, 5, v8
    v_lshlrev_b32 v10, 7, v15
    v_bfe_u32 v11, v8, 1, 3
    v_xor_b32 v11, v11, v9
    v_lshlrev_b32 v12, 1, v14
    v_xor_b32 v11, v11, v12
    v_mov_b32 v7, 1
    """)
    for p in range(4):
        k.e(f"v_xor_b32 v12, {2*p}, v11")
        k.e(f"v_lshl_add_u32 v{AX+p}, v12, 4, v10")
    k.e(f"v_add_u32 v{AX+4}, 0x10000, v{AX}\nv_add_u32 v{AX+5}, 0x10000, v{AX+1}\nv_add_u32 v{AX+6}, 0x10000, v{AX+2}\nv_add_u32 v{AX+7}, 0x10000, v{AX+3}")
    def xread(dst, c, p):
        o = XS + (c % NXS)*16384
        k.e(f"ds_read_b128 {vr(dst,4)}, v{AX+p+4*(o >> 16)} offset:{o & 0xffff}")
    def arrive(i):
        k.e(f"s_mov_b64 exec, 1\nds_add_u32 v6, v7 offset:{4*i}\ns_mov_b64 exec, -1")
    def lwait(name, i, target, vt):
        k.label(k.L(name))
        k.e(f"""
        ds_read_b32 v{vt}, v6 offset:{4*i}
        s_waitcnt lgkmcnt(0)
        v_cmp_gt_u32 vcc, {target}, v{vt}
        s_cbranch_vccnz {k.L(name)}
        """)
    k.e(f"""
    v_mov_b32 v6, {CNT}
    s_waitcnt lgkmcnt(0)
    s_cmp_ge_u32 s{sW}, 4
    s_cbranch_scc1 {k.L('q')}
    """)
    vm_split = list(k.vm)
    def wpf(qside):
        if not WPF or not qside: return
        k.e(f"""
        s_cmp_ge_u32 s{sW}, 6
        s_cbranch_scc1 {k.L('nopf')}
        s_lshr_b32 s{sT}, s2, 3
        s_lshl_b32 s{sT}, s{sT}, 1
        s_add_u32 s{sT}, s{sT}, s{sW}
        s_sub_u32 s{sT}, s{sT}, 4
        s_mul_i32 s{sT}, s{sT}, 49
        v_and_b32 v5, 63, v0
        v_min_u32 v5, 48, v5
        v_add_lshl_u32 v5, v5, s{sT}, 7
        buffer_load_dword v{DUM}, v5, s[{SP}:{SP+3}], 0 offen
        """)
        k.label(k.L('nopf'))
    ACK, ACV = 16, 32
    BUF = [48, 60, 72]
    AWK, AWV = 152, 156
    CSK, CSV = 160, 162
    RL, XE, WEK, WEV = 84, 100, 104, 108
    PKF, VF, KVA, T = 112, 120, 128, 144
    k.e(f"""
    s_setprio 2
    v_bfe_u32 v11, v0, 2, 2
    v_lshl_add_u32 v10, v9, 3, v11
    v_lshlrev_b32 v10, 7, v10
    v_bfe_u32 v12, v0, 4, 1
    v_and_b32 v13, 3, v0
    v_lshl_add_u32 v12, v12, 2, v13
    s_and_b32 s{sT}, s{sH}, 1
    v_add_u32 v12, s{sT}, v12
    v_and_b32 v12, 7, v12
    v_lshl_add_u32 v10, v12, 3, v10
    v_lshrrev_b32 v11, 1, v11
    v_lshl_add_u32 v10, v11, 6, v10
    v_lshl_add_u32 v10, v14, 11, v10
    v_add_u32 v{AWK}, {VS}, v10
    v_mov_b32 v{CSK}, 0
    v_mov_b32 v{CSK+1}, 0
    v_mov_b32 v{XE+2}, 0
    v_mov_b32 v{XE+3}, 0
    """)
    assert VS % 8192 == 0
    for p in range(1, 4):
        k.e(f"v_xor_b32 v{AWK+p}, {p << 11}, v{AWK}")
    for p in range(4):
        k.e(f"v_xor_b32 v{AWV+p}, 64, v{AWK+p}")
    k.e(f"""
    v_lshlrev_b32 v12, 3, v0
    v_add_u32 v12, {CSX}, v12
    v_and_b32 v13, 63, v0
    v_lshlrev_b32 v13, 3, v13
    v_add_u32 v13, {CSX}, v13
    v_lshlrev_b32 v10, 3, v15
    v_add_u32 v10, {MISC}, v10
    v_lshlrev_b32 v11, 7, v14
    v_lshl_add_u32 v11, v9, 4, v11
    v_add_u32 v11, {MISC+1024}, v11
    """)
    def kv_reads(c, p, b):
        o = (c % NVS)*8192
        xread(BUF[b], c, p)
        for ri in range(2):
            k.e(f"ds_read_b64_tr_b16 {vr(BUF[b]+4+2*ri,2)}, v{AWK+p} offset:{o+ri*512}")
        for ri in range(2):
            k.e(f"ds_read_b64_tr_b16 {vr(BUF[b]+8+2*ri,2)}, v{AWV+p} offset:{o+ri*512}")
    NS = 7+AH
    def gate(s):
        k.wait_vm(f"s{s}")
        k.e("s_barrier")
        if s == 0: k.stamp(2)
        if s == NS-1: k.stamp(3)
    def post_gate(s):
        issue_after(s)
        if s == NS-2:
            k.e(f"""
            v_mov_b32 v5, 0
            s_lshr_b32 s{sT2}, s{sH}, 1
            s_lshl_b32 s{sT2}, s{sT2}, 2
            """)
            k.vop(f"buffer_load_dword v{T+4}, v5, s[{SDB}:{SDB+3}], s{sT2} offen sc1", "poll")
    def rd(u):
        c, p = u >> 2, u & 3
        if p == 0: gate(c+AH)
        kv_reads(c, p, u % 3)
        if p == 0: post_gate(c+AH)
    for s_ in range(AH):
        gate(s_); post_gate(s_)
    for u in range(3): rd(u)
    for u in range(28):
        c, p = u >> 2, u & 3
        b = u % 3
        k.e(f"s_waitcnt lgkmcnt({5*min(2, 27-u)})")
        first = (u == 0)
        k.e(f"v_mfma_f32_32x32x16_bf16 {vr(ACK,16)}, {vr(BUF[b],4)}, {vr(BUF[b]+4,4)}, {'0' if first else vr(ACK,16)}")
        k.e(f"v_mfma_f32_32x32x16_bf16 {vr(ACV,16)}, {vr(BUF[b],4)}, {vr(BUF[b]+8,4)}, {'0' if first else vr(ACV,16)}")
        if p == 0:
            for j in range(4):
                k.e(f"v_dot2c_f32_bf16 v{CSK}, s{sONE}, v{BUF[b]+4+j}")
                k.e(f"v_dot2c_f32_bf16 v{CSK+1}, s{sONE}, v{BUF[b]+8+j}")
        if u+3 < 28: rd(u+3)
        if u == 25:
            k.e(f"ds_write_b64 v12, {vr(CSK,2)}")
            arrive(0)
        if u == 26:
            k.e(f"ds_read_b64 {vr(XE,2)}, v10")
            for a in range(4):
                k.e(f"ds_read_b128 {vr(RL+4*a,4)}, v11 offset:{a*32}")
            k.e(f"""
            v_and_b32 v10, 63, v0
            v_lshlrev_b32 v4, 2, v10
            v_lshlrev_b32 v10, 4, v10
            v_lshl_add_u32 v10, v14, 12, v10
            v_lshl_add_u32 v4, v14, 10, v4
            v_add_u32 v3, {PART}, v4
            s_lshl_b32 s{sT}, s{sH}, 12
            """)
    k.e(f"s_setprio {env('KVP', 0)}")
    lwait('w0', 0, 4, T)
    k.e(f"""
    ds_read2st64_b64 {vr(PKF,4)}, v13 offset0:0 offset1:1
    ds_read2st64_b64 {vr(PKF+4,4)}, v13 offset0:2 offset1:3
    s_waitcnt lgkmcnt(0)
    v_add_f32 v{PKF}, v{PKF}, v{PKF+2}
    v_add_f32 v{PKF+1}, v{PKF+1}, v{PKF+3}
    v_add_f32 v{PKF+4}, v{PKF+4}, v{PKF+6}
    v_add_f32 v{PKF+5}, v{PKF+5}, v{PKF+7}
    v_add_f32 v{CSK}, v{PKF}, v{PKF+4}
    v_add_f32 v{CSV}, v{PKF+1}, v{PKF+5}
    """)
    k.stamp(4)
    hilo_w(k, WEK, CSK, T)
    k.e("s_nop 1")
    k.e(f"v_mfma_f32_32x32x16_bf16 {vr(ACK,16)}, {vr(XE,4)}, {vr(WEK,4)}, {vr(ACK,16)}")
    hilo_w(k, WEV, CSV, T+1)
    k.e("s_nop 1")
    k.e(f"v_mfma_f32_32x32x16_bf16 {vr(ACV,16)}, {vr(XE,4)}, {vr(WEV,4)}, {vr(ACV,16)}")
    k.nop(3)
    for h in range(2):
        for i in range(8*h, 8*h+8, 2):
            phi_ops(k, ACK+i, ACK+i, RL+i, T, sEPS, sLN2)
            phi_ops(k, ACK+i+1, ACK+i+1, RL+i+1, T+1, sEPS, sLN2)
            k.e(f"v_cvt_pk_bf16_f32 v{PKF+i//2}, v{ACK+i}, v{ACK+i+1}")
        for i in range(8*h, 8*h+8, 2):
            k.e(f"v_pk_mul_f32 {vr(ACV+i,2)}, {vr(ACV+i,2)}, {vr(RL+i,2)}")
            k.e(f"v_cvt_pk_bf16_f32 v{VF+i//2}, v{ACV+i}, v{ACV+i+1}")
        k.e("s_mov_b32 exec_lo, 0x10000000\ns_mov_b32 exec_hi, 0x10000000")
        for j in range(4):
            k.e(f"v_mov_b32 v{VF+4*h+j}, s{sONE}")
        k.e("s_mov_b64 exec, -1\ns_nop 0")
        k.e(f"v_mfma_f32_32x32x16_bf16 {vr(KVA,16)}, {vr(PKF+4*h,4)}, {vr(VF+4*h,4)}, {'0' if h == 0 else vr(KVA,16)}")
    k.wait_vm("poll")
    k.label(k.L('poll'))
    k.e(f"""
    v_cmp_eq_u32 vcc, 0, v{T+4}
    s_cbranch_vccz {k.L('pollok')}
    s_sleep 16
    buffer_load_dword v{T+4}, v5, s[{SDB}:{SDB+3}], s{sT2} offen sc1
    s_waitcnt vmcnt(0)
    s_branch {k.L('poll')}
    """)
    k.label(k.L('pollok'))
    k.nop(9)
    for a in range(4):
        k.e(f"ds_write_b128 v10, {vr(KVA+4*a,4)} offset:{PART+a*1024}")
    arrive(1)
    lwait('w1', 1, 4, T)
    k.stamp(5)
    for u in range(4):
        k.e(f"ds_read2st64_b32 {vr(ACK+4*u,2)}, v3 offset0:{u} offset1:{u+16}")
        k.e(f"ds_read2st64_b32 {vr(ACK+4*u+2,2)}, v3 offset0:{u+32} offset1:{u+48}")
    for u in range(4):
        k.e(f"s_waitcnt lgkmcnt({6-2*u})")
        k.e(f"v_add_f32 v{ACK+4*u}, v{ACK+4*u}, v{ACK+4*u+1}")
        k.e(f"v_add_f32 v{ACK+4*u+2}, v{ACK+4*u+2}, v{ACK+4*u+3}")
        k.e(f"v_add_f32 v{ACK+4*u}, v{ACK+4*u}, v{ACK+4*u+2}")
        if u == 2:
            k.e(f"s_cmp_eq_u32 s{sW}, 3\ns_cbranch_scc1 {k.L('kvend')}")
        k.e(f"buffer_atomic_add_f32 v{ACK+4*u}, v4, s[{SWS}:{SWS+3}], s{sT} offen offset:{u*256}")
    k.label(k.L('kvend'))
    k.stamp(6)
    k.end(SWS, 0, 7)
    k.label(k.L('q'))
    k.vm = list(vm_split)
    XQ, ACQ, WB = 16, 128, 144
    SUM, SQ, CSQ, AWQ, T = 160, 162, 164, 168, 188
    XE2, WE2, RS = 180, 184, 166
    k.e(f"""
    v_bfe_u32 v11, v0, 2, 2
    v_lshl_add_u32 v10, v9, 3, v11
    v_lshlrev_b32 v10, 6, v10
    v_and_b32 v11, 1, v0
    v_bfe_u32 v12, v0, 4, 1
    v_lshl_add_u32 v11, v11, 1, v12
    v_bfe_u32 v12, v0, 1, 1
    v_lshl_add_u32 v11, v11, 1, v12
    s_and_b32 s{sT}, s{sH}, 1
    s_xor_b32 s{sT}, s{sT}, {QX}
    v_add_u32 v11, s{sT}, v11
    v_and_b32 v11, 7, v11
    v_lshl_add_u32 v10, v11, 3, v10
    v_lshl_add_u32 v10, v14, 10, v10
    v_add_u32 v{AWQ}, {WQ}, v10
    v_xor_b32 v{AWQ+1}, 0x400, v{AWQ}
    v_xor_b32 v{AWQ+2}, 0x800, v{AWQ}
    v_xor_b32 v{AWQ+3}, 0xc00, v{AWQ}
    v_bfe_u32 v10, v0, 2, 6
    v_mul_u32_u24 v4, 2688, v10
    v_and_b32 v10, 3, v0
    v_lshl_add_u32 v4, v10, 4, v4
    """)
    assert WQ % 4096 == 0
    for r in (SUM, SUM+1, SQ, SQ+1, CSQ, CSQ+1):
        k.e(f"v_mov_b32 v{r}, 0")
    def wq_dma(pos):
        k.e(f"""
        s_lshl_b32 s{sT}, s{sW}, 10
        s_add_i32 m0, s{sT}, {WQ + pos*4096 - 4096}
        s_add_u32 s{sT2}, s{sROT}, {pos}
        s_cmp_ge_u32 s{sT2}, 7
        s_cselect_b32 s{sT}, 7, 0
        s_sub_u32 s{sT2}, s{sT2}, s{sT}
        s_mul_i32 s{sT2}, s{sT2}, {64*2688}
        s_add_u32 s{sT2}, s{sT2}, s{sq}
        """)
        k.vop(f"buffer_load_dwordx4 v4, s[{SW}:{SW+3}], s{sT2} offen lds", f"wq{pos}")
    NB = 4
    def wq_read(kap):
        c, p = kap >> 2, kap & 3
        b = WB + 4*(kap % NB)
        for ri in range(2):
            k.e(f"ds_read_b64_tr_b16 {vr(b+2*ri,2)}, v{AWQ+p} offset:{c*4096+ri*256}")
    def q_range(k0, k1, mid=None):
        for kap in range(k0, min(k0+NB-1, k1)):
            wq_read(kap)
        for kap in range(k0, k1):
            if kap+NB-1 < k1:
                wq_read(kap+NB-1)
            rem = min(k1-1-kap, NB-1)
            k.e(f"s_waitcnt lgkmcnt({2*rem})")
            b = WB + 4*(kap % NB)
            k.e(f"v_mfma_f32_32x32x16_bf16 {vr(ACQ,16)}, {vr(b,4)}, {vr(XQ+4*kap,4)}, {'0' if kap == 0 else vr(ACQ,16)}")
            if (kap & 3) == 0:
                for j in range(4):
                    k.e(f"v_dot2c_f32_bf16 v{CSQ+(j&1)}, s{sONE}, v{b+j}")
            if mid and kap == mid[0]: mid[1]()
    for s in range(NS):
        gate(s)
        if s <= 6:
            for p in range(4):
                xread(XQ+16*s+4*p, s, p)
        if s == 4:
            for pos in range(QE): wq_dma(pos)
        issue_after(s)
        if s == 6:
            for pos in range(QE, 7): wq_dma(pos)
        if s == 1: wpf(True)
        if s == 0:
            k.e(f"""
            s_and_b32 s{sT}, s2, 0xfffffff1
            s_xor_b32 s{sT2}, s{sW}, 7
            s_or_b32 s{sT}, s{sT}, s{sT2}
            s_cmp_lg_u32 s{sT}, 0
            s_cbranch_scc1 {k.L('noflag')}
            s_lshl_b32 s{sT}, s2, 1
            v_mov_b32 v5, 0
            s_mov_b64 exec, 1
            buffer_store_dword v7, v5, s[{SDB}:{SDB+3}], s{sT} offen sc1
            s_mov_b64 exec, -1
            """)
            k.label(k.L('noflag'))
        if s <= 6:
            c = s
            for p in range(4):
                k.e(f"s_waitcnt lgkmcnt({3-p})")
                for j in range(4):
                    r = XQ+16*c+4*p+j
                    k.e(f"v_dot2c_f32_bf16 v{SUM+(j&1)}, s{sONE}, v{r}")
                    k.e(f"v_dot2c_f32_bf16 v{SQ+(j&1)}, v{r}, v{r}")
        if s == 7:
            k.e(f"""
            v_lshlrev_b32 v11, 2, v15
            v_lshlrev_b32 v10, 3, v15
            v_mov_b32 v{XE2+3}, 0
            v_add_f32 v{SUM}, v{SUM}, v{SUM+1}
            v_add_f32 v{SQ}, v{SQ}, v{SQ+1}
            v_mov_b32 v{SUM+1}, v{SUM}
            v_mov_b32 v{SQ+1}, v{SQ}
            v_add_u32 v10, {MISC}, v10
            v_add_u32 v11, {MISC+1024}, v11
            v_permlane32_swap_b32 v{SUM}, v{SUM+1}
            v_permlane32_swap_b32 v{SQ}, v{SQ+1}
            v_mov_b32 v{XE2+2}, 0
            v_add_f32 v{SUM}, v{SUM}, v{SUM+1}
            v_add_f32 v{SQ}, v{SQ}, v{SQ+1}
            v_mul_f32 v{SUM}, 0x{INV_D|0x80000000:x}, v{SUM}
            v_mul_f32 v{SQ}, 0x{INV_D:x}, v{SQ}
            v_fma_f32 v{SQ}, -v{SUM}, v{SUM}, v{SQ}
            v_max_f32 v{SQ}, 0, v{SQ}
            v_add_f32 v{SQ}, 0x{EPS_LN:x}, v{SQ}
            v_rsq_f32 v{RS}, v{SQ}
            """)
            hilo_x(k, XE2, SUM, T)
            k.e(f"""
            v_mul_f32 v{RS}, 0x{LOG2E:x}, v{RS}
            ds_write_b64 v10, {vr(XE2,2)}
            ds_write_b32 v11, v{RS}
            """)
        if s == 7:
            k.e("s_waitcnt lgkmcnt(0)")
            if QE: q_range(0, 4*QE)
            k.e(f"""
            v_lshlrev_b32 v12, 2, v0
            v_add_u32 v12, {CSX+1024}, v12
            v_and_b32 v10, 63, v0
            v_lshlrev_b32 v13, 2, v10
            v_add_u32 v13, {CSX+2048}, v13
            v_lshlrev_b32 v10, 4, v10
            s_lshl_b32 s{sT}, s{sRB}, 2
            s_add_u32 s{sT}, s{sT}, s{sW}
            s_sub_u32 s{sT}, s{sT}, 4
            s_lshl_b32 s{sT}, s{sT}, 4
            s_xor_b32 s{sT2}, s{sH}, {QX}
            s_add_u32 s{sT}, s{sT}, s{sT2}
            s_lshl_b32 s{sT}, s{sT}, 11
            s_add_u32 s{sT}, s{sT}, {PQ_OFF}
            """)
    k.e(f"s_setprio {env('QP', 2)}")
    def pub():
        k.e(f"""
        v_add_f32 v{CSQ}, v{CSQ}, v{CSQ+1}
        ds_write_b32 v12, v{CSQ}
        """)
        arrive(3)
    pm = (QE+7+1)//2
    for n, (p0, p1) in enumerate([(QE, pm), (pm, 7)]):
        k.wait_vm(f"wq{p1-1}")
        arrive(2)
        lwait(f'wq{n}', 2, 4*(n+1), T)
        k.stamp(4+n)
        q_range(4*p0, 4*p1, mid=(26, pub) if n == 1 else None)
    lwait('w4', 3, 4, T)
    k.e(f"""
    ds_read2st64_b32 {vr(WB,2)}, v13 offset0:0 offset1:1
    ds_read2st64_b32 {vr(WB+2,2)}, v13 offset0:2 offset1:3
    s_waitcnt lgkmcnt(0)
    v_add_f32 v{WB}, v{WB}, v{WB+1}
    v_add_f32 v{WB+2}, v{WB+2}, v{WB+3}
    v_add_f32 v{CSQ}, v{WB}, v{WB+2}
    """)
    hilo_w(k, WE2, CSQ, T)
    k.e(f"""
    s_nop 1
    v_mfma_f32_32x32x16_bf16 {vr(ACQ,16)}, {vr(WE2,4)}, {vr(XE2,4)}, {vr(ACQ,16)}
    """)
    k.nop(12)
    for i in range(0, 16, 2):
        phi_ops(k, ACQ+i, ACQ+i, RS, T, sEPS, sLN2)
        phi_ops(k, ACQ+i+1, ACQ+i+1, RS, T+1, sEPS, sLN2)
        k.e(f"v_cvt_pk_bf16_f32 v{WB+i//2}, v{ACQ+i}, v{ACQ+i+1}")
        if i == 6:
            k.e(f"buffer_store_dwordx4 {vr(WB,4)}, v10, s[{SWS}:{SWS+3}], s{sT} offen sc1")
    k.e(f"buffer_store_dwordx4 {vr(WB+4,4)}, v10, s[{SWS}:{SWS+3}], s{sT} offen offset:1024 sc1")
    k.stamp(6)
    k.end(SWS, 0, 7)
    k.label(k.L('end'))
    k.e("s_endpgm")
    return k, dict(vgpr=192, sgpr=64, grid=256, block=512, lds=163840)
```

```python
import sys, os
sys.path.insert(0, "dev")
os.environ.setdefault('STF', 'sc1')
os.environ['ZFL'] = '1'
import gen3
from gen3 import *

HPACE = env('HPACE', 8)
APRE = env('APRE', 4)
DX = env('DX', 0)
WTR = env('WTR', 1)
EARLY = env('EARLY', 1)
BORD = env('BORD', 1)
CXB = env('CXB', 3)
CXE = env('CXE', 60)
WSZ = (STAMP_OFF + 8*65536*2) if STAMPS else WS_USED

def flush(k, sws, kid, n, tv):
    if not STAMPS: return
    k.e("s_waitcnt lgkmcnt(0)")
    k.e("s_mov_b64 exec, 1")
    for i in range(8):
        k.e(f"v_mov_b32 v{tv+i}, s{40+2*i}" if i < n else f"v_mov_b32 v{tv+i}, 0")
    k.e(f"""
    v_lshrrev_b32 v{tv+8}, 6, v0
    v_lshlrev_b32 v{tv+8}, 5, v{tv+8}
    s_lshl_b32 s38, s2, 8
    s_add_u32 s38, s38, {STAMP_OFF + kid*65536*2}
    buffer_store_dwordx4 {vr(tv,4)}, v{tv+8}, s[{sws}:{sws+3}], s38 offen
    buffer_store_dwordx4 {vr(tv+4,4)}, v{tv+8}, s[{sws}:{sws+3}], s38 offen offset:16
    s_mov_b64 exec, -1
    """)

PSLEEP = env('PSLEEP', 1)
PMODE = env('PMODE', 0)
PDEP = env('PDEP', 1)
def poll(k, name, soff, target, va, vt, sws, scnt, sW, pw, work=None):
    k.e(f"""
    s_cmp_lg_u32 s{sW}, {pw}
    s_cbranch_scc1 {k.L(name+'dr')}
    s_mov_b32 s{scnt}, 0x200000
    """)
    if PMODE:
        k.e(f"v_and_b32 v{va}, 63, v0\nv_min_u32 v{va}, {target-1}, v{va}\nv_lshlrev_b32 v{va}, 2, v{va}")
    else:
        k.e(f"v_mov_b32 v{va}, 0")
    PV = 252 if PDEP > 1 else vt
    ld = lambda i: k.e(f"buffer_load_dword v{PV+i}, v{va}, s[{sws}:{sws+3}], s{soff} offen sc1")
    for i in range(PDEP-1):
        ld(i); k.e(f"s_sleep {PSLEEP}")
    k.label(k.L(name))
    for i in range(PDEP):
        ld((i+PDEP-1) % PDEP)
        k.e(f"""
        s_waitcnt vmcnt({PDEP-1})
        v_cmp_gt_u32 vcc, {1 if PMODE else target}, v{PV+i}
        s_cbranch_vccz {k.L(name+'ok')}
        s_sleep {PSLEEP}
        """)
    k.e(f"""
    s_sub_u32 s{scnt}, s{scnt}, 1
    s_cbranch_scc0 {k.L(name)}
    """)
    if work is None:
        k.label(k.L(name+'dr'))
        k.e("s_waitcnt vmcnt(0)")
        k.label(k.L(name+'ok'))
        k.e("s_barrier")
        k.vm = []
    else:
        k.label(k.L(name+'ok'))
        k.e("s_barrier")
        k.vm = []
        work()
        n = len(k.vm)
        k.e(f"s_branch {k.L(name+'j')}")
        k.label(k.L(name+'dr'))
        k.vm = []
        work()
        k.e(f"s_waitcnt vmcnt({n})")
        k.e("s_barrier")
        k.label(k.L(name+'j'))

def signal(k, name, soff, n, stride_log2, va, vt, sws, sW, spi):
    k.e(f"""
    s_cmp_lg_u32 s{sW}, 0
    s_cbranch_scc1 {k.L(name)}
    v_lshlrev_b32 v{va}, {stride_log2}, v0
    v_mov_b32 v{vt}, 1
    """)
    if PMODE:
        k.e(f"""
        v_lshl_add_u32 v{va}, s{spi}, 2, v{va}
        s_mov_b64 exec, {(1 << n) - 1}
        buffer_store_dword v{vt}, v{va}, s[{sws}:{sws+3}], s{soff} offen sc1
        """)
    else:
        k.e(f"""
        s_mov_b64 exec, {(1 << n) - 1}
        buffer_atomic_add v{vt}, v{va}, s[{sws}:{sws+3}], s{soff} offen sc1
        """)
    k.e("s_mov_b64 exec, -1")
    k.label(k.L(name))

def gen_f():
    k = K("kf")
    SX, SW, SWS, SG, SU, SD, SO = 4, 8, 12, 56, 60, 64, 68
    sW, sRB, sCB, sT, sT2, sT3, sEPS, sONE, sKV, sPQ0, sWO, sROT, sLN2 = 20, 21, 22, 23, 24, 25, 26, 27, 28, 29, 30, 31, 19
    sFB, sRT, sCG, sWOFF, sH, sQ, sDCG, sDW, sA, sKH, sCNT = 16, 17, 18, 32, 33, 34, 35, 36, 37, 39, 72
    BB = 98304
    sPOL = 73
    k.stamp(0)
    k.e(f"""
    s_cmp_ge_u32 s2, 256
    s_cbranch_scc1 {k.L('end')}
    s_load_dwordx2 s[{SWS}:{SWS+1}], s[0:1], 72
    s_load_dwordx2 s[{SG}:{SG+1}], s[0:1], 32
    s_load_dwordx2 s[{SU}:{SU+1}], s[0:1], 40
    s_cmp_ge_u32 s2, 224
    s_cbranch_scc1 {k.L('cs')}
    s_load_dwordx2 s[{SX}:{SX+1}], s[0:1], 0
    s_load_dwordx2 s[{SW}:{SW+1}], s[0:1], 16
    s_load_dwordx2 s[{SD}:{SD+1}], s[0:1], 48
    s_load_dwordx2 s[{SO}:{SO+1}], s[0:1], 56
    v_lshrrev_b32 v5, 6, v0
    v_and_b32 v1, 63, v0
    v_readfirstlane_b32 s{sW}, v5
    v_lshlrev_b32 v1, 4, v1
    v_bfe_u32 v9, v0, 5, 1
    s_lshr_b32 s{sT2}, s2, 3
    """)
    div7(k, sQ, sCB, sT2)
    k.e(f"""
    s_and_b32 s{sT}, s2, 7
    s_lshl_b32 s{sT}, s{sT}, 2
    s_add_u32 s{sRB}, s{sQ}, s{sT}
    s_lshl_b32 s{sWO}, s{sCB}, 7
    """)
    srd_consts(k, SWS, WSZ)
    k.e(f"""
    s_cmp_ge_u32 s{sW}, 4
    s_cbranch_scc1 {k.L('ld')}
    """)
    k.e(f"""
    v_bfe_u32 v6, v0, 3, 2
    v_and_b32 v7, 3, v0
    v_lshl_add_u32 v6, v6, 2, v7
    v_bfe_u32 v7, v0, 2, 1
    v_mad_u32_u24 v7, v7, 14, v6
    v_cmp_gt_u32 vcc, 14, v6
    v_bfe_u32 v6, v0, 3, 3
    v_and_b32 v8, 7, v0
    v_cndmask_b32 v7, 28, v7, vcc
    v_lshlrev_b32 v2, 4, v7
    v_lshl_add_u32 v2, v9, 11, v2
    v_bfe_u32 v7, v0, 4, 1
    v_lshlrev_b32 v7, 2, v7
    v_xor_b32 v7, v7, v8
    v_mul_u32_u24 v3, 896, v6
    v_lshl_add_u32 v3, v7, 4, v3
    s_add_u32 s{sROT}, s{sQ}, s{sCB}
    s_and_b32 s{sROT}, s{sROT}, 3
    s_lshl_b32 s{sT}, s{sW}, 2
    s_add_u32 s{sROT}, s{sROT}, s{sT}
    s_and_b32 s{sT}, s{sW}, 1
    s_lshl_b32 s{sT2}, s{sRB}, 1
    s_add_u32 s{sT3}, s{sT2}, s{sT}
    s_lshl_b32 s{sPQ0}, s{sT3}, 15
    s_add_u32 s{sPQ0}, s{sPQ0}, {PQ_OFF}
    s_lshl_b32 s{sT}, s{sW}, 14
    s_add_u32 m0, s{sT}, {BB}
    """)
    srd_consts(k, SX, S*D*2)
    srd_consts(k, SW, D*D*2)
    k.e(f"""
    s_mov_b32 s{sEPS}, 0x{EPS_PHI:x}
    s_mov_b32 s{sONE}, 0x{ONES_BF:x}
    s_mov_b32 s{sLN2}, 0x{LN2:x}
    s_waitcnt lgkmcnt(0)
    """)
    k.stamp(1)
    KVF, PQR, ACC, OA, XR = 16, 80, 144, 208, 248
    def ld_head(p):
        k.e(f"""
        s_xor_b32 s{sT}, s{sROT}, {p}
        s_lshl_b32 s{sKV}, s{sT}, 12
        s_lshl_b32 s{sT}, s{sT}, 11
        s_add_u32 s{sT}, s{sT}, s{sPQ0}
        s_xor_b32 s{sT2}, s{sT}, 0x8000
        """)
        for q in range(4):
            k.vop(f"buffer_load_dwordx4 {vr(KVF+16*p+4*q,4)}, v2, s[{SWS}:{SWS+3}], s{sKV} offen offset:{q*512}", f"kv{p}")
        for rt in range(2):
            for f in range(2):
                k.vop(f"buffer_load_dwordx4 {vr(PQR+16*p+8*rt+4*f,4)}, v1, s[{SWS}:{SWS+3}], s{sT if rt == 0 else sT2} offen offset:{f*1024}", f"pq{p}")
    def ld_wo(p):
        k.e(f"""
        s_xor_b32 s{sT}, s{sROT}, {p}
        s_mul_i32 s{sT}, s{sT}, {28*896}
        s_add_u32 s{sT}, s{sT}, s{sWO}
        """)
        for u in range(4):
            k.vop(f"buffer_load_dwordx4 v3, s[{SW}:{SW+3}], s{sT} offen offset:{u*1024} lds", f"wo{p}")
            if u < 3: k.e(f"s_add_u32 s{sT}, s{sT}, {7168-1024}")
        k.e("s_add_u32 m0, m0, 4096")
    ld_head(0); ld_head(1)
    def ld_x():
        k.e(f"""
        v_and_b32 v6, 31, v0
        v_mul_u32_u24 v4, 896, v6
        v_lshl_add_u32 v4, v9, 5, v4
        s_mul_i32 s{sT}, s{sT3}, {32*896}
        s_add_u32 s{sT}, s{sT}, s{sWO}
        s_lshr_b32 s{sT2}, s{sW}, 1
        s_lshl_b32 s{sT2}, s{sT2}, 6
        s_add_u32 s{sT}, s{sT}, s{sT2}
        """)
        k.vop(f"buffer_load_dwordx4 {vr(XR,4)}, v4, s[{SX}:{SX+3}], s{sT} offen", "x")
        k.vop(f"buffer_load_dwordx4 {vr(XR+4,4)}, v4, s[{SX}:{SX+3}], s{sT} offen offset:16", "x")
    AW0, AW1 = 14, 15
    k.e(f"""
    v_bfe_u32 v7, v0, 2, 2
    v_mad_u32_u24 v5, v9, 14, v7
    v_lshlrev_b32 v5, 7, v5
    v_lshrrev_b32 v7, 1, v7
    v_xor_b32 v7, v7, v9
    v_bfe_u32 v8, v0, 7, 1
    v_xor_b32 v7, v7, v8
    v_lshl_add_u32 v5, v7, 6, v5
    v_and_b32 v7, 1, v0
    v_lshl_add_u32 v5, v7, 5, v5
    v_bfe_u32 v7, v0, 4, 1
    v_lshl_add_u32 v5, v7, 4, v5
    v_bfe_u32 v7, v0, 1, 1
    v_lshl_add_u32 v5, v7, 3, v5
    v_lshrrev_b32 v7, 6, v0
    v_lshl_add_u32 v5, v7, 14, v5
    v_add_u32 v{AW0}, {BB}, v5
    v_xor_b32 v{AW1}, 64, v{AW0}
    """)
    def o_stage(p):
        k.wait_vm(f"kv{p}")
        if p == 0: k.stamp(2)
        if p == 3: k.stamp(3)
        b = KVF+16*p
        for i in range(8):
            k.e(f"v_cvt_pk_bf16_f32 v{b+i}, v{b+2*i}, v{b+2*i+1}")
        k.wait_vm(f"pq{p}")
        k.e("s_nop 0")
        for rt in range(2):
            for f in range(2):
                k.e(f"v_mfma_f32_32x32x16_bf16 {vr(OA+16*rt,16)}, {vr(b+4*f,4)}, {vr(PQR+16*p+8*rt+4*f,4)}, {'0' if f == 0 else vr(OA+16*rt,16)}")
    def norm_stage(p):
        for rt in range(2):
            o = OA+16*rt
            d = PQR+16*p+8*rt
            k.e(f"v_add_f32 v{o+14}, s{sEPS}, v{o+14}")
            k.e(f"v_rcp_f32 v{o+14}, v{o+14}")
            k.e(f"v_mov_b32 v{d+7}, 0")
            k.e(f"v_mul_f32 v{o+14}, s{sLN2}, v{o+14}")
            for i in range(0, 14, 2):
                k.e(f"v_pk_mul_f32 {vr(o+i,2)}, {vr(o+i,2)}, {vr(o+14,2)} op_sel_hi:[1,0]")
            for i in range(0, 14, 2):
                k.e(f"v_cvt_pk_bf16_f32 v{d+i//2}, v{o+i}, v{o+i+1}")
    def w_reads(p):
        k.wait_vm(f"wo{p}")
        for f in range(2):
            for ct in range(2):
                for ri in range(2):
                    k.e(f"ds_read_b64_tr_b16 {vr(KVF+16*p+8*f+4*ct+2*ri,2)}, v{AW0 if ct == 0 else AW1} offset:{(32*p+8*f+4*ri)*128}")
    def main_stage(p):
        for f in range(2):
            for ct in range(2):
                k.e(f"s_waitcnt lgkmcnt({6-4*f-2*ct})")
                for rt in range(2):
                    a = ACC+16*(2*ct+rt)
                    first = (p == 0 and f == 0)
                    k.e(f"v_mfma_f32_32x32x16_bf16 {vr(a,16)}, {vr(KVF+16*p+8*f+4*ct,4)}, {vr(PQR+16*p+8*rt+4*f,4)}, {'0' if first else vr(a,16)}")
    for p in range(4):
        o_stage(p)
        if BORD == 0:
            if p == 0: ld_wo(0); ld_head(2)
            if p == 1: ld_wo(1); ld_head(3)
            if p == 2:
                ld_wo(2); ld_wo(3); ld_x()
                k.e("s_barrier")
            if p > 0:
                main_stage(p-1)
            norm_stage(p)
            w_reads(p)
        else:
            if p == 0: ld_head(2)
            if p == 1: ld_head(3)
            if p == 2: ld_wo(0); ld_wo(1)
            if p == 3:
                ld_wo(2); ld_wo(3); ld_x()
                k.e("s_barrier")
            norm_stage(p)
    if BORD:
        for p in range(4):
            w_reads(p)
            if p < 3: main_stage(p)
    k.stamp(4)
    k.e("s_nop 1")
    main_stage(3)
    k.e(f"""
    v_lshrrev_b32 v7, 6, v0
    v_add_u32 v6, {BB}, v1
    v_lshl_add_u32 v8, v7, 14, v6
    """)
    for tp in range(1, 4):
        k.e(f"v_xor_b32 v{10+tp}, {tp}, v7")
        k.e(f"v_lshl_add_u32 v{10+tp}, v{10+tp}, 14, v6")
    k.e(f"""
    s_lshl_b32 s{sT}, s{sCB}, 1
    s_lshr_b32 s{sT2}, s{sW}, 1
    s_add_u32 s{sKV}, s{sT}, s{sT2}
    s_mul_i32 s{sT2}, s{sT3}, 14
    s_add_u32 s{sT}, s{sKV}, s{sT2}
    s_lshl_b32 s{sT2}, s{sT}, 8
    s_add_u32 s{sT2}, s{sT2}, {ST_OFF}
    s_lshl_b32 s{sT}, s{sT}, 11
    s_add_u32 s{sT}, s{sT}, {HF_OFF}
    """)
    for tp in range(1, 4):
        for a in range(4):
            k.e(f"ds_write_b128 v8, {vr(ACC+16*tp+4*a,4)} offset:{(tp-1)*4096+a*1024}")
    k.wait_vm("x")
    XU = 80
    for i in range(8):
        k.e(f"v_lshlrev_b32 v{XU+2*i}, 16, v{XR+i}")
        k.e(f"v_and_b32 v{XU+2*i+1}, 0xffff0000, v{XR+i}")
    for i in range(0, 16, 2):
        k.e(f"v_pk_add_f32 {vr(ACC+i,2)}, {vr(ACC+i,2)}, {vr(XU+i,2)}")
    k.e("""
    v_mov_b32 v4, 0
    v_mov_b32 v5, 0
    s_waitcnt lgkmcnt(0)
    s_barrier
    """)
    k.stamp(5)
    for tp in range(1, 4):
        for a in range(4):
            k.e(f"ds_read_b128 {vr(16*tp+4*a,4)}, v{10+tp} offset:{(tp-1)*4096+a*1024}")
    for j in range(3):
        k.e(f"s_waitcnt lgkmcnt({8-4*j})")
        for i in range(0, 16, 2):
            k.e(f"v_pk_add_f32 {vr(ACC+i,2)}, {vr(ACC+i,2)}, {vr(16+16*j+i,2)}")
    HO = 96
    for i in range(8):
        k.e(f"v_cvt_pk_bf16_f32 v{HO+i}, v{ACC+2*i}, v{ACC+2*i+1}")
    k.e(f"""
    buffer_store_dwordx4 {vr(HO,4)}, v1, s[{SWS}:{SWS+3}], s{sT} offen sc1
    buffer_store_dwordx4 {vr(HO+4,4)}, v1, s[{SWS}:{SWS+3}], s{sT} offen offset:1024 sc1
    """)
    for i in range(8):
        k.e(f"v_dot2c_f32_bf16 v4, s{sONE}, v{HO+i}")
        k.e(f"v_dot2c_f32_bf16 v5, v{HO+i}, v{HO+i}")
    k.e(f"""
    v_and_b32 v6, 31, v0
    v_lshlrev_b32 v6, 3, v6
    s_lshr_b32 s{sT}, s{sRB}, 2
    v_mov_b32 v12, v4
    v_mov_b32 v13, v5
    s_mul_i32 s{sT}, s{sT}, {28*128}
    s_add_u32 s{sT}, s{sT}, {FL_OFF}
    v_permlane32_swap_b32 v4, v12
    v_permlane32_swap_b32 v5, v13
    s_nop 0
    v_add_f32 v4, v4, v12
    v_add_f32 v5, v5, v13
    s_mov_b32 exec_hi, 0
    buffer_store_dwordx2 v[4:5], v6, s[{SWS}:{SWS+3}], s{sT2} offen sc1
    s_mov_b64 exec, -1
    """)
    k.stamp(6)
    k.e("s_waitcnt vmcnt(0)\ns_barrier")
    k.e(f"s_lshr_b32 s{sKV}, s2, 3")
    signal(k, 'sg1', sT, 28, 7, 7, 8, SWS, sW, sKV)
    k.stamp(7)
    flush(k, SWS, 1, 8, 16)
    k.e(f"s_branch {k.L('cc')}")
    def c_setup_scalar():
        k.e(f"""
        s_lshl_b32 s{sT}, s{sQ}, 1
        s_add_u32 s{sT}, s{sT}, s{sCB}
        """)
        div7(k, sT2, sCG, sT)
        k.e(f"""
        s_and_b32 s{sT2}, s2, 3
        s_mul_i32 s{sT2}, s{sT2}, 7
        s_add_u32 s{sFB}, s{sCB}, s{sT2}
        """)
        srd_consts(k, SG, D*F*2)
        srd_consts(k, SU, D*F*2+1024)
    k.label(k.L('ld'))
    k.vm = []
    c_setup_scalar()
    k.e(f"""
    v_bfe_u32 v6, v0, 3, 3
    v_bfe_u32 v7, v0, 6, 2
    v_lshl_add_u32 v6, v7, 4, v6
    v_and_b32 v8, 7, v0
    v_bfe_u32 v7, v0, 4, 1
    v_lshlrev_b32 v7, 2, v7
    v_xor_b32 v7, v7, v8
    v_mul_u32_u24 v2, 3584, v6
    v_lshl_add_u32 v2, v7, 4, v2
    v_add_u32 v3, {8*3584-2048}, v2
    s_lshl_b32 s{sWOFF}, s{sFB}, 7
    s_mul_i32 s{sT}, s{sCG}, {64*3584}
    s_add_u32 s{sWOFF}, s{sWOFF}, s{sT}
    s_mov_b32 s{sH}, s{sCG}
    s_and_b32 s{sT}, s{sW}, 3
    s_lshl_b32 m0, s{sT}, 12
    s_waitcnt lgkmcnt(0)
    s_sub_u32 s{SU}, s{SU}, 1024
    s_subb_u32 s{SU+1}, s{SU+1}, 0
    s_barrier
    """)
    for c in range(6):
        k.e(f"""
        buffer_load_dwordx4 v2, s[{SG}:{SG+3}], s{sWOFF} offen lds
        buffer_load_dwordx4 v2, s[{SU}:{SU+3}], s{sWOFF} offen offset:1024 lds
        buffer_load_dwordx4 v3, s[{SG}:{SG+3}], s{sWOFF} offen offset:2048 lds
        buffer_load_dwordx4 v3, s[{SU}:{SU+3}], s{sWOFF} offen offset:3072 lds
        """)
        if c < 5:
            k.e(f"""
            s_add_u32 m0, m0, 16384
            s_add_u32 s{sH}, s{sH}, 1
            s_cmp_eq_u32 s{sH}, 7
            s_cselect_b32 s{sT}, -6, 1
            s_mul_i32 s{sT}, s{sT}, {64*3584}
            s_add_u32 s{sWOFF}, s{sWOFF}, s{sT}
            """)
        if c == 2: k.e("s_barrier")
    k.e("s_barrier")
    k.e(f"s_branch {k.L('cj')}")
    k.label(k.L('cc'))
    c_setup_scalar()
    k.e(f"""
    s_sub_u32 s{SU}, s{SU}, 1024
    s_subb_u32 s{SU+1}, s{SU+1}, 0
    """)
    k.label(k.L('cj'))
    k.vm = []
    k.stamp(0)
    HFR, ACC, WF, STR, CSR = 16, 128, 192, 208, 224
    k.e(f"""
    s_and_b32 s{sT}, s2, 4
    s_add_u32 s{sT}, s{sT}, s{sQ}
    s_lshl_b32 s{sRT}, s{sT}, 3
    s_add_u32 s{sRT}, s{sRT}, s{sW}
    s_mul_i32 s{sPQ0}, s{sT}, 28
    s_add_u32 s{sPOL}, s{sPQ0}, s{sFB}
    s_lshl_b32 s{sPOL}, s{sPOL}, 7
    s_add_u32 s{sPOL}, s{sPOL}, {FL_OFF}
    s_mul_i32 s{sH}, s{sRT}, 28672
    s_lshl_b32 s{sT}, s{sCG}, 12
    s_add_u32 s{sH}, s{sH}, s{sT}
    s_add_u32 s{sH}, s{sH}, {HF_OFF}
    """)
    AW0, AW1 = 10, 11
    k.e(f"""
    s_add_u32 s{sT}, s{sCG}, 6
    s_cmp_ge_u32 s{sT}, 7
    s_cselect_b32 s{sT2}, 7, 0
    s_sub_u32 s{sT}, s{sT}, s{sT2}
    s_mul_i32 s{sT}, s{sT}, {64*3584}
    s_lshl_b32 s{sWOFF}, s{sFB}, 7
    s_add_u32 s{sWOFF}, s{sWOFF}, s{sT}
    v_lshrrev_b32 v6, 3, v0
    v_and_b32 v8, 7, v0
    v_bfe_u32 v7, v0, 4, 1
    v_lshlrev_b32 v4, 2, v7
    v_xor_b32 v4, v4, v8
    v_mul_u32_u24 v3, 3584, v6
    v_lshl_add_u32 v3, v4, 4, v3
    v_bfe_u32 v7, v0, 7, 2
    v_mul_u32_u24 v7, 448, v7
    v_bfe_u32 v6, v0, 3, 3
    v_add_u32 v6, v6, v7
    v_bfe_u32 v7, v0, 6, 1
    v_lshl_add_u32 v6, v7, 4, v6
    v_mul_u32_u24 v14, 896, v6
    v_lshl_add_u32 v14, v4, 4, v14
    v_add_u32 v15, {8*896-1024}, v14
    v_bfe_u32 v7, v0, 2, 2
    v_lshlrev_b32 v6, 12, v9
    v_lshl_add_u32 v6, v7, 7, v6
    v_lshrrev_b32 v7, 1, v7
    v_lshl_add_u32 v6, v7, 6, v6
    v_and_b32 v7, 1, v0
    v_lshl_add_u32 v6, v7, 5, v6
    v_bfe_u32 v7, v0, 4, 1
    v_lshl_add_u32 v6, v7, 4, v6
    v_bfe_u32 v7, v0, 1, 1
    v_lshl_add_u32 v{AW0}, v7, 3, v6
    v_xor_b32 v{AW1}, 64, v{AW0}
    v_add_u32 v12, 0x10000, v{AW0}
    v_add_u32 v13, 0x10000, v{AW1}
    v_and_b32 v6, 31, v0
    v_mul_u32_u24 v4, 1792, v9
    v_lshl_add_u32 v4, v6, 3, v4
    v_bfe_u32 v7, v0, 2, 1
    v_bfe_u32 v8, v0, 3, 2
    v_lshlrev_b32 v7, 4, v7
    v_lshl_add_u32 v7, v8, 2, v7
    v_and_b32 v8, 3, v0
    v_add_lshl_u32 v2, v7, v8, 2
    s_mul_i32 s{sT}, s{sQ}, 7
    s_lshr_b32 s{sT}, s{sT}, 1
    s_lshl_b32 s{sDCG}, s{sCB}, 1
    s_add_u32 s{sDCG}, s{sDCG}, s{sT}
    s_cmp_ge_u32 s{sDCG}, 14
    s_cselect_b32 s{sT}, 14, 0
    s_sub_u32 s{sDCG}, s{sDCG}, s{sT}
    s_mul_i32 s{sT}, s{sDCG}, {32*896}
    s_add_u32 s{sDW}, s{sWO}, s{sT}
    s_mov_b32 s{sROT}, s{sDCG}
    s_mul_i32 s{sT}, s{sRT}, 3584
    s_add_u32 s{sT}, s{sT}, {ST_OFF}
    s_lshl_b32 s{sT2}, s{sFB}, 8
    s_add_u32 s{sT2}, s{sT2}, {CS_OFF}
    s_add_u32 s{sKV}, s{sT2}, 7168
    """)
    srd_consts(k, SD, F*D*2)
    srd_consts(k, SO, S*D*2)
    def h_loads(c):
        L = []
        for j in range(4):
            def hj(j=j):
                if j == 0 and c > 0:
                    k.e(f"""
                    s_add_u32 s{sCG}, s{sCG}, 1
                    s_cmp_eq_u32 s{sCG}, 7
                    s_cselect_b32 s{sT3}, -6, 1
                    s_lshl_b32 s{sT3}, s{sT3}, 12
                    s_add_u32 s{sH}, s{sH}, s{sT3}
                    """)
                k.vop(f"buffer_load_dwordx4 {vr(HFR+16*c+4*j,4)}, v1, s[{SWS}:{SWS+3}], s{sH} offen offset:{j*1024} sc1", f"h{c}")
            L.append(hj)
        return L
    dslot = [7, 8, 9, 0, 1, 2, 3, 4, 5, 6, 7, 8, 9, 0]
    def wd_dma(j):
        k.e(f"""
        s_lshl_b32 s{sT3}, s{sW}, 11
        s_add_u32 m0, s{sT3}, {dslot[j]*16384}
        """)
        if j > 0:
            k.e(f"""
            s_add_u32 s{sDCG}, s{sDCG}, 1
            s_cmp_eq_u32 s{sDCG}, 14
            s_cselect_b32 s{sT3}, -13, 1
            s_mul_i32 s{sT3}, s{sT3}, {32*896}
            s_add_u32 s{sDW}, s{sDW}, s{sT3}
            """)
        else:
            k.e("s_nop 0")
        k.vop(f"buffer_load_dwordx4 v14, s[{SD}:{SD+3}], s{sDW} offen lds", f"w{j}")
        k.vop(f"buffer_load_dwordx4 v15, s[{SD}:{SD+3}], s{sDW} offen offset:1024 lds", f"w{j}")
    def w6():
        k.e(f"""
        s_lshl_b32 s{sT3}, s{sW}, 11
        s_add_u32 m0, s{sT3}, {6*16384}
        s_nop 0
        """)
        k.vop(f"buffer_load_dwordx4 v3, s[{SG}:{SG+3}], s{sWOFF} offen lds", "wc6")
        k.vop(f"buffer_load_dwordx4 v3, s[{SU}:{SU+3}], s{sWOFF} offen offset:1024 lds", "wc6")
    def early():
        w6()
        for j in range(EARLY-1): wd_dma(j)
    poll(k, 'p1', sPOL, 28, 5, 6, SWS, sCNT, sW, 4, work=early if EARLY else None)
    k.stamp(1)
    for f in h_loads(0): f()
    k.e("s_barrier")
    for f in h_loads(1): f()
    stl = []
    for u in range(7):
        stl.append(lambda u=u: k.vop(f"buffer_load_dwordx2 {vr(STR+2*u,2)}, v4, s[{SWS}:{SWS+3}], s{sT} offen offset:{u*256} sc1", "st"))
    for q in range(4):
        stl.append(lambda q=q: k.vop(f"buffer_load_dword v{CSR+q}, v2, s[{SWS}:{SWS+3}], s{sT2 if q < 2 else sKV} offen offset:{(q&1)*128} sc1", "st"))
    KS = CKS
    units = [(kap, tau) for kap in range(KS) for tau in range(4)]
    units += [(kap, tau) for kap in range(KS, 28) for tau in (0, 2)] + [('x', 0), ('x', 2)]
    nA = len(units)
    units += [(kap, tau) for kap in range(KS, 28) for tau in (1, 3)] + [('x', 1), ('x', 3)]
    NU = len(units)
    DEP = 4
    T, XE, WE = 228, 232, 236
    C1, IR2 = STR+4, STR+2
    g6 = next(u for u in range(NU) if units[u][0] != 'x' and units[u][0] >= 24) - DEP
    assert g6 >= 4*KS and KS >= 16
    pend = []
    for c in range(2, 7):
        for i, f in enumerate(h_loads(c)):
            pend.append(((c-2)*HPACE + 2*i, f))
    e0 = 5*HPACE
    if not EARLY: pend.append((e0, w6))
    for i, f in enumerate(stl): pend.append((e0+2+i, f))
    for j in range(max(0, EARLY-1), 3): pend.append((e0+14+4*j, lambda j=j: wd_dma(j)))
    for j in range(3, 7): pend.append((g6+2+5*(j-3), lambda j=j: wd_dma(j)))
    WT = 40
    def wt_load(j, i):
        if i == 0:
            k.e(f"""
            s_add_u32 s{sLN2}, s{sROT}, {j}
            s_cmp_ge_u32 s{sLN2}, 14
            s_cselect_b32 s{sT3}, 14, 0
            s_sub_u32 s{sLN2}, s{sLN2}, s{sT3}
            s_mul_i32 s{sLN2}, s{sLN2}, {32*896}
            s_add_u32 s{sLN2}, s{sLN2}, s{sWO}
            """)
        k.vop(f"buffer_load_dwordx4 {vr(WT+8*(j-10)+4*i,4)}, v{14+i}, s[{SD}:{SD+3}], s{sLN2} offen offset:{i*1024}", "wt")
    if WTR:
        for j in range(10, 14):
            for i in range(2):
                pend.append((g6+22+2*(2*(j-10)+i), lambda j=j, i=i: wt_load(j, i)))
    pend.sort(key=lambda x: x[0])
    kk = K("tmp")
    for u in range(1, 7):
        kk.e(f"v_add_f32 v{STR}, v{STR}, v{STR+2*u}")
        kk.e(f"v_add_f32 v{STR+1}, v{STR+1}, v{STR+2*u+1}")
    kk.e(f"""
    v_cmp_eq_u32 vcc, 0, v9
    v_mov_b32 v{STR+2}, v{STR}
    v_mov_b32 v{STR+3}, v{STR+1}
    v_cndmask_b32 v{CSR}, 0, v{CSR}, vcc
    v_cndmask_b32 v{CSR+1}, 0, v{CSR+1}, vcc
    v_permlane32_swap_b32 v{STR}, v{STR+2}
    v_permlane32_swap_b32 v{STR+1}, v{STR+3}
    v_cndmask_b32 v{CSR+2}, 0, v{CSR+2}, vcc
    v_cndmask_b32 v{CSR+3}, 0, v{CSR+3}, vcc
    v_add_f32 v{STR}, v{STR}, v{STR+2}
    v_add_f32 v{STR+1}, v{STR+1}, v{STR+3}
    v_mul_f32 v{STR}, 0x{INV_D|0x80000000:x}, v{STR}
    v_mul_f32 v{STR+1}, 0x{INV_D:x}, v{STR+1}
    v_fma_f32 v{STR+1}, -v{STR}, v{STR}, v{STR+1}
    v_max_f32 v{STR+1}, 0, v{STR+1}
    v_add_f32 v{STR+2}, 0x{EPS_LN:x}, v{STR+1}
    v_rsq_f32 v{STR+4}, v{STR+2}
    """)
    hilo_x(kk, XE, STR, T)
    kk.e(f"v_mov_b32 v{XE+2}, 0\nv_mov_b32 v{XE+3}, 0")
    kk.e(f"v_mul_f32 v{STR+4}, 0x{LOG2E|0x80000000:x}, v{STR+4}")
    for tau in range(4):
        hilo_w(kk, WE+4*tau, CSR+tau, T+1)
    kk.e(f"""
    s_mul_i32 s{sT}, s{sRT}, 114688
    s_lshl_b32 s{sT2}, s{sFB}, 12
    s_add_u32 s{sT}, s{sT}, s{sT2}
    s_add_u32 s{sT}, s{sT}, {ACT_OFF}
    """)
    side1 = [l.strip() for l in kk.lines]
    def epi(ct, packed):
        kk = K("tmp")
        O = 16 + 8*ct
        g, u = ACC+16*ct, ACC+32+16*ct
        for i in range(0, 16, 2):
            t = 32 + (i % 8)
            if packed:
                kk.e(f"v_pk_mul_f32 {vr(t,2)}, {vr(g+i,2)}, {vr(C1,2)} op_sel_hi:[1,0]")
                kk.e(f"v_pk_mul_f32 {vr(g+i,2)}, {vr(g+i,2)}, {vr(u+i,2)}")
                kk.e(f"v_exp_f32 v{t}, v{t}")
                kk.e(f"v_exp_f32 v{t+1}, v{t+1}")
                kk.e("s_nop 0")
                kk.e(f"v_pk_fma_f32 {vr(t,2)}, {vr(t,2)}, {vr(IR2,2)}, {vr(IR2,2)} op_sel_hi:[1,0,0]")
                kk.e(f"v_rcp_f32 v{t}, v{t}")
                kk.e(f"v_rcp_f32 v{t+1}, v{t+1}")
                kk.e("s_nop 0")
                kk.e(f"v_pk_mul_f32 {vr(g+i,2)}, {vr(g+i,2)}, {vr(t,2)}")
            else:
                kk.e(f"v_mul_f32 v{t}, v{g+i}, v{C1}")
                kk.e(f"v_mul_f32 v{t+1}, v{g+i+1}, v{C1}")
                kk.e(f"v_exp_f32 v{t}, v{t}")
                kk.e(f"v_mul_f32 v{g+i}, v{g+i}, v{u+i}")
                kk.e(f"v_exp_f32 v{t+1}, v{t+1}")
                kk.e(f"v_mul_f32 v{g+i+1}, v{g+i+1}, v{u+i+1}")
                kk.e(f"v_fma_f32 v{t}, v{t}, v{IR2}, v{IR2}")
                kk.e(f"v_fma_f32 v{t+1}, v{t+1}, v{IR2}, v{IR2}")
                kk.e(f"v_rcp_f32 v{t}, v{t}")
                kk.e(f"v_rcp_f32 v{t+1}, v{t+1}")
                kk.e(f"v_mul_f32 v{g+i}, v{g+i}, v{t}")
                kk.e(f"v_mul_f32 v{g+i+1}, v{g+i+1}, v{t+1}")
            kk.e(f"v_cvt_pk_bf16_f32 v{O+i//2}, v{g+i}, v{g+i+1}")
            if i % 8 == 6:
                f = i // 8
                kk.e(f"buffer_store_dwordx4 {vr(O+4*f,4)}, v1, s[{SWS}:{SWS+3}], s{sT} offen offset:{ct*2048+f*1024} sc1")
        return [l.strip() for l in kk.lines]
    side2 = epi(0, False)
    s1_start = nA - 2 - (len(side1)+3)//4 - 1
    assert s1_start > e0+2+len(stl)
    s2_start = nA + 3
    hw = set()
    gate = dict(done=False)
    def rd(u):
        kap, tau = units[u]
        if kap == 'x': return
        if kap >= 24 and not gate['done']:
            gate['done'] = True
            k.wait_vm("wc6")
            k.e("s_barrier")
            k.stamp(4)
        cc, tl, f = kap >> 2, (kap >> 1) & 1, kap & 1
        m, ct = tau >> 1, tau & 1
        o = cc*16384 + tl*8192 + f*2048 + m*1024
        a = AW0 + ct
        if o >= 0x10000: o -= 0x10000; a += 2
        for ri in range(2):
            k.e(f"ds_read_b64_tr_b16 {vr(bufof[u]+2*ri,2)}, v{a} offset:{o+ri*512}")
    free = [WF+4*i for i in range(4)] + [WE+4*i for i in range(CXB)]
    bufof = {}
    nxt = dict(u=0)
    def fill(u):
        while nxt['u'] < NU and (free or units[nxt['u']][0] == 'x'):
            v = nxt['u']
            if units[v][0] != 'x':
                bufof[v] = free.pop(0)
                rd(v)
            nxt['u'] += 1
    fill(-1)
    started = set()
    for u in range(NU):
        kap, tau = units[u]
        a = ACC+16*tau
        if kap == 'x':
            assert not side1
            k.e(f"v_mfma_f32_32x32x16_bf16 {vr(a,16)}, {vr(WE+4*tau,4)}, {vr(XE,4)}, {vr(a,16)}")
        else:
            if (kap >> 2) not in hw:
                hw.add(kap >> 2)
                k.wait_vm(f"h{kap>>2}")
                if kap == 0: k.stamp(2)
                if kap == 12: k.stamp(3)
            nout = sum(1 for v in range(u+1, nxt['u']) if units[v][0] != 'x')
            assert nout <= 7
            k.e(f"s_waitcnt lgkmcnt({2*nout})")
            k.e(f"v_mfma_f32_32x32x16_bf16 {vr(a,16)}, {vr(bufof[u],4)}, {vr(HFR+4*kap,4)}, {'0' if tau not in started else vr(a,16)}")
            started.add(tau)
            if bufof[u] < WE or u < CXE: free.append(bufof[u])
        fill(u)
        while pend and pend[0][0] <= u:
            pend.pop(0)[1]()
        if u >= s1_start and side1:
            if u == s1_start:
                k.wait_vm("st")
                k.e(f"s_mov_b32 s{sCNT}, 0x100000")
                k.label(k.L('csw'))
                k.e(f"""
                v_max_u32 v{T}, v{CSR}, v{CSR+1}
                v_max3_u32 v{T}, v{T}, v{CSR+2}, v{CSR+3}
                v_cmp_eq_u32 vcc, -1, v{T}
                s_cbranch_vccz {k.L('cswok')}
                s_sleep 4
                """)
                for q in range(4):
                    k.e(f"buffer_load_dword v{CSR+q}, v2, s[{SWS}:{SWS+3}], s{sT2 if q < 2 else sKV} offen offset:{(q&1)*128} sc1")
                k.e(f"""
                s_waitcnt vmcnt(0)
                s_sub_u32 s{sCNT}, s{sCNT}, 1
                s_cbranch_scc0 {k.L('csw')}
                """)
                k.label(k.L('cswok'))
            for _ in range(4):
                if side1: k.e(side1.pop(0))
        if u >= s2_start and side2:
            for _ in range(5 if len(side2) > 4*(NU-u) else 4):
                if side2: k.e(side2.pop(0))
    assert not pend
    k.stamp(5)
    for l in side2: k.e(l)
    k.e(f"""
    s_lshl_b32 s{sT2}, s{sPQ0}, 7
    s_add_u32 s{sT2}, s{sT2}, {FL_OFF+32768}
    """)
    k.nop(max(0, 10-len(side2)))
    for l in epi(1, True): k.e(l)
    k.stamp(6)
    k.e("s_waitcnt vmcnt(0)\ns_barrier")
    signal(k, 'sg2', sT2, 28, 7, 7, 8, SWS, sW, sFB)
    k.stamp(7)
    flush(k, SWS, 2, 8, 176)
    k.vm = []
    k.stamp(0)
    ACC, WF, HR, AW = 128, 160, 192, 196
    def AFR(j):
        if not WTR: return 16+8*j
        return 16+8*j if j < 3 else (72+8*(j-3) if j < 10 else 208+8*(j-10))
    RED = 1*16384
    for j in (7, 8, 9): wd_dma(j)
    k.e(f"""
    s_lshr_b32 s{sKH}, s{sW}, 1
    s_lshl_b32 s{sH}, s{sRB}, 1
    s_and_b32 s{sT2}, s{sW}, 1
    s_add_u32 s{sH}, s{sH}, s{sT2}
    s_lshl_b32 s{sT}, s{sH}, 2
    s_add_u32 s{sT}, s{sT}, s{sKH}
    s_mul_i32 s{sA}, s{sT}, 28672
    s_lshl_b32 s{sT}, s{sROT}, 11
    s_add_u32 s{sA}, s{sA}, s{sT}
    s_add_u32 s{sA}, s{sA}, {ACT_OFF}
    s_mul_i32 s{sT2}, s{sRB}, 7
    s_add_u32 s{sT2}, s{sT2}, s{sCB}
    s_lshl_b32 s{sT2}, s{sT2}, 7
    s_add_u32 s{sT2}, s{sT2}, {FL_OFF+32768}
    v_bfe_u32 v7, v0, 2, 2
    v_lshl_add_u32 v6, v9, 4, v7
    v_lshlrev_b32 v6, 7, v6
    v_bfe_u32 v5, v0, 7, 2
    v_lshl_add_u32 v6, v5, 12, v6
    v_lshrrev_b32 v7, 1, v7
    v_bfe_u32 v5, v0, 8, 1
    v_xor_b32 v7, v7, v5
    v_lshl_add_u32 v6, v7, 6, v6
    v_and_b32 v7, 1, v0
    v_lshl_add_u32 v6, v7, 5, v6
    v_bfe_u32 v7, v0, 4, 1
    v_bfe_u32 v5, v0, 7, 1
    v_xor_b32 v7, v7, v5
    v_lshl_add_u32 v6, v7, 4, v6
    v_bfe_u32 v7, v0, 1, 1
    v_lshl_add_u32 v{AW}, v7, 3, v6
    v_xor_b32 v{AW+1}, 64, v{AW}
    v_add_u32 v{AW+2}, 0x10000, v{AW}
    v_add_u32 v{AW+3}, 0x10000, v{AW+1}
    v_add_u32 v{AW+4}, 0x20000, v{AW}
    v_add_u32 v{AW+5}, 0x20000, v{AW+1}
    s_mul_i32 s{sT}, s{sH}, 28
    s_lshl_b32 s{sT3}, s{sCB}, 2
    s_add_u32 s{sT}, s{sT}, s{sT3}
    s_add_u32 s{sT}, s{sT}, s{sKH}
    s_lshl_b32 s{sT}, s{sT}, 10
    s_add_u32 s{sT}, s{sT}, {HF_OFF}
    buffer_load_dwordx4 {vr(HR,4)}, v1, s[{SWS}:{SWS+3}], s{sT} offen sc1
    v_lshrrev_b32 v5, 6, v0
    s_movk_i32 s{sT3}, 6144
    v_add_u32 v6, {RED}, v1
    v_mad_u32_u24 v10, v5, s{sT3}, v6
    """)
    for qd in range(1, 4):
        k.e(f"v_xor_b32 v{10+qd}, {2*qd}, v5")
        k.e(f"v_mad_u32_u24 v{10+qd}, v{10+qd}, s{sT3}, v6")
    k.e(f"""
    v_and_b32 v5, 31, v0
    v_mul_u32_u24 v4, 896, v5
    v_lshl_add_u32 v4, v9, 5, v4
    s_mul_i32 s{sT}, s{sH}, {32*896}
    s_add_u32 s{sT}, s{sT}, s{sWO}
    s_lshr_b32 s{sT3}, s{sKH}, 1
    s_lshl_b32 s{sT3}, s{sT3}, 6
    s_add_u32 s{sT}, s{sT}, s{sT3}
    s_and_b32 s{sT3}, s{sKH}, 1
    s_lshl_b32 s{sT3}, s{sT3}, 4
    s_add_u32 s{sT}, s{sT}, s{sT3}
    """)
    k.e(f"""
    v_lshrrev_b32 v5, 6, v0
    v_lshl_add_u32 v202, v5, 11, v1
    v_add_u32 v203, {7*16384}, v202
    """)
    poll(k, 'p2', sT2, 28, 2, 3, SWS, sCNT, sW, 4)
    k.stamp(1)
    def lda(j):
        if j > 0:
            k.e(f"""
            s_add_u32 s{sROT}, s{sROT}, 1
            s_cmp_eq_u32 s{sROT}, 14
            s_cselect_b32 s{sT3}, -13, 1
            s_lshl_b32 s{sT3}, s{sT3}, 11
            s_add_u32 s{sA}, s{sA}, s{sT3}
            """)
        for f in range(2):
            k.vop(f"buffer_load_dwordx4 {vr(AFR(j)+4*f,4)}, v1, s[{SWS}:{SWS+3}], s{sA} offen offset:{f*1024} sc1", f"a{j}")
    NBUF = 6
    def reads(u):
        j, f, ct = u >> 2, (u >> 1) & 1, u & 1
        o = dslot[j]*16384 + f*1024
        a = AW + ct + 2*(o >> 16)
        o &= 0xffff
        b = WF + 4*(u % NBUF)
        for ri in range(2):
            k.e(f"ds_read_b64_tr_b16 {vr(b+2*ri,2)}, v{a} offset:{o+ri*512}")
    for j in range(APRE): lda(j)
    DEP = NBUF-1
    NU = 56
    wq = []
    for u in range(DEP): reads(u)
    for u in range(NU):
        j, f, ct = u >> 2, (u >> 1) & 1, u & 1
        if u+DEP < NU:
            if (u+DEP) % 4 == 0:
                jn = (u+DEP)//4
                if DX == 0:
                    if jn == 6:
                        k.e("s_barrier")
                        k.stamp(3)
                        if WTR: wq = [(jj, i) for jj in (10, 11, 12, 13) for i in range(2)]
                        else:
                            for jj in (10, 11, 12, 13): wd_dma(jj)
                    if jn == 10:
                        if WTR: assert not wq
                        else: k.wait_vm("w13")
                        k.e("s_barrier")
                        k.stamp(4)
                else:
                    if jn == 4:
                        k.e("s_barrier")
                        for jj in (10, 11): wd_dma(jj)
                    if jn == 6:
                        k.e("s_barrier")
                        k.stamp(3)
                        for jj in (12, 13): wd_dma(jj)
                    if jn == 10:
                        k.wait_vm("w11")
                        k.e("s_barrier")
                        k.stamp(4)
                    if jn == 12:
                        k.wait_vm("w13")
                        k.e("s_barrier")
            reads(u+DEP)
        if u % 4 == 0:
            k.wait_vm(f"a{j}")
            if u == 0: k.stamp(2)
        k.e(f"s_waitcnt lgkmcnt({2*min(DEP, NU-1-u)})")
        a = ACC+16*ct
        k.e(f"v_mfma_f32_32x32x16_bf16 {vr(a,16)}, {vr(WF+4*(u%NBUF),4)}, {vr(AFR(j)+4*f,4)}, {'0' if u < 2 else vr(a,16)}")
        if u % 4 == 3 and j + APRE < 14:
            lda(j + APRE)
        if wq:
            jj, i = wq.pop(0)
            sl = dslot[jj]
            k.e(f"ds_write_b128 v{203 if sl >= 7 else 202}, {vr(WT+8*(jj-10)+4*i,4)} offset:{(sl-7 if sl >= 7 else sl)*16384+i*1024}")
    k.stamp(5)
    for i in range(4):
        k.e(f"v_lshlrev_b32 v{16+2*i}, 16, v{HR+i}")
        k.e(f"v_and_b32 v{17+2*i}, 0xffff0000, v{HR+i}")
    k.nop(3)
    for qd in range(1, 4):
        for a in range(2):
            k.e(f"ds_write_b128 v{10+qd}, {vr(ACC+8*qd+4*a,4)} offset:{(qd-1)*2048+a*1024}")
    for i in range(0, 8, 2):
        k.e(f"v_pk_add_f32 {vr(ACC+i,2)}, {vr(ACC+i,2)}, {vr(16+i,2)}")
    k.e("s_waitcnt lgkmcnt(0)\ns_barrier")
    for n in range(6):
        k.e(f"ds_read_b128 {vr(24+4*n,4)}, v10 offset:{n*1024}")
    for qd in range(3):
        k.e(f"s_waitcnt lgkmcnt({4-2*qd})")
        for i in range(0, 8, 2):
            k.e(f"v_pk_add_f32 {vr(ACC+i,2)}, {vr(ACC+i,2)}, {vr(24+8*qd+i,2)}")
    for i in range(4):
        k.e(f"v_cvt_pk_bf16_f32 v{16+i}, v{ACC+2*i}, v{ACC+2*i+1}")
    k.e(f"buffer_store_dwordx4 v[16:19], v4, s[{SO}:{SO+3}], s{sT} offen")
    k.stamp(6)
    k.end(SWS, 3, 7)
    k.label(k.L('cs'))
    k.e(f"""
    s_load_dwordx2 s[{SD}:{SD+1}], s[0:1], 48
    s_mov_b32 s{SD+2}, {F*D*2}
    s_mov_b32 s{SD+3}, 0x20000
    s_sub_u32 s{sCB}, s2, 224
    s_mul_i32 s{sQ}, s{sCB}, {392*128}
    v_min_u32 v2, 391, v0
    v_lshlrev_b32 v2, 7, v2
    s_cmp_lt_u32 s2, 252
    s_cbranch_scc1 {k.L('cs1')}
    s_waitcnt lgkmcnt(0)
    buffer_load_dword v100, v2, s[{SD}:{SD+3}], s{sQ} offen
    s_endpgm
    """)
    k.label(k.L('cs1'))
    k.e(f"""
    v_lshrrev_b32 v5, 6, v0
    v_bfe_u32 v6, v0, 3, 3
    v_readfirstlane_b32 s{sW}, v5
    v_and_b32 v7, 7, v0
    v_mul_u32_u24 v1, 3584, v6
    v_lshl_add_u32 v1, v7, 4, v1
    s_sub_u32 s{sCB}, s2, 224
    s_and_b32 s{sT}, s{sW}, 3
    s_mul_i32 s{sT}, s{sT}, {112*3584}
    s_lshl_b32 s{sT2}, s{sCB}, 7
    s_add_u32 s{sT}, s{sT}, s{sT2}
    s_mov_b32 s{sEPS}, 0x3f80
    s_mov_b32 s{sONE}, 0x3f800000
    """)
    srd_consts(k, SW, D*F*2)
    srd_consts(k, SWS, WSZ)
    k.e(f"""
    s_waitcnt lgkmcnt(0)
    s_cmp_ge_u32 s{sW}, 4
    s_cselect_b32 s{SW}, s{SU}, s{SG}
    s_cselect_b32 s{SW+1}, s{SU+1}, s{SG+1}
    """)
    for u in range(14):
        k.e(f"buffer_load_dwordx4 {vr(16+4*u,4)}, v1, s[{SW}:{SW+3}], s{sT} offen")
        k.e(f"s_add_u32 s{sT}, s{sT}, {8*3584}")
    for i in range(8):
        k.e(f"v_mov_b32 v{8+i}, 0")
    for u in range(14):
        k.e(f"s_waitcnt vmcnt({13-u})")
        for j in range(4):
            k.e(f"v_dot2c_f32_bf16 v{8+2*j}, s{sEPS}, v{16+4*u+j}")
            k.e(f"v_dot2c_f32_bf16 v{9+2*j}, s{sONE}, v{16+4*u+j}")
    k.e(f"""
    s_cmp_eq_u32 s{sW}, 0
    s_cbranch_scc1 {k.L('cs2')}
    buffer_load_dword v100, v2, s[{SD}:{SD+3}], s{sQ} offen
    """)
    k.label(k.L('cs2'))
    k.e(f"""
    v_mov_b32 v101, v2
    v_lshlrev_b32 v2, 5, v0
    v_and_b32 v4, 63, v0
    v_lshlrev_b32 v4, 2, v4
    v_add_u32 v3, 8192, v4
    s_nop 0
    ds_write_b128 v2, v[8:11]
    ds_write_b128 v2, v[12:15] offset:16
    s_waitcnt lgkmcnt(0)
    s_barrier
    s_cmp_ge_u32 s{sW}, 1
    s_cbranch_scc1 {k.L('end')}
    """)
    for m in range(2):
        for h in range(2):
            for i in range(8):
                k.e(f"ds_read2st64_b32 {vr(16+32*m+16*h+2*i,2)}, v{4 if m == 0 else 3} offset0:{16*h+2*i} offset1:{16*h+2*i+1}")
            k.e("s_waitcnt lgkmcnt(0)")
    k.e(f"""
    s_lshl_b32 s{sT}, s{sCB}, 8
    s_add_u32 s{sT}, s{sT}, {CS_OFF}
    s_add_u32 s{sT2}, s{sT}, 7168
    """)
    for m in range(2):
        for stp in (16, 8, 4, 2, 1):
            for i in range(stp):
                k.e(f"v_add_f32 v{16+32*m+i}, v{16+32*m+i}, v{16+32*m+i+stp}")
    k.e(f"""
    buffer_store_dword v16, v4, s[{SWS}:{SWS+3}], s{sT} offen sc1
    buffer_store_dword v48, v4, s[{SWS}:{SWS+3}], s{sT2} offen sc1
    buffer_load_dword v100, v101, s[{SD}:{SD+3}], s{sQ} offen
    """)
    k.end(SWS, 1, 1)
    k.label(k.L('end'))
    k.e("s_endpgm")
    return k, dict(vgpr=256, sgpr=80, grid=256, block=512, lds=163840)

if __name__ == "__main__":
    from gen5a import gen_a5
    from gen6a import gen_a6
    from gen7a import gen_a7
    from gen8a import gen_a8
    ks = [{5: gen_a5, 6: gen_a6, 7: gen_a7, 8: gen_a8}[env('AV', 8)](), gen_f()]
    open(sys.argv[1] if len(sys.argv) > 1 else "sequential_preLN__linear_attn_block__swiglu_ffn__prompt.s", "w").write(build(ks))
```

```python
from gen3 import *

def gen_a8():
    k = K("ka")
    SX, SW, SWS, SDB, SP = 4, 8, 12, 16, 32
    sW, sRB, sH, sx, skv, sq, sT, sT2, sEPS, sONE, sLN2, sCX, sCV, sROT = 20, 21, 22, 23, 24, 25, 26, 27, 28, 29, 30, 31, 56, 57
    XS, NXS = 0, 7
    VS, NVS = 114688, 5
    WQ = 0
    MISC = 155648
    PART = 32768
    CSX = MISC + 2048
    CNT = MISC + 6144
    DUM = 190
    AH = 2
    CPL = env('CPL', 8)
    QX = env('QX', 1)
    QE = env('QE', 0)
    k.stamp(0)
    k.e(f"""
    s_cmp_ge_u32 s2, 256
    s_cbranch_scc1 {k.L('end')}
    s_load_dwordx2 s[{SX}:{SX+1}], s[0:1], 0
    s_load_dwordx2 s[{SW}:{SW+1}], s[0:1], 8
    s_load_dwordx2 s[{SDB}:{SDB+1}], s[0:1], 64
    s_load_dwordx2 s[{SWS}:{SWS+1}], s[0:1], 72
    s_load_dwordx2 s[{SP}:{SP+1}], s[0:1], 16
    """)
    if CPF:
        k.e(f"""
        s_getpc_b64 s[36:37]
        Lka_pc:
        s_lshr_b32 s{sT2}, s2, 3
        v_min_u32 v5, {CPL-1}, v0
        v_lshlrev_b32 v5, 7, v5
        s_mul_i32 s{sT}, s{sT2}, {CPL*128}
        v_add_u32 v5, s{sT}, v5
        v_min_u32 v5, Lcode_end-Lka_pc-4, v5
        v_cmp_gt_u32 vcc, {CPL}, v0
        s_and_saveexec_b64 s[38:39], vcc
        s_cbranch_execz {k.L('nocpf')}
        global_load_dword v{DUM}, v5, s[36:37]
        """)
        k.label(k.L('nocpf'))
        k.e("s_mov_b64 exec, -1")
    k.e(f"""
    v_lshrrev_b32 v5, 6, v0
    v_lshrrev_b32 v6, 3, v0
    v_readfirstlane_b32 s{sW}, v5
    v_and_b32 v7, 0x38, v6
    v_add_u32 v7, v6, v7
    v_and_b32 v8, 7, v0
    v_bfe_u32 v9, v0, 4, 2
    v_xor_b32 v9, v8, v9
    v_mul_u32_u24 v1, 896, v7
    v_lshl_add_u32 v1, v9, 4, v1
    v_xor_b32 v2, 64, v1
    v_add_u32 v2, 6144, v2
    s_bfe_u32 s{sRB}, s2, 0x20001
    s_lshl_b32 s{sRB}, s{sRB}, 2
    s_lshr_b32 s{sT}, s2, 6
    s_add_u32 s{sRB}, s{sRB}, s{sT}
    s_bfe_u32 s{sT2}, s2, 0x30003
    s_and_b32 s{sH}, s2, 1
    s_lshl_b32 s{sH}, s{sH}, 3
    s_add_u32 s{sH}, s{sH}, s{sT2}
    s_lshl_b32 s{sT}, s{sT}, 1
    s_add_u32 s{sT}, s{sT}, s{sT2}
    """)
    div7(k, sT2, sROT, sT)
    k.e(f"""
    s_mul_i32 s{sx}, s{sRB}, {128*896}
    s_lshl_b32 s{sT}, s{sROT}, 7
    s_add_u32 s{sx}, s{sx}, s{sT}
    s_mov_b32 s{sCX}, s{sROT}
    s_lshl_b32 m0, s{sW}, 11
    """)
    srd_consts(k, SX, S*D*2)
    srd_consts(k, SW, D*3*D*2)
    srd_consts(k, SP, D*D*2)
    k.e(f"""
    v_and_b32 v5, 63, v0
    v_min_u32 v10, 36, v5
    s_mul_i32 s{sT}, s2, 37
    v_add_lshl_u32 v10, v10, s{sT}, 7
    s_waitcnt lgkmcnt(0)
    """)
    k.stamp(1)
    if WPF:
        k.e(f"""
        s_cmp_lg_u32 s{sW}, 3
        s_cbranch_scc1 {k.L('nt1')}
        buffer_load_dword v{DUM}, v10, s[{SW}:{SW+3}], 0 offen
        """)
        k.label(k.L('nt1'))
    def issue_x(c):
        if c > 0:
            k.e(f"""
            s_lshl_b32 s{sT}, s{sW}, 11
            s_add_u32 m0, s{sT}, {XS + (c % NXS)*16384}
            s_add_u32 s{sCX}, s{sCX}, 1
            s_cmp_eq_u32 s{sCX}, 7
            s_cselect_b32 s{sT}, -6, 1
            s_lshl_b32 s{sT}, s{sT}, 7
            s_add_u32 s{sx}, s{sx}, s{sT}
            """)
        k.vop(f"buffer_load_dwordx4 v1, s[{SX}:{SX+3}], s{sx} offen lds", f"s{c}")
        k.vop(f"buffer_load_dwordx4 v2, s[{SX}:{SX+3}], s{sx} offen offset:1024 lds", f"s{c}")
    def issue_v(c):
        k.e(f"""
        s_lshl_b32 s{sT}, s{sW}, 10
        s_add_u32 m0, s{sT}, {VS + (c % NVS)*8192}
        """)
        if c > 0:
            k.e(f"""
            s_add_u32 s{sCV}, s{sCV}, 1
            s_cmp_eq_u32 s{sCV}, 7
            s_cselect_b32 s{sT}, -6, 1
            s_mul_i32 s{sT}, s{sT}, {64*2688}
            s_add_u32 s{skv}, s{skv}, s{sT}
            """)
        else:
            k.e("s_nop 0")
        k.vop(f"buffer_load_dwordx4 v3, s[{SW}:{SW+3}], s{skv} offen lds", f"s{c+AH}")
    def issue_stage(s):
        if s <= 6: issue_x(s)
        if AH <= s <= 6+AH: issue_v(s-AH)
    def issue_after(s):
        if s+3 <= 6: issue_x(s+3)
        if AH <= s+3 <= 6+AH: issue_v(s+3-AH)
    srd_consts(k, SWS, WS_USED)
    k.e(f"""
    s_and_b32 s{sT}, s2, 0xfffffff1
    s_cmp_lg_u32 s{sT}, 0
    s_cbranch_scc1 {k.L('nozero')}
    v_mov_b32 v12, 0
    v_mov_b32 v13, 0
    v_mov_b32 v14, 0
    v_mov_b32 v15, 0
    v_lshlrev_b32 v10, 4, v0
    s_lshl_b32 s{sT}, s2, 12
    buffer_store_dwordx4 v[12:15], v10, s[{SWS}:{SWS+3}], s{sT} offen sc1
    """)
    k.label(k.L('nozero'))
    issue_stage(0)
    k.e("s_barrier")
    issue_stage(1)
    k.e(f"""
    v_bfe_u32 v9, v0, 4, 1
    v_lshlrev_b32 v9, 2, v9
    v_xor_b32 v9, v8, v9
    v_mul_u32_u24 v3, 2688, v6
    v_and_b32 v8, 3, v9
    v_lshl_add_u32 v3, v8, 4, v3
    v_lshrrev_b32 v9, 2, v9
    v_mul_u32_u24 v9, 896, v9
    v_add_u32 v3, v3, v9
    s_mul_i32 s{sq}, s{sH}, 56
    s_and_b32 s{sq}, s{sq}, -16
    s_mul_i32 s{sT}, s{sROT}, {64*2688}
    s_add_u32 s{skv}, s{sq}, s{sT}
    s_add_u32 s{skv}, s{skv}, 896
    s_mov_b32 s{sCV}, s{sROT}
    s_xor_b32 s{sq}, s{sH}, {QX}
    s_mul_i32 s{sq}, s{sq}, 56
    s_and_b32 s{sq}, s{sq}, -16
    """)
    k.e("s_barrier")
    issue_stage(2)
    srd_consts(k, SDB, 256)
    k.e(f"""
    s_mov_b32 s{sEPS}, 0x{EPS_PHI_L:x}
    s_mov_b32 s{sONE}, 0x{ONES_BF:x}
    s_mov_b32 s{sLN2}, 0x{LN2:x}
    v_mov_b32 v12, 0
    v_mov_b32 v13, 0
    v_mov_b32 v14, 0
    v_mov_b32 v15, 0
    v_mov_b32 v10, {CNT}
    ds_write_b128 v10, v[12:15]
    s_cmp_lt_u32 s{sW}, 4
    s_cbranch_scc1 {k.L('nozf')}
    v_and_b32 v10, 255, v0
    v_lshlrev_b32 v10, 4, v10
    s_lshr_b32 s{sT}, s{sRB}, 2
    s_or_b32 s{sT}, s{sT}, s{sH}
    s_cmp_lg_u32 s{sT}, 0
    s_cbranch_scc1 {k.L('nocs')}
    s_lshl_b32 s{sT}, s{sRB}, 12
    s_add_u32 s{sT}, s{sT}, {CS_OFF}
    v_mov_b32 v16, -1
    v_mov_b32 v17, -1
    v_mov_b32 v18, -1
    v_mov_b32 v19, -1
    buffer_store_dwordx4 v[16:19], v10, s[{SWS}:{SWS+3}], s{sT} offen sc1
    """)
    k.label(k.L('nocs'))
    k.e(f"""
    s_cmp_lg_u32 s{sH}, 14
    s_cbranch_scc1 {k.L('nozf')}
    s_lshl_b32 s{sT}, s{sRB}, 12
    s_add_u32 s{sT}, s{sT}, {FL_OFF}
    buffer_store_dwordx4 v[12:15], v10, s[{SWS}:{SWS+3}], s{sT} offen sc1
    """)
    k.label(k.L('nozf'))
    AX = 172
    k.e(f"""
    v_and_b32 v8, 31, v0
    v_bfe_u32 v9, v0, 5, 1
    v_bfe_u32 v14, v0, 6, 2
    v_lshl_add_u32 v15, v14, 5, v8
    v_lshlrev_b32 v10, 7, v15
    v_bfe_u32 v11, v8, 1, 3
    v_xor_b32 v11, v11, v9
    v_lshlrev_b32 v12, 1, v14
    v_xor_b32 v11, v11, v12
    v_mov_b32 v7, 1
    """)
    for p in range(4):
        k.e(f"v_xor_b32 v12, {2*p}, v11")
        k.e(f"v_lshl_add_u32 v{AX+p}, v12, 4, v10")
    k.e(f"v_add_u32 v{AX+4}, 0x10000, v{AX}\nv_add_u32 v{AX+5}, 0x10000, v{AX+1}\nv_add_u32 v{AX+6}, 0x10000, v{AX+2}\nv_add_u32 v{AX+7}, 0x10000, v{AX+3}")
    def xread(dst, c, p):
        o = XS + (c % NXS)*16384
        k.e(f"ds_read_b128 {vr(dst,4)}, v{AX+p+4*(o >> 16)} offset:{o & 0xffff}")
    def arrive(i):
        k.e(f"s_mov_b64 exec, 1\nds_add_u32 v6, v7 offset:{4*i}\ns_mov_b64 exec, -1")
    def lwait(name, i, target, vt):
        k.label(k.L(name))
        k.e(f"""
        ds_read_b32 v{vt}, v6 offset:{4*i}
        s_waitcnt lgkmcnt(0)
        v_cmp_gt_u32 vcc, {target}, v{vt}
        s_cbranch_vccnz {k.L(name)}
        """)
    k.e(f"""
    v_mov_b32 v6, {CNT}
    s_waitcnt lgkmcnt(0)
    s_cmp_ge_u32 s{sW}, 4
    s_cbranch_scc1 {k.L('q')}
    """)
    vm_split = list(k.vm)
    def wpf(qside):
        if not WPF or not qside: return
        k.e(f"""
        s_cmp_ge_u32 s{sW}, 6
        s_cbranch_scc1 {k.L('nopf')}
        s_lshr_b32 s{sT}, s2, 3
        s_lshl_b32 s{sT}, s{sT}, 1
        s_add_u32 s{sT}, s{sT}, s{sW}
        s_sub_u32 s{sT}, s{sT}, 4
        s_mul_i32 s{sT}, s{sT}, 49
        v_and_b32 v5, 63, v0
        v_min_u32 v5, 48, v5
        v_add_lshl_u32 v5, v5, s{sT}, 7
        buffer_load_dword v{DUM}, v5, s[{SP}:{SP+3}], 0 offen
        """)
        k.label(k.L('nopf'))
    ACK, ACV = 16, 32
    BUF = [48, 60, 72]
    AWK, AWV = 152, 156
    CSK, CSV = 160, 162
    RL, XE, WEK, WEV = 84, 100, 104, 108
    PKF, VF, KVA, T = 112, 120, 128, 144
    k.e(f"""
    s_setprio 2
    v_bfe_u32 v11, v0, 2, 2
    v_lshl_add_u32 v10, v9, 3, v11
    v_lshlrev_b32 v10, 7, v10
    v_bfe_u32 v12, v0, 4, 1
    v_and_b32 v13, 3, v0
    v_lshl_add_u32 v12, v12, 2, v13
    s_and_b32 s{sT}, s{sH}, 1
    v_add_u32 v12, s{sT}, v12
    v_and_b32 v12, 7, v12
    v_lshl_add_u32 v10, v12, 3, v10
    v_lshrrev_b32 v11, 1, v11
    v_lshl_add_u32 v10, v11, 6, v10
    v_lshl_add_u32 v10, v14, 11, v10
    v_add_u32 v{AWK}, {VS}, v10
    v_mov_b32 v{CSK}, 0
    v_mov_b32 v{CSK+1}, 0
    v_mov_b32 v{XE+2}, 0
    v_mov_b32 v{XE+3}, 0
    """)
    assert VS % 8192 == 0
    for p in range(1, 4):
        k.e(f"v_xor_b32 v{AWK+p}, {p << 11}, v{AWK}")
    for p in range(4):
        k.e(f"v_xor_b32 v{AWV+p}, 64, v{AWK+p}")
    k.e(f"""
    v_lshlrev_b32 v12, 3, v0
    v_add_u32 v12, {CSX}, v12
    v_and_b32 v13, 63, v0
    v_lshlrev_b32 v13, 3, v13
    v_add_u32 v13, {CSX}, v13
    v_lshlrev_b32 v10, 3, v15
    v_add_u32 v10, {MISC}, v10
    v_lshlrev_b32 v11, 7, v14
    v_lshl_add_u32 v11, v9, 4, v11
    v_add_u32 v11, {MISC+1024}, v11
    """)
    def kv_reads(c, p, b):
        o = (c % NVS)*8192
        xread(BUF[b], c, p)
        for ri in range(2):
            k.e(f"ds_read_b64_tr_b16 {vr(BUF[b]+4+2*ri,2)}, v{AWK+p} offset:{o+ri*512}")
        for ri in range(2):
            k.e(f"ds_read_b64_tr_b16 {vr(BUF[b]+8+2*ri,2)}, v{AWV+p} offset:{o+ri*512}")
    NS = 7+AH
    def gate(s):
        k.wait_vm(f"s{s}")
        k.e("s_barrier")
        if s == 0: k.stamp(2)
        if s == NS-1: k.stamp(3)
    def post_gate(s):
        issue_after(s)
        if s == NS-2:
            k.e(f"""
            v_mov_b32 v5, 0
            s_lshr_b32 s{sT2}, s{sH}, 1
            s_lshl_b32 s{sT2}, s{sT2}, 2
            """)
            k.vop(f"buffer_load_dword v{T+4}, v5, s[{SDB}:{SDB+3}], s{sT2} offen sc1", "poll")
    def rd(u):
        c, p = u >> 2, u & 3
        if p == 0: gate(c+AH)
        kv_reads(c, p, u % 3)
        if p == 0: post_gate(c+AH)
    for s_ in range(AH):
        gate(s_); post_gate(s_)
    for u in range(3): rd(u)
    for u in range(28):
        c, p = u >> 2, u & 3
        b = u % 3
        k.e(f"s_waitcnt lgkmcnt({5*min(2, 27-u)})")
        first = (u == 0)
        k.e(f"v_mfma_f32_32x32x16_bf16 {vr(ACK,16)}, {vr(BUF[b],4)}, {vr(BUF[b]+4,4)}, {'0' if first else vr(ACK,16)}")
        k.e(f"v_mfma_f32_32x32x16_bf16 {vr(ACV,16)}, {vr(BUF[b],4)}, {vr(BUF[b]+8,4)}, {'0' if first else vr(ACV,16)}")
        if p == 0:
            for j in range(4):
                k.e(f"v_dot2c_f32_bf16 v{CSK}, s{sONE}, v{BUF[b]+4+j}")
                k.e(f"v_dot2c_f32_bf16 v{CSK+1}, s{sONE}, v{BUF[b]+8+j}")
        if u+3 < 28: rd(u+3)
        if u == 25:
            k.e(f"ds_write_b64 v12, {vr(CSK,2)}")
            arrive(0)
        if u == 26:
            k.e(f"ds_read_b64 {vr(XE,2)}, v10")
            for a in range(4):
                k.e(f"ds_read_b128 {vr(RL+4*a,4)}, v11 offset:{a*32}")
            k.e(f"""
            v_and_b32 v10, 63, v0
            v_lshlrev_b32 v4, 2, v10
            v_lshlrev_b32 v10, 4, v10
            v_lshl_add_u32 v10, v14, 12, v10
            v_lshl_add_u32 v4, v14, 10, v4
            v_add_u32 v3, {PART}, v4
            s_lshl_b32 s{sT}, s{sH}, 12
            """)
    k.e(f"s_setprio {env('KVP', 0)}")
    lwait('w0', 0, 4, T)
    k.e(f"""
    ds_read2st64_b64 {vr(PKF,4)}, v13 offset0:0 offset1:1
    ds_read2st64_b64 {vr(PKF+4,4)}, v13 offset0:2 offset1:3
    s_waitcnt lgkmcnt(0)
    v_add_f32 v{PKF}, v{PKF}, v{PKF+2}
    v_add_f32 v{PKF+1}, v{PKF+1}, v{PKF+3}
    v_add_f32 v{PKF+4}, v{PKF+4}, v{PKF+6}
    v_add_f32 v{PKF+5}, v{PKF+5}, v{PKF+7}
    v_add_f32 v{CSK}, v{PKF}, v{PKF+4}
    v_add_f32 v{CSV}, v{PKF+1}, v{PKF+5}
    """)
    k.stamp(4)
    hilo_w(k, WEK, CSK, T)
    k.e("s_nop 1")
    k.e(f"v_mfma_f32_32x32x16_bf16 {vr(ACK,16)}, {vr(XE,4)}, {vr(WEK,4)}, {vr(ACK,16)}")
    hilo_w(k, WEV, CSV, T+1)
    k.e("s_nop 1")
    k.e(f"v_mfma_f32_32x32x16_bf16 {vr(ACV,16)}, {vr(XE,4)}, {vr(WEV,4)}, {vr(ACV,16)}")
    k.nop(3)
    for h in range(2):
        for i in range(8*h, 8*h+8, 2):
            phi_ops(k, ACK+i, ACK+i, RL+i, T, sEPS, sLN2)
            phi_ops(k, ACK+i+1, ACK+i+1, RL+i+1, T+1, sEPS, sLN2)
            k.e(f"v_cvt_pk_bf16_f32 v{PKF+i//2}, v{ACK+i}, v{ACK+i+1}")
        for i in range(8*h, 8*h+8, 2):
            k.e(f"v_pk_mul_f32 {vr(ACV+i,2)}, {vr(ACV+i,2)}, {vr(RL+i,2)}")
            k.e(f"v_cvt_pk_bf16_f32 v{VF+i//2}, v{ACV+i}, v{ACV+i+1}")
        k.e("s_mov_b32 exec_lo, 0x10000000\ns_mov_b32 exec_hi, 0x10000000")
        for j in range(4):
            k.e(f"v_mov_b32 v{VF+4*h+j}, s{sONE}")
        k.e("s_mov_b64 exec, -1\ns_nop 0")
        k.e(f"v_mfma_f32_32x32x16_bf16 {vr(KVA,16)}, {vr(PKF+4*h,4)}, {vr(VF+4*h,4)}, {'0' if h == 0 else vr(KVA,16)}")
    k.wait_vm("poll")
    k.e(f"s_mov_b32 s{sCX}, 0x100000")
    k.label(k.L('poll'))
    k.e(f"""
    v_cmp_eq_u32 vcc, 0, v{T+4}
    s_cbranch_vccz {k.L('pollok')}
    s_sleep 16
    buffer_load_dword v{T+4}, v5, s[{SDB}:{SDB+3}], s{sT2} offen sc1
    s_waitcnt vmcnt(0)
    s_sub_u32 s{sCX}, s{sCX}, 1
    s_cbranch_scc0 {k.L('poll')}
    """)
    k.label(k.L('pollok'))
    k.nop(9)
    for a in range(4):
        k.e(f"ds_write_b128 v10, {vr(KVA+4*a,4)} offset:{PART+a*1024}")
    arrive(1)
    lwait('w1', 1, 4, T)
    k.stamp(5)
    for u in range(4):
        k.e(f"ds_read2st64_b32 {vr(ACK+4*u,2)}, v3 offset0:{u} offset1:{u+16}")
        k.e(f"ds_read2st64_b32 {vr(ACK+4*u+2,2)}, v3 offset0:{u+32} offset1:{u+48}")
    for u in range(4):
        k.e(f"s_waitcnt lgkmcnt({6-2*u})")
        k.e(f"v_add_f32 v{ACK+4*u}, v{ACK+4*u}, v{ACK+4*u+1}")
        k.e(f"v_add_f32 v{ACK+4*u+2}, v{ACK+4*u+2}, v{ACK+4*u+3}")
        k.e(f"v_add_f32 v{ACK+4*u}, v{ACK+4*u}, v{ACK+4*u+2}")
        if u == 2:
            k.e(f"s_cmp_eq_u32 s{sW}, 3\ns_cbranch_scc1 {k.L('kvend')}")
        k.e(f"buffer_atomic_add_f32 v{ACK+4*u}, v4, s[{SWS}:{SWS+3}], s{sT} offen offset:{u*256}")
    k.label(k.L('kvend'))
    k.stamp(6)
    k.end(SWS, 0, 7)
    k.label(k.L('q'))
    k.vm = list(vm_split)
    XQ, ACQ, WB = 16, 128, 144
    SUM, SQ, CSQ, AWQ, T = 160, 162, 164, 168, 188
    XE2, WE2, RS = 180, 184, 166
    k.e(f"""
    v_bfe_u32 v11, v0, 2, 2
    v_lshl_add_u32 v10, v9, 3, v11
    v_lshlrev_b32 v10, 6, v10
    v_and_b32 v11, 1, v0
    v_bfe_u32 v12, v0, 4, 1
    v_lshl_add_u32 v11, v11, 1, v12
    v_bfe_u32 v12, v0, 1, 1
    v_lshl_add_u32 v11, v11, 1, v12
    s_and_b32 s{sT}, s{sH}, 1
    s_xor_b32 s{sT}, s{sT}, {QX}
    v_add_u32 v11, s{sT}, v11
    v_and_b32 v11, 7, v11
    v_lshl_add_u32 v10, v11, 3, v10
    v_lshl_add_u32 v10, v14, 10, v10
    v_add_u32 v{AWQ}, {WQ}, v10
    v_xor_b32 v{AWQ+1}, 0x400, v{AWQ}
    v_xor_b32 v{AWQ+2}, 0x800, v{AWQ}
    v_xor_b32 v{AWQ+3}, 0xc00, v{AWQ}
    v_bfe_u32 v10, v0, 2, 6
    v_mul_u32_u24 v4, 2688, v10
    v_and_b32 v10, 3, v0
    v_lshl_add_u32 v4, v10, 4, v4
    """)
    assert WQ % 4096 == 0
    for r in (SUM, SUM+1, SQ, SQ+1, CSQ, CSQ+1):
        k.e(f"v_mov_b32 v{r}, 0")
    def wq_dma(pos):
        k.e(f"""
        s_lshl_b32 s{sT}, s{sW}, 10
        s_add_i32 m0, s{sT}, {WQ + pos*4096 - 4096}
        s_add_u32 s{sT2}, s{sROT}, {pos}
        s_cmp_ge_u32 s{sT2}, 7
        s_cselect_b32 s{sT}, 7, 0
        s_sub_u32 s{sT2}, s{sT2}, s{sT}
        s_mul_i32 s{sT2}, s{sT2}, {64*2688}
        s_add_u32 s{sT2}, s{sT2}, s{sq}
        """)
        k.vop(f"buffer_load_dwordx4 v4, s[{SW}:{SW+3}], s{sT2} offen lds", f"wq{pos}")
    NB = 4
    def wq_read(kap):
        c, p = kap >> 2, kap & 3
        b = WB + 4*(kap % NB)
        for ri in range(2):
            k.e(f"ds_read_b64_tr_b16 {vr(b+2*ri,2)}, v{AWQ+p} offset:{c*4096+ri*256}")
    def q_range(k0, k1, mid=None):
        for kap in range(k0, min(k0+NB-1, k1)):
            wq_read(kap)
        for kap in range(k0, k1):
            if kap+NB-1 < k1:
                wq_read(kap+NB-1)
            rem = min(k1-1-kap, NB-1)
            k.e(f"s_waitcnt lgkmcnt({2*rem})")
            b = WB + 4*(kap % NB)
            k.e(f"v_mfma_f32_32x32x16_bf16 {vr(ACQ,16)}, {vr(b,4)}, {vr(XQ+4*kap,4)}, {'0' if kap == 0 else vr(ACQ,16)}")
            if (kap & 3) == 0:
                for j in range(4):
                    k.e(f"v_dot2c_f32_bf16 v{CSQ+(j&1)}, s{sONE}, v{b+j}")
            if mid and kap == mid[0]: mid[1]()
    for s in range(NS):
        gate(s)
        if s <= 6:
            for p in range(4):
                xread(XQ+16*s+4*p, s, p)
        if s == 4:
            for pos in range(QE): wq_dma(pos)
        issue_after(s)
        if s == 6:
            for pos in range(QE, 7): wq_dma(pos)
        if s == 1: wpf(True)
        if s == 0:
            k.e(f"""
            s_and_b32 s{sT}, s2, 0xfffffff1
            s_xor_b32 s{sT2}, s{sW}, 7
            s_or_b32 s{sT}, s{sT}, s{sT2}
            s_cmp_lg_u32 s{sT}, 0
            s_cbranch_scc1 {k.L('noflag')}
            s_lshl_b32 s{sT}, s2, 1
            v_mov_b32 v5, 0
            s_mov_b64 exec, 1
            buffer_store_dword v7, v5, s[{SDB}:{SDB+3}], s{sT} offen sc1
            s_mov_b64 exec, -1
            """)
            k.label(k.L('noflag'))
        if s <= 6:
            c = s
            for p in range(4):
                k.e(f"s_waitcnt lgkmcnt({3-p})")
                for j in range(4):
                    r = XQ+16*c+4*p+j
                    k.e(f"v_dot2c_f32_bf16 v{SUM+(j&1)}, s{sONE}, v{r}")
                    k.e(f"v_dot2c_f32_bf16 v{SQ+(j&1)}, v{r}, v{r}")
        if s == 7:
            k.e(f"""
            v_lshlrev_b32 v11, 2, v15
            v_lshlrev_b32 v10, 3, v15
            v_mov_b32 v{XE2+3}, 0
            v_add_f32 v{SUM}, v{SUM}, v{SUM+1}
            v_add_f32 v{SQ}, v{SQ}, v{SQ+1}
            v_mov_b32 v{SUM+1}, v{SUM}
            v_mov_b32 v{SQ+1}, v{SQ}
            v_add_u32 v10, {MISC}, v10
            v_add_u32 v11, {MISC+1024}, v11
            v_permlane32_swap_b32 v{SUM}, v{SUM+1}
            v_permlane32_swap_b32 v{SQ}, v{SQ+1}
            v_mov_b32 v{XE2+2}, 0
            v_add_f32 v{SUM}, v{SUM}, v{SUM+1}
            v_add_f32 v{SQ}, v{SQ}, v{SQ+1}
            v_mul_f32 v{SUM}, 0x{INV_D|0x80000000:x}, v{SUM}
            v_mul_f32 v{SQ}, 0x{INV_D:x}, v{SQ}
            v_fma_f32 v{SQ}, -v{SUM}, v{SUM}, v{SQ}
            v_max_f32 v{SQ}, 0, v{SQ}
            v_add_f32 v{SQ}, 0x{EPS_LN:x}, v{SQ}
            v_rsq_f32 v{RS}, v{SQ}
            """)
            hilo_x(k, XE2, SUM, T)
            k.e(f"""
            v_mul_f32 v{RS}, 0x{LOG2E:x}, v{RS}
            ds_write_b64 v10, {vr(XE2,2)}
            ds_write_b32 v11, v{RS}
            """)
        if s == 7:
            k.e("s_waitcnt lgkmcnt(0)")
            if QE: q_range(0, 4*QE)
            k.e(f"""
            v_lshlrev_b32 v12, 2, v0
            v_add_u32 v12, {CSX+1024}, v12
            v_and_b32 v10, 63, v0
            v_lshlrev_b32 v13, 2, v10
            v_add_u32 v13, {CSX+2048}, v13
            v_lshlrev_b32 v10, 4, v10
            s_lshl_b32 s{sT}, s{sRB}, 2
            s_add_u32 s{sT}, s{sT}, s{sW}
            s_sub_u32 s{sT}, s{sT}, 4
            s_lshl_b32 s{sT}, s{sT}, 4
            s_xor_b32 s{sT2}, s{sH}, {QX}
            s_add_u32 s{sT}, s{sT}, s{sT2}
            s_lshl_b32 s{sT}, s{sT}, 11
            s_add_u32 s{sT}, s{sT}, {PQ_OFF}
            """)
    k.e(f"s_setprio {env('QP', 2)}")
    def pub():
        k.e(f"""
        v_add_f32 v{CSQ}, v{CSQ}, v{CSQ+1}
        ds_write_b32 v12, v{CSQ}
        """)
        arrive(3)
    pm = (QE+7+1)//2
    for n, (p0, p1) in enumerate([(QE, pm), (pm, 7)]):
        k.wait_vm(f"wq{p1-1}")
        arrive(2)
        lwait(f'wq{n}', 2, 4*(n+1), T)
        k.stamp(4+n)
        q_range(4*p0, 4*p1, mid=(26, pub) if n == 1 else None)
    lwait('w4', 3, 4, T)
    k.e(f"""
    ds_read2st64_b32 {vr(WB,2)}, v13 offset0:0 offset1:1
    ds_read2st64_b32 {vr(WB+2,2)}, v13 offset0:2 offset1:3
    s_waitcnt lgkmcnt(0)
    v_add_f32 v{WB}, v{WB}, v{WB+1}
    v_add_f32 v{WB+2}, v{WB+2}, v{WB+3}
    v_add_f32 v{CSQ}, v{WB}, v{WB+2}
    """)
    hilo_w(k, WE2, CSQ, T)
    k.e(f"""
    s_nop 1
    v_mfma_f32_32x32x16_bf16 {vr(ACQ,16)}, {vr(WE2,4)}, {vr(XE2,4)}, {vr(ACQ,16)}
    """)
    k.nop(12)
    for i in range(0, 16, 2):
        phi_ops(k, ACQ+i, ACQ+i, RS, T, sEPS, sLN2)
        phi_ops(k, ACQ+i+1, ACQ+i+1, RS, T+1, sEPS, sLN2)
        k.e(f"v_cvt_pk_bf16_f32 v{WB+i//2}, v{ACQ+i}, v{ACQ+i+1}")
        if i == 6:
            k.e(f"buffer_store_dwordx4 {vr(WB,4)}, v10, s[{SWS}:{SWS+3}], s{sT} offen sc1")
    k.e(f"buffer_store_dwordx4 {vr(WB+4,4)}, v10, s[{SWS}:{SWS+3}], s{sT} offen offset:1024 sc1")
    k.stamp(6)
    k.end(SWS, 0, 7)
    k.label(k.L('end'))
    k.e("s_endpgm")
    return k, dict(vgpr=192, sgpr=64, grid=256, block=512, lds=163840)
```

```python
import sys, os
sys.path.insert(0, "dev")
os.environ.setdefault('STF', 'sc1')
os.environ['ZFL'] = '1'
import gen3
from gen3 import *

HPACE = env('HPACE', 8)
APRE = env('APRE', 4)
DX = env('DX', 0)
WTR = env('WTR', 1)
EARLY = env('EARLY', 1)
BORD = env('BORD', 1)
CXB = env('CXB', 3)
CXE = env('CXE', 60)
WSZ = (STAMP_OFF + 8*65536*2) if STAMPS else WS_USED

def flush(k, sws, kid, n, tv):
    if not STAMPS: return
    k.e("s_waitcnt lgkmcnt(0)")
    k.e("s_mov_b64 exec, 1")
    for i in range(8):
        k.e(f"v_mov_b32 v{tv+i}, s{40+2*i}" if i < n else f"v_mov_b32 v{tv+i}, 0")
    k.e(f"""
    v_lshrrev_b32 v{tv+8}, 6, v0
    v_lshlrev_b32 v{tv+8}, 5, v{tv+8}
    s_lshl_b32 s38, s2, 8
    s_add_u32 s38, s38, {STAMP_OFF + kid*65536*2}
    buffer_store_dwordx4 {vr(tv,4)}, v{tv+8}, s[{sws}:{sws+3}], s38 offen
    buffer_store_dwordx4 {vr(tv+4,4)}, v{tv+8}, s[{sws}:{sws+3}], s38 offen offset:16
    s_mov_b64 exec, -1
    """)

PSLEEP = env('PSLEEP', 1)
PMODE = env('PMODE', 0)
PDEP = env('PDEP', 1)
def poll(k, name, soff, target, va, vt, sws, scnt, sW, pw, work=None):
    k.e(f"""
    s_cmp_lg_u32 s{sW}, {pw}
    s_cbranch_scc1 {k.L(name+'dr')}
    s_mov_b32 s{scnt}, 0x200000
    """)
    if PMODE:
        k.e(f"v_and_b32 v{va}, 63, v0\nv_min_u32 v{va}, {target-1}, v{va}\nv_lshlrev_b32 v{va}, 2, v{va}")
    else:
        k.e(f"v_mov_b32 v{va}, 0")
    PV = 252 if PDEP > 1 else vt
    ld = lambda i: k.e(f"buffer_load_dword v{PV+i}, v{va}, s[{sws}:{sws+3}], s{soff} offen sc1")
    for i in range(PDEP-1):
        ld(i); k.e(f"s_sleep {PSLEEP}")
    k.label(k.L(name))
    for i in range(PDEP):
        ld((i+PDEP-1) % PDEP)
        k.e(f"""
        s_waitcnt vmcnt({PDEP-1})
        v_cmp_gt_u32 vcc, {1 if PMODE else target}, v{PV+i}
        s_cbranch_vccz {k.L(name+'ok')}
        s_sleep {PSLEEP}
        """)
    k.e(f"""
    s_sub_u32 s{scnt}, s{scnt}, 1
    s_cbranch_scc0 {k.L(name)}
    """)
    if work is None:
        k.label(k.L(name+'dr'))
        k.e("s_waitcnt vmcnt(0)")
        k.label(k.L(name+'ok'))
        k.e("s_barrier")
        k.vm = []
    else:
        k.label(k.L(name+'ok'))
        k.e("s_barrier")
        k.vm = []
        work()
        n = len(k.vm)
        k.e(f"s_branch {k.L(name+'j')}")
        k.label(k.L(name+'dr'))
        k.vm = []
        work()
        k.e(f"s_waitcnt vmcnt({n})")
        k.e("s_barrier")
        k.label(k.L(name+'j'))

def signal(k, name, soff, n, stride_log2, va, vt, sws, sW, spi):
    k.e(f"""
    s_cmp_lg_u32 s{sW}, 0
    s_cbranch_scc1 {k.L(name)}
    v_lshlrev_b32 v{va}, {stride_log2}, v0
    v_mov_b32 v{vt}, 1
    """)
    if PMODE:
        k.e(f"""
        v_lshl_add_u32 v{va}, s{spi}, 2, v{va}
        s_mov_b64 exec, {(1 << n) - 1}
        buffer_store_dword v{vt}, v{va}, s[{sws}:{sws+3}], s{soff} offen sc1
        """)
    else:
        k.e(f"""
        s_mov_b64 exec, {(1 << n) - 1}
        buffer_atomic_add v{vt}, v{va}, s[{sws}:{sws+3}], s{soff} offen sc1
        """)
    k.e("s_mov_b64 exec, -1")
    k.label(k.L(name))

def gen_f():
    k = K("kf")
    SX, SW, SWS, SG, SU, SD, SO = 4, 8, 12, 56, 60, 64, 68
    sW, sRB, sCB, sT, sT2, sT3, sEPS, sONE, sKV, sPQ0, sWO, sROT, sLN2 = 20, 21, 22, 23, 24, 25, 26, 27, 28, 29, 30, 31, 19
    sFB, sRT, sCG, sWOFF, sH, sQ, sDCG, sDW, sA, sKH, sCNT = 16, 17, 18, 32, 33, 34, 35, 36, 37, 39, 72
    BB = 98304
    sPOL = 73
    k.stamp(0)
    k.e(f"""
    s_cmp_ge_u32 s2, 256
    s_cbranch_scc1 {k.L('end')}
    s_load_dwordx2 s[{SWS}:{SWS+1}], s[0:1], 72
    s_load_dwordx2 s[{SG}:{SG+1}], s[0:1], 32
    s_load_dwordx2 s[{SU}:{SU+1}], s[0:1], 40
    s_cmp_ge_u32 s2, 224
    s_cbranch_scc1 {k.L('cs')}
    s_load_dwordx2 s[{SX}:{SX+1}], s[0:1], 0
    s_load_dwordx2 s[{SW}:{SW+1}], s[0:1], 16
    s_load_dwordx2 s[{SD}:{SD+1}], s[0:1], 48
    s_load_dwordx2 s[{SO}:{SO+1}], s[0:1], 56
    v_lshrrev_b32 v5, 6, v0
    v_and_b32 v1, 63, v0
    v_readfirstlane_b32 s{sW}, v5
    v_lshlrev_b32 v1, 4, v1
    v_bfe_u32 v9, v0, 5, 1
    s_lshr_b32 s{sT2}, s2, 3
    """)
    div7(k, sQ, sCB, sT2)
    k.e(f"""
    s_and_b32 s{sT}, s2, 7
    s_lshl_b32 s{sT}, s{sT}, 2
    s_add_u32 s{sRB}, s{sQ}, s{sT}
    s_lshl_b32 s{sWO}, s{sCB}, 7
    """)
    srd_consts(k, SWS, WSZ)
    k.e(f"""
    s_cmp_ge_u32 s{sW}, 4
    s_cbranch_scc1 {k.L('ld')}
    """)
    k.e(f"""
    v_bfe_u32 v6, v0, 3, 2
    v_and_b32 v7, 3, v0
    v_lshl_add_u32 v6, v6, 2, v7
    v_bfe_u32 v7, v0, 2, 1
    v_mad_u32_u24 v7, v7, 14, v6
    v_cmp_gt_u32 vcc, 14, v6
    v_bfe_u32 v6, v0, 3, 3
    v_and_b32 v8, 7, v0
    v_cndmask_b32 v7, 28, v7, vcc
    v_lshlrev_b32 v2, 4, v7
    v_lshl_add_u32 v2, v9, 11, v2
    v_bfe_u32 v7, v0, 4, 1
    v_lshlrev_b32 v7, 2, v7
    v_xor_b32 v7, v7, v8
    v_mul_u32_u24 v3, 896, v6
    v_lshl_add_u32 v3, v7, 4, v3
    s_add_u32 s{sROT}, s{sQ}, s{sCB}
    s_and_b32 s{sROT}, s{sROT}, 3
    s_lshl_b32 s{sT}, s{sW}, 2
    s_add_u32 s{sROT}, s{sROT}, s{sT}
    s_and_b32 s{sT}, s{sW}, 1
    s_lshl_b32 s{sT2}, s{sRB}, 1
    s_add_u32 s{sT3}, s{sT2}, s{sT}
    s_lshl_b32 s{sPQ0}, s{sT3}, 15
    s_add_u32 s{sPQ0}, s{sPQ0}, {PQ_OFF}
    s_lshl_b32 s{sT}, s{sW}, 14
    s_add_u32 m0, s{sT}, {BB}
    """)
    srd_consts(k, SX, S*D*2)
    srd_consts(k, SW, D*D*2)
    k.e(f"""
    s_mov_b32 s{sEPS}, 0x{EPS_PHI:x}
    s_mov_b32 s{sONE}, 0x{ONES_BF:x}
    s_mov_b32 s{sLN2}, 0x{LN2:x}
    s_waitcnt lgkmcnt(0)
    """)
    k.stamp(1)
    KVF, PQR, ACC, OA, XR = 16, 80, 144, 208, 248
    def ld_head(p):
        k.e(f"""
        s_xor_b32 s{sT}, s{sROT}, {p}
        s_lshl_b32 s{sKV}, s{sT}, 12
        s_lshl_b32 s{sT}, s{sT}, 11
        s_add_u32 s{sT}, s{sT}, s{sPQ0}
        s_xor_b32 s{sT2}, s{sT}, 0x8000
        """)
        for q in range(4):
            k.vop(f"buffer_load_dwordx4 {vr(KVF+16*p+4*q,4)}, v2, s[{SWS}:{SWS+3}], s{sKV} offen offset:{q*512}", f"kv{p}")
        for rt in range(2):
            for f in range(2):
                k.vop(f"buffer_load_dwordx4 {vr(PQR+16*p+8*rt+4*f,4)}, v1, s[{SWS}:{SWS+3}], s{sT if rt == 0 else sT2} offen offset:{f*1024}", f"pq{p}")
    def ld_wo(p):
        k.e(f"""
        s_xor_b32 s{sT}, s{sROT}, {p}
        s_mul_i32 s{sT}, s{sT}, {28*896}
        s_add_u32 s{sT}, s{sT}, s{sWO}
        """)
        for u in range(4):
            k.vop(f"buffer_load_dwordx4 v3, s[{SW}:{SW+3}], s{sT} offen offset:{u*1024} lds", f"wo{p}")
            if u < 3: k.e(f"s_add_u32 s{sT}, s{sT}, {7168-1024}")
        k.e("s_add_u32 m0, m0, 4096")
    ld_head(0); ld_head(1)
    def ld_x():
        k.e(f"""
        v_and_b32 v6, 31, v0
        v_mul_u32_u24 v4, 896, v6
        v_lshl_add_u32 v4, v9, 5, v4
        s_mul_i32 s{sT}, s{sT3}, {32*896}
        s_add_u32 s{sT}, s{sT}, s{sWO}
        s_lshr_b32 s{sT2}, s{sW}, 1
        s_lshl_b32 s{sT2}, s{sT2}, 6
        s_add_u32 s{sT}, s{sT}, s{sT2}
        """)
        k.vop(f"buffer_load_dwordx4 {vr(XR,4)}, v4, s[{SX}:{SX+3}], s{sT} offen", "x")
        k.vop(f"buffer_load_dwordx4 {vr(XR+4,4)}, v4, s[{SX}:{SX+3}], s{sT} offen offset:16", "x")
    AW0, AW1 = 14, 15
    k.e(f"""
    v_bfe_u32 v7, v0, 2, 2
    v_mad_u32_u24 v5, v9, 14, v7
    v_lshlrev_b32 v5, 7, v5
    v_lshrrev_b32 v7, 1, v7
    v_xor_b32 v7, v7, v9
    v_bfe_u32 v8, v0, 7, 1
    v_xor_b32 v7, v7, v8
    v_lshl_add_u32 v5, v7, 6, v5
    v_and_b32 v7, 1, v0
    v_lshl_add_u32 v5, v7, 5, v5
    v_bfe_u32 v7, v0, 4, 1
    v_lshl_add_u32 v5, v7, 4, v5
    v_bfe_u32 v7, v0, 1, 1
    v_lshl_add_u32 v5, v7, 3, v5
    v_lshrrev_b32 v7, 6, v0
    v_lshl_add_u32 v5, v7, 14, v5
    v_add_u32 v{AW0}, {BB}, v5
    v_xor_b32 v{AW1}, 64, v{AW0}
    """)
    def o_stage(p):
        k.wait_vm(f"kv{p}")
        if p == 0: k.stamp(2)
        if p == 3: k.stamp(3)
        b = KVF+16*p
        for i in range(8):
            k.e(f"v_cvt_pk_bf16_f32 v{b+i}, v{b+2*i}, v{b+2*i+1}")
        k.wait_vm(f"pq{p}")
        k.e("s_nop 0")
        for rt in range(2):
            for f in range(2):
                k.e(f"v_mfma_f32_32x32x16_bf16 {vr(OA+16*rt,16)}, {vr(b+4*f,4)}, {vr(PQR+16*p+8*rt+4*f,4)}, {'0' if f == 0 else vr(OA+16*rt,16)}")
    def norm_stage(p):
        for rt in range(2):
            o = OA+16*rt
            d = PQR+16*p+8*rt
            k.e(f"v_add_f32 v{o+14}, s{sEPS}, v{o+14}")
            k.e(f"v_rcp_f32 v{o+14}, v{o+14}")
            k.e(f"v_mov_b32 v{d+7}, 0")
            k.e(f"v_mul_f32 v{o+14}, s{sLN2}, v{o+14}")
            for i in range(0, 14, 2):
                k.e(f"v_pk_mul_f32 {vr(o+i,2)}, {vr(o+i,2)}, {vr(o+14,2)} op_sel_hi:[1,0]")
            for i in range(0, 14, 2):
                k.e(f"v_cvt_pk_bf16_f32 v{d+i//2}, v{o+i}, v{o+i+1}")
    def w_reads(p):
        k.wait_vm(f"wo{p}")
        for f in range(2):
            for ct in range(2):
                for ri in range(2):
                    k.e(f"ds_read_b64_tr_b16 {vr(KVF+16*p+8*f+4*ct+2*ri,2)}, v{AW0 if ct == 0 else AW1} offset:{(32*p+8*f+4*ri)*128}")
    def main_stage(p):
        for f in range(2):
            for ct in range(2):
                k.e(f"s_waitcnt lgkmcnt({6-4*f-2*ct})")
                for rt in range(2):
                    a = ACC+16*(2*ct+rt)
                    first = (p == 0 and f == 0)
                    k.e(f"v_mfma_f32_32x32x16_bf16 {vr(a,16)}, {vr(KVF+16*p+8*f+4*ct,4)}, {vr(PQR+16*p+8*rt+4*f,4)}, {'0' if first else vr(a,16)}")
    for p in range(4):
        o_stage(p)
        if BORD == 0:
            if p == 0: ld_wo(0); ld_head(2)
            if p == 1: ld_wo(1); ld_head(3)
            if p == 2:
                ld_wo(2); ld_wo(3); ld_x()
                k.e("s_barrier")
            if p > 0:
                main_stage(p-1)
            norm_stage(p)
            w_reads(p)
        else:
            if p == 0: ld_head(2)
            if p == 1: ld_head(3)
            if p == 2: ld_wo(0); ld_wo(1)
            if p == 3:
                ld_wo(2); ld_wo(3); ld_x()
                k.e("s_barrier")
            norm_stage(p)
    if BORD:
        for p in range(4):
            w_reads(p)
            if p < 3: main_stage(p)
    k.stamp(4)
    k.e("s_nop 1")
    main_stage(3)
    k.e(f"""
    v_lshrrev_b32 v7, 6, v0
    v_add_u32 v6, {BB}, v1
    v_lshl_add_u32 v8, v7, 14, v6
    """)
    for tp in range(1, 4):
        k.e(f"v_xor_b32 v{10+tp}, {tp}, v7")
        k.e(f"v_lshl_add_u32 v{10+tp}, v{10+tp}, 14, v6")
    k.e(f"""
    s_lshl_b32 s{sT}, s{sCB}, 1
    s_lshr_b32 s{sT2}, s{sW}, 1
    s_add_u32 s{sKV}, s{sT}, s{sT2}
    s_mul_i32 s{sT2}, s{sT3}, 14
    s_add_u32 s{sT}, s{sKV}, s{sT2}
    s_lshl_b32 s{sT2}, s{sT}, 8
    s_add_u32 s{sT2}, s{sT2}, {ST_OFF}
    s_lshl_b32 s{sT}, s{sT}, 11
    s_add_u32 s{sT}, s{sT}, {HF_OFF}
    """)
    for tp in range(1, 4):
        for a in range(4):
            k.e(f"ds_write_b128 v8, {vr(ACC+16*tp+4*a,4)} offset:{(tp-1)*4096+a*1024}")
    k.wait_vm("x")
    XU = 80
    for i in range(8):
        k.e(f"v_lshlrev_b32 v{XU+2*i}, 16, v{XR+i}")
        k.e(f"v_and_b32 v{XU+2*i+1}, 0xffff0000, v{XR+i}")
    for i in range(0, 16, 2):
        k.e(f"v_pk_add_f32 {vr(ACC+i,2)}, {vr(ACC+i,2)}, {vr(XU+i,2)}")
    k.e("""
    v_mov_b32 v4, 0
    v_mov_b32 v5, 0
    s_waitcnt lgkmcnt(0)
    s_barrier
    """)
    k.stamp(5)
    for tp in range(1, 4):
        for a in range(4):
            k.e(f"ds_read_b128 {vr(16*tp+4*a,4)}, v{10+tp} offset:{(tp-1)*4096+a*1024}")
    for j in range(3):
        k.e(f"s_waitcnt lgkmcnt({8-4*j})")
        for i in range(0, 16, 2):
            k.e(f"v_pk_add_f32 {vr(ACC+i,2)}, {vr(ACC+i,2)}, {vr(16+16*j+i,2)}")
    HO = 96
    for i in range(8):
        k.e(f"v_cvt_pk_bf16_f32 v{HO+i}, v{ACC+2*i}, v{ACC+2*i+1}")
    k.e(f"""
    buffer_store_dwordx4 {vr(HO,4)}, v1, s[{SWS}:{SWS+3}], s{sT} offen sc1
    buffer_store_dwordx4 {vr(HO+4,4)}, v1, s[{SWS}:{SWS+3}], s{sT} offen offset:1024 sc1
    """)
    for i in range(8):
        k.e(f"v_dot2c_f32_bf16 v4, s{sONE}, v{HO+i}")
        k.e(f"v_dot2c_f32_bf16 v5, v{HO+i}, v{HO+i}")
    k.e(f"""
    v_and_b32 v6, 31, v0
    v_lshlrev_b32 v6, 3, v6
    s_lshr_b32 s{sT}, s{sRB}, 2
    v_mov_b32 v12, v4
    v_mov_b32 v13, v5
    s_mul_i32 s{sT}, s{sT}, {28*128}
    s_add_u32 s{sT}, s{sT}, {FL_OFF}
    v_permlane32_swap_b32 v4, v12
    v_permlane32_swap_b32 v5, v13
    s_nop 0
    v_add_f32 v4, v4, v12
    v_add_f32 v5, v5, v13
    s_mov_b32 exec_hi, 0
    buffer_store_dwordx2 v[4:5], v6, s[{SWS}:{SWS+3}], s{sT2} offen sc1
    s_mov_b64 exec, -1
    """)
    k.stamp(6)
    k.e("s_waitcnt vmcnt(0)\ns_barrier")
    k.e(f"s_lshr_b32 s{sKV}, s2, 3")
    signal(k, 'sg1', sT, 28, 7, 7, 8, SWS, sW, sKV)
    k.stamp(7)
    flush(k, SWS, 1, 8, 16)
    k.e(f"s_branch {k.L('cc')}")
    def c_setup_scalar():
        k.e(f"""
        s_lshl_b32 s{sT}, s{sQ}, 1
        s_add_u32 s{sT}, s{sT}, s{sCB}
        """)
        div7(k, sT2, sCG, sT)
        k.e(f"""
        s_and_b32 s{sT2}, s2, 3
        s_mul_i32 s{sT2}, s{sT2}, 7
        s_add_u32 s{sFB}, s{sCB}, s{sT2}
        """)
        srd_consts(k, SG, D*F*2)
        srd_consts(k, SU, D*F*2+1024)
    k.label(k.L('ld'))
    k.vm = []
    c_setup_scalar()
    k.e(f"""
    v_bfe_u32 v6, v0, 3, 3
    v_bfe_u32 v7, v0, 6, 2
    v_lshl_add_u32 v6, v7, 4, v6
    v_and_b32 v8, 7, v0
    v_bfe_u32 v7, v0, 4, 1
    v_lshlrev_b32 v7, 2, v7
    v_xor_b32 v7, v7, v8
    v_mul_u32_u24 v2, 3584, v6
    v_lshl_add_u32 v2, v7, 4, v2
    v_add_u32 v3, {8*3584-2048}, v2
    s_lshl_b32 s{sWOFF}, s{sFB}, 7
    s_mul_i32 s{sT}, s{sCG}, {64*3584}
    s_add_u32 s{sWOFF}, s{sWOFF}, s{sT}
    s_mov_b32 s{sH}, s{sCG}
    s_and_b32 s{sT}, s{sW}, 3
    s_lshl_b32 m0, s{sT}, 12
    s_waitcnt lgkmcnt(0)
    s_sub_u32 s{SU}, s{SU}, 1024
    s_subb_u32 s{SU+1}, s{SU+1}, 0
    s_barrier
    """)
    for c in range(6):
        k.e(f"""
        buffer_load_dwordx4 v2, s[{SG}:{SG+3}], s{sWOFF} offen lds
        buffer_load_dwordx4 v2, s[{SU}:{SU+3}], s{sWOFF} offen offset:1024 lds
        buffer_load_dwordx4 v3, s[{SG}:{SG+3}], s{sWOFF} offen offset:2048 lds
        buffer_load_dwordx4 v3, s[{SU}:{SU+3}], s{sWOFF} offen offset:3072 lds
        """)
        if c < 5:
            k.e(f"""
            s_add_u32 m0, m0, 16384
            s_add_u32 s{sH}, s{sH}, 1
            s_cmp_eq_u32 s{sH}, 7
            s_cselect_b32 s{sT}, -6, 1
            s_mul_i32 s{sT}, s{sT}, {64*3584}
            s_add_u32 s{sWOFF}, s{sWOFF}, s{sT}
            """)
        if c == 2: k.e("s_barrier")
    k.e("s_barrier")
    k.e(f"s_branch {k.L('cj')}")
    k.label(k.L('cc'))
    c_setup_scalar()
    k.e(f"""
    s_sub_u32 s{SU}, s{SU}, 1024
    s_subb_u32 s{SU+1}, s{SU+1}, 0
    """)
    k.label(k.L('cj'))
    k.vm = []
    k.stamp(0)
    HFR, ACC, WF, STR, CSR = 16, 128, 192, 208, 224
    k.e(f"""
    s_and_b32 s{sT}, s2, 4
    s_add_u32 s{sT}, s{sT}, s{sQ}
    s_lshl_b32 s{sRT}, s{sT}, 3
    s_add_u32 s{sRT}, s{sRT}, s{sW}
    s_mul_i32 s{sPQ0}, s{sT}, 28
    s_add_u32 s{sPOL}, s{sPQ0}, s{sFB}
    s_lshl_b32 s{sPOL}, s{sPOL}, 7
    s_add_u32 s{sPOL}, s{sPOL}, {FL_OFF}
    s_mul_i32 s{sH}, s{sRT}, 28672
    s_lshl_b32 s{sT}, s{sCG}, 12
    s_add_u32 s{sH}, s{sH}, s{sT}
    s_add_u32 s{sH}, s{sH}, {HF_OFF}
    """)
    AW0, AW1 = 10, 11
    k.e(f"""
    s_add_u32 s{sT}, s{sCG}, 6
    s_cmp_ge_u32 s{sT}, 7
    s_cselect_b32 s{sT2}, 7, 0
    s_sub_u32 s{sT}, s{sT}, s{sT2}
    s_mul_i32 s{sT}, s{sT}, {64*3584}
    s_lshl_b32 s{sWOFF}, s{sFB}, 7
    s_add_u32 s{sWOFF}, s{sWOFF}, s{sT}
    v_lshrrev_b32 v6, 3, v0
    v_and_b32 v8, 7, v0
    v_bfe_u32 v7, v0, 4, 1
    v_lshlrev_b32 v4, 2, v7
    v_xor_b32 v4, v4, v8
    v_mul_u32_u24 v3, 3584, v6
    v_lshl_add_u32 v3, v4, 4, v3
    v_bfe_u32 v7, v0, 7, 2
    v_mul_u32_u24 v7, 448, v7
    v_bfe_u32 v6, v0, 3, 3
    v_add_u32 v6, v6, v7
    v_bfe_u32 v7, v0, 6, 1
    v_lshl_add_u32 v6, v7, 4, v6
    v_mul_u32_u24 v14, 896, v6
    v_lshl_add_u32 v14, v4, 4, v14
    v_add_u32 v15, {8*896-1024}, v14
    v_bfe_u32 v7, v0, 2, 2
    v_lshlrev_b32 v6, 12, v9
    v_lshl_add_u32 v6, v7, 7, v6
    v_lshrrev_b32 v7, 1, v7
    v_lshl_add_u32 v6, v7, 6, v6
    v_and_b32 v7, 1, v0
    v_lshl_add_u32 v6, v7, 5, v6
    v_bfe_u32 v7, v0, 4, 1
    v_lshl_add_u32 v6, v7, 4, v6
    v_bfe_u32 v7, v0, 1, 1
    v_lshl_add_u32 v{AW0}, v7, 3, v6
    v_xor_b32 v{AW1}, 64, v{AW0}
    v_add_u32 v12, 0x10000, v{AW0}
    v_add_u32 v13, 0x10000, v{AW1}
    v_and_b32 v6, 31, v0
    v_mul_u32_u24 v4, 1792, v9
    v_lshl_add_u32 v4, v6, 3, v4
    v_bfe_u32 v7, v0, 2, 1
    v_bfe_u32 v8, v0, 3, 2
    v_lshlrev_b32 v7, 4, v7
    v_lshl_add_u32 v7, v8, 2, v7
    v_and_b32 v8, 3, v0
    v_add_lshl_u32 v2, v7, v8, 2
    s_mul_i32 s{sT}, s{sQ}, 7
    s_lshr_b32 s{sT}, s{sT}, 1
    s_lshl_b32 s{sDCG}, s{sCB}, 1
    s_add_u32 s{sDCG}, s{sDCG}, s{sT}
    s_cmp_ge_u32 s{sDCG}, 14
    s_cselect_b32 s{sT}, 14, 0
    s_sub_u32 s{sDCG}, s{sDCG}, s{sT}
    s_mul_i32 s{sT}, s{sDCG}, {32*896}
    s_add_u32 s{sDW}, s{sWO}, s{sT}
    s_mov_b32 s{sROT}, s{sDCG}
    s_mul_i32 s{sT}, s{sRT}, 3584
    s_add_u32 s{sT}, s{sT}, {ST_OFF}
    s_lshl_b32 s{sT2}, s{sFB}, 8
    s_add_u32 s{sT2}, s{sT2}, {CS_OFF}
    s_add_u32 s{sKV}, s{sT2}, 7168
    """)
    srd_consts(k, SD, F*D*2)
    srd_consts(k, SO, S*D*2)
    def h_loads(c):
        L = []
        for j in range(4):
            def hj(j=j):
                if j == 0 and c > 0:
                    k.e(f"""
                    s_add_u32 s{sCG}, s{sCG}, 1
                    s_cmp_eq_u32 s{sCG}, 7
                    s_cselect_b32 s{sT3}, -6, 1
                    s_lshl_b32 s{sT3}, s{sT3}, 12
                    s_add_u32 s{sH}, s{sH}, s{sT3}
                    """)
                k.vop(f"buffer_load_dwordx4 {vr(HFR+16*c+4*j,4)}, v1, s[{SWS}:{SWS+3}], s{sH} offen offset:{j*1024} sc1", f"h{c}")
            L.append(hj)
        return L
    dslot = [7, 8, 9, 0, 1, 2, 3, 4, 5, 6, 7, 8, 9, 0]
    def wd_dma(j):
        k.e(f"""
        s_lshl_b32 s{sT3}, s{sW}, 11
        s_add_u32 m0, s{sT3}, {dslot[j]*16384}
        """)
        if j > 0:
            k.e(f"""
            s_add_u32 s{sDCG}, s{sDCG}, 1
            s_cmp_eq_u32 s{sDCG}, 14
            s_cselect_b32 s{sT3}, -13, 1
            s_mul_i32 s{sT3}, s{sT3}, {32*896}
            s_add_u32 s{sDW}, s{sDW}, s{sT3}
            """)
        else:
            k.e("s_nop 0")
        k.vop(f"buffer_load_dwordx4 v14, s[{SD}:{SD+3}], s{sDW} offen lds", f"w{j}")
        k.vop(f"buffer_load_dwordx4 v15, s[{SD}:{SD+3}], s{sDW} offen offset:1024 lds", f"w{j}")
    def w6():
        k.e(f"""
        s_lshl_b32 s{sT3}, s{sW}, 11
        s_add_u32 m0, s{sT3}, {6*16384}
        s_nop 0
        """)
        k.vop(f"buffer_load_dwordx4 v3, s[{SG}:{SG+3}], s{sWOFF} offen lds", "wc6")
        k.vop(f"buffer_load_dwordx4 v3, s[{SU}:{SU+3}], s{sWOFF} offen offset:1024 lds", "wc6")
    def early():
        w6()
        for j in range(EARLY-1): wd_dma(j)
    poll(k, 'p1', sPOL, 28, 5, 6, SWS, sCNT, sW, 4, work=early if EARLY else None)
    k.stamp(1)
    for f in h_loads(0): f()
    if env('YPRIO', 0):
        k.e(f"s_cmp_lt_u32 s{sW}, 4\ns_cbranch_scc1 {k.L('np')}\ns_setprio {env('YPRIO', 0)}")
        k.label(k.L('np'))
    k.e("s_barrier")
    for f in h_loads(1): f()
    stl = []
    for u in range(7):
        stl.append(lambda u=u: k.vop(f"buffer_load_dwordx2 {vr(STR+2*u,2)}, v4, s[{SWS}:{SWS+3}], s{sT} offen offset:{u*256} sc1", "st"))
    for q in range(4):
        stl.append(lambda q=q: k.vop(f"buffer_load_dword v{CSR+q}, v2, s[{SWS}:{SWS+3}], s{sT2 if q < 2 else sKV} offen offset:{(q&1)*128} sc1", "st"))
    KS = CKS
    units = [(kap, tau) for kap in range(KS) for tau in range(4)]
    units += [(kap, tau) for kap in range(KS, 28) for tau in (0, 2)] + [('x', 0), ('x', 2)]
    nA = len(units)
    units += [(kap, tau) for kap in range(KS, 28) for tau in (1, 3)] + [('x', 1), ('x', 3)]
    NU = len(units)
    DEP = 4
    T, XE, WE = 228, 232, 236
    C1, IR2 = STR+4, STR+2
    g6 = next(u for u in range(NU) if units[u][0] != 'x' and units[u][0] >= 24) - DEP
    assert g6 >= 4*KS and KS >= 16
    pend = []
    for c in range(2, 7):
        for i, f in enumerate(h_loads(c)):
            pend.append(((c-2)*HPACE + 2*i, f))
    e0 = 5*HPACE
    if not EARLY: pend.append((e0, w6))
    for i, f in enumerate(stl): pend.append((e0+2+i, f))
    for j in range(max(0, EARLY-1), 3): pend.append((e0+14+4*j, lambda j=j: wd_dma(j)))
    for j in range(3, 7): pend.append((g6+2+5*(j-3), lambda j=j: wd_dma(j)))
    WT = 40
    def wt_load(j, i):
        if i == 0:
            k.e(f"""
            s_add_u32 s{sLN2}, s{sROT}, {j}
            s_cmp_ge_u32 s{sLN2}, 14
            s_cselect_b32 s{sT3}, 14, 0
            s_sub_u32 s{sLN2}, s{sLN2}, s{sT3}
            s_mul_i32 s{sLN2}, s{sLN2}, {32*896}
            s_add_u32 s{sLN2}, s{sLN2}, s{sWO}
            """)
        k.vop(f"buffer_load_dwordx4 {vr(WT+8*(j-10)+4*i,4)}, v{14+i}, s[{SD}:{SD+3}], s{sLN2} offen offset:{i*1024}", "wt")
    if WTR:
        for j in range(10, 14):
            for i in range(2):
                pend.append((g6+22+2*(2*(j-10)+i), lambda j=j, i=i: wt_load(j, i)))
    pend.sort(key=lambda x: x[0])
    kk = K("tmp")
    for u in range(1, 7):
        kk.e(f"v_add_f32 v{STR}, v{STR}, v{STR+2*u}")
        kk.e(f"v_add_f32 v{STR+1}, v{STR+1}, v{STR+2*u+1}")
    kk.e(f"""
    v_cmp_eq_u32 vcc, 0, v9
    v_mov_b32 v{STR+2}, v{STR}
    v_mov_b32 v{STR+3}, v{STR+1}
    v_cndmask_b32 v{CSR}, 0, v{CSR}, vcc
    v_cndmask_b32 v{CSR+1}, 0, v{CSR+1}, vcc
    v_permlane32_swap_b32 v{STR}, v{STR+2}
    v_permlane32_swap_b32 v{STR+1}, v{STR+3}
    v_cndmask_b32 v{CSR+2}, 0, v{CSR+2}, vcc
    v_cndmask_b32 v{CSR+3}, 0, v{CSR+3}, vcc
    v_add_f32 v{STR}, v{STR}, v{STR+2}
    v_add_f32 v{STR+1}, v{STR+1}, v{STR+3}
    v_mul_f32 v{STR}, 0x{INV_D|0x80000000:x}, v{STR}
    v_mul_f32 v{STR+1}, 0x{INV_D:x}, v{STR+1}
    v_fma_f32 v{STR+1}, -v{STR}, v{STR}, v{STR+1}
    v_max_f32 v{STR+1}, 0, v{STR+1}
    v_add_f32 v{STR+2}, 0x{EPS_LN:x}, v{STR+1}
    v_rsq_f32 v{STR+4}, v{STR+2}
    """)
    hilo_x(kk, XE, STR, T)
    kk.e(f"v_mov_b32 v{XE+2}, 0\nv_mov_b32 v{XE+3}, 0")
    kk.e(f"v_mul_f32 v{STR+4}, 0x{LOG2E|0x80000000:x}, v{STR+4}")
    for tau in range(4):
        hilo_w(kk, WE+4*tau, CSR+tau, T+1)
    kk.e(f"""
    s_mul_i32 s{sT}, s{sRT}, 114688
    s_lshl_b32 s{sT2}, s{sFB}, 12
    s_add_u32 s{sT}, s{sT}, s{sT2}
    s_add_u32 s{sT}, s{sT}, {ACT_OFF}
    """)
    side1 = [l.strip() for l in kk.lines]
    def epi(ct, packed):
        kk = K("tmp")
        O = 16 + 8*ct
        g, u = ACC+16*ct, ACC+32+16*ct
        for i in range(0, 16, 2):
            t = 32 + (i % 8)
            if packed:
                kk.e(f"v_pk_mul_f32 {vr(t,2)}, {vr(g+i,2)}, {vr(C1,2)} op_sel_hi:[1,0]")
                kk.e(f"v_pk_mul_f32 {vr(g+i,2)}, {vr(g+i,2)}, {vr(u+i,2)}")
                kk.e(f"v_exp_f32 v{t}, v{t}")
                kk.e(f"v_exp_f32 v{t+1}, v{t+1}")
                kk.e("s_nop 0")
                kk.e(f"v_pk_fma_f32 {vr(t,2)}, {vr(t,2)}, {vr(IR2,2)}, {vr(IR2,2)} op_sel_hi:[1,0,0]")
                kk.e(f"v_rcp_f32 v{t}, v{t}")
                kk.e(f"v_rcp_f32 v{t+1}, v{t+1}")
                kk.e("s_nop 0")
                kk.e(f"v_pk_mul_f32 {vr(g+i,2)}, {vr(g+i,2)}, {vr(t,2)}")
            else:
                kk.e(f"v_mul_f32 v{t}, v{g+i}, v{C1}")
                kk.e(f"v_mul_f32 v{t+1}, v{g+i+1}, v{C1}")
                kk.e(f"v_exp_f32 v{t}, v{t}")
                kk.e(f"v_mul_f32 v{g+i}, v{g+i}, v{u+i}")
                kk.e(f"v_exp_f32 v{t+1}, v{t+1}")
                kk.e(f"v_mul_f32 v{g+i+1}, v{g+i+1}, v{u+i+1}")
                kk.e(f"v_fma_f32 v{t}, v{t}, v{IR2}, v{IR2}")
                kk.e(f"v_fma_f32 v{t+1}, v{t+1}, v{IR2}, v{IR2}")
                kk.e(f"v_rcp_f32 v{t}, v{t}")
                kk.e(f"v_rcp_f32 v{t+1}, v{t+1}")
                kk.e(f"v_mul_f32 v{g+i}, v{g+i}, v{t}")
                kk.e(f"v_mul_f32 v{g+i+1}, v{g+i+1}, v{t+1}")
            kk.e(f"v_cvt_pk_bf16_f32 v{O+i//2}, v{g+i}, v{g+i+1}")
            if i % 8 == 6:
                f = i // 8
                kk.e(f"buffer_store_dwordx4 {vr(O+4*f,4)}, v1, s[{SWS}:{SWS+3}], s{sT} offen offset:{ct*2048+f*1024} sc1")
        return [l.strip() for l in kk.lines]
    side2 = epi(0, False)
    s1_start = nA - 2 - (len(side1)+3)//4 - 1
    assert s1_start > e0+2+len(stl)
    s2_start = nA + 3
    hw = set()
    gate = dict(done=False)
    def rd(u):
        kap, tau = units[u]
        if kap == 'x': return
        if kap >= 24 and not gate['done']:
            gate['done'] = True
            k.wait_vm("wc6")
            k.e("s_barrier")
            k.stamp(4)
        cc, tl, f = kap >> 2, (kap >> 1) & 1, kap & 1
        m, ct = tau >> 1, tau & 1
        o = cc*16384 + tl*8192 + f*2048 + m*1024
        a = AW0 + ct
        if o >= 0x10000: o -= 0x10000; a += 2
        for ri in range(2):
            k.e(f"ds_read_b64_tr_b16 {vr(bufof[u]+2*ri,2)}, v{a} offset:{o+ri*512}")
    free = [WF+4*i for i in range(4)] + [WE+4*i for i in range(CXB)]
    bufof = {}
    nxt = dict(u=0)
    def fill(u):
        while nxt['u'] < NU and (free or units[nxt['u']][0] == 'x'):
            v = nxt['u']
            if units[v][0] != 'x':
                bufof[v] = free.pop(0)
                rd(v)
            nxt['u'] += 1
    fill(-1)
    started = set()
    for u in range(NU):
        kap, tau = units[u]
        a = ACC+16*tau
        if kap == 'x':
            assert not side1
            k.e(f"v_mfma_f32_32x32x16_bf16 {vr(a,16)}, {vr(WE+4*tau,4)}, {vr(XE,4)}, {vr(a,16)}")
        else:
            if (kap >> 2) not in hw:
                hw.add(kap >> 2)
                k.wait_vm(f"h{kap>>2}")
                if kap == 0: k.stamp(2)
                if kap == 12: k.stamp(3)
            nout = sum(1 for v in range(u+1, nxt['u']) if units[v][0] != 'x')
            assert nout <= 7
            k.e(f"s_waitcnt lgkmcnt({2*nout})")
            k.e(f"v_mfma_f32_32x32x16_bf16 {vr(a,16)}, {vr(bufof[u],4)}, {vr(HFR+4*kap,4)}, {'0' if tau not in started else vr(a,16)}")
            started.add(tau)
            if bufof[u] < WE or u < CXE: free.append(bufof[u])
        fill(u)
        while pend and pend[0][0] <= u:
            pend.pop(0)[1]()
        if u >= s1_start and side1:
            if u == s1_start:
                k.wait_vm("st")
                k.e(f"s_mov_b32 s{sCNT}, 0x100000")
                k.label(k.L('csw'))
                k.e(f"""
                v_max_u32 v{T}, v{CSR}, v{CSR+1}
                v_max3_u32 v{T}, v{T}, v{CSR+2}, v{CSR+3}
                v_cmp_eq_u32 vcc, -1, v{T}
                s_cbranch_vccz {k.L('cswok')}
                s_sleep 4
                """)
                for q in range(4):
                    k.e(f"buffer_load_dword v{CSR+q}, v2, s[{SWS}:{SWS+3}], s{sT2 if q < 2 else sKV} offen offset:{(q&1)*128} sc1")
                k.e(f"""
                s_waitcnt vmcnt(0)
                s_sub_u32 s{sCNT}, s{sCNT}, 1
                s_cbranch_scc0 {k.L('csw')}
                """)
                k.label(k.L('cswok'))
            for _ in range(4):
                if side1: k.e(side1.pop(0))
        if u >= s2_start and side2:
            for _ in range(5 if len(side2) > 4*(NU-u) else 4):
                if side2: k.e(side2.pop(0))
    assert not pend
    k.stamp(5)
    for l in side2: k.e(l)
    k.e(f"""
    s_lshl_b32 s{sT2}, s{sPQ0}, 7
    s_add_u32 s{sT2}, s{sT2}, {FL_OFF+32768}
    """)
    k.nop(max(0, 10-len(side2)))
    for l in epi(1, True): k.e(l)
    k.stamp(6)
    k.e("s_waitcnt vmcnt(0)\ns_barrier")
    signal(k, 'sg2', sT2, 28, 7, 7, 8, SWS, sW, sFB)
    k.stamp(7)
    flush(k, SWS, 2, 8, 176)
    k.vm = []
    k.stamp(0)
    ACC, WF, HR, AW = 128, 160, 192, 196
    def AFR(j):
        if not WTR: return 16+8*j
        return 16+8*j if j < 3 else (72+8*(j-3) if j < 10 else 208+8*(j-10))
    RED = 1*16384
    for j in (7, 8, 9): wd_dma(j)
    k.e(f"""
    s_lshr_b32 s{sKH}, s{sW}, 1
    s_lshl_b32 s{sH}, s{sRB}, 1
    s_and_b32 s{sT2}, s{sW}, 1
    s_add_u32 s{sH}, s{sH}, s{sT2}
    s_lshl_b32 s{sT}, s{sH}, 2
    s_add_u32 s{sT}, s{sT}, s{sKH}
    s_mul_i32 s{sA}, s{sT}, 28672
    s_lshl_b32 s{sT}, s{sROT}, 11
    s_add_u32 s{sA}, s{sA}, s{sT}
    s_add_u32 s{sA}, s{sA}, {ACT_OFF}
    s_mul_i32 s{sT2}, s{sRB}, 7
    s_add_u32 s{sT2}, s{sT2}, s{sCB}
    s_lshl_b32 s{sT2}, s{sT2}, 7
    s_add_u32 s{sT2}, s{sT2}, {FL_OFF+32768}
    v_bfe_u32 v7, v0, 2, 2
    v_lshl_add_u32 v6, v9, 4, v7
    v_lshlrev_b32 v6, 7, v6
    v_bfe_u32 v5, v0, 7, 2
    v_lshl_add_u32 v6, v5, 12, v6
    v_lshrrev_b32 v7, 1, v7
    v_bfe_u32 v5, v0, 8, 1
    v_xor_b32 v7, v7, v5
    v_lshl_add_u32 v6, v7, 6, v6
    v_and_b32 v7, 1, v0
    v_lshl_add_u32 v6, v7, 5, v6
    v_bfe_u32 v7, v0, 4, 1
    v_bfe_u32 v5, v0, 7, 1
    v_xor_b32 v7, v7, v5
    v_lshl_add_u32 v6, v7, 4, v6
    v_bfe_u32 v7, v0, 1, 1
    v_lshl_add_u32 v{AW}, v7, 3, v6
    v_xor_b32 v{AW+1}, 64, v{AW}
    v_add_u32 v{AW+2}, 0x10000, v{AW}
    v_add_u32 v{AW+3}, 0x10000, v{AW+1}
    v_add_u32 v{AW+4}, 0x20000, v{AW}
    v_add_u32 v{AW+5}, 0x20000, v{AW+1}
    s_mul_i32 s{sT}, s{sH}, 28
    s_lshl_b32 s{sT3}, s{sCB}, 2
    s_add_u32 s{sT}, s{sT}, s{sT3}
    s_add_u32 s{sT}, s{sT}, s{sKH}
    s_lshl_b32 s{sT}, s{sT}, 10
    s_add_u32 s{sT}, s{sT}, {HF_OFF}
    buffer_load_dwordx4 {vr(HR,4)}, v1, s[{SWS}:{SWS+3}], s{sT} offen sc1
    v_lshrrev_b32 v5, 6, v0
    s_movk_i32 s{sT3}, 6144
    v_add_u32 v6, {RED}, v1
    v_mad_u32_u24 v10, v5, s{sT3}, v6
    """)
    for qd in range(1, 4):
        k.e(f"v_xor_b32 v{10+qd}, {2*qd}, v5")
        k.e(f"v_mad_u32_u24 v{10+qd}, v{10+qd}, s{sT3}, v6")
    k.e(f"""
    v_and_b32 v5, 31, v0
    v_mul_u32_u24 v4, 896, v5
    v_lshl_add_u32 v4, v9, 5, v4
    s_mul_i32 s{sT}, s{sH}, {32*896}
    s_add_u32 s{sT}, s{sT}, s{sWO}
    s_lshr_b32 s{sT3}, s{sKH}, 1
    s_lshl_b32 s{sT3}, s{sT3}, 6
    s_add_u32 s{sT}, s{sT}, s{sT3}
    s_and_b32 s{sT3}, s{sKH}, 1
    s_lshl_b32 s{sT3}, s{sT3}, 4
    s_add_u32 s{sT}, s{sT}, s{sT3}
    """)
    k.e(f"""
    v_lshrrev_b32 v5, 6, v0
    v_lshl_add_u32 v202, v5, 11, v1
    v_add_u32 v203, {7*16384}, v202
    """)
    poll(k, 'p2', sT2, 28, 2, 3, SWS, sCNT, sW, 4)
    k.stamp(1)
    def lda(j):
        if j > 0:
            k.e(f"""
            s_add_u32 s{sROT}, s{sROT}, 1
            s_cmp_eq_u32 s{sROT}, 14
            s_cselect_b32 s{sT3}, -13, 1
            s_lshl_b32 s{sT3}, s{sT3}, 11
            s_add_u32 s{sA}, s{sA}, s{sT3}
            """)
        for f in range(2):
            k.vop(f"buffer_load_dwordx4 {vr(AFR(j)+4*f,4)}, v1, s[{SWS}:{SWS+3}], s{sA} offen offset:{f*1024} sc1", f"a{j}")
    NBUF = 6
    def reads(u):
        j, f, ct = u >> 2, (u >> 1) & 1, u & 1
        o = dslot[j]*16384 + f*1024
        a = AW + ct + 2*(o >> 16)
        o &= 0xffff
        b = WF + 4*(u % NBUF)
        for ri in range(2):
            k.e(f"ds_read_b64_tr_b16 {vr(b+2*ri,2)}, v{a} offset:{o+ri*512}")
    for j in range(APRE): lda(j)
    DEP = NBUF-1
    NU = 56
    wq = []
    for u in range(DEP): reads(u)
    for u in range(NU):
        j, f, ct = u >> 2, (u >> 1) & 1, u & 1
        if u+DEP < NU:
            if (u+DEP) % 4 == 0:
                jn = (u+DEP)//4
                if DX == 0:
                    if jn == 6:
                        k.e("s_barrier")
                        k.stamp(3)
                        if WTR: wq = [(jj, i) for jj in (10, 11, 12, 13) for i in range(2)]
                        else:
                            for jj in (10, 11, 12, 13): wd_dma(jj)
                    if jn == 10:
                        if WTR: assert not wq
                        else: k.wait_vm("w13")
                        k.e("s_barrier")
                        k.stamp(4)
                else:
                    if jn == 4:
                        k.e("s_barrier")
                        for jj in (10, 11): wd_dma(jj)
                    if jn == 6:
                        k.e("s_barrier")
                        k.stamp(3)
                        for jj in (12, 13): wd_dma(jj)
                    if jn == 10:
                        k.wait_vm("w11")
                        k.e("s_barrier")
                        k.stamp(4)
                    if jn == 12:
                        k.wait_vm("w13")
                        k.e("s_barrier")
            reads(u+DEP)
        if u % 4 == 0:
            k.wait_vm(f"a{j}")
            if u == 0: k.stamp(2)
        k.e(f"s_waitcnt lgkmcnt({2*min(DEP, NU-1-u)})")
        a = ACC+16*ct
        k.e(f"v_mfma_f32_32x32x16_bf16 {vr(a,16)}, {vr(WF+4*(u%NBUF),4)}, {vr(AFR(j)+4*f,4)}, {'0' if u < 2 else vr(a,16)}")
        if u % 4 == 3 and j + APRE < 14:
            lda(j + APRE)
        if wq:
            jj, i = wq.pop(0)
            sl = dslot[jj]
            k.e(f"ds_write_b128 v{203 if sl >= 7 else 202}, {vr(WT+8*(jj-10)+4*i,4)} offset:{(sl-7 if sl >= 7 else sl)*16384+i*1024}")
    k.stamp(5)
    for i in range(4):
        k.e(f"v_lshlrev_b32 v{16+2*i}, 16, v{HR+i}")
        k.e(f"v_and_b32 v{17+2*i}, 0xffff0000, v{HR+i}")
    k.nop(3)
    for qd in range(1, 4):
        for a in range(2):
            k.e(f"ds_write_b128 v{10+qd}, {vr(ACC+8*qd+4*a,4)} offset:{(qd-1)*2048+a*1024}")
    for i in range(0, 8, 2):
        k.e(f"v_pk_add_f32 {vr(ACC+i,2)}, {vr(ACC+i,2)}, {vr(16+i,2)}")
    k.e("s_waitcnt lgkmcnt(0)\ns_barrier")
    for n in range(6):
        k.e(f"ds_read_b128 {vr(24+4*n,4)}, v10 offset:{n*1024}")
    for qd in range(3):
        k.e(f"s_waitcnt lgkmcnt({4-2*qd})")
        for i in range(0, 8, 2):
            k.e(f"v_pk_add_f32 {vr(ACC+i,2)}, {vr(ACC+i,2)}, {vr(24+8*qd+i,2)}")
    for i in range(4):
        k.e(f"v_cvt_pk_bf16_f32 v{16+i}, v{ACC+2*i}, v{ACC+2*i+1}")
    k.e(f"buffer_store_dwordx4 v[16:19], v4, s[{SO}:{SO+3}], s{sT} offen {os.environ.get('OSF','')}")
    k.stamp(6)
    k.end(SWS, 3, 7)
    k.label(k.L('cs'))
    k.e(f"""
    s_load_dwordx2 s[{SD}:{SD+1}], s[0:1], 48
    s_mov_b32 s{SD+2}, {F*D*2}
    s_mov_b32 s{SD+3}, 0x20000
    s_sub_u32 s{sCB}, s2, 224
    s_mul_i32 s{sQ}, s{sCB}, {392*128}
    v_min_u32 v2, 391, v0
    v_lshlrev_b32 v2, 7, v2
    s_cmp_lt_u32 s2, 252
    s_cbranch_scc1 {k.L('cs1')}
    s_waitcnt lgkmcnt(0)
    buffer_load_dword v100, v2, s[{SD}:{SD+3}], s{sQ} offen
    s_endpgm
    """)
    k.label(k.L('cs1'))
    k.e(f"""
    v_lshrrev_b32 v5, 6, v0
    v_bfe_u32 v6, v0, 3, 3
    v_readfirstlane_b32 s{sW}, v5
    v_and_b32 v7, 7, v0
    v_mul_u32_u24 v1, 3584, v6
    v_lshl_add_u32 v1, v7, 4, v1
    s_sub_u32 s{sCB}, s2, 224
    s_and_b32 s{sT}, s{sW}, 3
    s_mul_i32 s{sT}, s{sT}, {112*3584}
    s_lshl_b32 s{sT2}, s{sCB}, 7
    s_add_u32 s{sT}, s{sT}, s{sT2}
    s_mov_b32 s{sEPS}, 0x3f80
    s_mov_b32 s{sONE}, 0x3f800000
    """)
    srd_consts(k, SW, D*F*2)
    srd_consts(k, SWS, WSZ)
    k.e(f"""
    s_waitcnt lgkmcnt(0)
    s_cmp_ge_u32 s{sW}, 4
    s_cselect_b32 s{SW}, s{SU}, s{SG}
    s_cselect_b32 s{SW+1}, s{SU+1}, s{SG+1}
    """)
    for u in range(14):
        k.e(f"buffer_load_dwordx4 {vr(16+4*u,4)}, v1, s[{SW}:{SW+3}], s{sT} offen")
        k.e(f"s_add_u32 s{sT}, s{sT}, {8*3584}")
    for i in range(8):
        k.e(f"v_mov_b32 v{8+i}, 0")
    for u in range(14):
        k.e(f"s_waitcnt vmcnt({13-u})")
        for j in range(4):
            k.e(f"v_dot2c_f32_bf16 v{8+2*j}, s{sEPS}, v{16+4*u+j}")
            k.e(f"v_dot2c_f32_bf16 v{9+2*j}, s{sONE}, v{16+4*u+j}")
    k.e(f"""
    s_cmp_eq_u32 s{sW}, 0
    s_cbranch_scc1 {k.L('cs2')}
    buffer_load_dword v100, v2, s[{SD}:{SD+3}], s{sQ} offen
    """)
    k.label(k.L('cs2'))
    k.e(f"""
    v_mov_b32 v101, v2
    v_lshlrev_b32 v2, 5, v0
    v_and_b32 v4, 63, v0
    v_lshlrev_b32 v4, 2, v4
    v_add_u32 v3, 8192, v4
    s_nop 0
    ds_write_b128 v2, v[8:11]
    ds_write_b128 v2, v[12:15] offset:16
    s_waitcnt lgkmcnt(0)
    s_barrier
    s_cmp_ge_u32 s{sW}, 1
    s_cbranch_scc1 {k.L('end')}
    """)
    for m in range(2):
        for h in range(2):
            for i in range(8):
                k.e(f"ds_read2st64_b32 {vr(16+32*m+16*h+2*i,2)}, v{4 if m == 0 else 3} offset0:{16*h+2*i} offset1:{16*h+2*i+1}")
            k.e("s_waitcnt lgkmcnt(0)")
    k.e(f"""
    s_lshl_b32 s{sT}, s{sCB}, 8
    s_add_u32 s{sT}, s{sT}, {CS_OFF}
    s_add_u32 s{sT2}, s{sT}, 7168
    """)
    for m in range(2):
        for stp in (16, 8, 4, 2, 1):
            for i in range(stp):
                k.e(f"v_add_f32 v{16+32*m+i}, v{16+32*m+i}, v{16+32*m+i+stp}")
    k.e(f"""
    buffer_store_dword v16, v4, s[{SWS}:{SWS+3}], s{sT} offen sc1
    buffer_store_dword v48, v4, s[{SWS}:{SWS+3}], s{sT2} offen sc1
    buffer_load_dword v100, v101, s[{SD}:{SD+3}], s{sQ} offen
    """)
    k.end(SWS, 1, 1)
    k.label(k.L('end'))
    k.e("s_endpgm")
    return k, dict(vgpr=256, sgpr=80, grid=256, block=512, lds=163840)

if __name__ == "__main__":
    from gen5a import gen_a5
    from gen6a import gen_a6
    from gen7a import gen_a7
    from gen8a import gen_a8
    ks = [{5: gen_a5, 6: gen_a6, 7: gen_a7, 8: gen_a8}[env('AV', 8)](), gen_f()]
    open(sys.argv[1] if len(sys.argv) > 1 else "sequential_preLN__linear_attn_block__swiglu_ffn__prompt.s", "w").write(build(ks))
```

```python
from gen3 import *

def gen_a8():
    k = K("ka")
    SX, SW, SWS, SDB, SP = 4, 8, 12, 16, 32
    sW, sRB, sH, sx, skv, sq, sT, sT2, sEPS, sONE, sLN2, sCX, sCV, sROT = 20, 21, 22, 23, 24, 25, 26, 27, 28, 29, 30, 31, 56, 57
    XS, NXS = 0, 7
    VS, NVS = 114688, 5
    WQ = 0
    MISC = 155648
    PART = 32768
    CSX = MISC + 2048
    CNT = MISC + 6144
    DUM = 190
    AH = 2
    CPL = env('CPL', 8)
    QX = env('QX', 1)
    QE = env('QE', 0)
    k.stamp(0)
    k.e(f"""
    s_cmp_ge_u32 s2, 256
    s_cbranch_scc1 {k.L('end')}
    s_load_dwordx2 s[{SX}:{SX+1}], s[0:1], 0
    s_load_dwordx2 s[{SW}:{SW+1}], s[0:1], 8
    s_load_dwordx2 s[{SDB}:{SDB+1}], s[0:1], 64
    s_load_dwordx2 s[{SWS}:{SWS+1}], s[0:1], 72
    s_load_dwordx2 s[{SP}:{SP+1}], s[0:1], 16
    """)
    def cpf():
        if CPF:
            k.e(f"""
            s_getpc_b64 s[36:37]
            Lka_pc:
            s_lshr_b32 s{sT2}, s2, 3
            v_min_u32 v5, {CPL-1}, v0
            v_lshlrev_b32 v5, 7, v5
            s_mul_i32 s{sT}, s{sT2}, {CPL*128}
            v_add_u32 v5, s{sT}, v5
            v_min_u32 v5, Lcode_end-Lka_pc-4, v5
            v_cmp_gt_u32 vcc, {CPL}, v0
            s_and_saveexec_b64 s[38:39], vcc
            s_cbranch_execz {k.L('nocpf')}
            global_load_dword v{DUM}, v5, s[36:37]
            """)
            k.label(k.L('nocpf'))
            k.e("s_mov_b64 exec, -1")
    PFP = env('PFP', 0)
    if PFP == 0: cpf()
    k.e(f"""
    v_lshrrev_b32 v5, 6, v0
    v_lshrrev_b32 v6, 3, v0
    v_readfirstlane_b32 s{sW}, v5
    v_and_b32 v7, 0x38, v6
    v_add_u32 v7, v6, v7
    v_and_b32 v8, 7, v0
    v_bfe_u32 v9, v0, 4, 2
    v_xor_b32 v9, v8, v9
    v_mul_u32_u24 v1, 896, v7
    v_lshl_add_u32 v1, v9, 4, v1
    v_xor_b32 v2, 64, v1
    v_add_u32 v2, 6144, v2
    s_bfe_u32 s{sRB}, s2, 0x20001
    s_lshl_b32 s{sRB}, s{sRB}, 2
    s_lshr_b32 s{sT}, s2, 6
    s_add_u32 s{sRB}, s{sRB}, s{sT}
    s_bfe_u32 s{sT2}, s2, 0x30003
    s_and_b32 s{sH}, s2, 1
    s_lshl_b32 s{sH}, s{sH}, 3
    s_add_u32 s{sH}, s{sH}, s{sT2}
    s_lshl_b32 s{sT}, s{sT}, 1
    s_add_u32 s{sT}, s{sT}, s{sT2}
    """)
    div7(k, sT2, sROT, sT)
    k.e(f"""
    s_mul_i32 s{sx}, s{sRB}, {128*896}
    s_lshl_b32 s{sT}, s{sROT}, 7
    s_add_u32 s{sx}, s{sx}, s{sT}
    s_mov_b32 s{sCX}, s{sROT}
    s_lshl_b32 m0, s{sW}, 11
    """)
    srd_consts(k, SX, S*D*2)
    srd_consts(k, SW, D*3*D*2)
    srd_consts(k, SP, D*D*2)
    k.e(f"""
    v_and_b32 v5, 63, v0
    v_min_u32 v11, 36, v5
    s_mul_i32 s{sT}, s2, 37
    v_add_lshl_u32 v11, v11, s{sT}, 7
    s_waitcnt lgkmcnt(0)
    """)
    k.stamp(1)
    def wtouch():
        if WPF:
            k.e(f"""
            s_cmp_lg_u32 s{sW}, 3
            s_cbranch_scc1 {k.L('nt1')}
            buffer_load_dword v{DUM}, v11, s[{SW}:{SW+3}], 0 offen
            """)
            k.label(k.L('nt1'))
    if PFP == 0: wtouch()
    def issue_x(c):
        if c > 0:
            k.e(f"""
            s_lshl_b32 s{sT}, s{sW}, 11
            s_add_u32 m0, s{sT}, {XS + (c % NXS)*16384}
            s_add_u32 s{sCX}, s{sCX}, 1
            s_cmp_eq_u32 s{sCX}, 7
            s_cselect_b32 s{sT}, -6, 1
            s_lshl_b32 s{sT}, s{sT}, 7
            s_add_u32 s{sx}, s{sx}, s{sT}
            """)
        k.vop(f"buffer_load_dwordx4 v1, s[{SX}:{SX+3}], s{sx} offen lds", f"s{c}")
        k.vop(f"buffer_load_dwordx4 v2, s[{SX}:{SX+3}], s{sx} offen offset:1024 lds", f"s{c}")
    def issue_v(c):
        k.e(f"""
        s_lshl_b32 s{sT}, s{sW}, 10
        s_add_u32 m0, s{sT}, {VS + (c % NVS)*8192}
        """)
        if c > 0:
            k.e(f"""
            s_add_u32 s{sCV}, s{sCV}, 1
            s_cmp_eq_u32 s{sCV}, 7
            s_cselect_b32 s{sT}, -6, 1
            s_mul_i32 s{sT}, s{sT}, {64*2688}
            s_add_u32 s{skv}, s{skv}, s{sT}
            """)
        else:
            k.e("s_nop 0")
        k.vop(f"buffer_load_dwordx4 v3, s[{SW}:{SW+3}], s{skv} offen lds", f"s{c+AH}")
    def issue_stage(s):
        if s <= 6: issue_x(s)
        if AH <= s <= 6+AH: issue_v(s-AH)
    def issue_after(s):
        if s+3 <= 6: issue_x(s+3)
        if AH <= s+3 <= 6+AH: issue_v(s+3-AH)
    srd_consts(k, SWS, WS_USED)
    k.e(f"""
    s_and_b32 s{sT}, s2, 0xfffffff1
    s_cmp_lg_u32 s{sT}, 0
    s_cbranch_scc1 {k.L('nozero')}
    v_mov_b32 v12, 0
    v_mov_b32 v13, 0
    v_mov_b32 v14, 0
    v_mov_b32 v15, 0
    v_lshlrev_b32 v10, 4, v0
    s_lshl_b32 s{sT}, s2, 12
    buffer_store_dwordx4 v[12:15], v10, s[{SWS}:{SWS+3}], s{sT} offen sc1
    """)
    k.label(k.L('nozero'))
    issue_stage(0)
    k.e("s_barrier")
    issue_stage(1)
    if PFP == 1: wtouch(); cpf()
    k.e(f"""
    v_bfe_u32 v9, v0, 4, 1
    v_lshlrev_b32 v9, 2, v9
    v_xor_b32 v9, v8, v9
    v_mul_u32_u24 v3, 2688, v6
    v_and_b32 v8, 3, v9
    v_lshl_add_u32 v3, v8, 4, v3
    v_lshrrev_b32 v9, 2, v9
    v_mul_u32_u24 v9, 896, v9
    v_add_u32 v3, v3, v9
    s_mul_i32 s{sq}, s{sH}, 56
    s_and_b32 s{sq}, s{sq}, -16
    s_mul_i32 s{sT}, s{sROT}, {64*2688}
    s_add_u32 s{skv}, s{sq}, s{sT}
    s_add_u32 s{skv}, s{skv}, 896
    s_mov_b32 s{sCV}, s{sROT}
    s_xor_b32 s{sq}, s{sH}, {QX}
    s_mul_i32 s{sq}, s{sq}, 56
    s_and_b32 s{sq}, s{sq}, -16
    """)
    k.e("s_barrier")
    issue_stage(2)
    if PFP == 2: wtouch(); cpf()
    srd_consts(k, SDB, 256)
    k.e(f"""
    s_mov_b32 s{sEPS}, 0x{EPS_PHI_L:x}
    s_mov_b32 s{sONE}, 0x{ONES_BF:x}
    s_mov_b32 s{sLN2}, 0x{LN2:x}
    v_mov_b32 v12, 0
    v_mov_b32 v13, 0
    v_mov_b32 v14, 0
    v_mov_b32 v15, 0
    v_mov_b32 v10, {CNT}
    ds_write_b128 v10, v[12:15]
    s_cmp_lt_u32 s{sW}, 4
    s_cbranch_scc1 {k.L('nozf')}
    v_and_b32 v10, 255, v0
    v_lshlrev_b32 v10, 4, v10
    s_lshr_b32 s{sT}, s{sRB}, 2
    s_or_b32 s{sT}, s{sT}, s{sH}
    s_cmp_lg_u32 s{sT}, 0
    s_cbranch_scc1 {k.L('nocs')}
    s_lshl_b32 s{sT}, s{sRB}, 12
    s_add_u32 s{sT}, s{sT}, {CS_OFF}
    v_mov_b32 v16, -1
    v_mov_b32 v17, -1
    v_mov_b32 v18, -1
    v_mov_b32 v19, -1
    buffer_store_dwordx4 v[16:19], v10, s[{SWS}:{SWS+3}], s{sT} offen sc1
    """)
    k.label(k.L('nocs'))
    k.e(f"""
    s_cmp_lg_u32 s{sH}, 14
    s_cbranch_scc1 {k.L('nozf')}
    s_lshl_b32 s{sT}, s{sRB}, 12
    s_add_u32 s{sT}, s{sT}, {FL_OFF}
    buffer_store_dwordx4 v[12:15], v10, s[{SWS}:{SWS+3}], s{sT} offen sc1
    """)
    k.label(k.L('nozf'))
    AX = 172
    k.e(f"""
    v_and_b32 v8, 31, v0
    v_bfe_u32 v9, v0, 5, 1
    v_bfe_u32 v14, v0, 6, 2
    v_lshl_add_u32 v15, v14, 5, v8
    v_lshlrev_b32 v10, 7, v15
    v_bfe_u32 v11, v8, 1, 3
    v_xor_b32 v11, v11, v9
    v_lshlrev_b32 v12, 1, v14
    v_xor_b32 v11, v11, v12
    v_mov_b32 v7, 1
    """)
    for p in range(4):
        k.e(f"v_xor_b32 v12, {2*p}, v11")
        k.e(f"v_lshl_add_u32 v{AX+p}, v12, 4, v10")
    k.e(f"v_add_u32 v{AX+4}, 0x10000, v{AX}\nv_add_u32 v{AX+5}, 0x10000, v{AX+1}\nv_add_u32 v{AX+6}, 0x10000, v{AX+2}\nv_add_u32 v{AX+7}, 0x10000, v{AX+3}")
    def xread(dst, c, p):
        o = XS + (c % NXS)*16384
        k.e(f"ds_read_b128 {vr(dst,4)}, v{AX+p+4*(o >> 16)} offset:{o & 0xffff}")
    def arrive(i):
        k.e(f"s_mov_b64 exec, 1\nds_add_u32 v6, v7 offset:{4*i}\ns_mov_b64 exec, -1")
    def lwait(name, i, target, vt):
        k.label(k.L(name))
        k.e(f"""
        ds_read_b32 v{vt}, v6 offset:{4*i}
        s_waitcnt lgkmcnt(0)
        v_cmp_gt_u32 vcc, {target}, v{vt}
        s_cbranch_vccnz {k.L(name)}
        """)
    k.e(f"""
    v_mov_b32 v6, {CNT}
    s_waitcnt lgkmcnt(0)
    s_cmp_ge_u32 s{sW}, 4
    s_cbranch_scc1 {k.L('q')}
    """)
    vm_split = list(k.vm)
    def wpf(qside):
        if not WPF or not qside: return
        k.e(f"""
        s_cmp_ge_u32 s{sW}, 6
        s_cbranch_scc1 {k.L('nopf')}
        s_lshr_b32 s{sT}, s2, 3
        s_lshl_b32 s{sT}, s{sT}, 1
        s_add_u32 s{sT}, s{sT}, s{sW}
        s_sub_u32 s{sT}, s{sT}, 4
        s_mul_i32 s{sT}, s{sT}, 49
        v_and_b32 v5, 63, v0
        v_min_u32 v5, 48, v5
        v_add_lshl_u32 v5, v5, s{sT}, 7
        buffer_load_dword v{DUM}, v5, s[{SP}:{SP+3}], 0 offen
        """)
        k.label(k.L('nopf'))
    ACK, ACV = 16, 32
    BUF = [48, 60, 72]
    AWK, AWV = 152, 156
    CSK, CSV = 160, 162
    RL, XE, WEK, WEV = 84, 100, 104, 108
    PKF, VF, KVA, T = 112, 120, 128, 144
    k.e(f"""
    s_setprio 2
    v_bfe_u32 v11, v0, 2, 2
    v_lshl_add_u32 v10, v9, 3, v11
    v_lshlrev_b32 v10, 7, v10
    v_bfe_u32 v12, v0, 4, 1
    v_and_b32 v13, 3, v0
    v_lshl_add_u32 v12, v12, 2, v13
    s_and_b32 s{sT}, s{sH}, 1
    v_add_u32 v12, s{sT}, v12
    v_and_b32 v12, 7, v12
    v_lshl_add_u32 v10, v12, 3, v10
    v_lshrrev_b32 v11, 1, v11
    v_lshl_add_u32 v10, v11, 6, v10
    v_lshl_add_u32 v10, v14, 11, v10
    v_add_u32 v{AWK}, {VS}, v10
    v_mov_b32 v{CSK}, 0
    v_mov_b32 v{CSK+1}, 0
    v_mov_b32 v{XE+2}, 0
    v_mov_b32 v{XE+3}, 0
    """)
    assert VS % 8192 == 0
    for p in range(1, 4):
        k.e(f"v_xor_b32 v{AWK+p}, {p << 11}, v{AWK}")
    for p in range(4):
        k.e(f"v_xor_b32 v{AWV+p}, 64, v{AWK+p}")
    k.e(f"""
    v_lshlrev_b32 v12, 3, v0
    v_add_u32 v12, {CSX}, v12
    v_and_b32 v13, 63, v0
    v_lshlrev_b32 v13, 3, v13
    v_add_u32 v13, {CSX}, v13
    v_lshlrev_b32 v10, 3, v15
    v_add_u32 v10, {MISC}, v10
    v_lshlrev_b32 v11, 7, v14
    v_lshl_add_u32 v11, v9, 4, v11
    v_add_u32 v11, {MISC+1024}, v11
    """)
    def kv_reads(c, p, b):
        o = (c % NVS)*8192
        xread(BUF[b], c, p)
        for ri in range(2):
            k.e(f"ds_read_b64_tr_b16 {vr(BUF[b]+4+2*ri,2)}, v{AWK+p} offset:{o+ri*512}")
        for ri in range(2):
            k.e(f"ds_read_b64_tr_b16 {vr(BUF[b]+8+2*ri,2)}, v{AWV+p} offset:{o+ri*512}")
    NS = 7+AH
    def gate(s):
        k.wait_vm(f"s{s}")
        k.e("s_barrier")
        if s == 0: k.stamp(2)
        if s == NS-1: k.stamp(3)
    def post_gate(s):
        issue_after(s)
        if s == NS-2:
            k.e(f"""
            v_mov_b32 v5, 0
            s_lshr_b32 s{sT2}, s{sH}, 1
            s_lshl_b32 s{sT2}, s{sT2}, 2
            """)
            k.vop(f"buffer_load_dword v{T+4}, v5, s[{SDB}:{SDB+3}], s{sT2} offen sc1", "poll")
    def rd(u):
        c, p = u >> 2, u & 3
        if p == 0: gate(c+AH)
        kv_reads(c, p, u % 3)
        if p == 0: post_gate(c+AH)
    for s_ in range(AH):
        gate(s_); post_gate(s_)
    for u in range(3): rd(u)
    for u in range(28):
        c, p = u >> 2, u & 3
        b = u % 3
        k.e(f"s_waitcnt lgkmcnt({5*min(2, 27-u)})")
        first = (u == 0)
        k.e(f"v_mfma_f32_32x32x16_bf16 {vr(ACK,16)}, {vr(BUF[b],4)}, {vr(BUF[b]+4,4)}, {'0' if first else vr(ACK,16)}")
        k.e(f"v_mfma_f32_32x32x16_bf16 {vr(ACV,16)}, {vr(BUF[b],4)}, {vr(BUF[b]+8,4)}, {'0' if first else vr(ACV,16)}")
        if p == 0:
            for j in range(4):
                k.e(f"v_dot2c_f32_bf16 v{CSK}, s{sONE}, v{BUF[b]+4+j}")
                k.e(f"v_dot2c_f32_bf16 v{CSK+1}, s{sONE}, v{BUF[b]+8+j}")
        if u+3 < 28: rd(u+3)
        if u == 25:
            k.e(f"ds_write_b64 v12, {vr(CSK,2)}")
            arrive(0)
        if u == 26:
            k.e(f"ds_read_b64 {vr(XE,2)}, v10")
            for a in range(4):
                k.e(f"ds_read_b128 {vr(RL+4*a,4)}, v11 offset:{a*32}")
            k.e(f"""
            v_and_b32 v10, 63, v0
            v_lshlrev_b32 v4, 2, v10
            v_lshlrev_b32 v10, 4, v10
            v_lshl_add_u32 v10, v14, 12, v10
            v_lshl_add_u32 v4, v14, 10, v4
            v_add_u32 v3, {PART}, v4
            s_lshl_b32 s{sT}, s{sH}, 12
            """)
    k.e(f"s_setprio {env('KVP', 0)}")
    lwait('w0', 0, 4, T)
    k.e(f"""
    ds_read2st64_b64 {vr(PKF,4)}, v13 offset0:0 offset1:1
    ds_read2st64_b64 {vr(PKF+4,4)}, v13 offset0:2 offset1:3
    s_waitcnt lgkmcnt(0)
    v_add_f32 v{PKF}, v{PKF}, v{PKF+2}
    v_add_f32 v{PKF+1}, v{PKF+1}, v{PKF+3}
    v_add_f32 v{PKF+4}, v{PKF+4}, v{PKF+6}
    v_add_f32 v{PKF+5}, v{PKF+5}, v{PKF+7}
    v_add_f32 v{CSK}, v{PKF}, v{PKF+4}
    v_add_f32 v{CSV}, v{PKF+1}, v{PKF+5}
    """)
    k.stamp(4)
    hilo_w(k, WEK, CSK, T)
    k.e("s_nop 1")
    k.e(f"v_mfma_f32_32x32x16_bf16 {vr(ACK,16)}, {vr(XE,4)}, {vr(WEK,4)}, {vr(ACK,16)}")
    hilo_w(k, WEV, CSV, T+1)
    k.e("s_nop 1")
    k.e(f"v_mfma_f32_32x32x16_bf16 {vr(ACV,16)}, {vr(XE,4)}, {vr(WEV,4)}, {vr(ACV,16)}")
    k.nop(3)
    for h in range(2):
        for i in range(8*h, 8*h+8, 2):
            phi_ops(k, ACK+i, ACK+i, RL+i, T, sEPS, sLN2)
            phi_ops(k, ACK+i+1, ACK+i+1, RL+i+1, T+1, sEPS, sLN2)
            k.e(f"v_cvt_pk_bf16_f32 v{PKF+i//2}, v{ACK+i}, v{ACK+i+1}")
        for i in range(8*h, 8*h+8, 2):
            k.e(f"v_pk_mul_f32 {vr(ACV+i,2)}, {vr(ACV+i,2)}, {vr(RL+i,2)}")
            k.e(f"v_cvt_pk_bf16_f32 v{VF+i//2}, v{ACV+i}, v{ACV+i+1}")
        k.e("s_mov_b32 exec_lo, 0x10000000\ns_mov_b32 exec_hi, 0x10000000")
        for j in range(4):
            k.e(f"v_mov_b32 v{VF+4*h+j}, s{sONE}")
        k.e("s_mov_b64 exec, -1\ns_nop 0")
        k.e(f"v_mfma_f32_32x32x16_bf16 {vr(KVA,16)}, {vr(PKF+4*h,4)}, {vr(VF+4*h,4)}, {'0' if h == 0 else vr(KVA,16)}")
    k.wait_vm("poll")
    k.e(f"s_mov_b32 s{sCX}, 0x100000")
    k.label(k.L('poll'))
    k.e(f"""
    v_cmp_eq_u32 vcc, 0, v{T+4}
    s_cbranch_vccz {k.L('pollok')}
    s_sleep 16
    buffer_load_dword v{T+4}, v5, s[{SDB}:{SDB+3}], s{sT2} offen sc1
    s_waitcnt vmcnt(0)
    s_sub_u32 s{sCX}, s{sCX}, 1
    s_cbranch_scc0 {k.L('poll')}
    """)
    k.label(k.L('pollok'))
    k.nop(9)
    for a in range(4):
        k.e(f"ds_write_b128 v10, {vr(KVA+4*a,4)} offset:{PART+a*1024}")
    arrive(1)
    lwait('w1', 1, 4, T)
    k.stamp(5)
    for u in range(4):
        k.e(f"ds_read2st64_b32 {vr(ACK+4*u,2)}, v3 offset0:{u} offset1:{u+16}")
        k.e(f"ds_read2st64_b32 {vr(ACK+4*u+2,2)}, v3 offset0:{u+32} offset1:{u+48}")
    for u in range(4):
        k.e(f"s_waitcnt lgkmcnt({6-2*u})")
        k.e(f"v_add_f32 v{ACK+4*u}, v{ACK+4*u}, v{ACK+4*u+1}")
        k.e(f"v_add_f32 v{ACK+4*u+2}, v{ACK+4*u+2}, v{ACK+4*u+3}")
        k.e(f"v_add_f32 v{ACK+4*u}, v{ACK+4*u}, v{ACK+4*u+2}")
        if u == 2:
            k.e(f"s_cmp_eq_u32 s{sW}, 3\ns_cbranch_scc1 {k.L('kvend')}")
        k.e(f"buffer_atomic_add_f32 v{ACK+4*u}, v4, s[{SWS}:{SWS+3}], s{sT} offen offset:{u*256}")
    k.label(k.L('kvend'))
    k.stamp(6)
    k.end(SWS, 0, 7)
    k.label(k.L('q'))
    k.vm = list(vm_split)
    XQ, ACQ, WB = 16, 128, 144
    SUM, SQ, CSQ, AWQ, T = 160, 162, 164, 168, 188
    XE2, WE2, RS = 180, 184, 166
    k.e(f"""
    v_bfe_u32 v11, v0, 2, 2
    v_lshl_add_u32 v10, v9, 3, v11
    v_lshlrev_b32 v10, 6, v10
    v_and_b32 v11, 1, v0
    v_bfe_u32 v12, v0, 4, 1
    v_lshl_add_u32 v11, v11, 1, v12
    v_bfe_u32 v12, v0, 1, 1
    v_lshl_add_u32 v11, v11, 1, v12
    s_and_b32 s{sT}, s{sH}, 1
    s_xor_b32 s{sT}, s{sT}, {QX}
    v_add_u32 v11, s{sT}, v11
    v_and_b32 v11, 7, v11
    v_lshl_add_u32 v10, v11, 3, v10
    v_lshl_add_u32 v10, v14, 10, v10
    v_add_u32 v{AWQ}, {WQ}, v10
    v_xor_b32 v{AWQ+1}, 0x400, v{AWQ}
    v_xor_b32 v{AWQ+2}, 0x800, v{AWQ}
    v_xor_b32 v{AWQ+3}, 0xc00, v{AWQ}
    v_bfe_u32 v10, v0, 2, 6
    v_mul_u32_u24 v4, 2688, v10
    v_and_b32 v10, 3, v0
    v_lshl_add_u32 v4, v10, 4, v4
    """)
    assert WQ % 4096 == 0
    for r in (SUM, SUM+1, SQ, SQ+1, CSQ, CSQ+1):
        k.e(f"v_mov_b32 v{r}, 0")
    def wq_dma(pos):
        k.e(f"""
        s_lshl_b32 s{sT}, s{sW}, 10
        s_add_i32 m0, s{sT}, {WQ + pos*4096 - 4096}
        s_add_u32 s{sT2}, s{sROT}, {pos}
        s_cmp_ge_u32 s{sT2}, 7
        s_cselect_b32 s{sT}, 7, 0
        s_sub_u32 s{sT2}, s{sT2}, s{sT}
        s_mul_i32 s{sT2}, s{sT2}, {64*2688}
        s_add_u32 s{sT2}, s{sT2}, s{sq}
        """)
        k.vop(f"buffer_load_dwordx4 v4, s[{SW}:{SW+3}], s{sT2} offen lds", f"wq{pos}")
    NB = 4
    def wq_read(kap):
        c, p = kap >> 2, kap & 3
        b = WB + 4*(kap % NB)
        for ri in range(2):
            k.e(f"ds_read_b64_tr_b16 {vr(b+2*ri,2)}, v{AWQ+p} offset:{c*4096+ri*256}")
    def q_range(k0, k1, mid=None):
        for kap in range(k0, min(k0+NB-1, k1)):
            wq_read(kap)
        for kap in range(k0, k1):
            if kap+NB-1 < k1:
                wq_read(kap+NB-1)
            rem = min(k1-1-kap, NB-1)
            k.e(f"s_waitcnt lgkmcnt({2*rem})")
            b = WB + 4*(kap % NB)
            k.e(f"v_mfma_f32_32x32x16_bf16 {vr(ACQ,16)}, {vr(b,4)}, {vr(XQ+4*kap,4)}, {'0' if kap == 0 else vr(ACQ,16)}")
            if (kap & 3) == 0:
                for j in range(4):
                    k.e(f"v_dot2c_f32_bf16 v{CSQ+(j&1)}, s{sONE}, v{b+j}")
            if mid and kap == mid[0]: mid[1]()
    for s in range(NS):
        gate(s)
        if s <= 6:
            for p in range(4):
                xread(XQ+16*s+4*p, s, p)
        if s == 4:
            for pos in range(QE): wq_dma(pos)
        issue_after(s)
        if s == 6:
            for pos in range(QE, 7): wq_dma(pos)
        if s == 1: wpf(True)
        if s == 0:
            k.e(f"""
            s_and_b32 s{sT}, s2, 0xfffffff1
            s_xor_b32 s{sT2}, s{sW}, 7
            s_or_b32 s{sT}, s{sT}, s{sT2}
            s_cmp_lg_u32 s{sT}, 0
            s_cbranch_scc1 {k.L('noflag')}
            s_lshl_b32 s{sT}, s2, 1
            v_mov_b32 v5, 0
            s_mov_b64 exec, 1
            buffer_store_dword v7, v5, s[{SDB}:{SDB+3}], s{sT} offen sc1
            s_mov_b64 exec, -1
            """)
            k.label(k.L('noflag'))
        if s <= 6:
            c = s
            for p in range(4):
                k.e(f"s_waitcnt lgkmcnt({3-p})")
                for j in range(4):
                    r = XQ+16*c+4*p+j
                    k.e(f"v_dot2c_f32_bf16 v{SUM+(j&1)}, s{sONE}, v{r}")
                    k.e(f"v_dot2c_f32_bf16 v{SQ+(j&1)}, v{r}, v{r}")
        if s == 7:
            k.e(f"""
            v_lshlrev_b32 v11, 2, v15
            v_lshlrev_b32 v10, 3, v15
            v_mov_b32 v{XE2+3}, 0
            v_add_f32 v{SUM}, v{SUM}, v{SUM+1}
            v_add_f32 v{SQ}, v{SQ}, v{SQ+1}
            v_mov_b32 v{SUM+1}, v{SUM}
            v_mov_b32 v{SQ+1}, v{SQ}
            v_add_u32 v10, {MISC}, v10
            v_add_u32 v11, {MISC+1024}, v11
            v_permlane32_swap_b32 v{SUM}, v{SUM+1}
            v_permlane32_swap_b32 v{SQ}, v{SQ+1}
            v_mov_b32 v{XE2+2}, 0
            v_add_f32 v{SUM}, v{SUM}, v{SUM+1}
            v_add_f32 v{SQ}, v{SQ}, v{SQ+1}
            v_mul_f32 v{SUM}, 0x{INV_D|0x80000000:x}, v{SUM}
            v_mul_f32 v{SQ}, 0x{INV_D:x}, v{SQ}
            v_fma_f32 v{SQ}, -v{SUM}, v{SUM}, v{SQ}
            v_max_f32 v{SQ}, 0, v{SQ}
            v_add_f32 v{SQ}, 0x{EPS_LN:x}, v{SQ}
            v_rsq_f32 v{RS}, v{SQ}
            """)
            hilo_x(k, XE2, SUM, T)
            k.e(f"""
            v_mul_f32 v{RS}, 0x{LOG2E:x}, v{RS}
            ds_write_b64 v10, {vr(XE2,2)}
            ds_write_b32 v11, v{RS}
            """)
        if s == 7:
            k.e("s_waitcnt lgkmcnt(0)")
            if QE: q_range(0, 4*QE)
            k.e(f"""
            v_lshlrev_b32 v12, 2, v0
            v_add_u32 v12, {CSX+1024}, v12
            v_and_b32 v10, 63, v0
            v_lshlrev_b32 v13, 2, v10
            v_add_u32 v13, {CSX+2048}, v13
            v_lshlrev_b32 v10, 4, v10
            s_lshl_b32 s{sT}, s{sRB}, 2
            s_add_u32 s{sT}, s{sT}, s{sW}
            s_sub_u32 s{sT}, s{sT}, 4
            s_lshl_b32 s{sT}, s{sT}, 4
            s_xor_b32 s{sT2}, s{sH}, {QX}
            s_add_u32 s{sT}, s{sT}, s{sT2}
            s_lshl_b32 s{sT}, s{sT}, 11
            s_add_u32 s{sT}, s{sT}, {PQ_OFF}
            """)
    k.e(f"s_setprio {env('QP', 2)}")
    def pub():
        k.e(f"""
        v_add_f32 v{CSQ}, v{CSQ}, v{CSQ+1}
        ds_write_b32 v12, v{CSQ}
        """)
        arrive(3)
    pm = (QE+7+1)//2
    for n, (p0, p1) in enumerate([(QE, pm), (pm, 7)]):
        k.wait_vm(f"wq{p1-1}")
        arrive(2)
        lwait(f'wq{n}', 2, 4*(n+1), T)
        k.stamp(4+n)
        q_range(4*p0, 4*p1, mid=(26, pub) if n == 1 else None)
    lwait('w4', 3, 4, T)
    k.e(f"""
    ds_read2st64_b32 {vr(WB,2)}, v13 offset0:0 offset1:1
    ds_read2st64_b32 {vr(WB+2,2)}, v13 offset0:2 offset1:3
    s_waitcnt lgkmcnt(0)
    v_add_f32 v{WB}, v{WB}, v{WB+1}
    v_add_f32 v{WB+2}, v{WB+2}, v{WB+3}
    v_add_f32 v{CSQ}, v{WB}, v{WB+2}
    """)
    hilo_w(k, WE2, CSQ, T)
    k.e(f"""
    s_nop 1
    v_mfma_f32_32x32x16_bf16 {vr(ACQ,16)}, {vr(WE2,4)}, {vr(XE2,4)}, {vr(ACQ,16)}
    """)
    k.nop(12)
    for i in range(0, 16, 2):
        phi_ops(k, ACQ+i, ACQ+i, RS, T, sEPS, sLN2)
        phi_ops(k, ACQ+i+1, ACQ+i+1, RS, T+1, sEPS, sLN2)
        k.e(f"v_cvt_pk_bf16_f32 v{WB+i//2}, v{ACQ+i}, v{ACQ+i+1}")
        if i == 6:
            k.e(f"buffer_store_dwordx4 {vr(WB,4)}, v10, s[{SWS}:{SWS+3}], s{sT} offen sc1")
    k.e(f"buffer_store_dwordx4 {vr(WB+4,4)}, v10, s[{SWS}:{SWS+3}], s{sT} offen offset:1024 sc1")
    k.stamp(6)
    k.end(SWS, 0, 7)
    k.label(k.L('end'))
    k.e("s_endpgm")
    return k, dict(vgpr=192, sgpr=64, grid=256, block=512, lds=163840)
```

```python
from gen3 import *

def mflush(k):
    if not STAMPS: return
    k.e("s_waitcnt lgkmcnt(0)\ns_mov_b64 exec, 1")
    for i in range(8): k.e(f"v_mov_b32 v{16+i}, s{40+2*i}")
    k.e(f"""
    v_lshrrev_b32 v24, 6, v0
    v_lshlrev_b32 v24, 5, v24
    s_lshl_b32 s38, s2, 8
    s_add_u32 s38, s38, {STAMP_OFF}
    s_mov_b32 s14, {STAMP_OFF + 8*65536*2}
    buffer_store_dwordx4 v[16:19], v24, s[12:15], s38 offen
    buffer_store_dwordx4 v[20:23], v24, s[12:15], s38 offen offset:16
    s_mov_b64 exec, -1
    """)

def gen_a8():
    k = K("ka")
    SX, SW, SWS, SDB, SP = 4, 8, 12, 16, 32
    sW, sRB, sH, sx, skv, sq, sT, sT2, sEPS, sONE, sLN2, sCX, sCV, sROT = 20, 21, 22, 23, 24, 25, 26, 27, 28, 29, 30, 31, 56, 57
    XS, NXS = 0, 7
    VS, NVS = 114688, 5
    WQ = 0
    MISC = 155648
    PART = 32768
    CSX = MISC + 2048
    CNT = MISC + 6144
    DUM = 190
    AH = 2
    MERGE = env('MERGE', 0)
    sJ = 58
    CPL = env('CPL', 8)
    QX = env('QX', 1)
    QE = env('QE', 0)
    k.stamp(0)
    k.e(f"""
    s_cmp_ge_u32 s2, 256
    s_cbranch_scc1 {k.L('end')}
    s_load_dwordx2 s[{SX}:{SX+1}], s[0:1], 0
    s_load_dwordx2 s[{SW}:{SW+1}], s[0:1], 8
    s_load_dwordx2 s[{SDB}:{SDB+1}], s[0:1], 64
    s_load_dwordx2 s[{SWS}:{SWS+1}], s[0:1], 72
    s_load_dwordx2 s[{SP}:{SP+1}], s[0:1], 16
    """)
    def cpf():
        if CPF:
            k.e(f"""
            s_getpc_b64 s[36:37]
            Lka_pc:
            s_lshr_b32 s{sT2}, s2, 3
            v_min_u32 v5, {CPL-1}, v0
            v_lshlrev_b32 v5, 7, v5
            s_mul_i32 s{sT}, s{sT2}, {CPL*128}
            v_add_u32 v5, s{sT}, v5
            v_min_u32 v5, Lcode_end-Lka_pc-4, v5
            v_cmp_gt_u32 vcc, {CPL}, v0
            s_and_saveexec_b64 s[38:39], vcc
            s_cbranch_execz {k.L('nocpf')}
            global_load_dword v{DUM}, v5, s[36:37]
            """)
            k.label(k.L('nocpf'))
            k.e("s_mov_b64 exec, -1")
    PFP = env('PFP', 0)
    if PFP == 0: cpf()
    k.e(f"""
    v_lshrrev_b32 v5, 6, v0
    v_lshrrev_b32 v6, 3, v0
    v_readfirstlane_b32 s{sW}, v5
    v_and_b32 v7, 0x38, v6
    v_add_u32 v7, v6, v7
    v_and_b32 v8, 7, v0
    v_bfe_u32 v9, v0, 4, 2
    v_xor_b32 v9, v8, v9
    v_mul_u32_u24 v1, 896, v7
    v_lshl_add_u32 v1, v9, 4, v1
    v_xor_b32 v2, 64, v1
    v_add_u32 v2, 6144, v2
    s_bfe_u32 s{sRB}, s2, 0x20001
    s_lshl_b32 s{sRB}, s{sRB}, 2
    s_lshr_b32 s{sT}, s2, 6
    s_add_u32 s{sRB}, s{sRB}, s{sT}
    s_bfe_u32 s{sT2}, s2, 0x30003
    s_and_b32 s{sH}, s2, 1
    s_lshl_b32 s{sH}, s{sH}, 3
    s_add_u32 s{sH}, s{sH}, s{sT2}
    s_lshl_b32 s{sT}, s{sT}, 1
    s_add_u32 s{sT}, s{sT}, s{sT2}
    """)
    div7(k, sT2, sROT, sT)
    k.e(f"""
    s_mul_i32 s{sx}, s{sRB}, {128*896}
    s_lshl_b32 s{sT}, s{sROT}, 7
    s_add_u32 s{sx}, s{sx}, s{sT}
    s_mov_b32 s{sCX}, s{sROT}
    s_lshl_b32 m0, s{sW}, 11
    """)
    srd_consts(k, SX, S*D*2)
    srd_consts(k, SW, D*3*D*2)
    srd_consts(k, SP, D*D*2)
    k.e(f"""
    v_and_b32 v5, 63, v0
    v_min_u32 v11, 36, v5
    s_mul_i32 s{sT}, s2, 37
    v_add_lshl_u32 v11, v11, s{sT}, 7
    s_waitcnt lgkmcnt(0)
    """)
    k.stamp(1)
    def wtouch():
        if WPF:
            k.e(f"""
            s_cmp_lg_u32 s{sW}, 3
            s_cbranch_scc1 {k.L('nt1')}
            buffer_load_dword v{DUM}, v11, s[{SW}:{SW+3}], 0 offen
            """)
            k.label(k.L('nt1'))
    if PFP == 0: wtouch()
    def issue_x(c):
        if c > 0:
            k.e(f"""
            s_lshl_b32 s{sT}, s{sW}, 11
            s_add_u32 m0, s{sT}, {XS + (c % NXS)*16384}
            s_add_u32 s{sCX}, s{sCX}, 1
            s_cmp_eq_u32 s{sCX}, 7
            s_cselect_b32 s{sT}, -6, 1
            s_lshl_b32 s{sT}, s{sT}, 7
            s_add_u32 s{sx}, s{sx}, s{sT}
            """)
        k.vop(f"buffer_load_dwordx4 v1, s[{SX}:{SX+3}], s{sx} offen lds", f"s{c}")
        k.vop(f"buffer_load_dwordx4 v2, s[{SX}:{SX+3}], s{sx} offen offset:1024 lds", f"s{c}")
    def issue_v(c):
        k.e(f"""
        s_lshl_b32 s{sT}, s{sW}, 10
        s_add_u32 m0, s{sT}, {VS + (c % NVS)*8192}
        """)
        if c > 0:
            k.e(f"""
            s_add_u32 s{sCV}, s{sCV}, 1
            s_cmp_eq_u32 s{sCV}, 7
            s_cselect_b32 s{sT}, -6, 1
            s_mul_i32 s{sT}, s{sT}, {64*2688}
            s_add_u32 s{skv}, s{skv}, s{sT}
            """)
        else:
            k.e("s_nop 0")
        k.vop(f"buffer_load_dwordx4 v3, s[{SW}:{SW+3}], s{skv} offen lds", f"s{c+AH}")
    def issue_stage(s):
        if s <= 6: issue_x(s)
        if AH <= s <= 6+AH: issue_v(s-AH)
    def issue_after(s):
        if s+3 <= 6: issue_x(s+3)
        if AH <= s+3 <= 6+AH: issue_v(s+3-AH)
    srd_consts(k, SWS, WS_USED)
    if MERGE:
        k.e(f"""
        s_lshr_b32 s{sJ}, s2, 6
        s_lshl_b32 s{sJ}, s{sJ}, 3
        s_bfe_u32 s{sT}, s2, 0x30001
        s_add_u32 s{sJ}, s{sJ}, s{sT}
        s_and_b32 s{sT}, s2, 0x31
        s_cmp_lg_u32 s{sT}, 0
        s_cselect_b32 s{sJ}, 63, s{sJ}
        s_cmp_ge_u32 s{sJ}, 23
        s_cbranch_scc1 {k.L('nozero')}
        s_cmp_ge_u32 s{sJ}, 8
        s_cselect_b32 s{sT}, {FL_OFF-8*8192}, 0
        s_cmp_ge_u32 s{sJ}, 21
        s_cselect_b32 s{sT}, {CS_OFF-21*8192}, s{sT}
        s_cselect_b32 s{sT2}, -1, 0
        v_mov_b32 v12, s{sT2}
        v_mov_b32 v13, s{sT2}
        v_mov_b32 v14, s{sT2}
        v_mov_b32 v15, s{sT2}
        s_lshl_b32 s{sT2}, s{sJ}, 13
        s_add_u32 s{sT}, s{sT}, s{sT2}
        v_lshlrev_b32 v10, 4, v0
        buffer_store_dwordx4 v[12:15], v10, s[{SWS}:{SWS+3}], s{sT} offen sc1
        """)
    else:
        k.e(f"""
        s_and_b32 s{sT}, s2, 0xfffffff1
        s_cmp_lg_u32 s{sT}, 0
        s_cbranch_scc1 {k.L('nozero')}
        v_mov_b32 v12, 0
        v_mov_b32 v13, 0
        v_mov_b32 v14, 0
        v_mov_b32 v15, 0
        v_lshlrev_b32 v10, 4, v0
        s_lshl_b32 s{sT}, s2, 12
        buffer_store_dwordx4 v[12:15], v10, s[{SWS}:{SWS+3}], s{sT} offen sc1
        """)
    k.label(k.L('nozero'))
    issue_stage(0)
    k.e("s_barrier")
    issue_stage(1)
    if PFP == 1: wtouch(); cpf()
    k.e(f"""
    v_bfe_u32 v9, v0, 4, 1
    v_lshlrev_b32 v9, 2, v9
    v_xor_b32 v9, v8, v9
    v_mul_u32_u24 v3, 2688, v6
    v_and_b32 v8, 3, v9
    v_lshl_add_u32 v3, v8, 4, v3
    v_lshrrev_b32 v9, 2, v9
    v_mul_u32_u24 v9, 896, v9
    v_add_u32 v3, v3, v9
    s_mul_i32 s{sq}, s{sH}, 56
    s_and_b32 s{sq}, s{sq}, -16
    s_mul_i32 s{sT}, s{sROT}, {64*2688}
    s_add_u32 s{skv}, s{sq}, s{sT}
    s_add_u32 s{skv}, s{skv}, 896
    s_mov_b32 s{sCV}, s{sROT}
    s_xor_b32 s{sq}, s{sH}, {QX}
    s_mul_i32 s{sq}, s{sq}, 56
    s_and_b32 s{sq}, s{sq}, -16
    """)
    k.e("s_barrier")
    issue_stage(2)
    if PFP == 2: wtouch(); cpf()
    srd_consts(k, SDB, 256)
    k.e(f"""
    s_mov_b32 s{sEPS}, 0x{EPS_PHI_L:x}
    s_mov_b32 s{sONE}, 0x{ONES_BF:x}
    s_mov_b32 s{sLN2}, 0x{LN2:x}
    v_mov_b32 v12, 0
    v_mov_b32 v13, 0
    v_mov_b32 v14, 0
    v_mov_b32 v15, 0
    v_mov_b32 v10, {CNT}
    ds_write_b128 v10, v[12:15]
    ds_write_b128 v10, v[12:15] offset:16
    s_cmp_lt_u32 s{sW}, {8 if MERGE else 4}
    s_cbranch_scc1 {k.L('nozf')}
    v_and_b32 v10, 255, v0
    v_lshlrev_b32 v10, 4, v10
    s_lshr_b32 s{sT}, s{sRB}, 2
    s_or_b32 s{sT}, s{sT}, s{sH}
    s_cmp_lg_u32 s{sT}, 0
    s_cbranch_scc1 {k.L('nocs')}
    s_lshl_b32 s{sT}, s{sRB}, 12
    s_add_u32 s{sT}, s{sT}, {CS_OFF}
    v_mov_b32 v16, -1
    v_mov_b32 v17, -1
    v_mov_b32 v18, -1
    v_mov_b32 v19, -1
    buffer_store_dwordx4 v[16:19], v10, s[{SWS}:{SWS+3}], s{sT} offen sc1
    """)
    k.label(k.L('nocs'))
    k.e(f"""
    s_cmp_lg_u32 s{sH}, 14
    s_cbranch_scc1 {k.L('nozf')}
    s_lshl_b32 s{sT}, s{sRB}, 12
    s_add_u32 s{sT}, s{sT}, {FL_OFF}
    buffer_store_dwordx4 v[12:15], v10, s[{SWS}:{SWS+3}], s{sT} offen sc1
    """)
    k.label(k.L('nozf'))
    AX = 172
    k.e(f"""
    v_and_b32 v8, 31, v0
    v_bfe_u32 v9, v0, 5, 1
    v_bfe_u32 v14, v0, 6, 2
    v_lshl_add_u32 v15, v14, 5, v8
    v_lshlrev_b32 v10, 7, v15
    v_bfe_u32 v11, v8, 1, 3
    v_xor_b32 v11, v11, v9
    v_lshlrev_b32 v12, 1, v14
    v_xor_b32 v11, v11, v12
    v_mov_b32 v7, 1
    """)
    for p in range(4):
        k.e(f"v_xor_b32 v12, {2*p}, v11")
        k.e(f"v_lshl_add_u32 v{AX+p}, v12, 4, v10")
    k.e(f"v_add_u32 v{AX+4}, 0x10000, v{AX}\nv_add_u32 v{AX+5}, 0x10000, v{AX+1}\nv_add_u32 v{AX+6}, 0x10000, v{AX+2}\nv_add_u32 v{AX+7}, 0x10000, v{AX+3}")
    def xread(dst, c, p):
        o = XS + (c % NXS)*16384
        k.e(f"ds_read_b128 {vr(dst,4)}, v{AX+p+4*(o >> 16)} offset:{o & 0xffff}")
    def arrive(i):
        k.e(f"s_mov_b64 exec, 1\nds_add_u32 v6, v7 offset:{4*i}\ns_mov_b64 exec, -1")
    def lwait(name, i, target, vt):
        k.label(k.L(name))
        k.e(f"""
        ds_read_b32 v{vt}, v6 offset:{4*i}
        s_waitcnt lgkmcnt(0)
        v_cmp_gt_u32 vcc, {target}, v{vt}
        s_cbranch_vccnz {k.L(name)}
        """)
    k.e(f"""
    v_mov_b32 v6, {CNT}
    s_waitcnt lgkmcnt(0)
    s_cmp_ge_u32 s{sW}, 4
    s_cbranch_scc1 {k.L('q')}
    """)
    vm_split = list(k.vm)
    def wpf(qside):
        if not WPF or not qside: return
        k.e(f"""
        s_cmp_ge_u32 s{sW}, 6
        s_cbranch_scc1 {k.L('nopf')}
        s_lshr_b32 s{sT}, s2, 3
        s_lshl_b32 s{sT}, s{sT}, 1
        s_add_u32 s{sT}, s{sT}, s{sW}
        s_sub_u32 s{sT}, s{sT}, 4
        s_mul_i32 s{sT}, s{sT}, 49
        v_and_b32 v5, 63, v0
        v_min_u32 v5, 48, v5
        v_add_lshl_u32 v5, v5, s{sT}, 7
        buffer_load_dword v{DUM}, v5, s[{SP}:{SP+3}], 0 offen
        """)
        k.label(k.L('nopf'))
    ACK, ACV = 16, 32
    BUF = [48, 60, 72]
    AWK, AWV = 152, 156
    CSK, CSV = 160, 162
    RL, XE, WEK, WEV = 84, 100, 104, 108
    PKF, VF, KVA, T = 112, 120, 128, 144
    k.e(f"""
    s_setprio 2
    v_bfe_u32 v11, v0, 2, 2
    v_lshl_add_u32 v10, v9, 3, v11
    v_lshlrev_b32 v10, 7, v10
    v_bfe_u32 v12, v0, 4, 1
    v_and_b32 v13, 3, v0
    v_lshl_add_u32 v12, v12, 2, v13
    s_and_b32 s{sT}, s{sH}, 1
    v_add_u32 v12, s{sT}, v12
    v_and_b32 v12, 7, v12
    v_lshl_add_u32 v10, v12, 3, v10
    v_lshrrev_b32 v11, 1, v11
    v_lshl_add_u32 v10, v11, 6, v10
    v_lshl_add_u32 v10, v14, 11, v10
    v_add_u32 v{AWK}, {VS}, v10
    v_mov_b32 v{CSK}, 0
    v_mov_b32 v{CSK+1}, 0
    v_mov_b32 v{XE+2}, 0
    v_mov_b32 v{XE+3}, 0
    """)
    assert VS % 8192 == 0
    for p in range(1, 4):
        k.e(f"v_xor_b32 v{AWK+p}, {p << 11}, v{AWK}")
    for p in range(4):
        k.e(f"v_xor_b32 v{AWV+p}, 64, v{AWK+p}")
    k.e(f"""
    v_lshlrev_b32 v12, 3, v0
    v_add_u32 v12, {CSX}, v12
    v_and_b32 v13, 63, v0
    v_lshlrev_b32 v13, 3, v13
    v_add_u32 v13, {CSX}, v13
    v_lshlrev_b32 v10, 3, v15
    v_add_u32 v10, {MISC}, v10
    v_lshlrev_b32 v11, 7, v14
    v_lshl_add_u32 v11, v9, 4, v11
    v_add_u32 v11, {MISC+1024}, v11
    """)
    def kv_reads(c, p, b):
        o = (c % NVS)*8192
        xread(BUF[b], c, p)
        for ri in range(2):
            k.e(f"ds_read_b64_tr_b16 {vr(BUF[b]+4+2*ri,2)}, v{AWK+p} offset:{o+ri*512}")
        for ri in range(2):
            k.e(f"ds_read_b64_tr_b16 {vr(BUF[b]+8+2*ri,2)}, v{AWV+p} offset:{o+ri*512}")
    NS = 7+AH
    def gate(s):
        k.wait_vm(f"s{s}")
        k.e("s_barrier")
        if s == 0: k.stamp(2)
        if s == NS-1: k.stamp(3)
    def post_gate(s):
        issue_after(s)
        if s == NS-2:
            k.e(f"""
            v_mov_b32 v5, 0
            s_lshr_b32 s{sT2}, s{sH}, 1
            s_lshl_b32 s{sT2}, s{sT2}, 2
            """)
            if MERGE:
                k.e(f"v_min_u32 v5, 22, v8\nv_lshlrev_b32 v5, 2, v5\ns_mov_b32 s{sT2}, 0")
            k.vop(f"buffer_load_dword v{T+4}, v5, s[{SDB}:{SDB+3}], s{sT2} offen sc1", "poll")
    def rd(u):
        c, p = u >> 2, u & 3
        if p == 0: gate(c+AH)
        kv_reads(c, p, u % 3)
        if p == 0: post_gate(c+AH)
    for s_ in range(AH):
        gate(s_); post_gate(s_)
    for u in range(3): rd(u)
    for u in range(28):
        c, p = u >> 2, u & 3
        b = u % 3
        k.e(f"s_waitcnt lgkmcnt({5*min(2, 27-u)})")
        first = (u == 0)
        k.e(f"v_mfma_f32_32x32x16_bf16 {vr(ACK,16)}, {vr(BUF[b],4)}, {vr(BUF[b]+4,4)}, {'0' if first else vr(ACK,16)}")
        k.e(f"v_mfma_f32_32x32x16_bf16 {vr(ACV,16)}, {vr(BUF[b],4)}, {vr(BUF[b]+8,4)}, {'0' if first else vr(ACV,16)}")
        if p == 0:
            for j in range(4):
                k.e(f"v_dot2c_f32_bf16 v{CSK}, s{sONE}, v{BUF[b]+4+j}")
                k.e(f"v_dot2c_f32_bf16 v{CSK+1}, s{sONE}, v{BUF[b]+8+j}")
        if u+3 < 28: rd(u+3)
        if u == 25:
            k.e(f"ds_write_b64 v12, {vr(CSK,2)}")
            arrive(0)
        if u == 26:
            k.e(f"ds_read_b64 {vr(XE,2)}, v10")
            for a in range(4):
                k.e(f"ds_read_b128 {vr(RL+4*a,4)}, v11 offset:{a*32}")
            k.e(f"""
            v_and_b32 v10, 63, v0
            v_lshlrev_b32 v4, 2, v10
            v_lshlrev_b32 v10, 4, v10
            v_lshl_add_u32 v10, v14, 12, v10
            v_lshl_add_u32 v4, v14, 10, v4
            v_add_u32 v3, {PART}, v4
            s_lshl_b32 s{sT}, s{sH}, 12
            """)
    k.e(f"s_setprio {env('KVP', 0)}")
    lwait('w0', 0, 4, T)
    k.e(f"""
    ds_read2st64_b64 {vr(PKF,4)}, v13 offset0:0 offset1:1
    ds_read2st64_b64 {vr(PKF+4,4)}, v13 offset0:2 offset1:3
    s_waitcnt lgkmcnt(0)
    v_add_f32 v{PKF}, v{PKF}, v{PKF+2}
    v_add_f32 v{PKF+1}, v{PKF+1}, v{PKF+3}
    v_add_f32 v{PKF+4}, v{PKF+4}, v{PKF+6}
    v_add_f32 v{PKF+5}, v{PKF+5}, v{PKF+7}
    v_add_f32 v{CSK}, v{PKF}, v{PKF+4}
    v_add_f32 v{CSV}, v{PKF+1}, v{PKF+5}
    """)
    k.stamp(4)
    hilo_w(k, WEK, CSK, T)
    k.e("s_nop 1")
    k.e(f"v_mfma_f32_32x32x16_bf16 {vr(ACK,16)}, {vr(XE,4)}, {vr(WEK,4)}, {vr(ACK,16)}")
    hilo_w(k, WEV, CSV, T+1)
    k.e("s_nop 1")
    k.e(f"v_mfma_f32_32x32x16_bf16 {vr(ACV,16)}, {vr(XE,4)}, {vr(WEV,4)}, {vr(ACV,16)}")
    k.nop(3)
    for h in range(2):
        for i in range(8*h, 8*h+8, 2):
            phi_ops(k, ACK+i, ACK+i, RL+i, T, sEPS, sLN2)
            phi_ops(k, ACK+i+1, ACK+i+1, RL+i+1, T+1, sEPS, sLN2)
            k.e(f"v_cvt_pk_bf16_f32 v{PKF+i//2}, v{ACK+i}, v{ACK+i+1}")
        for i in range(8*h, 8*h+8, 2):
            k.e(f"v_pk_mul_f32 {vr(ACV+i,2)}, {vr(ACV+i,2)}, {vr(RL+i,2)}")
            k.e(f"v_cvt_pk_bf16_f32 v{VF+i//2}, v{ACV+i}, v{ACV+i+1}")
        k.e("s_mov_b32 exec_lo, 0x10000000\ns_mov_b32 exec_hi, 0x10000000")
        for j in range(4):
            k.e(f"v_mov_b32 v{VF+4*h+j}, s{sONE}")
        k.e("s_mov_b64 exec, -1\ns_nop 0")
        k.e(f"v_mfma_f32_32x32x16_bf16 {vr(KVA,16)}, {vr(PKF+4*h,4)}, {vr(VF+4*h,4)}, {'0' if h == 0 else vr(KVA,16)}")
    k.wait_vm("poll")
    k.e(f"s_mov_b32 s{sCX}, 0x100000")
    k.label(k.L('poll'))
    k.e(f"""
    v_cmp_eq_u32 vcc, 0, v{T+4}
    s_cbranch_vccz {k.L('pollok')}
    s_sleep 16
    buffer_load_dword v{T+4}, v5, s[{SDB}:{SDB+3}], s{sT2} offen sc1
    s_waitcnt vmcnt(0)
    s_sub_u32 s{sCX}, s{sCX}, 1
    s_cbranch_scc0 {k.L('poll')}
    """)
    k.label(k.L('pollok'))
    k.nop(9)
    for a in range(4):
        k.e(f"ds_write_b128 v10, {vr(KVA+4*a,4)} offset:{PART+a*1024}")
    arrive(1)
    lwait('w1', 1, 4, T)
    k.stamp(5)
    for u in range(4):
        k.e(f"ds_read2st64_b32 {vr(ACK+4*u,2)}, v3 offset0:{u} offset1:{u+16}")
        k.e(f"ds_read2st64_b32 {vr(ACK+4*u+2,2)}, v3 offset0:{u+32} offset1:{u+48}")
    for u in range(4):
        k.e(f"s_waitcnt lgkmcnt({6-2*u})")
        k.e(f"v_add_f32 v{ACK+4*u}, v{ACK+4*u}, v{ACK+4*u+1}")
        k.e(f"v_add_f32 v{ACK+4*u+2}, v{ACK+4*u+2}, v{ACK+4*u+3}")
        k.e(f"v_add_f32 v{ACK+4*u}, v{ACK+4*u}, v{ACK+4*u+2}")
        if u == 2:
            k.e(f"s_cmp_eq_u32 s{sW}, 3\ns_cbranch_scc1 {k.L('kvend')}")
        k.e(f"buffer_atomic_add_f32 v{ACK+4*u}, v4, s[{SWS}:{SWS+3}], s{sT} offen offset:{u*256}")
    k.label(k.L('kvend'))
    k.stamp(6)
    if MERGE:
        k.e(f"""
        s_mov_b64 exec, 1
        s_waitcnt vmcnt(0)
        ds_add_rtn_u32 v10, v6, v7 offset:16
        s_waitcnt lgkmcnt(0)
        v_cmp_ne_u32 vcc, 3, v10
        s_cbranch_vccnz {k.L('kvx')}
        v_mov_b32 v10, 1
        v_mov_b32 v5, 0
        s_lshl_b32 s{sT}, s{sH}, 7
        s_add_u32 s{sT}, s{sT}, {FL_OFF+98304}
        buffer_atomic_add v10, v5, s[{SWS}:{SWS+3}], s{sT} offen sc0 sc1
        s_waitcnt vmcnt(0)
        v_cmp_ne_u32 vcc, 15, v10
        s_cbranch_vccnz {k.L('kvx')}
        s_mov_b64 exec, -1
        v_and_b32 v5, 63, v0
        v_lshlrev_b32 v5, 7, v5
        s_mov_b32 s{sT}, {FL_OFF+65536}
        buffer_atomic_add v7, v5, s[{SWS}:{SWS+3}], s{sT} offen sc1
        s_add_u32 s{sT}, s{sT}, 8192
        buffer_atomic_add v7, v5, s[{SWS}:{SWS+3}], s{sT} offen sc1
        s_add_u32 s{sT}, s{sT}, 8192
        buffer_atomic_add v7, v5, s[{SWS}:{SWS+3}], s{sT} offen sc1
        s_add_u32 s{sT}, s{sT}, 8192
        s_mov_b32 exec_hi, 0
        buffer_atomic_add v7, v5, s[{SWS}:{SWS+3}], s{sT} offen sc1
        """)
        k.label(k.L('kvx'))
        k.e("s_mov_b64 exec, -1")
        k.stamp(7)
        mflush(k)
        k.e("s_setprio 0\ns_branch Lkf_entry")
    else:
        k.end(SWS, 0, 7)
    k.label(k.L('q'))
    k.vm = list(vm_split)
    XQ, ACQ, WB = 16, 128, 144
    SUM, SQ, CSQ, AWQ, T = 160, 162, 164, 168, 188
    XE2, WE2, RS = 180, 184, 166
    k.e(f"""
    v_bfe_u32 v11, v0, 2, 2
    v_lshl_add_u32 v10, v9, 3, v11
    v_lshlrev_b32 v10, 6, v10
    v_and_b32 v11, 1, v0
    v_bfe_u32 v12, v0, 4, 1
    v_lshl_add_u32 v11, v11, 1, v12
    v_bfe_u32 v12, v0, 1, 1
    v_lshl_add_u32 v11, v11, 1, v12
    s_and_b32 s{sT}, s{sH}, 1
    s_xor_b32 s{sT}, s{sT}, {QX}
    v_add_u32 v11, s{sT}, v11
    v_and_b32 v11, 7, v11
    v_lshl_add_u32 v10, v11, 3, v10
    v_lshl_add_u32 v10, v14, 10, v10
    v_add_u32 v{AWQ}, {WQ}, v10
    v_xor_b32 v{AWQ+1}, 0x400, v{AWQ}
    v_xor_b32 v{AWQ+2}, 0x800, v{AWQ}
    v_xor_b32 v{AWQ+3}, 0xc00, v{AWQ}
    v_bfe_u32 v10, v0, 2, 6
    v_mul_u32_u24 v4, 2688, v10
    v_and_b32 v10, 3, v0
    v_lshl_add_u32 v4, v10, 4, v4
    """)
    assert WQ % 4096 == 0
    for r in (SUM, SUM+1, SQ, SQ+1, CSQ, CSQ+1):
        k.e(f"v_mov_b32 v{r}, 0")
    def wq_dma(pos):
        k.e(f"""
        s_lshl_b32 s{sT}, s{sW}, 10
        s_add_i32 m0, s{sT}, {WQ + pos*4096 - 4096}
        s_add_u32 s{sT2}, s{sROT}, {pos}
        s_cmp_ge_u32 s{sT2}, 7
        s_cselect_b32 s{sT}, 7, 0
        s_sub_u32 s{sT2}, s{sT2}, s{sT}
        s_mul_i32 s{sT2}, s{sT2}, {64*2688}
        s_add_u32 s{sT2}, s{sT2}, s{sq}
        """)
        k.vop(f"buffer_load_dwordx4 v4, s[{SW}:{SW+3}], s{sT2} offen lds", f"wq{pos}")
    NB = 4
    def wq_read(kap):
        c, p = kap >> 2, kap & 3
        b = WB + 4*(kap % NB)
        for ri in range(2):
            k.e(f"ds_read_b64_tr_b16 {vr(b+2*ri,2)}, v{AWQ+p} offset:{c*4096+ri*256}")
    def q_range(k0, k1, mid=None):
        for kap in range(k0, min(k0+NB-1, k1)):
            wq_read(kap)
        for kap in range(k0, k1):
            if kap+NB-1 < k1:
                wq_read(kap+NB-1)
            rem = min(k1-1-kap, NB-1)
            k.e(f"s_waitcnt lgkmcnt({2*rem})")
            b = WB + 4*(kap % NB)
            k.e(f"v_mfma_f32_32x32x16_bf16 {vr(ACQ,16)}, {vr(b,4)}, {vr(XQ+4*kap,4)}, {'0' if kap == 0 else vr(ACQ,16)}")
            if (kap & 3) == 0:
                for j in range(4):
                    k.e(f"v_dot2c_f32_bf16 v{CSQ+(j&1)}, s{sONE}, v{b+j}")
            if mid and kap == mid[0]: mid[1]()
    for s in range(NS):
        gate(s)
        if s <= 6:
            for p in range(4):
                xread(XQ+16*s+4*p, s, p)
        if s == 4:
            for pos in range(QE): wq_dma(pos)
        issue_after(s)
        if s == 6:
            if MERGE:
                k.e(f"v_min_u32 v5, 22, v8\nv_lshlrev_b32 v5, 2, v5")
                k.vop(f"buffer_load_dword v{DUM+1}, v5, s[{SDB}:{SDB+3}], 0 offen sc1", "qp")
            for pos in range(QE, 7): wq_dma(pos)
        if s == 1: wpf(True)
        if s == 0:
            if MERGE:
                FLC = f"""s_cmp_lg_u32 s{sW}, 7
                s_cbranch_scc1 {k.L('noflag')}
                s_cmp_ge_u32 s{sJ}, 23
                s_cbranch_scc1 {k.L('noflag')}
                s_lshl_b32 s{sT}, s{sJ}, 2"""
            else:
                FLC = f"""s_and_b32 s{sT}, s2, 0xfffffff1
                s_xor_b32 s{sT2}, s{sW}, 7
                s_or_b32 s{sT}, s{sT}, s{sT2}
                s_cmp_lg_u32 s{sT}, 0
                s_cbranch_scc1 {k.L('noflag')}
                s_lshl_b32 s{sT}, s2, 1"""
            k.e(f"""
            {FLC}
            v_mov_b32 v5, 0
            s_mov_b64 exec, 1
            buffer_store_dword v7, v5, s[{SDB}:{SDB+3}], s{sT} offen sc1
            s_mov_b64 exec, -1
            """)
            k.label(k.L('noflag'))
        if s <= 6:
            c = s
            for p in range(4):
                k.e(f"s_waitcnt lgkmcnt({3-p})")
                for j in range(4):
                    r = XQ+16*c+4*p+j
                    k.e(f"v_dot2c_f32_bf16 v{SUM+(j&1)}, s{sONE}, v{r}")
                    k.e(f"v_dot2c_f32_bf16 v{SQ+(j&1)}, v{r}, v{r}")
        if s == 7:
            k.e(f"""
            v_lshlrev_b32 v11, 2, v15
            v_lshlrev_b32 v10, 3, v15
            v_mov_b32 v{XE2+3}, 0
            v_add_f32 v{SUM}, v{SUM}, v{SUM+1}
            v_add_f32 v{SQ}, v{SQ}, v{SQ+1}
            v_mov_b32 v{SUM+1}, v{SUM}
            v_mov_b32 v{SQ+1}, v{SQ}
            v_add_u32 v10, {MISC}, v10
            v_add_u32 v11, {MISC+1024}, v11
            v_permlane32_swap_b32 v{SUM}, v{SUM+1}
            v_permlane32_swap_b32 v{SQ}, v{SQ+1}
            v_mov_b32 v{XE2+2}, 0
            v_add_f32 v{SUM}, v{SUM}, v{SUM+1}
            v_add_f32 v{SQ}, v{SQ}, v{SQ+1}
            v_mul_f32 v{SUM}, 0x{INV_D|0x80000000:x}, v{SUM}
            v_mul_f32 v{SQ}, 0x{INV_D:x}, v{SQ}
            v_fma_f32 v{SQ}, -v{SUM}, v{SUM}, v{SQ}
            v_max_f32 v{SQ}, 0, v{SQ}
            v_add_f32 v{SQ}, 0x{EPS_LN:x}, v{SQ}
            v_rsq_f32 v{RS}, v{SQ}
            """)
            hilo_x(k, XE2, SUM, T)
            k.e(f"""
            v_mul_f32 v{RS}, 0x{LOG2E:x}, v{RS}
            ds_write_b64 v10, {vr(XE2,2)}
            ds_write_b32 v11, v{RS}
            """)
        if s == 7:
            k.e("s_waitcnt lgkmcnt(0)")
            if QE: q_range(0, 4*QE)
            k.e(f"""
            v_lshlrev_b32 v12, 2, v0
            v_add_u32 v12, {CSX+1024}, v12
            v_and_b32 v10, 63, v0
            v_lshlrev_b32 v13, 2, v10
            v_add_u32 v13, {CSX+2048}, v13
            v_lshlrev_b32 v10, 4, v10
            s_lshl_b32 s{sT}, s{sRB}, 2
            s_add_u32 s{sT}, s{sT}, s{sW}
            s_sub_u32 s{sT}, s{sT}, 4
            s_lshl_b32 s{sT}, s{sT}, 4
            s_xor_b32 s{sT2}, s{sH}, {QX}
            s_add_u32 s{sT}, s{sT}, s{sT2}
            s_lshl_b32 s{sT}, s{sT}, 11
            s_add_u32 s{sT}, s{sT}, {PQ_OFF}
            """)
    k.e(f"s_setprio {env('QP', 2)}")
    def pub():
        k.e(f"""
        v_add_f32 v{CSQ}, v{CSQ}, v{CSQ+1}
        ds_write_b32 v12, v{CSQ}
        """)
        arrive(3)
    pm = (QE+7+1)//2
    for n, (p0, p1) in enumerate([(QE, pm), (pm, 7)]):
        k.wait_vm(f"wq{p1-1}")
        arrive(2)
        lwait(f'wq{n}', 2, 4*(n+1), T)
        k.stamp(4+n)
        q_range(4*p0, 4*p1, mid=(26, pub) if n == 1 else None)
    lwait('w4', 3, 4, T)
    k.e(f"""
    ds_read2st64_b32 {vr(WB,2)}, v13 offset0:0 offset1:1
    ds_read2st64_b32 {vr(WB+2,2)}, v13 offset0:2 offset1:3
    s_waitcnt lgkmcnt(0)
    v_add_f32 v{WB}, v{WB}, v{WB+1}
    v_add_f32 v{WB+2}, v{WB+2}, v{WB+3}
    v_add_f32 v{CSQ}, v{WB}, v{WB+2}
    """)
    hilo_w(k, WE2, CSQ, T)
    k.e(f"""
    s_nop 1
    v_mfma_f32_32x32x16_bf16 {vr(ACQ,16)}, {vr(WE2,4)}, {vr(XE2,4)}, {vr(ACQ,16)}
    """)
    k.nop(12)
    for i in range(0, 16, 2):
        phi_ops(k, ACQ+i, ACQ+i, RS, T, sEPS, sLN2)
        phi_ops(k, ACQ+i+1, ACQ+i+1, RS, T+1, sEPS, sLN2)
        k.e(f"v_cvt_pk_bf16_f32 v{WB+i//2}, v{ACQ+i}, v{ACQ+i+1}")
        if i == 6:
            k.e(f"buffer_store_dwordx4 {vr(WB,4)}, v10, s[{SWS}:{SWS+3}], s{sT} offen sc1")
    k.e(f"buffer_store_dwordx4 {vr(WB+4,4)}, v10, s[{SWS}:{SWS+3}], s{sT} offen offset:1024 sc1")
    k.stamp(6)
    if MERGE:
        k.e(f"s_mov_b32 s{sCX}, 0x100000")
        k.label(k.L('qpoll'))
        k.e(f"""
        v_cmp_eq_u32 vcc, 0, v{DUM+1}
        s_cbranch_vccz {k.L('qpollok')}
        s_sleep 16
        buffer_load_dword v{DUM+1}, v5, s[{SDB}:{SDB+3}], 0 offen sc1
        s_waitcnt vmcnt(0)
        s_sub_u32 s{sCX}, s{sCX}, 1
        s_cbranch_scc0 {k.L('qpoll')}
        """)
        k.label(k.L('qpollok'))
        k.e(f"""
        s_mov_b64 exec, 1
        s_waitcnt vmcnt(0)
        ds_add_rtn_u32 v10, v6, v7 offset:20
        s_waitcnt lgkmcnt(0)
        v_cmp_ne_u32 vcc, 3, v10
        s_cbranch_vccnz {k.L('qx')}
        s_mov_b64 exec, 0x3fff
        v_and_b32 v5, 63, v0
        v_lshlrev_b32 v5, 7, v5
        s_mul_i32 s{sT}, s{sRB}, {14*128}
        s_add_u32 s{sT}, s{sT}, {FL_OFF+65536}
        buffer_atomic_add v7, v5, s[{SWS}:{SWS+3}], s{sT} offen sc1
        """)
        k.label(k.L('qx'))
        k.e("s_mov_b64 exec, -1")
        k.stamp(7)
        mflush(k)
        k.e("s_setprio 0\ns_branch Lkf_entry")
    else:
        k.end(SWS, 0, 7)
    k.label(k.L('end'))
    k.e("s_endpgm")
    return k, dict(vgpr=192, sgpr=64, grid=256, block=512, lds=163840)
```

```python
import sys, os
sys.path.insert(0, "dev")
os.environ.setdefault('STF', 'sc1')
os.environ['ZFL'] = '1'
import gen3
from gen3 import *

HPACE = env('HPACE', 8)
APRE = env('APRE', 4)
DX = env('DX', 0)
WTR = env('WTR', 1)
MERGE = env('MERGE', 0)
LPRE = env('LPRE', 0)
EARLY = env('EARLY', 1)
BORD = env('BORD', 1)
CXB = env('CXB', 3)
CXE = env('CXE', 60)
WSZ = (STAMP_OFF + 8*65536*2) if STAMPS else WS_USED

def flush(k, sws, kid, n, tv):
    if not STAMPS: return
    k.e("s_waitcnt lgkmcnt(0)")
    k.e("s_mov_b64 exec, 1")
    for i in range(8):
        k.e(f"v_mov_b32 v{tv+i}, s{40+2*i}" if i < n else f"v_mov_b32 v{tv+i}, 0")
    k.e(f"""
    v_lshrrev_b32 v{tv+8}, 6, v0
    v_lshlrev_b32 v{tv+8}, 5, v{tv+8}
    s_lshl_b32 s38, s2, 8
    s_add_u32 s38, s38, {STAMP_OFF + kid*65536*2}
    buffer_store_dwordx4 {vr(tv,4)}, v{tv+8}, s[{sws}:{sws+3}], s38 offen
    buffer_store_dwordx4 {vr(tv+4,4)}, v{tv+8}, s[{sws}:{sws+3}], s38 offen offset:16
    s_mov_b64 exec, -1
    """)

PSLEEP = env('PSLEEP', 1)
PMODE = env('PMODE', 0)
PDEP = env('PDEP', 1)
def poll(k, name, soff, target, va, vt, sws, scnt, sW, pw, work=None):
    k.e(f"""
    s_cmp_lg_u32 s{sW}, {pw}
    s_cbranch_scc1 {k.L(name+'dr')}
    s_mov_b32 s{scnt}, 0x200000
    """)
    if PMODE:
        k.e(f"v_and_b32 v{va}, 63, v0\nv_min_u32 v{va}, {target-1}, v{va}\nv_lshlrev_b32 v{va}, 2, v{va}")
    else:
        k.e(f"v_mov_b32 v{va}, 0")
    PV = 252 if PDEP > 1 else vt
    ld = lambda i: k.e(f"buffer_load_dword v{PV+i}, v{va}, s[{sws}:{sws+3}], s{soff} offen sc1")
    for i in range(PDEP-1):
        ld(i); k.e(f"s_sleep {PSLEEP}")
    k.label(k.L(name))
    for i in range(PDEP):
        ld((i+PDEP-1) % PDEP)
        k.e(f"""
        s_waitcnt vmcnt({PDEP-1})
        v_cmp_gt_u32 vcc, {1 if PMODE else target}, v{PV+i}
        s_cbranch_vccz {k.L(name+'ok')}
        s_sleep {PSLEEP}
        """)
    k.e(f"""
    s_sub_u32 s{scnt}, s{scnt}, 1
    s_cbranch_scc0 {k.L(name)}
    """)
    if work is None:
        k.label(k.L(name+'dr'))
        k.e("s_waitcnt vmcnt(0)")
        k.label(k.L(name+'ok'))
        k.e("s_barrier")
        k.vm = []
    else:
        k.label(k.L(name+'ok'))
        k.e("s_barrier")
        k.vm = []
        work()
        n = len(k.vm)
        k.e(f"s_branch {k.L(name+'j')}")
        k.label(k.L(name+'dr'))
        k.vm = []
        work()
        k.e(f"s_waitcnt vmcnt({n})")
        k.e("s_barrier")
        k.label(k.L(name+'j'))

def signal(k, name, soff, n, stride_log2, va, vt, sws, sW, spi):
    k.e(f"""
    s_cmp_lg_u32 s{sW}, 0
    s_cbranch_scc1 {k.L(name)}
    v_lshlrev_b32 v{va}, {stride_log2}, v0
    v_mov_b32 v{vt}, 1
    """)
    if PMODE:
        k.e(f"""
        v_lshl_add_u32 v{va}, s{spi}, 2, v{va}
        s_mov_b64 exec, {(1 << n) - 1}
        buffer_store_dword v{vt}, v{va}, s[{sws}:{sws+3}], s{soff} offen sc1
        """)
    else:
        k.e(f"""
        s_mov_b64 exec, {(1 << n) - 1}
        buffer_atomic_add v{vt}, v{va}, s[{sws}:{sws+3}], s{soff} offen sc1
        """)
    k.e("s_mov_b64 exec, -1")
    k.label(k.L(name))

def gen_f():
    k = K("kf")
    SX, SW, SWS, SG, SU, SD, SO = 4, 8, 12, 56, 60, 64, 68
    sW, sRB, sCB, sT, sT2, sT3, sEPS, sONE, sKV, sPQ0, sWO, sROT, sLN2 = 20, 21, 22, 23, 24, 25, 26, 27, 28, 29, 30, 31, 19
    sFB, sRT, sCG, sWOFF, sH, sQ, sDCG, sDW, sA, sKH, sCNT = 16, 17, 18, 32, 33, 34, 35, 36, 37, 39, 72
    BB = 98304
    sPOL = 73
    if MERGE:
        k.label("Lkf_entry")
        k.e("s_barrier")
    k.stamp(0)
    k.e(f"""
    s_cmp_ge_u32 s2, 256
    s_cbranch_scc1 {k.L('end')}
    s_load_dwordx2 s[{SWS}:{SWS+1}], s[0:1], 72
    s_load_dwordx2 s[{SG}:{SG+1}], s[0:1], 32
    s_load_dwordx2 s[{SU}:{SU+1}], s[0:1], 40
    s_cmp_ge_u32 s2, 224
    s_cbranch_scc1 {k.L('cs')}
    s_load_dwordx2 s[{SX}:{SX+1}], s[0:1], 0
    s_load_dwordx2 s[{SW}:{SW+1}], s[0:1], 16
    s_load_dwordx2 s[{SD}:{SD+1}], s[0:1], 48
    s_load_dwordx2 s[{SO}:{SO+1}], s[0:1], 56
    v_lshrrev_b32 v5, 6, v0
    v_and_b32 v1, 63, v0
    v_readfirstlane_b32 s{sW}, v5
    v_lshlrev_b32 v1, 4, v1
    v_bfe_u32 v9, v0, 5, 1
    s_lshr_b32 s{sT2}, s2, 3
    """)
    div7(k, sQ, sCB, sT2)
    k.e(f"""
    s_and_b32 s{sT}, s2, 7
    s_lshl_b32 s{sT}, s{sT}, 2
    s_add_u32 s{sRB}, s{sQ}, s{sT}
    s_lshl_b32 s{sWO}, s{sCB}, 7
    """)
    srd_consts(k, SWS, WSZ)
    k.e(f"""
    s_cmp_ge_u32 s{sW}, 4
    s_cbranch_scc1 {k.L('ld')}
    """)
    k.e(f"""
    v_bfe_u32 v6, v0, 3, 2
    v_and_b32 v7, 3, v0
    v_lshl_add_u32 v6, v6, 2, v7
    v_bfe_u32 v7, v0, 2, 1
    v_mad_u32_u24 v7, v7, 14, v6
    v_cmp_gt_u32 vcc, 14, v6
    v_bfe_u32 v6, v0, 3, 3
    v_and_b32 v8, 7, v0
    v_cndmask_b32 v7, 28, v7, vcc
    v_lshlrev_b32 v2, 4, v7
    v_lshl_add_u32 v2, v9, 11, v2
    v_bfe_u32 v7, v0, 4, 1
    v_lshlrev_b32 v7, 2, v7
    v_xor_b32 v7, v7, v8
    v_mul_u32_u24 v3, 896, v6
    v_lshl_add_u32 v3, v7, 4, v3
    s_add_u32 s{sROT}, s{sQ}, s{sCB}
    s_and_b32 s{sROT}, s{sROT}, 3
    s_lshl_b32 s{sT}, s{sW}, 2
    s_add_u32 s{sROT}, s{sROT}, s{sT}
    s_and_b32 s{sT}, s{sW}, 1
    s_lshl_b32 s{sT2}, s{sRB}, 1
    s_add_u32 s{sT3}, s{sT2}, s{sT}
    s_lshl_b32 s{sPQ0}, s{sT3}, 15
    s_add_u32 s{sPQ0}, s{sPQ0}, {PQ_OFF}
    s_lshl_b32 s{sT}, s{sW}, 14
    s_add_u32 m0, s{sT}, {BB}
    """)
    srd_consts(k, SX, S*D*2)
    srd_consts(k, SW, D*D*2)
    k.e(f"""
    s_mov_b32 s{sEPS}, 0x{EPS_PHI:x}
    s_mov_b32 s{sONE}, 0x{ONES_BF:x}
    s_mov_b32 s{sLN2}, 0x{LN2:x}
    s_waitcnt lgkmcnt(0)
    """)
    k.stamp(1)
    KVF, PQR, ACC, OA, XR = 16, 80, 144, 208, 248
    def ld_head(p):
        k.e(f"""
        s_xor_b32 s{sT}, s{sROT}, {p}
        s_lshl_b32 s{sKV}, s{sT}, 12
        s_lshl_b32 s{sT}, s{sT}, 11
        s_add_u32 s{sT}, s{sT}, s{sPQ0}
        s_xor_b32 s{sT2}, s{sT}, 0x8000
        """)
        for q in range(4):
            k.vop(f"buffer_load_dwordx4 {vr(KVF+16*p+4*q,4)}, v2, s[{SWS}:{SWS+3}], s{sKV} offen offset:{q*512} {'sc1' if MERGE else ''}", f"kv{p}")
        for rt in range(2):
            for f in range(2):
                k.vop(f"buffer_load_dwordx4 {vr(PQR+16*p+8*rt+4*f,4)}, v1, s[{SWS}:{SWS+3}], s{sT if rt == 0 else sT2} offen offset:{f*1024} {'sc1' if MERGE else ''}", f"pq{p}")
    def ld_wo(p):
        k.e(f"""
        s_xor_b32 s{sT}, s{sROT}, {p}
        s_mul_i32 s{sT}, s{sT}, {28*896}
        s_add_u32 s{sT}, s{sT}, s{sWO}
        """)
        for u in range(4):
            k.vop(f"buffer_load_dwordx4 v3, s[{SW}:{SW+3}], s{sT} offen offset:{u*1024} lds", f"wo{p}")
            if u < 3: k.e(f"s_add_u32 s{sT}, s{sT}, {7168-1024}")
        k.e("s_add_u32 m0, m0, 4096")
    if not MERGE:
        ld_head(0); ld_head(1)
    def ld_x():
        k.e(f"""
        v_and_b32 v6, 31, v0
        v_mul_u32_u24 v4, 896, v6
        v_lshl_add_u32 v4, v9, 5, v4
        s_mul_i32 s{sT}, s{sT3}, {32*896}
        s_add_u32 s{sT}, s{sT}, s{sWO}
        s_lshr_b32 s{sT2}, s{sW}, 1
        s_lshl_b32 s{sT2}, s{sT2}, 6
        s_add_u32 s{sT}, s{sT}, s{sT2}
        """)
        k.vop(f"buffer_load_dwordx4 {vr(XR,4)}, v4, s[{SX}:{SX+3}], s{sT} offen", "x")
        k.vop(f"buffer_load_dwordx4 {vr(XR+4,4)}, v4, s[{SX}:{SX+3}], s{sT} offen offset:16", "x")
    AW0, AW1 = 14, 15
    k.e(f"""
    v_bfe_u32 v7, v0, 2, 2
    v_mad_u32_u24 v5, v9, 14, v7
    v_lshlrev_b32 v5, 7, v5
    v_lshrrev_b32 v7, 1, v7
    v_xor_b32 v7, v7, v9
    v_bfe_u32 v8, v0, 7, 1
    v_xor_b32 v7, v7, v8
    v_lshl_add_u32 v5, v7, 6, v5
    v_and_b32 v7, 1, v0
    v_lshl_add_u32 v5, v7, 5, v5
    v_bfe_u32 v7, v0, 4, 1
    v_lshl_add_u32 v5, v7, 4, v5
    v_bfe_u32 v7, v0, 1, 1
    v_lshl_add_u32 v5, v7, 3, v5
    v_lshrrev_b32 v7, 6, v0
    v_lshl_add_u32 v5, v7, 14, v5
    v_add_u32 v{AW0}, {BB}, v5
    v_xor_b32 v{AW1}, 64, v{AW0}
    """)
    def o_stage(p):
        k.wait_vm(f"kv{p}")
        if p == 0: k.stamp(2)
        if p == 3: k.stamp(3)
        b = KVF+16*p
        for i in range(8):
            k.e(f"v_cvt_pk_bf16_f32 v{b+i}, v{b+2*i}, v{b+2*i+1}")
        k.wait_vm(f"pq{p}")
        k.e("s_nop 0")
        for rt in range(2):
            for f in range(2):
                k.e(f"v_mfma_f32_32x32x16_bf16 {vr(OA+16*rt,16)}, {vr(b+4*f,4)}, {vr(PQR+16*p+8*rt+4*f,4)}, {'0' if f == 0 else vr(OA+16*rt,16)}")
    def norm_stage(p):
        for rt in range(2):
            o = OA+16*rt
            d = PQR+16*p+8*rt
            k.e(f"v_add_f32 v{o+14}, s{sEPS}, v{o+14}")
            k.e(f"v_rcp_f32 v{o+14}, v{o+14}")
            k.e(f"v_mov_b32 v{d+7}, 0")
            k.e(f"v_mul_f32 v{o+14}, s{sLN2}, v{o+14}")
            for i in range(0, 14, 2):
                k.e(f"v_pk_mul_f32 {vr(o+i,2)}, {vr(o+i,2)}, {vr(o+14,2)} op_sel_hi:[1,0]")
            for i in range(0, 14, 2):
                k.e(f"v_cvt_pk_bf16_f32 v{d+i//2}, v{o+i}, v{o+i+1}")
    def w_reads(p):
        k.wait_vm(f"wo{p}")
        for f in range(2):
            for ct in range(2):
                for ri in range(2):
                    k.e(f"ds_read_b64_tr_b16 {vr(KVF+16*p+8*f+4*ct+2*ri,2)}, v{AW0 if ct == 0 else AW1} offset:{(32*p+8*f+4*ri)*128}")
    def main_stage(p):
        for f in range(2):
            for ct in range(2):
                k.e(f"s_waitcnt lgkmcnt({6-4*f-2*ct})")
                for rt in range(2):
                    a = ACC+16*(2*ct+rt)
                    first = (p == 0 and f == 0)
                    k.e(f"v_mfma_f32_32x32x16_bf16 {vr(a,16)}, {vr(KVF+16*p+8*f+4*ct,4)}, {vr(PQR+16*p+8*rt+4*f,4)}, {'0' if first else vr(a,16)}")
    if MERGE:
        for p in range(4): ld_wo(p)
        ld_x()
        k.e(f"""
        s_mul_i32 s{sPOL}, s{sRB}, 7
        s_add_u32 s{sPOL}, s{sPOL}, s{sCB}
        s_lshl_b32 s{sPOL}, s{sPOL}, 7
        s_add_u32 s{sPOL}, s{sPOL}, {FL_OFF+65536}
        """)
        poll(k, 'p0', sPOL, 32, 5, 6, SWS, sCNT, sW, 0)
        k.vm = ["x"] + [f"wo{p}" for p in range(4)]
        k.stamp(1)
        ld_head(0); ld_head(1)
    for p in range(4):
        o_stage(p)
        if MERGE:
            if p == 0: ld_head(2)
            if p == 1:
                ld_head(3)
                k.e("s_barrier")
            if p > 0:
                main_stage(p-1)
            norm_stage(p)
            w_reads(p)
        elif BORD == 0:
            if p == 0: ld_wo(0); ld_head(2)
            if p == 1: ld_wo(1); ld_head(3)
            if p == 2:
                ld_wo(2); ld_wo(3); ld_x()
                k.e("s_barrier")
            if p > 0:
                main_stage(p-1)
            norm_stage(p)
            w_reads(p)
        else:
            if p == 0: ld_head(2)
            if p == 1: ld_head(3)
            if p == 2: ld_wo(0); ld_wo(1)
            if p == 3:
                ld_wo(2); ld_wo(3); ld_x()
                k.e("s_barrier")
            norm_stage(p)
    if BORD and not MERGE:
        for p in range(4):
            w_reads(p)
            if p < 3: main_stage(p)
    k.stamp(4)
    k.e("s_nop 1")
    main_stage(3)
    k.e(f"""
    v_lshrrev_b32 v7, 6, v0
    v_add_u32 v6, {BB}, v1
    v_lshl_add_u32 v8, v7, 14, v6
    """)
    for tp in range(1, 4):
        k.e(f"v_xor_b32 v{10+tp}, {tp}, v7")
        k.e(f"v_lshl_add_u32 v{10+tp}, v{10+tp}, 14, v6")
    k.e(f"""
    s_lshl_b32 s{sT}, s{sCB}, 1
    s_lshr_b32 s{sT2}, s{sW}, 1
    s_add_u32 s{sKV}, s{sT}, s{sT2}
    s_mul_i32 s{sT2}, s{sT3}, 14
    s_add_u32 s{sT}, s{sKV}, s{sT2}
    s_lshl_b32 s{sT2}, s{sT}, 8
    s_add_u32 s{sT2}, s{sT2}, {ST_OFF}
    s_lshl_b32 s{sT}, s{sT}, 11
    s_add_u32 s{sT}, s{sT}, {HF_OFF}
    """)
    for tp in range(1, 4):
        for a in range(4):
            k.e(f"ds_write_b128 v8, {vr(ACC+16*tp+4*a,4)} offset:{(tp-1)*4096+a*1024}")
    k.wait_vm("x")
    XU = 80
    for i in range(8):
        k.e(f"v_lshlrev_b32 v{XU+2*i}, 16, v{XR+i}")
        k.e(f"v_and_b32 v{XU+2*i+1}, 0xffff0000, v{XR+i}")
    for i in range(0, 16, 2):
        k.e(f"v_pk_add_f32 {vr(ACC+i,2)}, {vr(ACC+i,2)}, {vr(XU+i,2)}")
    k.e("""
    v_mov_b32 v4, 0
    v_mov_b32 v5, 0
    s_waitcnt lgkmcnt(0)
    s_barrier
    """)
    k.stamp(5)
    for tp in range(1, 4):
        for a in range(4):
            k.e(f"ds_read_b128 {vr(16*tp+4*a,4)}, v{10+tp} offset:{(tp-1)*4096+a*1024}")
    for j in range(3):
        k.e(f"s_waitcnt lgkmcnt({8-4*j})")
        for i in range(0, 16, 2):
            k.e(f"v_pk_add_f32 {vr(ACC+i,2)}, {vr(ACC+i,2)}, {vr(16+16*j+i,2)}")
    HO = 96
    for i in range(8):
        k.e(f"v_cvt_pk_bf16_f32 v{HO+i}, v{ACC+2*i}, v{ACC+2*i+1}")
    k.e(f"""
    buffer_store_dwordx4 {vr(HO,4)}, v1, s[{SWS}:{SWS+3}], s{sT} offen sc1
    buffer_store_dwordx4 {vr(HO+4,4)}, v1, s[{SWS}:{SWS+3}], s{sT} offen offset:1024 sc1
    """)
    for i in range(8):
        k.e(f"v_dot2c_f32_bf16 v4, s{sONE}, v{HO+i}")
        k.e(f"v_dot2c_f32_bf16 v5, v{HO+i}, v{HO+i}")
    k.e(f"""
    v_and_b32 v6, 31, v0
    v_lshlrev_b32 v6, 3, v6
    s_lshr_b32 s{sT}, s{sRB}, 2
    v_mov_b32 v12, v4
    v_mov_b32 v13, v5
    s_mul_i32 s{sT}, s{sT}, {28*128}
    s_add_u32 s{sT}, s{sT}, {FL_OFF}
    v_permlane32_swap_b32 v4, v12
    v_permlane32_swap_b32 v5, v13
    s_nop 0
    v_add_f32 v4, v4, v12
    v_add_f32 v5, v5, v13
    s_mov_b32 exec_hi, 0
    buffer_store_dwordx2 v[4:5], v6, s[{SWS}:{SWS+3}], s{sT2} offen sc1
    s_mov_b64 exec, -1
    """)
    k.stamp(6)
    k.e("s_waitcnt vmcnt(0)\ns_barrier")
    k.e(f"s_lshr_b32 s{sKV}, s2, 3")
    signal(k, 'sg1', sT, 28, 7, 7, 8, SWS, sW, sKV)
    k.stamp(7)
    flush(k, SWS, 1, 8, 16)
    k.e(f"s_branch {k.L('cc')}")
    def c_setup_scalar():
        k.e(f"""
        s_lshl_b32 s{sT}, s{sQ}, 1
        s_add_u32 s{sT}, s{sT}, s{sCB}
        """)
        div7(k, sT2, sCG, sT)
        k.e(f"""
        s_and_b32 s{sT2}, s2, 3
        s_mul_i32 s{sT2}, s{sT2}, 7
        s_add_u32 s{sFB}, s{sCB}, s{sT2}
        """)
        srd_consts(k, SG, D*F*2)
        srd_consts(k, SU, D*F*2+1024)
    k.label(k.L('ld'))
    k.vm = []
    c_setup_scalar()
    k.e(f"""
    v_bfe_u32 v6, v0, 3, 3
    v_bfe_u32 v7, v0, 6, 2
    v_lshl_add_u32 v6, v7, 4, v6
    v_and_b32 v8, 7, v0
    v_bfe_u32 v7, v0, 4, 1
    v_lshlrev_b32 v7, 2, v7
    v_xor_b32 v7, v7, v8
    v_mul_u32_u24 v2, 3584, v6
    v_lshl_add_u32 v2, v7, 4, v2
    v_add_u32 v3, {8*3584-2048}, v2
    s_lshl_b32 s{sWOFF}, s{sFB}, 7
    s_mul_i32 s{sT}, s{sCG}, {64*3584}
    s_add_u32 s{sWOFF}, s{sWOFF}, s{sT}
    s_mov_b32 s{sH}, s{sCG}
    s_and_b32 s{sT}, s{sW}, 3
    s_lshl_b32 m0, s{sT}, 12
    s_waitcnt lgkmcnt(0)
    s_sub_u32 s{SU}, s{SU}, 1024
    s_subb_u32 s{SU+1}, s{SU+1}, 0
    """)
    if not MERGE: k.e("s_barrier")
    for c in range(6):
        if MERGE and c == LPRE: k.e("s_barrier\ns_barrier")
        k.e(f"""
        buffer_load_dwordx4 v2, s[{SG}:{SG+3}], s{sWOFF} offen lds
        buffer_load_dwordx4 v2, s[{SU}:{SU+3}], s{sWOFF} offen offset:1024 lds
        buffer_load_dwordx4 v3, s[{SG}:{SG+3}], s{sWOFF} offen offset:2048 lds
        buffer_load_dwordx4 v3, s[{SU}:{SU+3}], s{sWOFF} offen offset:3072 lds
        """)
        if c < 5:
            k.e(f"""
            s_add_u32 m0, m0, 16384
            s_add_u32 s{sH}, s{sH}, 1
            s_cmp_eq_u32 s{sH}, 7
            s_cselect_b32 s{sT}, -6, 1
            s_mul_i32 s{sT}, s{sT}, {64*3584}
            s_add_u32 s{sWOFF}, s{sWOFF}, s{sT}
            """)
        if c == env('LBR', 2): k.e("s_barrier")
    k.e("s_barrier")
    k.e(f"s_branch {k.L('cj')}")
    k.label(k.L('cc'))
    c_setup_scalar()
    k.e(f"""
    s_sub_u32 s{SU}, s{SU}, 1024
    s_subb_u32 s{SU+1}, s{SU+1}, 0
    """)
    k.label(k.L('cj'))
    k.vm = []
    k.stamp(0)
    HFR, ACC, WF, STR, CSR = 16, 128, 192, 208, 224
    k.e(f"""
    s_and_b32 s{sT}, s2, 4
    s_add_u32 s{sT}, s{sT}, s{sQ}
    s_lshl_b32 s{sRT}, s{sT}, 3
    s_add_u32 s{sRT}, s{sRT}, s{sW}
    s_mul_i32 s{sPQ0}, s{sT}, 28
    s_add_u32 s{sPOL}, s{sPQ0}, s{sFB}
    s_lshl_b32 s{sPOL}, s{sPOL}, 7
    s_add_u32 s{sPOL}, s{sPOL}, {FL_OFF}
    s_mul_i32 s{sH}, s{sRT}, 28672
    s_lshl_b32 s{sT}, s{sCG}, 12
    s_add_u32 s{sH}, s{sH}, s{sT}
    s_add_u32 s{sH}, s{sH}, {HF_OFF}
    """)
    AW0, AW1 = 10, 11
    k.e(f"""
    s_add_u32 s{sT}, s{sCG}, 6
    s_cmp_ge_u32 s{sT}, 7
    s_cselect_b32 s{sT2}, 7, 0
    s_sub_u32 s{sT}, s{sT}, s{sT2}
    s_mul_i32 s{sT}, s{sT}, {64*3584}
    s_lshl_b32 s{sWOFF}, s{sFB}, 7
    s_add_u32 s{sWOFF}, s{sWOFF}, s{sT}
    v_lshrrev_b32 v6, 3, v0
    v_and_b32 v8, 7, v0
    v_bfe_u32 v7, v0, 4, 1
    v_lshlrev_b32 v4, 2, v7
    v_xor_b32 v4, v4, v8
    v_mul_u32_u24 v3, 3584, v6
    v_lshl_add_u32 v3, v4, 4, v3
    v_bfe_u32 v7, v0, 7, 2
    v_mul_u32_u24 v7, 448, v7
    v_bfe_u32 v6, v0, 3, 3
    v_add_u32 v6, v6, v7
    v_bfe_u32 v7, v0, 6, 1
    v_lshl_add_u32 v6, v7, 4, v6
    v_mul_u32_u24 v14, 896, v6
    v_lshl_add_u32 v14, v4, 4, v14
    v_add_u32 v15, {8*896-1024}, v14
    v_bfe_u32 v7, v0, 2, 2
    v_lshlrev_b32 v6, 12, v9
    v_lshl_add_u32 v6, v7, 7, v6
    v_lshrrev_b32 v7, 1, v7
    v_lshl_add_u32 v6, v7, 6, v6
    v_and_b32 v7, 1, v0
    v_lshl_add_u32 v6, v7, 5, v6
    v_bfe_u32 v7, v0, 4, 1
    v_lshl_add_u32 v6, v7, 4, v6
    v_bfe_u32 v7, v0, 1, 1
    v_lshl_add_u32 v{AW0}, v7, 3, v6
    v_xor_b32 v{AW1}, 64, v{AW0}
    v_add_u32 v12, 0x10000, v{AW0}
    v_add_u32 v13, 0x10000, v{AW1}
    v_and_b32 v6, 31, v0
    v_mul_u32_u24 v4, 1792, v9
    v_lshl_add_u32 v4, v6, 3, v4
    v_bfe_u32 v7, v0, 2, 1
    v_bfe_u32 v8, v0, 3, 2
    v_lshlrev_b32 v7, 4, v7
    v_lshl_add_u32 v7, v8, 2, v7
    v_and_b32 v8, 3, v0
    v_add_lshl_u32 v2, v7, v8, 2
    s_mul_i32 s{sT}, s{sQ}, 7
    s_lshr_b32 s{sT}, s{sT}, 1
    s_lshl_b32 s{sDCG}, s{sCB}, 1
    s_add_u32 s{sDCG}, s{sDCG}, s{sT}
    s_cmp_ge_u32 s{sDCG}, 14
    s_cselect_b32 s{sT}, 14, 0
    s_sub_u32 s{sDCG}, s{sDCG}, s{sT}
    s_mul_i32 s{sT}, s{sDCG}, {32*896}
    s_add_u32 s{sDW}, s{sWO}, s{sT}
    s_mov_b32 s{sROT}, s{sDCG}
    s_mul_i32 s{sT}, s{sRT}, 3584
    s_add_u32 s{sT}, s{sT}, {ST_OFF}
    s_lshl_b32 s{sT2}, s{sFB}, 8
    s_add_u32 s{sT2}, s{sT2}, {CS_OFF}
    s_add_u32 s{sKV}, s{sT2}, 7168
    """)
    srd_consts(k, SD, F*D*2)
    srd_consts(k, SO, S*D*2)
    def h_loads(c):
        L = []
        for j in range(4):
            def hj(j=j):
                if j == 0 and c > 0:
                    k.e(f"""
                    s_add_u32 s{sCG}, s{sCG}, 1
                    s_cmp_eq_u32 s{sCG}, 7
                    s_cselect_b32 s{sT3}, -6, 1
                    s_lshl_b32 s{sT3}, s{sT3}, 12
                    s_add_u32 s{sH}, s{sH}, s{sT3}
                    """)
                k.vop(f"buffer_load_dwordx4 {vr(HFR+16*c+4*j,4)}, v1, s[{SWS}:{SWS+3}], s{sH} offen offset:{j*1024} sc1", f"h{4*c+j}")
            L.append(hj)
        return L
    dslot = [7, 8, 9, 0, 1, 2, 3, 4, 5, 6, 7, 8, 9, 0]
    def wd_dma(j):
        k.e(f"""
        s_lshl_b32 s{sT3}, s{sW}, 11
        s_add_u32 m0, s{sT3}, {dslot[j]*16384}
        """)
        if j > 0:
            k.e(f"""
            s_add_u32 s{sDCG}, s{sDCG}, 1
            s_cmp_eq_u32 s{sDCG}, 14
            s_cselect_b32 s{sT3}, -13, 1
            s_mul_i32 s{sT3}, s{sT3}, {32*896}
            s_add_u32 s{sDW}, s{sDW}, s{sT3}
            """)
        else:
            k.e("s_nop 0")
        k.vop(f"buffer_load_dwordx4 v14, s[{SD}:{SD+3}], s{sDW} offen lds", f"w{j}")
        k.vop(f"buffer_load_dwordx4 v15, s[{SD}:{SD+3}], s{sDW} offen offset:1024 lds", f"w{j}")
    def w6():
        k.e(f"""
        s_lshl_b32 s{sT3}, s{sW}, 11
        s_add_u32 m0, s{sT3}, {6*16384}
        s_nop 0
        """)
        k.vop(f"buffer_load_dwordx4 v3, s[{SG}:{SG+3}], s{sWOFF} offen lds", "wc6")
        k.vop(f"buffer_load_dwordx4 v3, s[{SU}:{SU+3}], s{sWOFF} offen offset:1024 lds", "wc6")
    def early():
        w6()
        for j in range(EARLY-1): wd_dma(j)
    poll(k, 'p1', sPOL, 28, 5, 6, SWS, sCNT, sW, 4, work=early if EARLY else None)
    k.stamp(1)
    H0 = env('H0', 2)
    hl0 = h_loads(0)
    for f in hl0[:H0]: f()
    if env('YPRIO', 0):
        k.e(f"s_cmp_lt_u32 s{sW}, 4\ns_cbranch_scc1 {k.L('np')}\ns_setprio {env('YPRIO', 0)}")
        k.label(k.L('np'))
    k.e("s_barrier")
    for f in hl0[H0:]: f()
    if env('H1B', 0): k.e("s_barrier")
    for f in h_loads(1): f()
    stl = []
    for u in range(7):
        stl.append(lambda u=u: k.vop(f"buffer_load_dwordx2 {vr(STR+2*u,2)}, v4, s[{SWS}:{SWS+3}], s{sT} offen offset:{u*256} sc1", "st"))
    for q in range(4):
        stl.append(lambda q=q: k.vop(f"buffer_load_dword v{CSR+q}, v2, s[{SWS}:{SWS+3}], s{sT2 if q < 2 else sKV} offen offset:{(q&1)*128} sc1", "st"))
    KS = CKS
    units = [(kap, tau) for kap in range(KS) for tau in range(4)]
    units += [(kap, tau) for kap in range(KS, 28) for tau in (0, 2)] + [('x', 0), ('x', 2)]
    nA = len(units)
    units += [(kap, tau) for kap in range(KS, 28) for tau in (1, 3)] + [('x', 1), ('x', 3)]
    NU = len(units)
    DEP = 4
    T, XE, WE = 228, 232, 236
    C1, IR2 = STR+4, STR+2
    g6 = next(u for u in range(NU) if units[u][0] != 'x' and units[u][0] >= 24) - DEP
    assert g6 >= 4*KS and KS >= 16
    pend = []
    for c in range(2, 7):
        for i, f in enumerate(h_loads(c)):
            pend.append(((c-2)*HPACE + 2*i, f))
    e0 = 5*HPACE
    if not EARLY: pend.append((e0, w6))
    for i, f in enumerate(stl): pend.append((e0+2+i, f))
    for j in range(max(0, EARLY-1), 3): pend.append((e0+14+4*j, lambda j=j: wd_dma(j)))
    for j in range(3, 7): pend.append((g6+2+5*(j-3), lambda j=j: wd_dma(j)))
    WT = 40
    def wt_load(j, i):
        if i == 0:
            k.e(f"""
            s_add_u32 s{sLN2}, s{sROT}, {j}
            s_cmp_ge_u32 s{sLN2}, 14
            s_cselect_b32 s{sT3}, 14, 0
            s_sub_u32 s{sLN2}, s{sLN2}, s{sT3}
            s_mul_i32 s{sLN2}, s{sLN2}, {32*896}
            s_add_u32 s{sLN2}, s{sLN2}, s{sWO}
            """)
        k.vop(f"buffer_load_dwordx4 {vr(WT+8*(j-10)+4*i,4)}, v{14+i}, s[{SD}:{SD+3}], s{sLN2} offen offset:{i*1024}", "wt")
    if WTR:
        for j in range(10, 14):
            for i in range(2):
                pend.append((g6+22+2*(2*(j-10)+i), lambda j=j, i=i: wt_load(j, i)))
    pend.sort(key=lambda x: x[0])
    kk = K("tmp")
    for u in range(1, 7):
        kk.e(f"v_add_f32 v{STR}, v{STR}, v{STR+2*u}")
        kk.e(f"v_add_f32 v{STR+1}, v{STR+1}, v{STR+2*u+1}")
    kk.e(f"""
    v_cmp_eq_u32 vcc, 0, v9
    v_mov_b32 v{STR+2}, v{STR}
    v_mov_b32 v{STR+3}, v{STR+1}
    v_cndmask_b32 v{CSR}, 0, v{CSR}, vcc
    v_cndmask_b32 v{CSR+1}, 0, v{CSR+1}, vcc
    v_permlane32_swap_b32 v{STR}, v{STR+2}
    v_permlane32_swap_b32 v{STR+1}, v{STR+3}
    v_cndmask_b32 v{CSR+2}, 0, v{CSR+2}, vcc
    v_cndmask_b32 v{CSR+3}, 0, v{CSR+3}, vcc
    v_add_f32 v{STR}, v{STR}, v{STR+2}
    v_add_f32 v{STR+1}, v{STR+1}, v{STR+3}
    v_mul_f32 v{STR}, 0x{INV_D|0x80000000:x}, v{STR}
    v_mul_f32 v{STR+1}, 0x{INV_D:x}, v{STR+1}
    v_fma_f32 v{STR+1}, -v{STR}, v{STR}, v{STR+1}
    v_max_f32 v{STR+1}, 0, v{STR+1}
    v_add_f32 v{STR+2}, 0x{EPS_LN:x}, v{STR+1}
    v_rsq_f32 v{STR+4}, v{STR+2}
    """)
    hilo_x(kk, XE, STR, T)
    kk.e(f"v_mov_b32 v{XE+2}, 0\nv_mov_b32 v{XE+3}, 0")
    kk.e(f"v_mul_f32 v{STR+4}, 0x{LOG2E|0x80000000:x}, v{STR+4}")
    for tau in range(4):
        hilo_w(kk, WE+4*tau, CSR+tau, T+1)
    kk.e(f"""
    s_mul_i32 s{sT}, s{sRT}, 114688
    s_lshl_b32 s{sT2}, s{sFB}, 12
    s_add_u32 s{sT}, s{sT}, s{sT2}
    s_add_u32 s{sT}, s{sT}, {ACT_OFF}
    """)
    side1 = [l.strip() for l in kk.lines]
    def epi(ct, packed):
        kk = K("tmp")
        O = 16 + 8*ct
        g, u = ACC+16*ct, ACC+32+16*ct
        for i in range(0, 16, 2):
            t = 32 + (i % 8)
            if packed:
                kk.e(f"v_pk_mul_f32 {vr(t,2)}, {vr(g+i,2)}, {vr(C1,2)} op_sel_hi:[1,0]")
                kk.e(f"v_pk_mul_f32 {vr(g+i,2)}, {vr(g+i,2)}, {vr(u+i,2)}")
                kk.e(f"v_exp_f32 v{t}, v{t}")
                kk.e(f"v_exp_f32 v{t+1}, v{t+1}")
                kk.e("s_nop 0")
                kk.e(f"v_pk_fma_f32 {vr(t,2)}, {vr(t,2)}, {vr(IR2,2)}, {vr(IR2,2)} op_sel_hi:[1,0,0]")
                kk.e(f"v_rcp_f32 v{t}, v{t}")
                kk.e(f"v_rcp_f32 v{t+1}, v{t+1}")
                kk.e("s_nop 0")
                kk.e(f"v_pk_mul_f32 {vr(g+i,2)}, {vr(g+i,2)}, {vr(t,2)}")
            else:
                kk.e(f"v_mul_f32 v{t}, v{g+i}, v{C1}")
                kk.e(f"v_mul_f32 v{t+1}, v{g+i+1}, v{C1}")
                kk.e(f"v_exp_f32 v{t}, v{t}")
                kk.e(f"v_mul_f32 v{g+i}, v{g+i}, v{u+i}")
                kk.e(f"v_exp_f32 v{t+1}, v{t+1}")
                kk.e(f"v_mul_f32 v{g+i+1}, v{g+i+1}, v{u+i+1}")
                kk.e(f"v_fma_f32 v{t}, v{t}, v{IR2}, v{IR2}")
                kk.e(f"v_fma_f32 v{t+1}, v{t+1}, v{IR2}, v{IR2}")
                kk.e(f"v_rcp_f32 v{t}, v{t}")
                kk.e(f"v_rcp_f32 v{t+1}, v{t+1}")
                kk.e(f"v_mul_f32 v{g+i}, v{g+i}, v{t}")
                kk.e(f"v_mul_f32 v{g+i+1}, v{g+i+1}, v{t+1}")
            kk.e(f"v_cvt_pk_bf16_f32 v{O+i//2}, v{g+i}, v{g+i+1}")
            if i % 8 == 6:
                f = i // 8
                kk.e(f"buffer_store_dwordx4 {vr(O+4*f,4)}, v1, s[{SWS}:{SWS+3}], s{sT} offen offset:{ct*2048+f*1024} sc1")
        return [l.strip() for l in kk.lines]
    side2 = epi(0, False)
    s1_start = nA - 2 - (len(side1)+3)//4 - 1
    assert s1_start > e0+2+len(stl)
    s2_start = nA + 3
    hw = set()
    gate = dict(done=False)
    def rd(u):
        kap, tau = units[u]
        if kap == 'x': return
        if kap >= 24 and not gate['done']:
            gate['done'] = True
            k.wait_vm("wc6")
            k.e("s_barrier")
            k.stamp(4)
        cc, tl, f = kap >> 2, (kap >> 1) & 1, kap & 1
        m, ct = tau >> 1, tau & 1
        o = cc*16384 + tl*8192 + f*2048 + m*1024
        a = AW0 + ct
        if o >= 0x10000: o -= 0x10000; a += 2
        for ri in range(2):
            k.e(f"ds_read_b64_tr_b16 {vr(bufof[u]+2*ri,2)}, v{a} offset:{o+ri*512}")
    free = [WF+4*i for i in range(4)] + [WE+4*i for i in range(CXB)]
    bufof = {}
    nxt = dict(u=0)
    def fill(u):
        while nxt['u'] < NU and (free or units[nxt['u']][0] == 'x'):
            v = nxt['u']
            if units[v][0] != 'x':
                bufof[v] = free.pop(0)
                rd(v)
            nxt['u'] += 1
    fill(-1)
    started = set()
    for u in range(NU):
        kap, tau = units[u]
        a = ACC+16*tau
        if kap == 'x':
            assert not side1
            k.e(f"v_mfma_f32_32x32x16_bf16 {vr(a,16)}, {vr(WE+4*tau,4)}, {vr(XE,4)}, {vr(a,16)}")
        else:
            if kap not in hw:
                hw.add(kap)
                if kap < 8 or kap % 4 == 0: k.wait_vm(f"h{kap if kap < 8 else kap+3}")
                if kap == 0: k.stamp(2)
                if kap == 12: k.stamp(3)
            nout = sum(1 for v in range(u+1, nxt['u']) if units[v][0] != 'x')
            assert nout <= 7
            k.e(f"s_waitcnt lgkmcnt({2*nout})")
            k.e(f"v_mfma_f32_32x32x16_bf16 {vr(a,16)}, {vr(bufof[u],4)}, {vr(HFR+4*kap,4)}, {'0' if tau not in started else vr(a,16)}")
            started.add(tau)
            if bufof[u] < WE or u < CXE: free.append(bufof[u])
        fill(u)
        while pend and pend[0][0] <= u:
            pend.pop(0)[1]()
        if u >= s1_start and side1:
            if u == s1_start:
                k.wait_vm("st")
                k.e(f"s_mov_b32 s{sCNT}, 0x100000")
                k.label(k.L('csw'))
                k.e(f"""
                v_max_u32 v{T}, v{CSR}, v{CSR+1}
                v_max3_u32 v{T}, v{T}, v{CSR+2}, v{CSR+3}
                v_cmp_eq_u32 vcc, -1, v{T}
                s_cbranch_vccz {k.L('cswok')}
                s_sleep 4
                """)
                for q in range(4):
                    k.e(f"buffer_load_dword v{CSR+q}, v2, s[{SWS}:{SWS+3}], s{sT2 if q < 2 else sKV} offen offset:{(q&1)*128} sc1")
                k.e(f"""
                s_waitcnt vmcnt(0)
                s_sub_u32 s{sCNT}, s{sCNT}, 1
                s_cbranch_scc0 {k.L('csw')}
                """)
                k.label(k.L('cswok'))
            for _ in range(4):
                if side1: k.e(side1.pop(0))
        if u >= s2_start and side2:
            for _ in range(5 if len(side2) > 4*(NU-u) else 4):
                if side2: k.e(side2.pop(0))
    assert not pend
    k.stamp(5)
    for l in side2: k.e(l)
    k.e(f"""
    s_lshl_b32 s{sT2}, s{sPQ0}, 7
    s_add_u32 s{sT2}, s{sT2}, {FL_OFF+32768}
    """)
    k.nop(max(0, 10-len(side2)))
    for l in epi(1, True): k.e(l)
    k.stamp(6)
    k.e("s_waitcnt vmcnt(0)\ns_barrier")
    signal(k, 'sg2', sT2, 28, 7, 7, 8, SWS, sW, sFB)
    k.stamp(7)
    flush(k, SWS, 2, 8, 176)
    k.vm = []
    k.stamp(0)
    ACC, WF, HR, AW = 128, 160, 192, 196
    def AFR(j):
        if not WTR: return 16+8*j
        return 16+8*j if j < 3 else (72+8*(j-3) if j < 10 else 208+8*(j-10))
    RED = 1*16384
    for j in (7, 8, 9): wd_dma(j)
    k.e(f"""
    s_lshr_b32 s{sKH}, s{sW}, 1
    s_lshl_b32 s{sH}, s{sRB}, 1
    s_and_b32 s{sT2}, s{sW}, 1
    s_add_u32 s{sH}, s{sH}, s{sT2}
    s_lshl_b32 s{sT}, s{sH}, 2
    s_add_u32 s{sT}, s{sT}, s{sKH}
    s_mul_i32 s{sA}, s{sT}, 28672
    s_lshl_b32 s{sT}, s{sROT}, 11
    s_add_u32 s{sA}, s{sA}, s{sT}
    s_add_u32 s{sA}, s{sA}, {ACT_OFF}
    s_mul_i32 s{sT2}, s{sRB}, 7
    s_add_u32 s{sT2}, s{sT2}, s{sCB}
    s_lshl_b32 s{sT2}, s{sT2}, 7
    s_add_u32 s{sT2}, s{sT2}, {FL_OFF+32768}
    v_bfe_u32 v7, v0, 2, 2
    v_lshl_add_u32 v6, v9, 4, v7
    v_lshlrev_b32 v6, 7, v6
    v_bfe_u32 v5, v0, 7, 2
    v_lshl_add_u32 v6, v5, 12, v6
    v_lshrrev_b32 v7, 1, v7
    v_bfe_u32 v5, v0, 8, 1
    v_xor_b32 v7, v7, v5
    v_lshl_add_u32 v6, v7, 6, v6
    v_and_b32 v7, 1, v0
    v_lshl_add_u32 v6, v7, 5, v6
    v_bfe_u32 v7, v0, 4, 1
    v_bfe_u32 v5, v0, 7, 1
    v_xor_b32 v7, v7, v5
    v_lshl_add_u32 v6, v7, 4, v6
    v_bfe_u32 v7, v0, 1, 1
    v_lshl_add_u32 v{AW}, v7, 3, v6
    v_xor_b32 v{AW+1}, 64, v{AW}
    v_add_u32 v{AW+2}, 0x10000, v{AW}
    v_add_u32 v{AW+3}, 0x10000, v{AW+1}
    v_add_u32 v{AW+4}, 0x20000, v{AW}
    v_add_u32 v{AW+5}, 0x20000, v{AW+1}
    s_mul_i32 s{sT}, s{sH}, 28
    s_lshl_b32 s{sT3}, s{sCB}, 2
    s_add_u32 s{sT}, s{sT}, s{sT3}
    s_add_u32 s{sT}, s{sT}, s{sKH}
    s_lshl_b32 s{sT}, s{sT}, 10
    s_add_u32 s{sT}, s{sT}, {HF_OFF}
    buffer_load_dwordx4 {vr(HR,4)}, v1, s[{SWS}:{SWS+3}], s{sT} offen sc1
    v_lshrrev_b32 v5, 6, v0
    s_movk_i32 s{sT3}, 6144
    v_add_u32 v6, {RED}, v1
    v_mad_u32_u24 v10, v5, s{sT3}, v6
    """)
    for qd in range(1, 4):
        k.e(f"v_xor_b32 v{10+qd}, {2*qd}, v5")
        k.e(f"v_mad_u32_u24 v{10+qd}, v{10+qd}, s{sT3}, v6")
    k.e(f"""
    v_and_b32 v5, 31, v0
    v_mul_u32_u24 v4, 896, v5
    v_lshl_add_u32 v4, v9, 5, v4
    s_mul_i32 s{sT}, s{sH}, {32*896}
    s_add_u32 s{sT}, s{sT}, s{sWO}
    s_lshr_b32 s{sT3}, s{sKH}, 1
    s_lshl_b32 s{sT3}, s{sT3}, 6
    s_add_u32 s{sT}, s{sT}, s{sT3}
    s_and_b32 s{sT3}, s{sKH}, 1
    s_lshl_b32 s{sT3}, s{sT3}, 4
    s_add_u32 s{sT}, s{sT}, s{sT3}
    """)
    k.e(f"""
    v_lshrrev_b32 v5, 6, v0
    v_lshl_add_u32 v202, v5, 11, v1
    v_add_u32 v203, {7*16384}, v202
    """)
    poll(k, 'p2', sT2, 28, 2, 3, SWS, sCNT, sW, 4)
    k.stamp(1)
    def lda(j):
        if j > 0:
            k.e(f"""
            s_add_u32 s{sROT}, s{sROT}, 1
            s_cmp_eq_u32 s{sROT}, 14
            s_cselect_b32 s{sT3}, -13, 1
            s_lshl_b32 s{sT3}, s{sT3}, 11
            s_add_u32 s{sA}, s{sA}, s{sT3}
            """)
        for f in range(2):
            k.vop(f"buffer_load_dwordx4 {vr(AFR(j)+4*f,4)}, v1, s[{SWS}:{SWS+3}], s{sA} offen offset:{f*1024} sc1", f"a{j}")
    NBUF = 6
    def reads(u):
        j, f, ct = u >> 2, (u >> 1) & 1, u & 1
        o = dslot[j]*16384 + f*1024
        a = AW + ct + 2*(o >> 16)
        o &= 0xffff
        b = WF + 4*(u % NBUF)
        for ri in range(2):
            k.e(f"ds_read_b64_tr_b16 {vr(b+2*ri,2)}, v{a} offset:{o+ri*512}")
    for j in range(APRE):
        lda(j)
        if j < env('A0B', 1): k.e("s_barrier")
    DEP = NBUF-1
    NU = 56
    wq = []
    for u in range(DEP): reads(u)
    for u in range(NU):
        j, f, ct = u >> 2, (u >> 1) & 1, u & 1
        if u+DEP < NU:
            if (u+DEP) % 4 == 0:
                jn = (u+DEP)//4
                if DX == 0:
                    if jn == 6:
                        k.e("s_barrier")
                        k.stamp(3)
                        if WTR: wq = [(jj, i) for jj in (10, 11, 12, 13) for i in range(2)]
                        else:
                            for jj in (10, 11, 12, 13): wd_dma(jj)
                    if jn == 10:
                        if WTR: assert not wq
                        else: k.wait_vm("w13")
                        k.e("s_barrier")
                        k.stamp(4)
                else:
                    if jn == 4:
                        k.e("s_barrier")
                        for jj in (10, 11): wd_dma(jj)
                    if jn == 6:
                        k.e("s_barrier")
                        k.stamp(3)
                        for jj in (12, 13): wd_dma(jj)
                    if jn == 10:
                        k.wait_vm("w11")
                        k.e("s_barrier")
                        k.stamp(4)
                    if jn == 12:
                        k.wait_vm("w13")
                        k.e("s_barrier")
            reads(u+DEP)
        if u % 4 == 0:
            k.wait_vm(f"a{j}")
            if u == 0: k.stamp(2)
        k.e(f"s_waitcnt lgkmcnt({2*min(DEP, NU-1-u)})")
        a = ACC+16*ct
        k.e(f"v_mfma_f32_32x32x16_bf16 {vr(a,16)}, {vr(WF+4*(u%NBUF),4)}, {vr(AFR(j)+4*f,4)}, {'0' if u < 2 else vr(a,16)}")
        if u % 4 == 3 and j + APRE < 14:
            lda(j + APRE)
        if wq:
            jj, i = wq.pop(0)
            sl = dslot[jj]
            k.e(f"ds_write_b128 v{203 if sl >= 7 else 202}, {vr(WT+8*(jj-10)+4*i,4)} offset:{(sl-7 if sl >= 7 else sl)*16384+i*1024}")
    k.stamp(5)
    for i in range(4):
        k.e(f"v_lshlrev_b32 v{16+2*i}, 16, v{HR+i}")
        k.e(f"v_and_b32 v{17+2*i}, 0xffff0000, v{HR+i}")
    k.nop(3)
    for qd in range(1, 4):
        for a in range(2):
            k.e(f"ds_write_b128 v{10+qd}, {vr(ACC+8*qd+4*a,4)} offset:{(qd-1)*2048+a*1024}")
    for i in range(0, 8, 2):
        k.e(f"v_pk_add_f32 {vr(ACC+i,2)}, {vr(ACC+i,2)}, {vr(16+i,2)}")
    k.e("s_waitcnt lgkmcnt(0)\ns_barrier")
    for n in range(6):
        k.e(f"ds_read_b128 {vr(24+4*n,4)}, v10 offset:{n*1024}")
    for qd in range(3):
        k.e(f"s_waitcnt lgkmcnt({4-2*qd})")
        for i in range(0, 8, 2):
            k.e(f"v_pk_add_f32 {vr(ACC+i,2)}, {vr(ACC+i,2)}, {vr(24+8*qd+i,2)}")
    for i in range(4):
        k.e(f"v_cvt_pk_bf16_f32 v{16+i}, v{ACC+2*i}, v{ACC+2*i+1}")
    k.e(f"buffer_store_dwordx4 v[16:19], v4, s[{SO}:{SO+3}], s{sT} offen {os.environ.get('OSF','')}")
    k.stamp(6)
    k.end(SWS, 3, 7)
    k.label(k.L('cs'))
    k.e(f"""
    s_load_dwordx2 s[{SD}:{SD+1}], s[0:1], 48
    s_mov_b32 s{SD+2}, {F*D*2}
    s_mov_b32 s{SD+3}, 0x20000
    s_sub_u32 s{sCB}, s2, 224
    s_mul_i32 s{sQ}, s{sCB}, {392*128}
    v_min_u32 v2, 391, v0
    v_lshlrev_b32 v2, 7, v2
    s_cmp_lt_u32 s2, 252
    s_cbranch_scc1 {k.L('cs1')}
    s_waitcnt lgkmcnt(0)
    buffer_load_dword v100, v2, s[{SD}:{SD+3}], s{sQ} offen
    s_endpgm
    """)
    k.label(k.L('cs1'))
    k.e(f"""
    v_lshrrev_b32 v5, 6, v0
    v_bfe_u32 v6, v0, 3, 3
    v_readfirstlane_b32 s{sW}, v5
    v_and_b32 v7, 7, v0
    v_mul_u32_u24 v1, 3584, v6
    v_lshl_add_u32 v1, v7, 4, v1
    s_sub_u32 s{sCB}, s2, 224
    s_and_b32 s{sT}, s{sW}, 3
    s_mul_i32 s{sT}, s{sT}, {112*3584}
    s_lshl_b32 s{sT2}, s{sCB}, 7
    s_add_u32 s{sT}, s{sT}, s{sT2}
    s_mov_b32 s{sEPS}, 0x3f80
    s_mov_b32 s{sONE}, 0x3f800000
    """)
    srd_consts(k, SW, D*F*2)
    srd_consts(k, SWS, WSZ)
    k.e(f"""
    s_waitcnt lgkmcnt(0)
    s_cmp_ge_u32 s{sW}, 4
    s_cselect_b32 s{SW}, s{SU}, s{SG}
    s_cselect_b32 s{SW+1}, s{SU+1}, s{SG+1}
    """)
    for u in range(14):
        k.e(f"buffer_load_dwordx4 {vr(16+4*u,4)}, v1, s[{SW}:{SW+3}], s{sT} offen")
        k.e(f"s_add_u32 s{sT}, s{sT}, {8*3584}")
    for i in range(8):
        k.e(f"v_mov_b32 v{8+i}, 0")
    for u in range(14):
        k.e(f"s_waitcnt vmcnt({13-u})")
        for j in range(4):
            k.e(f"v_dot2c_f32_bf16 v{8+2*j}, s{sEPS}, v{16+4*u+j}")
            k.e(f"v_dot2c_f32_bf16 v{9+2*j}, s{sONE}, v{16+4*u+j}")
    k.e(f"""
    s_cmp_eq_u32 s{sW}, 0
    s_cbranch_scc1 {k.L('cs2')}
    buffer_load_dword v100, v2, s[{SD}:{SD+3}], s{sQ} offen
    """)
    k.label(k.L('cs2'))
    k.e(f"""
    v_mov_b32 v101, v2
    v_lshlrev_b32 v2, 5, v0
    v_and_b32 v4, 63, v0
    v_lshlrev_b32 v4, 2, v4
    v_add_u32 v3, 8192, v4
    s_nop 0
    ds_write_b128 v2, v[8:11]
    ds_write_b128 v2, v[12:15] offset:16
    s_waitcnt lgkmcnt(0)
    s_barrier
    s_cmp_ge_u32 s{sW}, 1
    s_cbranch_scc1 {k.L('end')}
    """)
    for m in range(2):
        for h in range(2):
            for i in range(8):
                k.e(f"ds_read2st64_b32 {vr(16+32*m+16*h+2*i,2)}, v{4 if m == 0 else 3} offset0:{16*h+2*i} offset1:{16*h+2*i+1}")
            k.e("s_waitcnt lgkmcnt(0)")
    k.e(f"""
    s_lshl_b32 s{sT}, s{sCB}, 8
    s_add_u32 s{sT}, s{sT}, {CS_OFF}
    s_add_u32 s{sT2}, s{sT}, 7168
    """)
    for m in range(2):
        for stp in (16, 8, 4, 2, 1):
            for i in range(stp):
                k.e(f"v_add_f32 v{16+32*m+i}, v{16+32*m+i}, v{16+32*m+i+stp}")
    k.e(f"""
    buffer_store_dword v16, v4, s[{SWS}:{SWS+3}], s{sT} offen sc1
    buffer_store_dword v48, v4, s[{SWS}:{SWS+3}], s{sT2} offen sc1
    buffer_load_dword v100, v101, s[{SD}:{SD+3}], s{sQ} offen
    """)
    k.end(SWS, 1, 1)
    k.label(k.L('end'))
    k.e("s_endpgm")
    return k, dict(vgpr=256, sgpr=80, grid=256, block=512, lds=163840)

if __name__ == "__main__":
    from gen8a import gen_a8
    ka, kf = gen_a8(), gen_f()
    out = sys.argv[1] if len(sys.argv) > 1 else "sequential_preLN__linear_attn_block__swiglu_ffn__prompt.s"
    if MERGE:
        ka[0].lines += kf[0].lines
        ks = [(ka[0], kf[1])]
    else:
        ks = [ka, kf]
    open(out, "w").write(build(ks))
```

```python
from gen3 import *

def mflush(k):
    if not STAMPS: return
    k.e("s_waitcnt lgkmcnt(0)\ns_mov_b64 exec, 1")
    for i in range(8): k.e(f"v_mov_b32 v{16+i}, s{40+2*i}")
    k.e(f"""
    v_lshrrev_b32 v24, 6, v0
    v_lshlrev_b32 v24, 5, v24
    s_lshl_b32 s38, s2, 8
    s_add_u32 s38, s38, {STAMP_OFF}
    s_mov_b32 s14, {STAMP_OFF + 8*65536*2}
    buffer_store_dwordx4 v[16:19], v24, s[12:15], s38 offen
    buffer_store_dwordx4 v[20:23], v24, s[12:15], s38 offen offset:16
    s_mov_b64 exec, -1
    """)

def gen_a8():
    k = K("ka")
    SX, SW, SWS, SDB, SP = 4, 8, 12, 16, 32
    sW, sRB, sH, sx, skv, sq, sT, sT2, sEPS, sONE, sLN2, sCX, sCV, sROT = 20, 21, 22, 23, 24, 25, 26, 27, 28, 29, 30, 31, 76, 77
    XS, NXS = 0, 7
    VS, NVS = 114688, 5
    WQ = 0
    MISC = 155648
    PART = 32768
    CSX = MISC + 2048
    CNT = MISC + 6144
    DUM = 190
    AH = 2
    MERGE = env('MERGE', 0)
    sJ = 78
    CPL = env('CPL', 8)
    QX = env('QX', 1)
    QE = env('QE', 0)
    k.stamp(0)
    k.e(f"""
    s_cmp_ge_u32 s2, 256
    s_cbranch_scc1 {k.L('end')}
    s_load_dwordx2 s[{SX}:{SX+1}], s[0:1], 0
    s_load_dwordx2 s[{SW}:{SW+1}], s[0:1], 8
    s_load_dwordx2 s[{SDB}:{SDB+1}], s[0:1], 64
    s_load_dwordx2 s[{SWS}:{SWS+1}], s[0:1], 72
    s_load_dwordx2 s[{SP}:{SP+1}], s[0:1], 16
    """)
    def cpf():
        if CPF:
            k.e(f"""
            s_getpc_b64 s[36:37]
            Lka_pc:
            s_lshr_b32 s{sT2}, s2, 3
            v_min_u32 v5, {CPL-1}, v0
            v_lshlrev_b32 v5, 7, v5
            s_mul_i32 s{sT}, s{sT2}, {CPL*128}
            v_add_u32 v5, s{sT}, v5
            v_min_u32 v5, Lcode_end-Lka_pc-4, v5
            v_cmp_gt_u32 vcc, {CPL}, v0
            s_and_saveexec_b64 s[38:39], vcc
            s_cbranch_execz {k.L('nocpf')}
            global_load_dword v{DUM}, v5, s[36:37]
            """)
            k.label(k.L('nocpf'))
            k.e("s_mov_b64 exec, -1")
    PFP = env('PFP', 0)
    if PFP == 0: cpf()
    k.e(f"""
    v_lshrrev_b32 v5, 6, v0
    v_lshrrev_b32 v6, 3, v0
    v_readfirstlane_b32 s{sW}, v5
    v_and_b32 v7, 0x38, v6
    v_add_u32 v7, v6, v7
    v_and_b32 v8, 7, v0
    v_bfe_u32 v9, v0, 4, 2
    v_xor_b32 v9, v8, v9
    v_mul_u32_u24 v1, 896, v7
    v_lshl_add_u32 v1, v9, 4, v1
    v_xor_b32 v2, 64, v1
    v_add_u32 v2, 6144, v2
    s_bfe_u32 s{sRB}, s2, 0x20001
    s_lshl_b32 s{sRB}, s{sRB}, 2
    s_lshr_b32 s{sT}, s2, 6
    s_add_u32 s{sRB}, s{sRB}, s{sT}
    s_bfe_u32 s{sT2}, s2, 0x30003
    s_and_b32 s{sH}, s2, 1
    s_lshl_b32 s{sH}, s{sH}, 3
    s_add_u32 s{sH}, s{sH}, s{sT2}
    s_lshl_b32 s{sT}, s{sT}, 1
    s_add_u32 s{sT}, s{sT}, s{sT2}
    """)
    div7(k, sT2, sROT, sT)
    k.e(f"""
    s_mul_i32 s{sx}, s{sRB}, {128*896}
    s_lshl_b32 s{sT}, s{sROT}, 7
    s_add_u32 s{sx}, s{sx}, s{sT}
    s_mov_b32 s{sCX}, s{sROT}
    s_lshl_b32 m0, s{sW}, 11
    """)
    srd_consts(k, SX, S*D*2)
    def setup2():
        srd_consts(k, SW, D*3*D*2)
        srd_consts(k, SP, D*D*2)
        k.e(f"""
        v_and_b32 v5, 63, v0
        v_min_u32 v11, 36, v5
        s_mul_i32 s{sT}, s2, 37
        v_add_lshl_u32 v11, v11, s{sT}, 7
        """)
    FAST = env('FAST', 1)
    if not FAST: setup2()
    k.e("s_waitcnt lgkmcnt(0)")
    k.stamp(1)
    def wtouch():
        if WPF:
            k.e(f"""
            s_cmp_lg_u32 s{sW}, 3
            s_cbranch_scc1 {k.L('nt1')}
            buffer_load_dword v{DUM}, v11, s[{SW}:{SW+3}], 0 offen
            """)
            k.label(k.L('nt1'))
    if PFP == 0: wtouch()
    def issue_x(c):
        if c > 0:
            k.e(f"""
            s_lshl_b32 s{sT}, s{sW}, 11
            s_add_u32 m0, s{sT}, {XS + (c % NXS)*16384}
            s_add_u32 s{sCX}, s{sCX}, 1
            s_cmp_eq_u32 s{sCX}, 7
            s_cselect_b32 s{sT}, -6, 1
            s_lshl_b32 s{sT}, s{sT}, 7
            s_add_u32 s{sx}, s{sx}, s{sT}
            """)
        k.vop(f"buffer_load_dwordx4 v1, s[{SX}:{SX+3}], s{sx} offen lds", f"s{c}")
        k.vop(f"buffer_load_dwordx4 v2, s[{SX}:{SX+3}], s{sx} offen offset:1024 lds", f"s{c}")
    def issue_v(c):
        k.e(f"""
        s_lshl_b32 s{sT}, s{sW}, 10
        s_add_u32 m0, s{sT}, {VS + (c % NVS)*8192}
        """)
        if c > 0:
            k.e(f"""
            s_add_u32 s{sCV}, s{sCV}, 1
            s_cmp_eq_u32 s{sCV}, 7
            s_cselect_b32 s{sT}, -6, 1
            s_mul_i32 s{sT}, s{sT}, {64*2688}
            s_add_u32 s{skv}, s{skv}, s{sT}
            """)
        else:
            k.e("s_nop 0")
        k.vop(f"buffer_load_dwordx4 v3, s[{SW}:{SW+3}], s{skv} offen lds", f"s{c+AH}")
    def issue_stage(s):
        if s <= 6: issue_x(s)
        if AH <= s <= 6+AH: issue_v(s-AH)
    def issue_after(s):
        if s+3 <= 6: issue_x(s+3)
        if AH <= s+3 <= 6+AH: issue_v(s+3-AH)
    if FAST:
        issue_stage(0)
        setup2()
    srd_consts(k, SWS, WS_USED)
    if MERGE:
        k.e(f"""
        s_lshr_b32 s{sJ}, s2, 6
        s_lshl_b32 s{sJ}, s{sJ}, 3
        s_bfe_u32 s{sT}, s2, 0x30001
        s_add_u32 s{sJ}, s{sJ}, s{sT}
        s_and_b32 s{sT}, s2, 0x31
        s_cmp_lg_u32 s{sT}, 0
        s_cselect_b32 s{sJ}, 63, s{sJ}
        s_cmp_ge_u32 s{sJ}, 24
        s_cbranch_scc1 {k.L('nozero')}
        s_cmp_ge_u32 s{sJ}, 8
        s_cselect_b32 s{sT}, {FL_OFF-8*8192}, 0
        s_cmp_ge_u32 s{sJ}, 22
        s_cselect_b32 s{sT}, {CS_OFF-22*8192}, s{sT}
        s_cselect_b32 s{sT2}, -1, 0
        v_mov_b32 v12, s{sT2}
        v_mov_b32 v13, s{sT2}
        v_mov_b32 v14, s{sT2}
        v_mov_b32 v15, s{sT2}
        s_lshl_b32 s{sT2}, s{sJ}, 13
        s_add_u32 s{sT}, s{sT}, s{sT2}
        v_lshlrev_b32 v10, 4, v0
        buffer_store_dwordx4 v[12:15], v10, s[{SWS}:{SWS+3}], s{sT} offen sc1
        """)
    else:
        k.e(f"""
        s_and_b32 s{sT}, s2, 0xfffffff1
        s_cmp_lg_u32 s{sT}, 0
        s_cbranch_scc1 {k.L('nozero')}
        v_mov_b32 v12, 0
        v_mov_b32 v13, 0
        v_mov_b32 v14, 0
        v_mov_b32 v15, 0
        v_lshlrev_b32 v10, 4, v0
        s_lshl_b32 s{sT}, s2, 12
        buffer_store_dwordx4 v[12:15], v10, s[{SWS}:{SWS+3}], s{sT} offen sc1
        """)
    k.label(k.L('nozero'))
    if not FAST: issue_stage(0)
    k.e("s_barrier")
    issue_stage(1)
    if PFP == 1: wtouch(); cpf()
    k.e(f"""
    v_bfe_u32 v9, v0, 4, 1
    v_lshlrev_b32 v9, 2, v9
    v_xor_b32 v9, v8, v9
    v_mul_u32_u24 v3, 2688, v6
    v_and_b32 v8, 3, v9
    v_lshl_add_u32 v3, v8, 4, v3
    v_lshrrev_b32 v9, 2, v9
    v_mul_u32_u24 v9, 896, v9
    v_add_u32 v3, v3, v9
    s_mul_i32 s{sq}, s{sH}, 56
    s_and_b32 s{sq}, s{sq}, -16
    s_mul_i32 s{sT}, s{sROT}, {64*2688}
    s_add_u32 s{skv}, s{sq}, s{sT}
    s_add_u32 s{skv}, s{skv}, 896
    s_mov_b32 s{sCV}, s{sROT}
    s_xor_b32 s{sq}, s{sH}, {QX}
    s_mul_i32 s{sq}, s{sq}, 56
    s_and_b32 s{sq}, s{sq}, -16
    """)
    k.e("s_barrier")
    issue_stage(2)
    if MERGE:
        k.e("""
        s_load_dwordx2 s[56:57], s[0:1], 32
        s_load_dwordx2 s[60:61], s[0:1], 40
        s_load_dwordx2 s[64:65], s[0:1], 48
        s_load_dwordx2 s[68:69], s[0:1], 56
        """)
    if PFP == 2: wtouch(); cpf()
    if env('TLB', 0):
        k.e(f"""
        s_cmp_lg_u32 s{sW}, 6
        s_cbranch_scc1 {k.L('ntl')}
        s_load_dwordx8 s[60:67], s[0:1], 32
        v_and_b32 v10, 63, v0
        v_lshlrev_b32 v10, {env('TLBS', 18)}, v10
        buffer_load_dword v{DUM}, v10, s[{SWS}:{SWS+3}], 0 offen
        s_mov_b32 s70, {D*F*2}
        s_mov_b32 s71, 0x20000
        s_waitcnt lgkmcnt(0)
        """)
        for i in range(4):
            k.e(f"""
            s_mov_b32 s68, s{60+2*i}
            s_mov_b32 s69, s{61+2*i}
            buffer_load_dword v{DUM}, v10, s[68:71], 0 offen
            """)
        k.label(k.L('ntl'))
    srd_consts(k, SDB, 256)
    k.e(f"""
    s_mov_b32 s{sEPS}, 0x{EPS_PHI_L:x}
    s_mov_b32 s{sONE}, 0x{ONES_BF:x}
    s_mov_b32 s{sLN2}, 0x{LN2:x}
    v_mov_b32 v12, 0
    v_mov_b32 v13, 0
    v_mov_b32 v14, 0
    v_mov_b32 v15, 0
    v_mov_b32 v10, {CNT}
    ds_write_b128 v10, v[12:15]
    ds_write_b128 v10, v[12:15] offset:16
    s_cmp_lt_u32 s{sW}, {8 if MERGE else 4}
    s_cbranch_scc1 {k.L('nozf')}
    v_and_b32 v10, 255, v0
    v_lshlrev_b32 v10, 4, v10
    s_lshr_b32 s{sT}, s{sRB}, 2
    s_or_b32 s{sT}, s{sT}, s{sH}
    s_cmp_lg_u32 s{sT}, 0
    s_cbranch_scc1 {k.L('nocs')}
    s_lshl_b32 s{sT}, s{sRB}, 12
    s_add_u32 s{sT}, s{sT}, {CS_OFF}
    v_mov_b32 v16, -1
    v_mov_b32 v17, -1
    v_mov_b32 v18, -1
    v_mov_b32 v19, -1
    buffer_store_dwordx4 v[16:19], v10, s[{SWS}:{SWS+3}], s{sT} offen sc1
    """)
    k.label(k.L('nocs'))
    k.e(f"""
    s_cmp_lg_u32 s{sH}, 14
    s_cbranch_scc1 {k.L('nozf')}
    s_lshl_b32 s{sT}, s{sRB}, 12
    s_add_u32 s{sT}, s{sT}, {FL_OFF}
    buffer_store_dwordx4 v[12:15], v10, s[{SWS}:{SWS+3}], s{sT} offen sc1
    """)
    k.label(k.L('nozf'))
    AX = 172
    k.e(f"""
    v_and_b32 v8, 31, v0
    v_bfe_u32 v9, v0, 5, 1
    v_bfe_u32 v14, v0, 6, 2
    v_lshl_add_u32 v15, v14, 5, v8
    v_lshlrev_b32 v10, 7, v15
    v_bfe_u32 v11, v8, 1, 3
    v_xor_b32 v11, v11, v9
    v_lshlrev_b32 v12, 1, v14
    v_xor_b32 v11, v11, v12
    v_mov_b32 v7, 1
    """)
    for p in range(4):
        k.e(f"v_xor_b32 v12, {2*p}, v11")
        k.e(f"v_lshl_add_u32 v{AX+p}, v12, 4, v10")
    k.e(f"v_add_u32 v{AX+4}, 0x10000, v{AX}\nv_add_u32 v{AX+5}, 0x10000, v{AX+1}\nv_add_u32 v{AX+6}, 0x10000, v{AX+2}\nv_add_u32 v{AX+7}, 0x10000, v{AX+3}")
    def xread(dst, c, p):
        o = XS + (c % NXS)*16384
        k.e(f"ds_read_b128 {vr(dst,4)}, v{AX+p+4*(o >> 16)} offset:{o & 0xffff}")
    def arrive(i):
        k.e(f"s_mov_b64 exec, 1\nds_add_u32 v6, v7 offset:{4*i}\ns_mov_b64 exec, -1")
    def lwait(name, i, target, vt):
        k.label(k.L(name))
        k.e(f"""
        ds_read_b32 v{vt}, v6 offset:{4*i}
        s_waitcnt lgkmcnt(0)
        v_cmp_gt_u32 vcc, {target}, v{vt}
        s_cbranch_vccnz {k.L(name)}
        """)
    k.e(f"""
    v_mov_b32 v6, {CNT}
    s_waitcnt lgkmcnt(0)
    s_cmp_ge_u32 s{sW}, 4
    s_cbranch_scc1 {k.L('q')}
    """)
    vm_split = list(k.vm)
    def wpf(qside):
        if not WPF or not qside: return
        k.e(f"""
        s_cmp_ge_u32 s{sW}, 6
        s_cbranch_scc1 {k.L('nopf')}
        s_lshr_b32 s{sT}, s2, 3
        s_lshl_b32 s{sT}, s{sT}, 1
        s_add_u32 s{sT}, s{sT}, s{sW}
        s_sub_u32 s{sT}, s{sT}, 4
        s_mul_i32 s{sT}, s{sT}, 49
        v_and_b32 v5, 63, v0
        v_min_u32 v5, 48, v5
        v_add_lshl_u32 v5, v5, s{sT}, 7
        buffer_load_dword v{DUM}, v5, s[{SP}:{SP+3}], 0 offen
        """)
        k.label(k.L('nopf'))
    ACK, ACV = 16, 32
    BUF = [48, 60, 72]
    AWK, AWV = 152, 156
    CSK, CSV = 160, 162
    RL, XE, WEK, WEV = 84, 100, 104, 108
    PKF, VF, KVA, T = 112, 120, 128, 144
    k.e(f"""
    s_setprio 2
    v_bfe_u32 v11, v0, 2, 2
    v_lshl_add_u32 v10, v9, 3, v11
    v_lshlrev_b32 v10, 7, v10
    v_bfe_u32 v12, v0, 4, 1
    v_and_b32 v13, 3, v0
    v_lshl_add_u32 v12, v12, 2, v13
    s_and_b32 s{sT}, s{sH}, 1
    v_add_u32 v12, s{sT}, v12
    v_and_b32 v12, 7, v12
    v_lshl_add_u32 v10, v12, 3, v10
    v_lshrrev_b32 v11, 1, v11
    v_lshl_add_u32 v10, v11, 6, v10
    v_lshl_add_u32 v10, v14, 11, v10
    v_add_u32 v{AWK}, {VS}, v10
    v_mov_b32 v{CSK}, 0
    v_mov_b32 v{CSK+1}, 0
    v_mov_b32 v{XE+2}, 0
    v_mov_b32 v{XE+3}, 0
    """)
    assert VS % 8192 == 0
    for p in range(1, 4):
        k.e(f"v_xor_b32 v{AWK+p}, {p << 11}, v{AWK}")
    for p in range(4):
        k.e(f"v_xor_b32 v{AWV+p}, 64, v{AWK+p}")
    k.e(f"""
    v_lshlrev_b32 v12, 3, v0
    v_add_u32 v12, {CSX}, v12
    v_and_b32 v13, 63, v0
    v_lshlrev_b32 v13, 3, v13
    v_add_u32 v13, {CSX}, v13
    v_lshlrev_b32 v10, 3, v15
    v_add_u32 v10, {MISC}, v10
    v_lshlrev_b32 v11, 7, v14
    v_lshl_add_u32 v11, v9, 4, v11
    v_add_u32 v11, {MISC+1024}, v11
    """)
    def kv_reads(c, p, b):
        o = (c % NVS)*8192
        xread(BUF[b], c, p)
        for ri in range(2):
            k.e(f"ds_read_b64_tr_b16 {vr(BUF[b]+4+2*ri,2)}, v{AWK+p} offset:{o+ri*512}")
        for ri in range(2):
            k.e(f"ds_read_b64_tr_b16 {vr(BUF[b]+8+2*ri,2)}, v{AWV+p} offset:{o+ri*512}")
    NS = 7+AH
    def gate(s):
        k.wait_vm(f"s{s}")
        k.e("s_barrier")
        if s == 0: k.stamp(2)
        if s == NS-1: k.stamp(3)
    def post_gate(s):
        issue_after(s)
        if s == NS-2:
            k.e(f"""
            v_mov_b32 v5, 0
            s_lshr_b32 s{sT2}, s{sH}, 1
            s_lshl_b32 s{sT2}, s{sT2}, 2
            """)
            if MERGE:
                k.e(f"v_min_u32 v5, 23, v8\nv_lshlrev_b32 v5, 2, v5\ns_mov_b32 s{sT2}, 0")
            k.vop(f"buffer_load_dword v{T+4}, v5, s[{SDB}:{SDB+3}], s{sT2} offen sc1", "poll")
    def rd(u):
        c, p = u >> 2, u & 3
        if p == 0: gate(c+AH)
        kv_reads(c, p, u % 3)
        if p == 0: post_gate(c+AH)
    for s_ in range(AH):
        gate(s_); post_gate(s_)
    for u in range(3): rd(u)
    for u in range(28):
        c, p = u >> 2, u & 3
        b = u % 3
        k.e(f"s_waitcnt lgkmcnt({5*min(2, 27-u)})")
        first = (u == 0)
        k.e(f"v_mfma_f32_32x32x16_bf16 {vr(ACK,16)}, {vr(BUF[b],4)}, {vr(BUF[b]+4,4)}, {'0' if first else vr(ACK,16)}")
        k.e(f"v_mfma_f32_32x32x16_bf16 {vr(ACV,16)}, {vr(BUF[b],4)}, {vr(BUF[b]+8,4)}, {'0' if first else vr(ACV,16)}")
        if p == 0:
            for j in range(4):
                k.e(f"v_dot2c_f32_bf16 v{CSK}, s{sONE}, v{BUF[b]+4+j}")
                k.e(f"v_dot2c_f32_bf16 v{CSK+1}, s{sONE}, v{BUF[b]+8+j}")
        if u+3 < 28: rd(u+3)
        if u == 25:
            k.e(f"ds_write_b64 v12, {vr(CSK,2)}")
            arrive(0)
        if u == 26:
            k.e(f"ds_read_b64 {vr(XE,2)}, v10")
            for a in range(4):
                k.e(f"ds_read_b128 {vr(RL+4*a,4)}, v11 offset:{a*32}")
            k.e(f"""
            v_and_b32 v10, 63, v0
            v_lshlrev_b32 v4, 2, v10
            v_lshlrev_b32 v10, 4, v10
            v_lshl_add_u32 v10, v14, 12, v10
            v_lshl_add_u32 v4, v14, 10, v4
            v_add_u32 v3, {PART}, v4
            s_lshl_b32 s{sT}, s{sH}, 12
            """)
    k.e(f"s_setprio {env('KVP', 0)}")
    lwait('w0', 0, 4, T)
    k.e(f"""
    ds_read2st64_b64 {vr(PKF,4)}, v13 offset0:0 offset1:1
    ds_read2st64_b64 {vr(PKF+4,4)}, v13 offset0:2 offset1:3
    s_waitcnt lgkmcnt(0)
    v_add_f32 v{PKF}, v{PKF}, v{PKF+2}
    v_add_f32 v{PKF+1}, v{PKF+1}, v{PKF+3}
    v_add_f32 v{PKF+4}, v{PKF+4}, v{PKF+6}
    v_add_f32 v{PKF+5}, v{PKF+5}, v{PKF+7}
    v_add_f32 v{CSK}, v{PKF}, v{PKF+4}
    v_add_f32 v{CSV}, v{PKF+1}, v{PKF+5}
    """)
    k.stamp(4)
    hilo_w(k, WEK, CSK, T)
    k.e("s_nop 1")
    k.e(f"v_mfma_f32_32x32x16_bf16 {vr(ACK,16)}, {vr(XE,4)}, {vr(WEK,4)}, {vr(ACK,16)}")
    hilo_w(k, WEV, CSV, T+1)
    k.e("s_nop 1")
    k.e(f"v_mfma_f32_32x32x16_bf16 {vr(ACV,16)}, {vr(XE,4)}, {vr(WEV,4)}, {vr(ACV,16)}")
    k.nop(3)
    for h in range(2):
        for i in range(8*h, 8*h+8, 2):
            phi_ops(k, ACK+i, ACK+i, RL+i, T, sEPS, sLN2)
            phi_ops(k, ACK+i+1, ACK+i+1, RL+i+1, T+1, sEPS, sLN2)
            k.e(f"v_cvt_pk_bf16_f32 v{PKF+i//2}, v{ACK+i}, v{ACK+i+1}")
        for i in range(8*h, 8*h+8, 2):
            k.e(f"v_pk_mul_f32 {vr(ACV+i,2)}, {vr(ACV+i,2)}, {vr(RL+i,2)}")
            k.e(f"v_cvt_pk_bf16_f32 v{VF+i//2}, v{ACV+i}, v{ACV+i+1}")
        k.e("s_mov_b32 exec_lo, 0x10000000\ns_mov_b32 exec_hi, 0x10000000")
        for j in range(4):
            k.e(f"v_mov_b32 v{VF+4*h+j}, s{sONE}")
        k.e("s_mov_b64 exec, -1\ns_nop 0")
        k.e(f"v_mfma_f32_32x32x16_bf16 {vr(KVA,16)}, {vr(PKF+4*h,4)}, {vr(VF+4*h,4)}, {'0' if h == 0 else vr(KVA,16)}")
    k.wait_vm("poll")
    k.e(f"s_mov_b32 s{sCX}, 0x100000")
    k.label(k.L('poll'))
    k.e(f"""
    v_cmp_eq_u32 vcc, 0, v{T+4}
    s_cbranch_vccz {k.L('pollok')}
    s_sleep 16
    buffer_load_dword v{T+4}, v5, s[{SDB}:{SDB+3}], s{sT2} offen sc1
    s_waitcnt vmcnt(0)
    s_sub_u32 s{sCX}, s{sCX}, 1
    s_cbranch_scc0 {k.L('poll')}
    """)
    k.label(k.L('pollok'))
    k.nop(9)
    for a in range(4):
        k.e(f"ds_write_b128 v10, {vr(KVA+4*a,4)} offset:{PART+a*1024}")
    arrive(1)
    lwait('w1', 1, 4, T)
    k.stamp(5)
    for u in range(4):
        k.e(f"ds_read2st64_b32 {vr(ACK+4*u,2)}, v3 offset0:{u} offset1:{u+16}")
        k.e(f"ds_read2st64_b32 {vr(ACK+4*u+2,2)}, v3 offset0:{u+32} offset1:{u+48}")
    for u in range(4):
        k.e(f"s_waitcnt lgkmcnt({6-2*u})")
        k.e(f"v_add_f32 v{ACK+4*u}, v{ACK+4*u}, v{ACK+4*u+1}")
        k.e(f"v_add_f32 v{ACK+4*u+2}, v{ACK+4*u+2}, v{ACK+4*u+3}")
        k.e(f"v_add_f32 v{ACK+4*u}, v{ACK+4*u}, v{ACK+4*u+2}")
        if u == 2:
            k.e(f"s_cmp_eq_u32 s{sW}, 3\ns_cbranch_scc1 {k.L('kvend')}")
        k.e(f"buffer_atomic_add_f32 v{ACK+4*u}, v4, s[{SWS}:{SWS+3}], s{sT} offen offset:{u*256}")
    k.label(k.L('kvend'))
    k.stamp(6)
    if MERGE:
        k.e(f"""
        s_mov_b64 exec, 1
        s_waitcnt vmcnt(0)
        ds_add_rtn_u32 v10, v6, v7 offset:16
        s_waitcnt lgkmcnt(0)
        v_cmp_ne_u32 vcc, 3, v10
        s_cbranch_vccnz {k.L('kvx')}
        """)
        if env('KV1', 1):
            k.e(f"""
            s_mov_b64 exec, 0xff
            v_and_b32 v5, 63, v0
            v_lshlrev_b32 v5, 11, v5
            s_lshl_b32 s{sT}, s{sH}, 7
            s_add_u32 s{sT}, s{sT}, {FL_OFF+98304}
            buffer_atomic_add v7, v5, s[{SWS}:{SWS+3}], s{sT} offen sc1
            """)
        else:
            k.e(f"""
        v_mov_b32 v10, 1
        v_mov_b32 v5, 0
        s_lshl_b32 s{sT}, s{sH}, 7
        s_add_u32 s{sT}, s{sT}, {FL_OFF+98304}
        buffer_atomic_add v10, v5, s[{SWS}:{SWS+3}], s{sT} offen sc0 sc1
        s_waitcnt vmcnt(0)
        v_cmp_ne_u32 vcc, 15, v10
        s_cbranch_vccnz {k.L('kvx')}
        s_mov_b64 exec, -1
        v_and_b32 v5, 63, v0
        v_lshlrev_b32 v5, 7, v5
        s_mov_b32 s{sT}, {FL_OFF+65536+64}
        buffer_atomic_add v7, v5, s[{SWS}:{SWS+3}], s{sT} offen sc1
        s_add_u32 s{sT}, s{sT}, 8192
        buffer_atomic_add v7, v5, s[{SWS}:{SWS+3}], s{sT} offen sc1
        s_add_u32 s{sT}, s{sT}, 8192
        buffer_atomic_add v7, v5, s[{SWS}:{SWS+3}], s{sT} offen sc1
        s_add_u32 s{sT}, s{sT}, 8192
        s_mov_b32 exec_hi, 0
        buffer_atomic_add v7, v5, s[{SWS}:{SWS+3}], s{sT} offen sc1
        """)
        k.label(k.L('kvx'))
        k.e("s_mov_b64 exec, -1")
        k.stamp(7)
        mflush(k)
        k.e("s_setprio 0\ns_branch Lkf_entry")
    else:
        k.end(SWS, 0, 7)
    k.label(k.L('q'))
    k.vm = list(vm_split)
    XQ, ACQ, WB = 16, 128, 144
    SUM, SQ, CSQ, AWQ, T = 160, 162, 164, 168, 188
    XE2, WE2, RS = 180, 184, 166
    k.e(f"""
    v_bfe_u32 v11, v0, 2, 2
    v_lshl_add_u32 v10, v9, 3, v11
    v_lshlrev_b32 v10, 6, v10
    v_and_b32 v11, 1, v0
    v_bfe_u32 v12, v0, 4, 1
    v_lshl_add_u32 v11, v11, 1, v12
    v_bfe_u32 v12, v0, 1, 1
    v_lshl_add_u32 v11, v11, 1, v12
    s_and_b32 s{sT}, s{sH}, 1
    s_xor_b32 s{sT}, s{sT}, {QX}
    v_add_u32 v11, s{sT}, v11
    v_and_b32 v11, 7, v11
    v_lshl_add_u32 v10, v11, 3, v10
    v_lshl_add_u32 v10, v14, 10, v10
    v_add_u32 v{AWQ}, {WQ}, v10
    v_xor_b32 v{AWQ+1}, 0x400, v{AWQ}
    v_xor_b32 v{AWQ+2}, 0x800, v{AWQ}
    v_xor_b32 v{AWQ+3}, 0xc00, v{AWQ}
    v_bfe_u32 v10, v0, 2, 6
    v_mul_u32_u24 v4, 2688, v10
    v_and_b32 v10, 3, v0
    v_lshl_add_u32 v4, v10, 4, v4
    """)
    assert WQ % 4096 == 0
    for r in (SUM, SUM+1, SQ, SQ+1, CSQ, CSQ+1):
        k.e(f"v_mov_b32 v{r}, 0")
    def wq_dma(pos):
        k.e(f"""
        s_lshl_b32 s{sT}, s{sW}, 10
        s_add_i32 m0, s{sT}, {WQ + pos*4096 - 4096}
        s_add_u32 s{sT2}, s{sROT}, {pos}
        s_cmp_ge_u32 s{sT2}, 7
        s_cselect_b32 s{sT}, 7, 0
        s_sub_u32 s{sT2}, s{sT2}, s{sT}
        s_mul_i32 s{sT2}, s{sT2}, {64*2688}
        s_add_u32 s{sT2}, s{sT2}, s{sq}
        """)
        k.vop(f"buffer_load_dwordx4 v4, s[{SW}:{SW+3}], s{sT2} offen lds", f"wq{pos}")
    NB = 4
    def wq_read(kap):
        c, p = kap >> 2, kap & 3
        b = WB + 4*(kap % NB)
        for ri in range(2):
            k.e(f"ds_read_b64_tr_b16 {vr(b+2*ri,2)}, v{AWQ+p} offset:{c*4096+ri*256}")
    def q_range(k0, k1, mid=None):
        for kap in range(k0, min(k0+NB-1, k1)):
            wq_read(kap)
        for kap in range(k0, k1):
            if kap+NB-1 < k1:
                wq_read(kap+NB-1)
            rem = min(k1-1-kap, NB-1)
            k.e(f"s_waitcnt lgkmcnt({2*rem})")
            b = WB + 4*(kap % NB)
            k.e(f"v_mfma_f32_32x32x16_bf16 {vr(ACQ,16)}, {vr(b,4)}, {vr(XQ+4*kap,4)}, {'0' if kap == 0 else vr(ACQ,16)}")
            if (kap & 3) == 0:
                for j in range(4):
                    k.e(f"v_dot2c_f32_bf16 v{CSQ+(j&1)}, s{sONE}, v{b+j}")
            if mid and kap == mid[0]: mid[1]()
    for s in range(NS):
        gate(s)
        if s <= 6:
            for p in range(4):
                xread(XQ+16*s+4*p, s, p)
        if s == 4:
            for pos in range(QE): wq_dma(pos)
        issue_after(s)
        if s == 6:
            if MERGE:
                k.e(f"v_min_u32 v5, 23, v8\nv_lshlrev_b32 v5, 2, v5")
                k.vop(f"buffer_load_dword v{DUM+1}, v5, s[{SDB}:{SDB+3}], 0 offen sc1", "qp")
            for pos in range(QE, 7): wq_dma(pos)
        if s == 1: wpf(True)
        if s == (1 if FAST else 0):
            if MERGE:
                FLC = f"""s_cmp_lg_u32 s{sW}, 7
                s_cbranch_scc1 {k.L('noflag')}
                s_cmp_ge_u32 s{sJ}, 24
                s_cbranch_scc1 {k.L('noflag')}
                s_lshl_b32 s{sT}, s{sJ}, 2"""
            else:
                FLC = f"""s_and_b32 s{sT}, s2, 0xfffffff1
                s_xor_b32 s{sT2}, s{sW}, 7
                s_or_b32 s{sT}, s{sT}, s{sT2}
                s_cmp_lg_u32 s{sT}, 0
                s_cbranch_scc1 {k.L('noflag')}
                s_lshl_b32 s{sT}, s2, 1"""
            k.e(f"""
            {FLC}
            v_mov_b32 v5, 0
            s_mov_b64 exec, 1
            buffer_store_dword v7, v5, s[{SDB}:{SDB+3}], s{sT} offen sc1
            s_mov_b64 exec, -1
            """)
            k.label(k.L('noflag'))
        if s <= 6:
            c = s
            for p in range(4):
                k.e(f"s_waitcnt lgkmcnt({3-p})")
                for j in range(4):
                    r = XQ+16*c+4*p+j
                    k.e(f"v_dot2c_f32_bf16 v{SUM+(j&1)}, s{sONE}, v{r}")
                    k.e(f"v_dot2c_f32_bf16 v{SQ+(j&1)}, v{r}, v{r}")
        if s == 7:
            k.e(f"""
            v_lshlrev_b32 v11, 2, v15
            v_lshlrev_b32 v10, 3, v15
            v_mov_b32 v{XE2+3}, 0
            v_add_f32 v{SUM}, v{SUM}, v{SUM+1}
            v_add_f32 v{SQ}, v{SQ}, v{SQ+1}
            v_mov_b32 v{SUM+1}, v{SUM}
            v_mov_b32 v{SQ+1}, v{SQ}
            v_add_u32 v10, {MISC}, v10
            v_add_u32 v11, {MISC+1024}, v11
            v_permlane32_swap_b32 v{SUM}, v{SUM+1}
            v_permlane32_swap_b32 v{SQ}, v{SQ+1}
            v_mov_b32 v{XE2+2}, 0
            v_add_f32 v{SUM}, v{SUM}, v{SUM+1}
            v_add_f32 v{SQ}, v{SQ}, v{SQ+1}
            v_mul_f32 v{SUM}, 0x{INV_D|0x80000000:x}, v{SUM}
            v_mul_f32 v{SQ}, 0x{INV_D:x}, v{SQ}
            v_fma_f32 v{SQ}, -v{SUM}, v{SUM}, v{SQ}
            v_max_f32 v{SQ}, 0, v{SQ}
            v_add_f32 v{SQ}, 0x{EPS_LN:x}, v{SQ}
            v_rsq_f32 v{RS}, v{SQ}
            """)
            hilo_x(k, XE2, SUM, T)
            k.e(f"""
            v_mul_f32 v{RS}, 0x{LOG2E:x}, v{RS}
            ds_write_b64 v10, {vr(XE2,2)}
            ds_write_b32 v11, v{RS}
            """)
        if s == 7:
            k.e("s_waitcnt lgkmcnt(0)")
            if QE: q_range(0, 4*QE)
            k.e(f"""
            v_lshlrev_b32 v12, 2, v0
            v_add_u32 v12, {CSX+1024}, v12
            v_and_b32 v10, 63, v0
            v_lshlrev_b32 v13, 2, v10
            v_add_u32 v13, {CSX+2048}, v13
            v_lshlrev_b32 v10, 4, v10
            s_lshl_b32 s{sT}, s{sRB}, 2
            s_add_u32 s{sT}, s{sT}, s{sW}
            s_sub_u32 s{sT}, s{sT}, 4
            s_lshl_b32 s{sT}, s{sT}, 4
            s_xor_b32 s{sT2}, s{sH}, {QX}
            s_add_u32 s{sT}, s{sT}, s{sT2}
            s_lshl_b32 s{sT}, s{sT}, 11
            s_add_u32 s{sT}, s{sT}, {PQ_OFF}
            """)
    k.e(f"s_setprio {env('QP', 2)}")
    def pub():
        k.e(f"""
        v_add_f32 v{CSQ}, v{CSQ}, v{CSQ+1}
        ds_write_b32 v12, v{CSQ}
        """)
        arrive(3)
    pm = (QE+7+1)//2
    for n, (p0, p1) in enumerate([(QE, pm), (pm, 7)]):
        k.wait_vm(f"wq{p1-1}")
        arrive(2)
        lwait(f'wq{n}', 2, 4*(n+1), T)
        k.stamp(4+n)
        q_range(4*p0, 4*p1, mid=(26, pub) if n == 1 else None)
    lwait('w4', 3, 4, T)
    k.e(f"""
    ds_read2st64_b32 {vr(WB,2)}, v13 offset0:0 offset1:1
    ds_read2st64_b32 {vr(WB+2,2)}, v13 offset0:2 offset1:3
    s_waitcnt lgkmcnt(0)
    v_add_f32 v{WB}, v{WB}, v{WB+1}
    v_add_f32 v{WB+2}, v{WB+2}, v{WB+3}
    v_add_f32 v{CSQ}, v{WB}, v{WB+2}
    """)
    hilo_w(k, WE2, CSQ, T)
    k.e(f"""
    s_nop 1
    v_mfma_f32_32x32x16_bf16 {vr(ACQ,16)}, {vr(WE2,4)}, {vr(XE2,4)}, {vr(ACQ,16)}
    """)
    k.nop(12)
    for i in range(0, 16, 2):
        phi_ops(k, ACQ+i, ACQ+i, RS, T, sEPS, sLN2)
        phi_ops(k, ACQ+i+1, ACQ+i+1, RS, T+1, sEPS, sLN2)
        k.e(f"v_cvt_pk_bf16_f32 v{WB+i//2}, v{ACQ+i}, v{ACQ+i+1}")
        if i == 6:
            k.e(f"buffer_store_dwordx4 {vr(WB,4)}, v10, s[{SWS}:{SWS+3}], s{sT} offen sc1")
    k.e(f"buffer_store_dwordx4 {vr(WB+4,4)}, v10, s[{SWS}:{SWS+3}], s{sT} offen offset:1024 sc1")
    k.stamp(6)
    if MERGE:
        k.e(f"s_mov_b32 s{sCX}, 0x100000")
        k.label(k.L('qpoll'))
        k.e(f"""
        v_cmp_eq_u32 vcc, 0, v{DUM+1}
        s_cbranch_vccz {k.L('qpollok')}
        s_sleep 16
        buffer_load_dword v{DUM+1}, v5, s[{SDB}:{SDB+3}], 0 offen sc1
        s_waitcnt vmcnt(0)
        s_sub_u32 s{sCX}, s{sCX}, 1
        s_cbranch_scc0 {k.L('qpoll')}
        """)
        k.label(k.L('qpollok'))
        k.e(f"""
        s_mov_b64 exec, 1
        s_waitcnt vmcnt(0)
        ds_add_rtn_u32 v10, v6, v7 offset:20
        s_waitcnt lgkmcnt(0)
        v_cmp_ne_u32 vcc, 3, v10
        s_cbranch_vccnz {k.L('qx')}
        s_mov_b64 exec, 0x3fff
        v_and_b32 v5, 63, v0
        v_lshlrev_b32 v5, 7, v5
        s_mul_i32 s{sT}, s{sRB}, {14*128}
        s_add_u32 s{sT}, s{sT}, {FL_OFF+65536}
        buffer_atomic_add v7, v5, s[{SWS}:{SWS+3}], s{sT} offen sc1
        """)
        k.label(k.L('qx'))
        k.e("s_mov_b64 exec, -1")
        k.stamp(7)
        mflush(k)
        k.e("s_setprio 0\ns_branch Lkf_entry")
    else:
        k.end(SWS, 0, 7)
    k.label(k.L('end'))
    k.e("s_endpgm")
    return k, dict(vgpr=192, sgpr=80, grid=256, block=512, lds=163840)
```

```python
import sys, os
sys.path.insert(0, "dev")
os.environ.setdefault('STF', 'sc1')
os.environ['ZFL'] = '1'
import gen3
from gen3 import *

HPACE = env('HPACE', 8)
APRE = env('APRE', 4)
DX = env('DX', 0)
WTR = env('WTR', 1)
MERGE = env('MERGE', 0)
LPRE = env('LPRE', 0)
BPK = env('BPK', 0)
EARLY = env('EARLY', 1)
BORD = env('BORD', 1)
CXB = env('CXB', 3)
CXE = env('CXE', 60)
WSZ = (STAMP_OFF + 8*65536*2) if STAMPS else WS_USED

def flush(k, sws, kid, n, tv):
    if not STAMPS: return
    k.e("s_waitcnt lgkmcnt(0)")
    k.e("s_mov_b64 exec, 1")
    for i in range(8):
        k.e(f"v_mov_b32 v{tv+i}, s{40+2*i}" if i < n else f"v_mov_b32 v{tv+i}, 0")
    k.e(f"""
    v_lshrrev_b32 v{tv+8}, 6, v0
    v_lshlrev_b32 v{tv+8}, 5, v{tv+8}
    s_lshl_b32 s38, s2, 8
    s_add_u32 s38, s38, {STAMP_OFF + kid*65536*2}
    buffer_store_dwordx4 {vr(tv,4)}, v{tv+8}, s[{sws}:{sws+3}], s38 offen
    buffer_store_dwordx4 {vr(tv+4,4)}, v{tv+8}, s[{sws}:{sws+3}], s38 offen offset:16
    s_mov_b64 exec, -1
    """)

PSLEEP = env('PSLEEP', 1)
PMODE = env('PMODE', 0)
PDEP = env('PDEP', 1)
def poll(k, name, soff, target, va, vt, sws, scnt, sW, pw, work=None, addr=None):
    k.e(f"""
    s_cmp_lg_u32 s{sW}, {pw}
    s_cbranch_scc1 {k.L(name+'dr')}
    s_mov_b32 s{scnt}, 0x200000
    """)
    if addr: k.e(addr)
    elif PMODE:
        k.e(f"v_and_b32 v{va}, 63, v0\nv_min_u32 v{va}, {target-1}, v{va}\nv_lshlrev_b32 v{va}, 2, v{va}")
    else:
        k.e(f"v_mov_b32 v{va}, 0")
    PV = 252 if PDEP > 1 else vt
    ld = lambda i: k.e(f"buffer_load_dword v{PV+i}, v{va}, s[{sws}:{sws+3}], s{soff} offen sc1")
    for i in range(PDEP-1):
        ld(i); k.e(f"s_sleep {PSLEEP}")
    k.label(k.L(name))
    for i in range(PDEP):
        ld((i+PDEP-1) % PDEP)
        k.e(f"""
        s_waitcnt vmcnt({PDEP-1})
        v_cmp_gt_u32 vcc, {1 if PMODE else target}, v{PV+i}
        s_cbranch_vccz {k.L(name+'ok')}
        s_sleep {PSLEEP}
        """)
    k.e(f"""
    s_sub_u32 s{scnt}, s{scnt}, 1
    s_cbranch_scc0 {k.L(name)}
    """)
    if work is None:
        k.label(k.L(name+'dr'))
        k.e("s_waitcnt vmcnt(0)")
        k.label(k.L(name+'ok'))
        k.e("s_barrier")
        k.vm = []
    else:
        k.label(k.L(name+'ok'))
        k.e("s_barrier")
        k.vm = []
        work()
        n = len(k.vm)
        k.e(f"s_branch {k.L(name+'j')}")
        k.label(k.L(name+'dr'))
        k.vm = []
        work()
        k.e(f"s_waitcnt vmcnt({n})")
        k.e("s_barrier")
        k.label(k.L(name+'j'))

def signal(k, name, soff, n, stride_log2, va, vt, sws, sW, spi):
    k.e(f"""
    s_cmp_lg_u32 s{sW}, 0
    s_cbranch_scc1 {k.L(name)}
    v_lshlrev_b32 v{va}, {stride_log2}, v0
    v_mov_b32 v{vt}, 1
    """)
    if PMODE:
        k.e(f"""
        v_lshl_add_u32 v{va}, s{spi}, 2, v{va}
        s_mov_b64 exec, {(1 << n) - 1}
        buffer_store_dword v{vt}, v{va}, s[{sws}:{sws+3}], s{soff} offen sc1
        """)
    else:
        k.e(f"""
        s_mov_b64 exec, {(1 << n) - 1}
        buffer_atomic_add v{vt}, v{va}, s[{sws}:{sws+3}], s{soff} offen sc1
        """)
    k.e("s_mov_b64 exec, -1")
    k.label(k.L(name))

def gen_f():
    k = K("kf")
    SX, SW, SWS, SG, SU, SD, SO = 4, 8, 12, 56, 60, 64, 68
    sW, sRB, sCB, sT, sT2, sT3, sEPS, sONE, sKV, sPQ0, sWO, sROT, sLN2 = 20, 21, 22, 23, 24, 25, 26, 27, 28, 29, 30, 31, 19
    sFB, sRT, sCG, sWOFF, sH, sQ, sDCG, sDW, sA, sKH, sCNT = 16, 17, 18, 32, 33, 34, 35, 36, 37, 39, 72
    BB = 98304
    sPOL = 73
    if MERGE:
        k.label("Lkf_entry")
        k.e("s_barrier")
    k.stamp(0)
    k.e(f"""
    s_cmp_ge_u32 s2, 224
    s_cbranch_scc1 {k.L('cs')}
    s_mov_b32 s{SW}, s32
    s_mov_b32 s{SW+1}, s33
    v_lshrrev_b32 v5, 6, v0
    v_and_b32 v1, 63, v0
    v_readfirstlane_b32 s{sW}, v5
    v_lshlrev_b32 v1, 4, v1
    v_bfe_u32 v9, v0, 5, 1
    s_lshr_b32 s{sT2}, s2, 3
    """)
    div7(k, sQ, sCB, sT2)
    k.e(f"""
    s_and_b32 s{sT}, s2, 7
    s_lshl_b32 s{sT}, s{sT}, 2
    s_add_u32 s{sRB}, s{sQ}, s{sT}
    s_lshl_b32 s{sWO}, s{sCB}, 7
    """)
    srd_consts(k, SWS, WSZ)
    k.e(f"""
    s_cmp_ge_u32 s{sW}, 4
    s_cbranch_scc1 {k.L('ld')}
    """)
    k.e(f"""
    v_bfe_u32 v6, v0, 3, 2
    v_and_b32 v7, 3, v0
    v_lshl_add_u32 v6, v6, 2, v7
    v_bfe_u32 v7, v0, 2, 1
    v_mad_u32_u24 v7, v7, 14, v6
    v_cmp_gt_u32 vcc, 14, v6
    v_bfe_u32 v6, v0, 3, 3
    v_and_b32 v8, 7, v0
    v_cndmask_b32 v7, 28, v7, vcc
    v_lshlrev_b32 v2, 4, v7
    v_lshl_add_u32 v2, v9, 11, v2
    v_bfe_u32 v7, v0, 4, 1
    v_lshlrev_b32 v7, 2, v7
    v_xor_b32 v7, v7, v8
    v_mul_u32_u24 v3, 896, v6
    v_lshl_add_u32 v3, v7, 4, v3
    s_add_u32 s{sROT}, s{sQ}, s{sCB}
    s_and_b32 s{sROT}, s{sROT}, 3
    s_lshl_b32 s{sT}, s{sW}, 2
    s_add_u32 s{sROT}, s{sROT}, s{sT}
    s_and_b32 s{sT}, s{sW}, 1
    s_lshl_b32 s{sT2}, s{sRB}, 1
    s_add_u32 s{sT3}, s{sT2}, s{sT}
    s_lshl_b32 s{sPQ0}, s{sT3}, 15
    s_add_u32 s{sPQ0}, s{sPQ0}, {PQ_OFF}
    s_lshl_b32 s{sT}, s{sW}, 14
    s_add_u32 m0, s{sT}, {BB}
    """)
    srd_consts(k, SX, S*D*2)
    srd_consts(k, SW, D*D*2)
    k.e(f"""
    s_mov_b32 s{sEPS}, 0x{EPS_PHI:x}
    s_mov_b32 s{sONE}, 0x{ONES_BF:x}
    s_mov_b32 s{sLN2}, 0x{LN2:x}
    s_waitcnt lgkmcnt(0)
    """)
    k.stamp(1)
    KVF, PQR, ACC, OA, XR = 16, 80, 144, 208, 248
    def ld_head(p):
        k.e(f"""
        s_xor_b32 s{sT}, s{sROT}, {p}
        s_lshl_b32 s{sKV}, s{sT}, 12
        s_lshl_b32 s{sT}, s{sT}, 11
        s_add_u32 s{sT}, s{sT}, s{sPQ0}
        s_xor_b32 s{sT2}, s{sT}, 0x8000
        """)
        for q in range(4):
            k.vop(f"buffer_load_dwordx4 {vr(KVF+16*p+4*q,4)}, v2, s[{SWS}:{SWS+3}], s{sKV} offen offset:{q*512} {'sc1' if MERGE else ''}", f"kv{p}")
        for rt in range(2):
            for f in range(2):
                k.vop(f"buffer_load_dwordx4 {vr(PQR+16*p+8*rt+4*f,4)}, v1, s[{SWS}:{SWS+3}], s{sT if rt == 0 else sT2} offen offset:{f*1024} {'sc1' if MERGE else ''}", f"pq{p}")
    def ld_wo(p):
        k.e(f"""
        s_xor_b32 s{sT}, s{sROT}, {p}
        s_mul_i32 s{sT}, s{sT}, {28*896}
        s_add_u32 s{sT}, s{sT}, s{sWO}
        """)
        for u in range(4):
            k.vop(f"buffer_load_dwordx4 v3, s[{SW}:{SW+3}], s{sT} offen offset:{u*1024} lds", f"wo{p}")
            if u < 3: k.e(f"s_add_u32 s{sT}, s{sT}, {7168-1024}")
        k.e("s_add_u32 m0, m0, 4096")
    if not MERGE:
        ld_head(0); ld_head(1)
    def ld_x():
        k.e(f"""
        v_and_b32 v6, 31, v0
        v_mul_u32_u24 v4, 896, v6
        v_lshl_add_u32 v4, v9, 5, v4
        s_mul_i32 s{sT}, s{sT3}, {32*896}
        s_add_u32 s{sT}, s{sT}, s{sWO}
        s_lshr_b32 s{sT2}, s{sW}, 1
        s_lshl_b32 s{sT2}, s{sT2}, 6
        s_add_u32 s{sT}, s{sT}, s{sT2}
        """)
        k.vop(f"buffer_load_dwordx4 {vr(XR,4)}, v4, s[{SX}:{SX+3}], s{sT} offen", "x")
        k.vop(f"buffer_load_dwordx4 {vr(XR+4,4)}, v4, s[{SX}:{SX+3}], s{sT} offen offset:16", "x")
    AW0, AW1 = 14, 15
    k.e(f"""
    v_bfe_u32 v7, v0, 2, 2
    v_mad_u32_u24 v5, v9, 14, v7
    v_lshlrev_b32 v5, 7, v5
    v_lshrrev_b32 v7, 1, v7
    v_xor_b32 v7, v7, v9
    v_bfe_u32 v8, v0, 7, 1
    v_xor_b32 v7, v7, v8
    v_lshl_add_u32 v5, v7, 6, v5
    v_and_b32 v7, 1, v0
    v_lshl_add_u32 v5, v7, 5, v5
    v_bfe_u32 v7, v0, 4, 1
    v_lshl_add_u32 v5, v7, 4, v5
    v_bfe_u32 v7, v0, 1, 1
    v_lshl_add_u32 v5, v7, 3, v5
    v_lshrrev_b32 v7, 6, v0
    v_lshl_add_u32 v5, v7, 14, v5
    v_add_u32 v{AW0}, {BB}, v5
    v_xor_b32 v{AW1}, 64, v{AW0}
    """)
    def o_stage(p):
        k.wait_vm(f"kv{p}")
        if p == 0: k.stamp(2)
        if p == 3: k.stamp(3)
        b = KVF+16*p
        for i in range(8):
            k.e(f"v_cvt_pk_bf16_f32 v{b+i}, v{b+2*i}, v{b+2*i+1}")
        k.wait_vm(f"pq{p}")
        k.e("s_nop 0")
        for rt in range(2):
            for f in range(2):
                k.e(f"v_mfma_f32_32x32x16_bf16 {vr(OA+16*rt,16)}, {vr(b+4*f,4)}, {vr(PQR+16*p+8*rt+4*f,4)}, {'0' if f == 0 else vr(OA+16*rt,16)}")
    def norm_stage(p):
        for rt in range(2):
            o = OA+16*rt
            d = PQR+16*p+8*rt
            k.e(f"v_add_f32 v{o+14}, s{sEPS}, v{o+14}")
            k.e(f"v_rcp_f32 v{o+14}, v{o+14}")
            k.e(f"v_mov_b32 v{d+7}, 0")
            k.e(f"v_mul_f32 v{o+14}, s{sLN2}, v{o+14}")
            for i in range(0, 14, 2):
                k.e(f"v_pk_mul_f32 {vr(o+i,2)}, {vr(o+i,2)}, {vr(o+14,2)} op_sel_hi:[1,0]")
            for i in range(0, 14, 2):
                k.e(f"v_cvt_pk_bf16_f32 v{d+i//2}, v{o+i}, v{o+i+1}")
    def w_reads(p):
        k.wait_vm(f"wo{p}")
        for f in range(2):
            for ct in range(2):
                for ri in range(2):
                    k.e(f"ds_read_b64_tr_b16 {vr(KVF+16*p+8*f+4*ct+2*ri,2)}, v{AW0 if ct == 0 else AW1} offset:{(32*p+8*f+4*ri)*128}")
    def main_stage(p):
        for f in range(2):
            for ct in range(2):
                k.e(f"s_waitcnt lgkmcnt({6-4*f-2*ct})")
                for rt in range(2):
                    a = ACC+16*(2*ct+rt)
                    first = (p == 0 and f == 0)
                    k.e(f"v_mfma_f32_32x32x16_bf16 {vr(a,16)}, {vr(KVF+16*p+8*f+4*ct,4)}, {vr(PQR+16*p+8*rt+4*f,4)}, {'0' if first else vr(a,16)}")
    if MERGE:
        for p in range(4): ld_wo(p)
        ld_x()
        k.e(f"""
        s_mul_i32 s{sPOL}, s{sRB}, 7
        s_add_u32 s{sPOL}, s{sPOL}, s{sCB}
        s_lshl_b32 s{sPOL}, s{sPOL}, 7
        s_add_u32 s{sPOL}, s{sPOL}, {FL_OFF+65536}
        """)
        if env('KV1', 1):
            ad = f"""
            s_and_b32 s{sT}, s2, 7
            s_lshl_b32 s{sT}, s{sT}, 11
            s_add_u32 s{sT}, s{sT}, {FL_OFF+98304}
            s_sub_u32 s{sT}, s{sT}, s{sPOL}
            v_cmp_gt_u32 vcc, 16, v0
            v_lshlrev_b32 v5, 7, v0
            v_add_u32 v5, s{sT}, v5
            v_cndmask_b32 v5, 0, v5, vcc
            """
        else:
            ad = "v_and_b32 v5, 1, v0\nv_lshlrev_b32 v5, 6, v5"
        sHF, sST = 74, 75
        k.e(f"""
        v_lshrrev_b32 v7, 6, v0
        v_add_u32 v6, {BB}, v1
        v_lshl_add_u32 v8, v7, 14, v6
        """)
        for tp in range(1, 4):
            k.e(f"v_xor_b32 v{10+tp}, {tp}, v7")
            k.e(f"v_lshl_add_u32 v{10+tp}, v{10+tp}, 14, v6")
        k.e(f"""
        s_lshl_b32 s{sT}, s{sCB}, 1
        s_lshr_b32 s{sT2}, s{sW}, 1
        s_add_u32 s{sT}, s{sT}, s{sT2}
        s_mul_i32 s{sT2}, s{sT3}, 14
        s_add_u32 s{sT}, s{sT}, s{sT2}
        s_lshl_b32 s{sST}, s{sT}, 8
        s_add_u32 s{sST}, s{sST}, {ST_OFF}
        s_lshl_b32 s{sHF}, s{sT}, 11
        s_add_u32 s{sHF}, s{sHF}, {HF_OFF}
        """)
        poll(k, 'p0', sPOL, 16, 5, 6, SWS, sCNT, sW, 0, addr=ad)
        k.stamp(1)
        ld_head(0); ld_head(1)
        for i in range(8):
            k.e(f"v_lshlrev_b32 v{ACC+2*i}, 16, v{XR+i}")
            k.e(f"v_and_b32 v{ACC+2*i+1}, 0xffff0000, v{XR+i}")
        def norm_list(p):
            L = []
            for rt in range(2):
                o = OA+16*rt
                d = PQR+16*p+8*rt
                L += [f"v_add_f32 v{o+14}, s{sEPS}, v{o+14}", f"v_rcp_f32 v{o+14}, v{o+14}", f"v_mov_b32 v{d+7}, 0", f"v_mul_f32 v{o+14}, s{sLN2}, v{o+14}"]
                for i in range(0, 14, 2):
                    if p == 0 or BPK:
                        L.append(f"v_pk_mul_f32 {vr(o+i,2)}, {vr(o+i,2)}, {vr(o+14,2)} op_sel_hi:[1,0]")
                    else:
                        L += [f"v_mul_f32 v{o+i}, v{o+i}, v{o+14}", f"v_mul_f32 v{o+i+1}, v{o+i+1}, v{o+14}"]
                    L.append(f"v_cvt_pk_bf16_f32 v{d+i//2}, v{o+i}, v{o+i+1}")
            return L
        def mm(p, f, ct, rt):
            a_ = ACC+16*(2*ct+rt)
            first = (p == 0 and f == 0 and (ct or rt))
            return f"v_mfma_f32_32x32x16_bf16 {vr(a_,16)}, {vr(KVF+16*p+8*f+4*ct,4)}, {vr(PQR+16*p+8*rt+4*f,4)}, {'0' if first else vr(a_,16)}"
        def wr(p):
            for f in range(2):
                for ct in range(2):
                    for ri in range(2):
                        k.e(f"ds_read_b64_tr_b16 {vr(KVF+16*p+8*f+4*ct+2*ri,2)}, v{AW0 if ct == 0 else AW1} offset:{(32*p+8*f+4*ri)*128}")
        deferred = []
        for p in range(4):
            o_stage(p)
            k.e("s_waitcnt lgkmcnt(0)")
            wr(p)
            if p == 0: ld_head(2)
            if p == 1:
                ld_head(3)
                k.e("s_barrier")
            V = norm_list(p)
            M = []
            if p > 0:
                for f in range(2):
                    for ct in range(2):
                        for rt in range(2):
                            if p == 3 and ct == 0 and rt == 0: deferred.append(mm(p-1, f, ct, rt))
                            else: M.append(mm(p-1, f, ct, rt))
            for i, m in enumerate(M):
                k.e(m)
                if i >= 1:
                    for _ in range(6):
                        if V: k.e(V.pop(0))
            for v in V: k.e(v)
        k.stamp(4)
        k.e("s_waitcnt lgkmcnt(0)\ns_nop 0")
        for (ct, rt) in ((1, 1), (1, 0), (0, 1)):
            for f in range(2): k.e(mm(3, f, ct, rt))
        deferred += [mm(3, 0, 0, 0), mm(3, 1, 0, 0)]
        k.e(deferred.pop(0)); k.e(deferred.pop(0))
        k.nop(6)
        for tp in (3, 2, 1):
            for a_ in range(4):
                k.e(f"ds_write_b128 v8, {vr(ACC+16*tp+4*a_,4)} offset:{(tp-1)*4096+a_*1024}")
            if deferred: k.e(deferred.pop(0))
        k.e(f"s_mov_b32 s{sT}, s{sHF}\ns_mov_b32 s{sT2}, s{sST}")
    assert MERGE
    k.e("""
    v_mov_b32 v4, 0
    v_mov_b32 v5, 0
    s_waitcnt lgkmcnt(0)
    s_barrier
    """)
    k.stamp(5)
    for tp in range(1, 4):
        for a in range(4):
            k.e(f"ds_read_b128 {vr(16*tp+4*a,4)}, v{10+tp} offset:{(tp-1)*4096+a*1024}")
    for j in range(3):
        k.e(f"s_waitcnt lgkmcnt({8-4*j})")
        for i in range(0, 16, 2):
            k.e(f"v_pk_add_f32 {vr(ACC+i,2)}, {vr(ACC+i,2)}, {vr(16+16*j+i,2)}")
    HO = 96
    for i in range(8):
        k.e(f"v_cvt_pk_bf16_f32 v{HO+i}, v{ACC+2*i}, v{ACC+2*i+1}")
    k.e(f"""
    buffer_store_dwordx4 {vr(HO,4)}, v1, s[{SWS}:{SWS+3}], s{sT} offen sc1
    buffer_store_dwordx4 {vr(HO+4,4)}, v1, s[{SWS}:{SWS+3}], s{sT} offen offset:1024 sc1
    """)
    for i in range(8):
        k.e(f"v_dot2c_f32_bf16 v4, s{sONE}, v{HO+i}")
        k.e(f"v_dot2c_f32_bf16 v5, v{HO+i}, v{HO+i}")
    k.e(f"""
    v_and_b32 v6, 31, v0
    v_lshlrev_b32 v6, 3, v6
    s_lshr_b32 s{sT}, s{sRB}, 2
    v_mov_b32 v12, v4
    v_mov_b32 v13, v5
    s_mul_i32 s{sT}, s{sT}, {28*128}
    s_add_u32 s{sT}, s{sT}, {FL_OFF}
    v_permlane32_swap_b32 v4, v12
    v_permlane32_swap_b32 v5, v13
    s_nop 0
    v_add_f32 v4, v4, v12
    v_add_f32 v5, v5, v13
    s_mov_b32 exec_hi, 0
    buffer_store_dwordx2 v[4:5], v6, s[{SWS}:{SWS+3}], s{sT2} offen sc1
    s_mov_b64 exec, -1
    """)
    k.stamp(6)
    k.e("s_waitcnt vmcnt(0)\ns_barrier")
    k.e(f"s_lshr_b32 s{sKV}, s2, 3")
    signal(k, 'sg1', sT, 28, 7, 7, 8, SWS, sW, sKV)
    k.stamp(7)
    flush(k, SWS, 1, 8, 16)
    k.e(f"s_branch {k.L('cc')}")
    def c_setup_scalar():
        k.e(f"""
        s_lshl_b32 s{sT}, s{sQ}, 1
        s_add_u32 s{sT}, s{sT}, s{sCB}
        """)
        div7(k, sT2, sCG, sT)
        k.e(f"""
        s_and_b32 s{sT2}, s2, 3
        s_mul_i32 s{sT2}, s{sT2}, 7
        s_add_u32 s{sFB}, s{sCB}, s{sT2}
        """)
        srd_consts(k, SG, D*F*2)
        srd_consts(k, SU, D*F*2+1024)
    k.label(k.L('ld'))
    k.vm = []
    c_setup_scalar()
    k.e(f"""
    v_bfe_u32 v6, v0, 3, 3
    v_bfe_u32 v7, v0, 6, 2
    v_lshl_add_u32 v6, v7, 4, v6
    v_and_b32 v8, 7, v0
    v_bfe_u32 v7, v0, 4, 1
    v_lshlrev_b32 v7, 2, v7
    v_xor_b32 v7, v7, v8
    v_mul_u32_u24 v2, 3584, v6
    v_lshl_add_u32 v2, v7, 4, v2
    v_add_u32 v3, {8*3584-2048}, v2
    s_lshl_b32 s{sWOFF}, s{sFB}, 7
    s_mul_i32 s{sT}, s{sCG}, {64*3584}
    s_add_u32 s{sWOFF}, s{sWOFF}, s{sT}
    s_mov_b32 s{sH}, s{sCG}
    s_and_b32 s{sT}, s{sW}, 3
    s_lshl_b32 m0, s{sT}, 12
    s_waitcnt lgkmcnt(0)
    s_sub_u32 s{SU}, s{SU}, 1024
    s_subb_u32 s{SU+1}, s{SU+1}, 0
    """)
    if not MERGE: k.e("s_barrier")
    for c in range(6):
        if MERGE and c == LPRE: k.e("s_barrier\ns_barrier")
        k.e(f"""
        buffer_load_dwordx4 v2, s[{SG}:{SG+3}], s{sWOFF} offen lds
        buffer_load_dwordx4 v2, s[{SU}:{SU+3}], s{sWOFF} offen offset:1024 lds
        buffer_load_dwordx4 v3, s[{SG}:{SG+3}], s{sWOFF} offen offset:2048 lds
        buffer_load_dwordx4 v3, s[{SU}:{SU+3}], s{sWOFF} offen offset:3072 lds
        """)
        if c < 5:
            k.e(f"""
            s_add_u32 m0, m0, 16384
            s_add_u32 s{sH}, s{sH}, 1
            s_cmp_eq_u32 s{sH}, 7
            s_cselect_b32 s{sT}, -6, 1
            s_mul_i32 s{sT}, s{sT}, {64*3584}
            s_add_u32 s{sWOFF}, s{sWOFF}, s{sT}
            """)
        if c == env('LBR', 2): k.e("s_barrier")
    k.e("s_barrier")
    k.e(f"s_branch {k.L('cj')}")
    k.label(k.L('cc'))
    c_setup_scalar()
    k.e(f"""
    s_sub_u32 s{SU}, s{SU}, 1024
    s_subb_u32 s{SU+1}, s{SU+1}, 0
    """)
    k.label(k.L('cj'))
    k.vm = []
    k.stamp(0)
    HFR, ACC, WF, STR, CSR = 16, 128, 192, 208, 224
    k.e(f"""
    s_and_b32 s{sT}, s2, 4
    s_add_u32 s{sT}, s{sT}, s{sQ}
    s_lshl_b32 s{sRT}, s{sT}, 3
    s_add_u32 s{sRT}, s{sRT}, s{sW}
    s_mul_i32 s{sPQ0}, s{sT}, 28
    s_add_u32 s{sPOL}, s{sPQ0}, s{sFB}
    s_lshl_b32 s{sPOL}, s{sPOL}, 7
    s_add_u32 s{sPOL}, s{sPOL}, {FL_OFF}
    s_mul_i32 s{sH}, s{sRT}, 28672
    s_lshl_b32 s{sT}, s{sCG}, 12
    s_add_u32 s{sH}, s{sH}, s{sT}
    s_add_u32 s{sH}, s{sH}, {HF_OFF}
    """)
    AW0, AW1 = 10, 11
    k.e(f"""
    s_add_u32 s{sT}, s{sCG}, 6
    s_cmp_ge_u32 s{sT}, 7
    s_cselect_b32 s{sT2}, 7, 0
    s_sub_u32 s{sT}, s{sT}, s{sT2}
    s_mul_i32 s{sT}, s{sT}, {64*3584}
    s_lshl_b32 s{sWOFF}, s{sFB}, 7
    s_add_u32 s{sWOFF}, s{sWOFF}, s{sT}
    v_lshrrev_b32 v6, 3, v0
    v_and_b32 v8, 7, v0
    v_bfe_u32 v7, v0, 4, 1
    v_lshlrev_b32 v4, 2, v7
    v_xor_b32 v4, v4, v8
    v_mul_u32_u24 v3, 3584, v6
    v_lshl_add_u32 v3, v4, 4, v3
    v_bfe_u32 v7, v0, 7, 2
    v_mul_u32_u24 v7, 448, v7
    v_bfe_u32 v6, v0, 3, 3
    v_add_u32 v6, v6, v7
    v_bfe_u32 v7, v0, 6, 1
    v_lshl_add_u32 v6, v7, 4, v6
    v_mul_u32_u24 v14, 896, v6
    v_lshl_add_u32 v14, v4, 4, v14
    v_add_u32 v15, {8*896-1024}, v14
    v_bfe_u32 v7, v0, 2, 2
    v_lshlrev_b32 v6, 12, v9
    v_lshl_add_u32 v6, v7, 7, v6
    v_lshrrev_b32 v7, 1, v7
    v_lshl_add_u32 v6, v7, 6, v6
    v_and_b32 v7, 1, v0
    v_lshl_add_u32 v6, v7, 5, v6
    v_bfe_u32 v7, v0, 4, 1
    v_lshl_add_u32 v6, v7, 4, v6
    v_bfe_u32 v7, v0, 1, 1
    v_lshl_add_u32 v{AW0}, v7, 3, v6
    v_xor_b32 v{AW1}, 64, v{AW0}
    v_add_u32 v12, 0x10000, v{AW0}
    v_add_u32 v13, 0x10000, v{AW1}
    v_and_b32 v6, 31, v0
    v_mul_u32_u24 v4, 1792, v9
    v_lshl_add_u32 v4, v6, 3, v4
    v_bfe_u32 v7, v0, 2, 1
    v_bfe_u32 v8, v0, 3, 2
    v_lshlrev_b32 v7, 4, v7
    v_lshl_add_u32 v7, v8, 2, v7
    v_and_b32 v8, 3, v0
    v_add_lshl_u32 v2, v7, v8, 2
    s_mul_i32 s{sT}, s{sQ}, 7
    s_lshr_b32 s{sT}, s{sT}, 1
    s_lshl_b32 s{sDCG}, s{sCB}, 1
    s_add_u32 s{sDCG}, s{sDCG}, s{sT}
    s_cmp_ge_u32 s{sDCG}, 14
    s_cselect_b32 s{sT}, 14, 0
    s_sub_u32 s{sDCG}, s{sDCG}, s{sT}
    s_mul_i32 s{sT}, s{sDCG}, {32*896}
    s_add_u32 s{sDW}, s{sWO}, s{sT}
    s_mov_b32 s{sROT}, s{sDCG}
    s_mul_i32 s{sT}, s{sRT}, 3584
    s_add_u32 s{sT}, s{sT}, {ST_OFF}
    s_lshl_b32 s{sT2}, s{sFB}, 8
    s_add_u32 s{sT2}, s{sT2}, {CS_OFF}
    s_add_u32 s{sKV}, s{sT2}, 7168
    """)
    srd_consts(k, SD, F*D*2)
    srd_consts(k, SO, S*D*2)
    def h_loads(c):
        L = []
        for j in range(4):
            def hj(j=j):
                if j == 0 and c > 0:
                    k.e(f"""
                    s_add_u32 s{sCG}, s{sCG}, 1
                    s_cmp_eq_u32 s{sCG}, 7
                    s_cselect_b32 s{sT3}, -6, 1
                    s_lshl_b32 s{sT3}, s{sT3}, 12
                    s_add_u32 s{sH}, s{sH}, s{sT3}
                    """)
                k.vop(f"buffer_load_dwordx4 {vr(HFR+16*c+4*j,4)}, v1, s[{SWS}:{SWS+3}], s{sH} offen offset:{j*1024} sc1", f"h{4*c+j}")
            L.append(hj)
        return L
    dslot = [7, 8, 9, 0, 1, 2, 3, 4, 5, 6, 7, 8, 9, 0]
    def wd_dma(j):
        k.e(f"""
        s_lshl_b32 s{sT3}, s{sW}, 11
        s_add_u32 m0, s{sT3}, {dslot[j]*16384}
        """)
        if j > 0:
            k.e(f"""
            s_add_u32 s{sDCG}, s{sDCG}, 1
            s_cmp_eq_u32 s{sDCG}, 14
            s_cselect_b32 s{sT3}, -13, 1
            s_mul_i32 s{sT3}, s{sT3}, {32*896}
            s_add_u32 s{sDW}, s{sDW}, s{sT3}
            """)
        else:
            k.e("s_nop 0")
        k.vop(f"buffer_load_dwordx4 v14, s[{SD}:{SD+3}], s{sDW} offen lds", f"w{j}")
        k.vop(f"buffer_load_dwordx4 v15, s[{SD}:{SD+3}], s{sDW} offen offset:1024 lds", f"w{j}")
    def w6():
        k.e(f"""
        s_lshl_b32 s{sT3}, s{sW}, 11
        s_add_u32 m0, s{sT3}, {6*16384}
        s_nop 0
        """)
        k.vop(f"buffer_load_dwordx4 v3, s[{SG}:{SG+3}], s{sWOFF} offen lds", "wc6")
        k.vop(f"buffer_load_dwordx4 v3, s[{SU}:{SU+3}], s{sWOFF} offen offset:1024 lds", "wc6")
    def early():
        w6()
        for j in range(EARLY-1): wd_dma(j)
    poll(k, 'p1', sPOL, 28, 5, 6, SWS, sCNT, sW, 4, work=early if EARLY else None)
    k.stamp(1)
    H0 = env('H0', 2)
    hl0 = h_loads(0)
    for f in hl0[:H0]: f()
    if env('YPRIO', 0):
        k.e(f"s_cmp_lt_u32 s{sW}, 4\ns_cbranch_scc1 {k.L('np')}\ns_setprio {env('YPRIO', 0)}")
        k.label(k.L('np'))
    k.e("s_barrier")
    for f in hl0[H0:]: f()
    if env('H1B', 0): k.e("s_barrier")
    for f in h_loads(1): f()
    stl = []
    for u in range(7):
        stl.append(lambda u=u: k.vop(f"buffer_load_dwordx2 {vr(STR+2*u,2)}, v4, s[{SWS}:{SWS+3}], s{sT} offen offset:{u*256} sc1", "st"))
    for q in range(4):
        stl.append(lambda q=q: k.vop(f"buffer_load_dword v{CSR+q}, v2, s[{SWS}:{SWS+3}], s{sT2 if q < 2 else sKV} offen offset:{(q&1)*128} sc1", "st"))
    KS = CKS
    units = [(kap, tau) for kap in range(KS) for tau in range(4)]
    units += [(kap, tau) for kap in range(KS, 28) for tau in (0, 2)] + [('x', 0), ('x', 2)]
    nA = len(units)
    units += [(kap, tau) for kap in range(KS, 28) for tau in (1, 3)] + [('x', 1), ('x', 3)]
    NU = len(units)
    DEP = 4
    T, XE, WE = 228, 232, 236
    C1, IR2 = STR+4, STR+2
    g6 = next(u for u in range(NU) if units[u][0] != 'x' and units[u][0] >= 24) - DEP
    assert g6 >= 4*KS and KS >= 16
    pend = []
    for c in range(2, 7):
        for i, f in enumerate(h_loads(c)):
            pend.append(((c-2)*HPACE + 2*i, f))
    e0 = 5*HPACE
    if not EARLY: pend.append((e0, w6))
    for i, f in enumerate(stl): pend.append((e0+2+i, f))
    for j in range(max(0, EARLY-1), 3): pend.append((e0+14+4*j, lambda j=j: wd_dma(j)))
    for j in range(3, 7): pend.append((g6+2+5*(j-3), lambda j=j: wd_dma(j)))
    WT = 40
    def wt_load(j, i):
        if i == 0:
            k.e(f"""
            s_add_u32 s{sLN2}, s{sROT}, {j}
            s_cmp_ge_u32 s{sLN2}, 14
            s_cselect_b32 s{sT3}, 14, 0
            s_sub_u32 s{sLN2}, s{sLN2}, s{sT3}
            s_mul_i32 s{sLN2}, s{sLN2}, {32*896}
            s_add_u32 s{sLN2}, s{sLN2}, s{sWO}
            """)
        k.vop(f"buffer_load_dwordx4 {vr(WT+8*(j-10)+4*i,4)}, v{14+i}, s[{SD}:{SD+3}], s{sLN2} offen offset:{i*1024}", "wt")
    if WTR:
        for j in range(10, 14):
            for i in range(2):
                pend.append((g6+22+2*(2*(j-10)+i), lambda j=j, i=i: wt_load(j, i)))
    pend.sort(key=lambda x: x[0])
    kk = K("tmp")
    for u in range(1, 7):
        kk.e(f"v_add_f32 v{STR}, v{STR}, v{STR+2*u}")
        kk.e(f"v_add_f32 v{STR+1}, v{STR+1}, v{STR+2*u+1}")
    kk.e(f"""
    v_cmp_eq_u32 vcc, 0, v9
    v_mov_b32 v{STR+2}, v{STR}
    v_mov_b32 v{STR+3}, v{STR+1}
    v_cndmask_b32 v{CSR}, 0, v{CSR}, vcc
    v_cndmask_b32 v{CSR+1}, 0, v{CSR+1}, vcc
    v_permlane32_swap_b32 v{STR}, v{STR+2}
    v_permlane32_swap_b32 v{STR+1}, v{STR+3}
    v_cndmask_b32 v{CSR+2}, 0, v{CSR+2}, vcc
    v_cndmask_b32 v{CSR+3}, 0, v{CSR+3}, vcc
    v_add_f32 v{STR}, v{STR}, v{STR+2}
    v_add_f32 v{STR+1}, v{STR+1}, v{STR+3}
    v_mul_f32 v{STR}, 0x{INV_D|0x80000000:x}, v{STR}
    v_mul_f32 v{STR+1}, 0x{INV_D:x}, v{STR+1}
    v_fma_f32 v{STR+1}, -v{STR}, v{STR}, v{STR+1}
    v_max_f32 v{STR+1}, 0, v{STR+1}
    v_add_f32 v{STR+2}, 0x{EPS_LN:x}, v{STR+1}
    v_rsq_f32 v{STR+4}, v{STR+2}
    """)
    hilo_x(kk, XE, STR, T)
    kk.e(f"v_mov_b32 v{XE+2}, 0\nv_mov_b32 v{XE+3}, 0")
    kk.e(f"v_mul_f32 v{STR+4}, 0x{LOG2E|0x80000000:x}, v{STR+4}")
    for tau in range(4):
        hilo_w(kk, WE+4*tau, CSR+tau, T+1)
    kk.e(f"""
    s_mul_i32 s{sT}, s{sRT}, 114688
    s_lshl_b32 s{sT2}, s{sFB}, 12
    s_add_u32 s{sT}, s{sT}, s{sT2}
    s_add_u32 s{sT}, s{sT}, {ACT_OFF}
    """)
    side1 = [l.strip() for l in kk.lines]
    def epi(ct, packed):
        kk = K("tmp")
        O = 16 + 8*ct
        g, u = ACC+16*ct, ACC+32+16*ct
        for i in range(0, 16, 2):
            t = 32 + (i % 8)
            if packed:
                kk.e(f"v_pk_mul_f32 {vr(t,2)}, {vr(g+i,2)}, {vr(C1,2)} op_sel_hi:[1,0]")
                kk.e(f"v_pk_mul_f32 {vr(g+i,2)}, {vr(g+i,2)}, {vr(u+i,2)}")
                kk.e(f"v_exp_f32 v{t}, v{t}")
                kk.e(f"v_exp_f32 v{t+1}, v{t+1}")
                kk.e("s_nop 0")
                kk.e(f"v_pk_fma_f32 {vr(t,2)}, {vr(t,2)}, {vr(IR2,2)}, {vr(IR2,2)} op_sel_hi:[1,0,0]")
                kk.e(f"v_rcp_f32 v{t}, v{t}")
                kk.e(f"v_rcp_f32 v{t+1}, v{t+1}")
                kk.e("s_nop 0")
                kk.e(f"v_pk_mul_f32 {vr(g+i,2)}, {vr(g+i,2)}, {vr(t,2)}")
            else:
                kk.e(f"v_mul_f32 v{t}, v{g+i}, v{C1}")
                kk.e(f"v_mul_f32 v{t+1}, v{g+i+1}, v{C1}")
                kk.e(f"v_exp_f32 v{t}, v{t}")
                kk.e(f"v_mul_f32 v{g+i}, v{g+i}, v{u+i}")
                kk.e(f"v_exp_f32 v{t+1}, v{t+1}")
                kk.e(f"v_mul_f32 v{g+i+1}, v{g+i+1}, v{u+i+1}")
                kk.e(f"v_fma_f32 v{t}, v{t}, v{IR2}, v{IR2}")
                kk.e(f"v_fma_f32 v{t+1}, v{t+1}, v{IR2}, v{IR2}")
                kk.e(f"v_rcp_f32 v{t}, v{t}")
                kk.e(f"v_rcp_f32 v{t+1}, v{t+1}")
                kk.e(f"v_mul_f32 v{g+i}, v{g+i}, v{t}")
                kk.e(f"v_mul_f32 v{g+i+1}, v{g+i+1}, v{t+1}")
            kk.e(f"v_cvt_pk_bf16_f32 v{O+i//2}, v{g+i}, v{g+i+1}")
            if i % 8 == 6:
                f = i // 8
                kk.e(f"buffer_store_dwordx4 {vr(O+4*f,4)}, v1, s[{SWS}:{SWS+3}], s{sT} offen offset:{ct*2048+f*1024} sc1")
        return [l.strip() for l in kk.lines]
    side2 = epi(0, False)
    s1_start = nA - 2 - (len(side1)+3)//4 - 1
    assert s1_start > e0+2+len(stl)
    s2_start = nA + 3
    hw = set()
    gate = dict(done=False)
    def rd(u):
        kap, tau = units[u]
        if kap == 'x': return
        if kap >= 24 and not gate['done']:
            gate['done'] = True
            k.wait_vm("wc6")
            k.e("s_barrier")
            k.stamp(4)
        cc, tl, f = kap >> 2, (kap >> 1) & 1, kap & 1
        m, ct = tau >> 1, tau & 1
        o = cc*16384 + tl*8192 + f*2048 + m*1024
        a = AW0 + ct
        if o >= 0x10000: o -= 0x10000; a += 2
        for ri in range(2):
            k.e(f"ds_read_b64_tr_b16 {vr(bufof[u]+2*ri,2)}, v{a} offset:{o+ri*512}")
    free = [WF+4*i for i in range(4)] + [WE+4*i for i in range(CXB)]
    bufof = {}
    nxt = dict(u=0)
    def fill(u):
        while nxt['u'] < NU and (free or units[nxt['u']][0] == 'x'):
            v = nxt['u']
            if units[v][0] != 'x':
                bufof[v] = free.pop(0)
                rd(v)
            nxt['u'] += 1
    fill(-1)
    started = set()
    for u in range(NU):
        kap, tau = units[u]
        a = ACC+16*tau
        if kap == 'x':
            assert not side1
            k.e(f"v_mfma_f32_32x32x16_bf16 {vr(a,16)}, {vr(WE+4*tau,4)}, {vr(XE,4)}, {vr(a,16)}")
        else:
            if kap not in hw:
                hw.add(kap)
                if kap < 8 or kap % 4 == 0: k.wait_vm(f"h{kap if kap < 8 else kap+3}")
                if kap == 0: k.stamp(2)
                if kap == 12: k.stamp(3)
            nout = sum(1 for v in range(u+1, nxt['u']) if units[v][0] != 'x')
            assert nout <= 7
            k.e(f"s_waitcnt lgkmcnt({2*nout})")
            k.e(f"v_mfma_f32_32x32x16_bf16 {vr(a,16)}, {vr(bufof[u],4)}, {vr(HFR+4*kap,4)}, {'0' if tau not in started else vr(a,16)}")
            started.add(tau)
            if bufof[u] < WE or u < CXE: free.append(bufof[u])
        fill(u)
        while pend and pend[0][0] <= u:
            pend.pop(0)[1]()
        if u >= s1_start and side1:
            if u == s1_start:
                k.wait_vm("st")
                k.e(f"s_mov_b32 s{sCNT}, 0x100000")
                k.label(k.L('csw'))
                k.e(f"""
                v_max_u32 v{T}, v{CSR}, v{CSR+1}
                v_max3_u32 v{T}, v{T}, v{CSR+2}, v{CSR+3}
                v_cmp_eq_u32 vcc, -1, v{T}
                s_cbranch_vccz {k.L('cswok')}
                s_sleep 4
                """)
                for q in range(4):
                    k.e(f"buffer_load_dword v{CSR+q}, v2, s[{SWS}:{SWS+3}], s{sT2 if q < 2 else sKV} offen offset:{(q&1)*128} sc1")
                k.e(f"""
                s_waitcnt vmcnt(0)
                s_sub_u32 s{sCNT}, s{sCNT}, 1
                s_cbranch_scc0 {k.L('csw')}
                """)
                k.label(k.L('cswok'))
            for _ in range(4):
                if side1: k.e(side1.pop(0))
        if u >= s2_start and side2:
            for _ in range(5 if len(side2) > 4*(NU-u) else 4):
                if side2: k.e(side2.pop(0))
    assert not pend
    k.stamp(5)
    for l in side2: k.e(l)
    k.e(f"""
    s_lshl_b32 s{sT2}, s{sPQ0}, 7
    s_add_u32 s{sT2}, s{sT2}, {FL_OFF+32768}
    """)
    k.nop(max(0, 10-len(side2)))
    EPK = env('EPK', 1)
    if EPK == 2:
        k.e(f"s_cmp_ge_u32 s{sW}, 4\ns_cbranch_scc1 {k.L('epy')}")
        for l in epi(1, False): k.e(l)
        k.e(f"s_branch {k.L('epj')}")
        k.label(k.L('epy'))
        for l in epi(1, True): k.e(l)
        k.label(k.L('epj'))
    else:
        for l in epi(1, bool(EPK)): k.e(l)
    k.stamp(6)
    k.e("s_waitcnt vmcnt(0)\ns_barrier")
    signal(k, 'sg2', sT2, 28, 7, 7, 8, SWS, sW, sFB)
    k.stamp(7)
    flush(k, SWS, 2, 8, 176)
    k.vm = []
    k.stamp(0)
    ACC, WF, HR, AW = 128, 160, 192, 196
    def AFR(j):
        if not WTR: return 16+8*j
        return 16+8*j if j < 3 else (72+8*(j-3) if j < 10 else 208+8*(j-10))
    RED = 1*16384
    P2W = env('P2W', 0)
    if not P2W:
        for j in (7, 8, 9): wd_dma(j)
    k.e(f"""
    s_lshr_b32 s{sKH}, s{sW}, 1
    s_lshl_b32 s{sH}, s{sRB}, 1
    s_and_b32 s{sT2}, s{sW}, 1
    s_add_u32 s{sH}, s{sH}, s{sT2}
    s_lshl_b32 s{sT}, s{sH}, 2
    s_add_u32 s{sT}, s{sT}, s{sKH}
    s_mul_i32 s{sA}, s{sT}, 28672
    s_lshl_b32 s{sT}, s{sROT}, 11
    s_add_u32 s{sA}, s{sA}, s{sT}
    s_add_u32 s{sA}, s{sA}, {ACT_OFF}
    s_mul_i32 s{sT2}, s{sRB}, 7
    s_add_u32 s{sT2}, s{sT2}, s{sCB}
    s_lshl_b32 s{sT2}, s{sT2}, 7
    s_add_u32 s{sT2}, s{sT2}, {FL_OFF+32768}
    v_bfe_u32 v7, v0, 2, 2
    v_lshl_add_u32 v6, v9, 4, v7
    v_lshlrev_b32 v6, 7, v6
    v_bfe_u32 v5, v0, 7, 2
    v_lshl_add_u32 v6, v5, 12, v6
    v_lshrrev_b32 v7, 1, v7
    v_bfe_u32 v5, v0, 8, 1
    v_xor_b32 v7, v7, v5
    v_lshl_add_u32 v6, v7, 6, v6
    v_and_b32 v7, 1, v0
    v_lshl_add_u32 v6, v7, 5, v6
    v_bfe_u32 v7, v0, 4, 1
    v_bfe_u32 v5, v0, 7, 1
    v_xor_b32 v7, v7, v5
    v_lshl_add_u32 v6, v7, 4, v6
    v_bfe_u32 v7, v0, 1, 1
    v_lshl_add_u32 v{AW}, v7, 3, v6
    v_xor_b32 v{AW+1}, 64, v{AW}
    v_add_u32 v{AW+2}, 0x10000, v{AW}
    v_add_u32 v{AW+3}, 0x10000, v{AW+1}
    v_add_u32 v{AW+4}, 0x20000, v{AW}
    v_add_u32 v{AW+5}, 0x20000, v{AW+1}
    s_mul_i32 s{sT}, s{sH}, 28
    s_lshl_b32 s{sT3}, s{sCB}, 2
    s_add_u32 s{sT}, s{sT}, s{sT3}
    s_add_u32 s{sT}, s{sT}, s{sKH}
    s_lshl_b32 s{sT}, s{sT}, 10
    s_add_u32 s{sT}, s{sT}, {HF_OFF}
    buffer_load_dwordx4 {vr(HR,4)}, v1, s[{SWS}:{SWS+3}], s{sT} offen sc1
    v_lshrrev_b32 v5, 6, v0
    s_movk_i32 s{sT3}, 6144
    v_add_u32 v6, {RED}, v1
    v_mad_u32_u24 v10, v5, s{sT3}, v6
    """)
    for qd in range(1, 4):
        k.e(f"v_xor_b32 v{10+qd}, {2*qd}, v5")
        k.e(f"v_mad_u32_u24 v{10+qd}, v{10+qd}, s{sT3}, v6")
    k.e(f"""
    v_and_b32 v5, 31, v0
    v_mul_u32_u24 v4, 896, v5
    v_lshl_add_u32 v4, v9, 5, v4
    s_mul_i32 s{sT}, s{sH}, {32*896}
    s_add_u32 s{sT}, s{sT}, s{sWO}
    s_lshr_b32 s{sT3}, s{sKH}, 1
    s_lshl_b32 s{sT3}, s{sT3}, 6
    s_add_u32 s{sT}, s{sT}, s{sT3}
    s_and_b32 s{sT3}, s{sKH}, 1
    s_lshl_b32 s{sT3}, s{sT3}, 4
    s_add_u32 s{sT}, s{sT}, s{sT3}
    """)
    k.e(f"""
    v_lshrrev_b32 v5, 6, v0
    v_lshl_add_u32 v202, v5, 11, v1
    v_add_u32 v203, {7*16384}, v202
    """)
    def w789():
        for j in (7, 8, 9): wd_dma(j)
    poll(k, 'p2', sT2, 28, 2, 3, SWS, sCNT, sW, 4, work=w789 if P2W else None)
    k.stamp(1)
    def lda(j):
        if j > 0:
            k.e(f"""
            s_add_u32 s{sROT}, s{sROT}, 1
            s_cmp_eq_u32 s{sROT}, 14
            s_cselect_b32 s{sT3}, -13, 1
            s_lshl_b32 s{sT3}, s{sT3}, 11
            s_add_u32 s{sA}, s{sA}, s{sT3}
            """)
        for f in range(2):
            k.vop(f"buffer_load_dwordx4 {vr(AFR(j)+4*f,4)}, v1, s[{SWS}:{SWS+3}], s{sA} offen offset:{f*1024} sc1", f"a{j}")
    NBUF = 6
    DSF = env('DSF', 3)
    dun = [(u >> 2, (u >> 1) & 1, u & 1) for u in range(4*(14-DSF))]
    dun += [(j, f, 1) for j in range(14-DSF, 14) for f in range(2)] + [(j, f, 0) for j in range(14-DSF, 14) for f in range(2)]
    def reads(u):
        j, f, ct = dun[u]
        o = dslot[j]*16384 + f*1024
        a = AW + ct + 2*(o >> 16)
        o &= 0xffff
        b = WF + 4*(u % NBUF)
        for ri in range(2):
            k.e(f"ds_read_b64_tr_b16 {vr(b+2*ri,2)}, v{a} offset:{o+ri*512}")
    for j in range(APRE):
        lda(j)
        if j < env('A0B', 1): k.e("s_barrier")
    DEP = NBUF-1
    NU = 56
    wq = []
    for u in range(DEP): reads(u)
    aw = set()
    sent = []
    for u in range(NU):
        j, f, ct = dun[u]
        if u+DEP < NU:
            if (u+DEP) % 4 == 0:
                jn = (u+DEP)//4
                if DX == 0:
                    if jn == 6:
                        k.e("s_barrier")
                        k.stamp(3)
                        if WTR: wq = [(jj, i) for jj in (10, 11, 12, 13) for i in range(2)]
                        else:
                            for jj in (10, 11, 12, 13): wd_dma(jj)
                    if jn == 10:
                        if WTR: assert not wq
                        else: k.wait_vm("w13")
                        k.e("s_barrier")
                        k.stamp(4)
                else:
                    if jn == 4:
                        k.e("s_barrier")
                        for jj in (10, 11): wd_dma(jj)
                    if jn == 6:
                        k.e("s_barrier")
                        k.stamp(3)
                        for jj in (12, 13): wd_dma(jj)
                    if jn == 10:
                        k.wait_vm("w11")
                        k.e("s_barrier")
                        k.stamp(4)
                    if jn == 12:
                        k.wait_vm("w13")
                        k.e("s_barrier")
            reads(u+DEP)
        if j not in aw:
            aw.add(j)
            k.wait_vm(f"a{j}")
            if u == 0: k.stamp(2)
        k.e(f"s_waitcnt lgkmcnt({2*min(DEP, NU-1-u)})")
        a = ACC+16*ct
        k.e(f"v_mfma_f32_32x32x16_bf16 {vr(a,16)}, {vr(WF+4*(u%NBUF),4)}, {vr(AFR(j)+4*f,4)}, {'0' if u < 2 else vr(a,16)}")
        if u % 4 == 3 and u//4 + APRE < 14:
            lda(u//4 + APRE)
        if DSF and u == NU-2*DSF+1:
            for i in range(4):
                k.e(f"v_lshlrev_b32 v{16+2*i}, 16, v{HR+i}")
                k.e(f"v_and_b32 v{17+2*i}, 0xffff0000, v{HR+i}")
        if DSF and u >= NU-2*DSF+2 and len(sent) < 4:
            for _ in range(2):
                n = len(sent); qd, a_ = 2 + n//2, n % 2
                sent.append(n)
                k.e(f"ds_write_b128 v{10+qd}, {vr(ACC+8*qd+4*a_,4)} offset:{(qd-1)*2048+a_*1024}")
        if wq:
            jj, i = wq.pop(0)
            sl = dslot[jj]
            k.e(f"ds_write_b128 v{203 if sl >= 7 else 202}, {vr(WT+8*(jj-10)+4*i,4)} offset:{(sl-7 if sl >= 7 else sl)*16384+i*1024}")
    k.stamp(5)
    if DSF:
        assert len(sent) == 4
        k.nop(12)
    else:
        for i in range(4):
            k.e(f"v_lshlrev_b32 v{16+2*i}, 16, v{HR+i}")
            k.e(f"v_and_b32 v{17+2*i}, 0xffff0000, v{HR+i}")
        k.nop(3)
    for qd in range(1, 2 if DSF else 4):
        for a in range(2):
            k.e(f"ds_write_b128 v{10+qd}, {vr(ACC+8*qd+4*a,4)} offset:{(qd-1)*2048+a*1024}")
    for i in range(0, 8, 2):
        k.e(f"v_pk_add_f32 {vr(ACC+i,2)}, {vr(ACC+i,2)}, {vr(16+i,2)}")
    k.e("s_waitcnt lgkmcnt(0)\ns_barrier")
    for n in range(6):
        k.e(f"ds_read_b128 {vr(24+4*n,4)}, v10 offset:{n*1024}")
    for qd in range(3):
        k.e(f"s_waitcnt lgkmcnt({4-2*qd})")
        for i in range(0, 8, 2):
            k.e(f"v_pk_add_f32 {vr(ACC+i,2)}, {vr(ACC+i,2)}, {vr(24+8*qd+i,2)}")
    for i in range(4):
        k.e(f"v_cvt_pk_bf16_f32 v{16+i}, v{ACC+2*i}, v{ACC+2*i+1}")
    k.e(f"buffer_store_dwordx4 v[16:19], v4, s[{SO}:{SO+3}], s{sT} offen {os.environ.get('OSF','')}")
    k.stamp(6)
    k.end(SWS, 3, 7)
    k.label(k.L('cs'))
    k.e(f"""
    s_mov_b32 s{SD+2}, {F*D*2}
    s_mov_b32 s{SD+3}, 0x20000
    s_sub_u32 s{sCB}, s2, 224
    s_mul_i32 s{sQ}, s{sCB}, {392*128}
    v_min_u32 v2, 391, v0
    v_lshlrev_b32 v2, 7, v2
    s_cmp_lt_u32 s2, 252
    s_cbranch_scc1 {k.L('cs1')}
    s_waitcnt lgkmcnt(0)
    buffer_load_dword v100, v2, s[{SD}:{SD+3}], s{sQ} offen
    s_endpgm
    """)
    k.label(k.L('cs1'))
    k.e(f"""
    v_lshrrev_b32 v5, 6, v0
    v_bfe_u32 v6, v0, 3, 3
    v_readfirstlane_b32 s{sW}, v5
    v_and_b32 v7, 7, v0
    v_mul_u32_u24 v1, 3584, v6
    v_lshl_add_u32 v1, v7, 4, v1
    s_sub_u32 s{sCB}, s2, 224
    s_and_b32 s{sT}, s{sW}, 3
    s_mul_i32 s{sT}, s{sT}, {112*3584}
    s_lshl_b32 s{sT2}, s{sCB}, 7
    s_add_u32 s{sT}, s{sT}, s{sT2}
    s_mov_b32 s{sEPS}, 0x3f80
    s_mov_b32 s{sONE}, 0x3f800000
    """)
    srd_consts(k, SW, D*F*2)
    srd_consts(k, SWS, WSZ)
    k.e(f"""
    s_waitcnt lgkmcnt(0)
    s_cmp_ge_u32 s{sW}, 4
    s_cselect_b32 s{SW}, s{SU}, s{SG}
    s_cselect_b32 s{SW+1}, s{SU+1}, s{SG+1}
    """)
    for u in range(14):
        k.e(f"buffer_load_dwordx4 {vr(16+4*u,4)}, v1, s[{SW}:{SW+3}], s{sT} offen")
        k.e(f"s_add_u32 s{sT}, s{sT}, {8*3584}")
    for i in range(8):
        k.e(f"v_mov_b32 v{8+i}, 0")
    for u in range(14):
        k.e(f"s_waitcnt vmcnt({13-u})")
        for j in range(4):
            k.e(f"v_dot2c_f32_bf16 v{8+2*j}, s{sEPS}, v{16+4*u+j}")
            k.e(f"v_dot2c_f32_bf16 v{9+2*j}, s{sONE}, v{16+4*u+j}")
    k.e(f"""
    s_cmp_eq_u32 s{sW}, 0
    s_cbranch_scc1 {k.L('cs2')}
    buffer_load_dword v100, v2, s[{SD}:{SD+3}], s{sQ} offen
    """)
    k.label(k.L('cs2'))
    k.e(f"""
    v_mov_b32 v101, v2
    v_lshlrev_b32 v2, 5, v0
    v_and_b32 v4, 63, v0
    v_lshlrev_b32 v4, 2, v4
    v_add_u32 v3, 8192, v4
    s_nop 0
    ds_write_b128 v2, v[8:11]
    ds_write_b128 v2, v[12:15] offset:16
    s_waitcnt lgkmcnt(0)
    s_barrier
    s_cmp_ge_u32 s{sW}, 1
    s_cbranch_scc1 {k.L('end')}
    """)
    for m in range(2):
        for h in range(2):
            for i in range(8):
                k.e(f"ds_read2st64_b32 {vr(16+32*m+16*h+2*i,2)}, v{4 if m == 0 else 3} offset0:{16*h+2*i} offset1:{16*h+2*i+1}")
            k.e("s_waitcnt lgkmcnt(0)")
    k.e(f"""
    s_lshl_b32 s{sT}, s{sCB}, 8
    s_add_u32 s{sT}, s{sT}, {CS_OFF}
    s_add_u32 s{sT2}, s{sT}, 7168
    """)
    for m in range(2):
        for stp in (16, 8, 4, 2, 1):
            for i in range(stp):
                k.e(f"v_add_f32 v{16+32*m+i}, v{16+32*m+i}, v{16+32*m+i+stp}")
    k.e(f"""
    buffer_store_dword v16, v4, s[{SWS}:{SWS+3}], s{sT} offen sc1
    buffer_store_dword v48, v4, s[{SWS}:{SWS+3}], s{sT2} offen sc1
    buffer_load_dword v100, v101, s[{SD}:{SD+3}], s{sQ} offen
    """)
    k.end(SWS, 1, 1)
    k.label(k.L('end'))
    k.e("s_endpgm")
    return k, dict(vgpr=256, sgpr=80, grid=256, block=512, lds=163840)

if __name__ == "__main__":
    from gen8a import gen_a8
    ka, kf = gen_a8(), gen_f()
    out = sys.argv[1] if len(sys.argv) > 1 else "sequential_preLN__linear_attn_block__swiglu_ffn__prompt.s"
    if MERGE:
        ka[0].lines += kf[0].lines
        ks = [(ka[0], kf[1])]
    else:
        ks = [ka, kf]
    open(out, "w").write(build(ks))
```
